```python
import torch

def _softmax(x, axis=-1):
    return torch.softmax(x, dim=axis)

def _gelu(x):
    return torch.nn.functional.gelu(x, approximate='tanh')

def _silu(x):
    return torch.nn.functional.silu(x)

def _sigmoid(x):
    return torch.sigmoid(x)

def _layernorm(x, axis=-1, eps=1e-05):
    m = x.mean(dim=axis, keepdim=True)
    v = x.var(dim=axis, keepdim=True, unbiased=False)
    return (x - m) / torch.sqrt(v + eps)

def _scatter_add(tgt, idx, src, axis=0):
    return tgt.clone().index_add_(axis, idx, src)

def _segment_sum(src, seg, n):
    out = torch.zeros((n,) + src.shape[1:], dtype=src.dtype)
    return out.index_add_(0, seg, src)

def _pad(x, pw):
    flat = tuple((v for pair in reversed(pw) for v in pair))
    return torch.nn.functional.pad(x, flat)
kernel_name = 'gated_mix__grouped_kv_mqa__memory_aug_recurrent_mem_tr__prompt'

def setup_inputs():

    _w = lambda a: (lambda t: t.to(torch.bfloat16) if t.is_floating_point() else t)(torch.as_tensor(a))

    def _A_setup():
        B, S, D, H = (1, 2048, 1024, 32)
        Dh = D // H
        return {'x': _w((lambda *s: torch.randn(*s, dtype=torch.bfloat16) * 0.1)(B, S, D)), 'wq': _w((lambda *s: torch.randn(*s, dtype=torch.bfloat16) * 0.8)(D, H * Dh)), 'wk': _w((lambda *s: torch.randn(*s, dtype=torch.bfloat16) * 0.2)(D, Dh)), 'wv': _w((lambda *s: torch.randn(*s, dtype=torch.bfloat16) * 0.2)(D, Dh)), 'wo': _w((lambda *s: torch.randn(*s, dtype=torch.bfloat16) * 0.2)(H * Dh, D))}
    _A_in = _A_setup()

    def _B_setup():
        B, S, Dm = (1, 2048, 1024)
        H, Dh = (32, 128)
        M, seg = (8, 32)
        seg = min(seg, S)
        S = S // seg * seg
        return {'x': _w((lambda *s: torch.randn(*s, dtype=torch.bfloat16) * 0.1)(B, S, Dm)), 'mem0': _w((lambda *s: torch.randn(*s, dtype=torch.bfloat16) * 1.6)(B, M, Dm)), 'Wq': _w((lambda *s: torch.randn(*s, dtype=torch.bfloat16) * 0.8)(Dm, H, Dh) * Dm ** (-0.5)), 'Wk': _w((lambda *s: torch.randn(*s, dtype=torch.bfloat16) * 0.8)(Dm, H, Dh) * Dm ** (-0.5)), 'Wv': _w((lambda *s: torch.randn(*s, dtype=torch.bfloat16) * 1.6)(Dm, H, Dh) * Dm ** (-0.5)), 'Wo': _w((lambda *s: torch.randn(*s, dtype=torch.bfloat16) * 1.6)(H, Dh, Dm) * (H * Dh) ** (-0.5)), 'seg_len': seg}
    _B_in = _B_setup()
    return {'A_x': _A_in['x'], 'A_wq': _A_in['wq'], 'A_wk': _A_in['wk'], 'A_wv': _A_in['wv'], 'A_wo': _A_in['wo'], 'B_x': _B_in['x'], 'B_mem0': _B_in['mem0'], 'B_Wq': _B_in['Wq'], 'B_Wk': _B_in['Wk'], 'B_Wv': _B_in['Wv'], 'B_Wo': _B_in['Wo'], 'B_seg_len': _B_in['seg_len'], 'gate_w': _w((lambda *s: torch.randn(*s, dtype=torch.bfloat16) * 1.6)(1024) * 16.0)}

def reference(A_x, A_wq, A_wk, A_wv, A_wo, B_x, B_mem0, B_Wq, B_Wk, B_Wv, B_Wo, B_seg_len, gate_w):

    def _A_ref(x, wq, wk, wv, wo):
        B, S, D = x.shape
        H = 32
        Dh = D // H
        q = (lambda x, *d: x.permute(*d))((x @ wq).reshape(B, S, H, Dh), 0, 2, 1, 3)
        k = x @ wk
        v = x @ wv
        scores = torch.einsum('bhqd,bkd->bhqk', q, k) * Dh ** (-0.5)
        p = _softmax(scores, axis=-1)
        o = torch.einsum('bhqk,bkd->bhqd', p, v)
        return (lambda x, *d: x.permute(*d))(o, 0, 2, 1, 3).reshape(B, S, H * Dh) @ wo

    def _B_ref(x, mem0, Wq, Wk, Wv, Wo, seg_len):
        B, S, Dm = x.shape
        H, Dh = (Wq.shape[1], Wq.shape[2])
        M = mem0.shape[1]
        scale = Dh ** (-0.5)
        n_seg = S // seg_len
        L = M + seg_len
        idx = torch.arange(L)
        mask = (idx[:, None] < M) | (idx[:, None] >= idx[None, :])
        mem = mem0
        outs = []
        for s in range(n_seg):
            xs = x[:, s * seg_len:(s + 1) * seg_len, :].clone()
            h = torch.concatenate([mem, xs], axis=1)
            q = torch.einsum('btd,dhe->bhte', h, Wq)
            k = torch.einsum('btd,dhe->bhte', h, Wk)
            v = torch.einsum('btd,dhe->bhte', h, Wv)
            scores = torch.einsum('bhqe,bhke->bhqk', q, k) * scale
            scores = torch.where(mask[None, None], scores, -1000000000.0)
            p = _softmax(scores, axis=-1)
            o = torch.einsum('bhqk,bhke->bhqe', p, v)
            o = torch.einsum('bhte,hed->btd', o, Wo)
            mem = o[:, :M, :].clone()
            outs.append(o[:, M:, :])
        return torch.concatenate(outs, axis=1)
    x = A_x
    g = _sigmoid((x * gate_w).sum(-1, keepdims=True))
    a = _A_ref(x, A_wq, A_wk, A_wv, A_wo)
    b = _B_ref(x, B_mem0, B_Wq, B_Wk, B_Wv, B_Wo, B_seg_len)
    return g * a + (1 - g) * b
```

```python
import re

TRANS = ('v_exp_', 'v_log_', 'v_rcp_', 'v_rsq_', 'v_sqrt_', 'v_sin_', 'v_cos_')

def parse_regs(tok):
    tok = tok.strip()
    tok = re.sub(r'^-', '', tok)
    m = re.match(r'^(?:abs\(|\|)(.*?)(?:\)|\|)$', tok)
    if m: tok = m.group(1)
    m = re.match(r'^([vas])(\d+)$', tok)
    if m: return [(m.group(1), int(m.group(2)))]
    m = re.match(r'^([vas])\[(\d+):(\d+)\]$', tok)
    if m: return [(m.group(1), i) for i in range(int(m.group(2)), int(m.group(3)) + 1)]
    if tok == 'vcc': return [('s', 106), ('s', 107)]
    if tok == 'vcc_lo': return [('s', 106)]
    if tok == 'vcc_hi': return [('s', 107)]
    if tok == 'exec': return [('s', 126), ('s', 127)]
    if tok == 'exec_lo': return [('s', 126)]
    if tok == 'exec_hi': return [('s', 127)]
    if tok == 'm0': return [('s', 124)]
    return []

def split_ops(s):
    out, depth, cur = [], 0, ''
    for ch in s:
        if ch in '[(': depth += 1
        if ch in '])': depth -= 1
        if ch == ',' and depth == 0:
            out.append(cur.strip()); cur = ''
        else: cur += ch
    if cur.strip(): out.append(cur.strip())
    return out

class Ins:
    __slots__ = ('text', 'op', 'kind', 'wr', 'rd', 'srcA', 'srcB', 'srcC', 'passes', 'ws', 'label', 'target', 'storedata', 'wide', 'lds', 'dpp', 'sconst', 'addr_s')
    def __init__(self, text):
        self.text = text
        t = text.split(';')[0].strip()
        self.label = None; self.target = None
        self.wr = []; self.rd = []; self.srcA = []; self.srcB = []; self.srcC = []
        self.passes = 0; self.ws = 1; self.storedata = []; self.wide = False; self.lds = False; self.dpp = False
        self.sconst = []; self.addr_s = []
        if t.endswith(':'):
            self.label = t[:-1]; self.kind = 'label'; self.op = ''; self.ws = 0; return
        if t.startswith('.') or t == '':
            self.kind = 'dir'; self.op = ''; self.ws = 0; return
        parts = t.split(None, 1)
        op = self.op = parts[0]
        rest = parts[1] if len(parts) > 1 else ''
        ops = split_ops(rest)
        mods = ''
        if ops:
            last = ops[-1].split(None, 1)
            ops[-1] = last[0]
            mods = last[1] if len(last) > 1 else ''
        R = [parse_regs(o) for o in ops]
        flat = lambda l: [r for x in l for r in x]
        if op == 's_nop':
            self.kind = 'nop'; self.ws = int(ops[0], 0) + 1
        elif op.startswith('s_cbranch') or op == 's_branch':
            self.kind = 'branch'; self.target = ops[0]
        elif op.startswith('v_mfma') or op.startswith('v_smfmac'):
            self.kind = 'mfma'
            self.wr = R[0]; self.srcA = R[1]; self.srcB = R[2]
            if op.startswith('v_smfmac'):
                self.srcC = R[0]; self.srcB = R[2] + R[3]
            else:
                self.srcC = R[3]
            self.rd = self.srcA + self.srcB + self.srcC
            self.passes = 8 if '32x32' in op else 4
            assert 'bf16' in op
        elif op.startswith('v_'):
            self.kind = 'valu'
            self.dpp = ('_dpp' in op) or ('row_' in mods) or ('quad_perm' in mods)
            if op.startswith('v_cmpx'):
                self.wr = R[0] + parse_regs('exec'); self.rd = flat(R[1:])
            elif op.startswith('v_cmp'):
                self.wr = R[0]; self.rd = flat(R[1:])
            elif op.startswith('v_permlane'):
                self.wr = R[0] + R[1]; self.rd = R[0] + R[1]
            elif re.match(r'v_(add|sub|subrev|addc|subb)_co', op):
                self.wr = R[0] + R[1]; self.rd = flat(R[2:])
            else:
                self.wr = R[0]; self.rd = flat(R[1:])
                if op.startswith('v_fmac') or op.startswith('v_dot2c') or self.dpp or 'UNUSED_PRESERVE' in mods or op.startswith('v_writelane'):
                    self.rd = self.rd + R[0]
                if op.startswith('v_cndmask') and len(ops) == 3: self.rd = self.rd + parse_regs('vcc')
            self.sconst = [r for r in self.rd if r[0] == 's']
        elif op.startswith('ds_'):
            self.kind = 'ds'
            if op.startswith('ds_read') or 'permute' in op or 'swizzle' in op or '_rtn' in op:
                self.wr = R[0]; self.rd = flat(R[1:])
            else:
                self.rd = flat(R)
        elif op.startswith('buffer_') or op.startswith('global_'):
            self.kind = 'vmem'
            allm = ' ' + mods + ' '
            self.lds = (' lds ' in allm) or '_lds_' in op
            if op in ('buffer_wbl2', 'buffer_inv'):
                pass
            elif self.lds:
                self.rd = flat(R) + parse_regs('m0')
            elif '_load' in op:
                self.wr = R[0]; self.rd = flat(R[1:])
                if 'd16' in op: self.rd = self.rd + R[0]
            elif op.startswith('buffer_'):
                self.rd = flat(R); self.storedata = R[0]
                if 'atomic' in op and ' sc0' in allm: self.wr = R[0]
            else:
                self.rd = flat(R); self.storedata = R[1]
            self.wide = ('x3' in op or 'x4' in op) and '_store' in op
            self.addr_s = [r for r in self.rd if r[0] == 's']
        elif op.startswith('s_'):
            self.kind = 'salu'
            if op.startswith('s_cmp') or op in ('s_waitcnt', 's_barrier', 's_endpgm', 's_setprio', 's_sleep', 's_bitcmp0_b32', 's_bitcmp1_b32'):
                self.rd = flat(R)
            elif 'saveexec' in op:
                self.wr = R[0] + parse_regs('exec'); self.rd = flat(R[1:])
            else:
                self.wr = R[0] if R else []; self.rd = flat(R[1:])
        else:
            raise ValueError('unknown instruction: ' + text)

def need(prev, cur):
    n = 0
    pw = set(prev.wr)
    if prev.kind == 'valu':
        vw = {r for r in pw if r[0] != 's'}
        sw = {r for r in pw if r[0] == 's'}
        exw = ('s', 126) in sw
        if cur.kind == 'mfma':
            if vw & set(cur.rd): n = max(n, 2)
            if exw: n = max(n, 4)
        if cur.kind == 'valu':
            if cur.dpp and (vw & set(cur.rd)): n = max(n, 2)
            if cur.dpp and exw: n = max(n, 5)
            if cur.op.startswith('v_permlane'):
                if vw & set(cur.rd): n = max(n, 2)
                if exw: n = max(n, 4)
            if cur.op.startswith('v_readlane') or cur.op.startswith('v_readfirstlane') or cur.op.startswith('v_writelane'):
                if vw & set(cur.rd): n = max(n, 1)
                if exw: n = max(n, 4)
                if sw & set(cur.sconst): n = max(n, 4)
            if sw & set(cur.sconst): n = max(n, 2)
            if prev.op.startswith(TRANS) and (vw & set(cur.rd)): n = max(n, 1)
            if 'sdwa' in prev.op and (vw & (set(cur.rd) | set(cur.wr))): n = max(n, 1)
        if cur.kind == 'vmem' and (sw & set(cur.addr_s)): n = max(n, 5)
        if cur.kind in ('vmem', 'ds', 'mfma') and prev.op.startswith(TRANS) and (vw & set(cur.rd)): n = max(n, 2)
        if cur.kind == 'branch' and cur.op in ('s_cbranch_vccz', 's_cbranch_vccnz', 's_cbranch_execz', 's_cbranch_execnz') and sw:
            n = max(n, 0)
        if cur.kind == 'salu' and (sw & set(cur.rd)): n = max(n, 1)
    if prev.kind == 'salu':
        if ('s', 124) in pw and cur.kind == 'vmem' and cur.lds: n = max(n, 1)
    if prev.kind == 'vmem' and prev.wide:
        if set(prev.storedata) & set(cur.wr): n = max(n, 2)
    if prev.kind == 'mfma':
        P = prev.passes
        if cur.kind == 'mfma':
            if pw & (set(cur.srcA) | set(cur.srcB)): n = max(n, {4: 8, 8: 12}[P])
            if pw & set(cur.srcC):
                if not (cur.srcC == prev.wr and cur.passes == P): n = max(n, {4: 6, 8: 10}[P])
            elif pw & set(cur.wr):
                n = max(n, {4: 6, 8: 10}[P])
        elif cur.kind in ('valu', 'ds', 'vmem'):
            if pw & (set(cur.rd) | set(cur.wr)): n = max(n, {4: 8, 8: 12}[P])
            if set(prev.srcC) & set(cur.wr): n = max(n, {4: 3, 8: 7}[P])
    return n

MAXW = 14

class Asm:
    def __init__(self):
        self.ins = []
        self.uid = 0
    def lab(self, base='L'):
        self.uid += 1
        return f'{base}_{self.uid}'
    def __call__(self, text):
        for line in text.split('\n'):
            line = line.strip()
            if not line or line.startswith(';'): continue
            self.ins.append(Ins(line))
    def pad(self):
        out = []
        def req(hist, cur):
            d = 0; n = 0
            for p in reversed(hist):
                if p.kind in ('label', 'dir'): continue
                if p.op in ('s_branch', 's_endpgm', 's_setpc_b64'): break
                k = need(p, cur)
                if k - d > n: n = k - d
                d += p.ws
                if d >= MAXW: break
            return n
        for cur in self.ins:
            if cur.kind not in ('label', 'dir', 'nop'):
                n = req(out[-40:], cur)
                if n > 0: out.append(Ins(f's_nop {n-1}'))
            out.append(cur)
        labels = {x.label: i for i, x in enumerate(out) if x.label}
        extra = {}
        for i, b in enumerate(out):
            if b.kind == 'branch' and b.target in labels:
                hist = [x for x in out[max(0, i - 40):i]] + [Ins('s_nop 0')]
                j = labels[b.target]; d = 0; worst = 0
                while j < len(out) and d < MAXW:
                    c = out[j]
                    if c.kind not in ('label', 'dir'):
                        if c.kind != 'nop':
                            dd = d;
                            for p in reversed(hist):
                                if p.kind in ('label', 'dir'): continue
                                if p.op in ('s_branch', 's_endpgm'): break
                                k = need(p, c)
                                if k - dd > worst: worst = k - dd
                                dd += p.ws
                                if dd >= MAXW: break
                        d += c.ws
                        if c.op in ('s_branch', 's_endpgm'): break
                    j += 1
                if worst > 0: extra[i] = worst
        res = []
        for i, x in enumerate(out):
            if i in extra: res.append(Ins(f's_nop {extra[i]-1}'))
            res.append(x)
        self.ins = res
    def text(self):
        o = []
        for x in self.ins:
            o.append(x.text if x.kind in ('label', 'dir') else '  ' + x.text)
        return '\n'.join(o) + '\n'

def vr(b, n=1, f='v'):
    return f'{f}{b}' if n == 1 else f'{f}[{b}:{b+n-1}]'
def ar(b, n=1): return vr(b, n, 'a')
def sr(b, n=1): return vr(b, n, 's')

class Regs:
    def __init__(self, start, limit, f='v'):
        self.p = start; self.limit = limit; self.f = f; self.names = {}
    def get(self, n=1, align=1, name=None):
        self.p = (self.p + align - 1) // align * align
        b = self.p; self.p += n
        assert self.p <= self.limit, f'out of {self.f} regs at {name}: {self.p} > {self.limit}'
        if name: self.names[name] = (b, n)
        return b

def kd(name, vgpr, accum, sgpr=102):
    return f'''.section .rodata,"a"
.p2align 6
.amdhsa_kernel {name}
  .amdhsa_next_free_vgpr {vgpr}
  .amdhsa_next_free_sgpr {sgpr}
  .amdhsa_accum_offset {accum}
  .amdhsa_group_segment_fixed_size 0
  .amdhsa_kernarg_size 128
  .amdhsa_user_sgpr_count 2
  .amdhsa_user_sgpr_kernarg_segment_ptr 1
  .amdhsa_system_sgpr_workgroup_id_x 1
  .amdhsa_float_denorm_mode_32 3
  .amdhsa_float_denorm_mode_16_64 3
.end_amdhsa_kernel
.text
'''
def kstart(name):
    return f'.globl {name}\n.p2align 8\n.type {name},@function\n{name}:\n'

class Stamps:
    def __init__(self, a, sreg, n, enabled=True):
        self.a = a; self.en = enabled; self.n = n
        if enabled:
            self.r = sreg.get(2 * n, 2); self.S = sreg.get(4, 4)
    def stamp(self, i, real=False):
        if self.en:
            self.a(f's_memrealtime {sr(self.r+2*i,2)}' if real else f's_memtime {sr(self.r+2*i,2)}')
    def flush(self, ws_lo, ws_hi, off, vt, wgreg='s2'):
        if not self.en: return
        a = self.a; S = self.S
        a('s_waitcnt vmcnt(0) lgkmcnt(0)')
        a(f's_add_u32 {sr(S)}, {ws_lo}, {off}')
        a(f's_addc_u32 {sr(S+1)}, {ws_hi}, 0')
        a(f's_and_b32 {sr(S+1)}, {sr(S+1)}, 0xffff')
        a(f's_mov_b32 {sr(S+2)}, 0x100000')
        a(f's_mov_b32 {sr(S+3)}, 0x20000')
        a(f'v_lshrrev_b32 v{vt}, 6, v0')
        a(f'v_lshlrev_b32 v{vt}, 6, v{vt}')
        a(f'v_mov_b32 v{vt+1}, {wgreg}')
        a(f'v_lshl_add_u32 v{vt}, v{vt+1}, 9, v{vt}')
        for i in range(self.n):
            a(f'v_mov_b32 v{vt+1}, {sr(self.r+2*i)}')
            a(f'buffer_store_dword v{vt+1}, v{vt}, {sr(S,4)}, 0 offen offset:{4*i}')
            a('s_nop 1')
```

```python
from asm import *
from layout import *
from small import srd

def attnA_job(a, sJob, sW, S0, sT, kWs, ldmod='', storemod='', st=None):
    SQ, SKV, SG, SO = S0, S0 + 4, S0 + 8, S0 + 12
    sTok, sBuf, sSrc, sCnt, sPass, sX = sT, sT + 1, sT + 2, sT + 3, sT + 4, sT + 5
    v = Regs(1, 256)
    L = v.get(); T1 = v.get(); T2 = v.get(); vK = v.get(); vV = v.get(); vD = v.get(); vQO = v.get(); vIdx = v.get(); vG = v.get(2, 2)
    ones = v.get(4, 4); Q = v.get(16, 4); O = v.get(32, 4); lac = v.get(8, 4); C = v.get(32, 4); S = v.get(64, 4)
    KF = v.get(16, 4); VF = v.get(16, 4)
    srd(a, SQ, sr(kWs), sr(kWs+1), 2048*2048, off=QA)
    srd(a, SKV, sr(kWs), sr(kWs+1), 262144, off=KVF)
    srd(a, SG, sr(kWs), sr(kWs+1), 16384, off=GT)
    srd(a, SO, sr(kWs), sr(kWs+1), 2048*2048, off=OA)
    a(f'v_and_b32 v{L}, 63, v0')
    a(f'v_lshlrev_b32 v{vD}, 4, v0')
    a(f's_lshl_b32 {sr(sTok)}, {sJob}, 3')
    a(f's_add_u32 {sr(sTok)}, {sr(sTok)}, {sW}')
    a(f's_lshl_b32 {sr(sTok)}, {sr(sTok)}, 1')
    a(f'v_and_b32 v{T1}, 31, v{L}')
    a(f'v_lshrrev_b32 v{T2}, 5, v{L}')
    a(f'v_lshlrev_b32 v{vQO}, 6, v{T1}')
    a(f'v_lshl_add_u32 v{vQO}, v{T2}, 5, v{vQO}')
    a(f's_lshl_b32 {sr(sX)}, {sr(sTok)}, 11')
    for t in range(2):
        for s in range(2):
            a(f'buffer_load_dwordx4 {vr(Q+8*t+4*s,4)}, v{vQO}, {sr(SQ,4)}, {sr(sX)} offen offset:{2048*t+16*s}{ldmod}')
    a(f's_lshl_b32 {sr(sX)}, {sr(sTok)}, 2')
    a(f'v_mov_b32 v{T1}, {sr(sX)}')
    a(f'buffer_load_dwordx2 {vr(vG,2)}, v{T1}, {sr(SG,4)}, 0 offen{ldmod}')
    a(f'v_mov_b32 v{vIdx}, 0xdddddddd')
    a(f'v_and_b32 v{T1}, 7, v{L}')
    a(f'v_mov_b32 v{T2}, 0x3f803f80')
    a(f'v_cmp_eq_u32 vcc, 0, v{T1}')
    a(f'v_cndmask_b32 v{ones}, 0, v{T2}, vcc')
    a(f'v_cndmask_b32 v{ones+1}, 0, v{T2}, vcc')
    a(f'v_cmp_eq_u32 vcc, 4, v{T1}')
    a(f'v_cndmask_b32 v{ones+2}, 0, v{T2}, vcc')
    a(f'v_cndmask_b32 v{ones+3}, 0, v{T2}, vcc')
    for i in range(32): a(f'v_mov_b32 v{C+i}, 0')
    a(f's_mov_b32 {sr(sPass)}, 0')
    Lre = a.lab('aa_re'); Ll = a.lab('aa_loop'); Ldone = a.lab('aa_done')
    a(f'{Lre}:')
    def dma():
        out = []
        for m in range(4):
            out.append((f's_add_u32 m0, {sr(sBuf)}, {m*8192}',
                        f'buffer_load_dwordx4 v{vD}, {sr(SKV,4)}, {sr(sSrc)} offen lds{ldmod}\ns_add_u32 {sr(sSrc)}, {sr(sSrc)}, 8192'))
        out[-1] = (out[-1][0], out[-1][1] + f'\ns_add_u32 {sr(sBuf)}, {sr(sBuf)}, 32768\ns_and_b32 {sr(sBuf)}, {sr(sBuf)}, 0x1ffff')
        return out
    a(f's_lshl_b32 {sr(sBuf)}, {sW}, 10')
    a(f's_mov_b32 {sr(sSrc)}, 0')
    for c in range(3):
        for d in dma(): a(d[0]); a(d[1])
    for i in range(32): a(f'v_mov_b32 v{O+i}, 0')
    for i in range(8): a(f'v_mov_b32 v{lac+i}, 0')
    for i in range(16): a(f'v_mov_b32 v{S+48+i}, 0')
    for i in range(8): a(f'v_mov_b32 v{VF+8+i}, 0')
    a(f'v_lshlrev_b32 v{vK}, 4, v{L}')
    a(f'v_lshlrev_b32 v{vV}, 4, v{L}')
    a(f'v_mov_b32 v{T1}, 131072')
    a(f'v_mov_b32 v{T2}, 0')
    a(f'ds_write_b32 v{T1}, v{T2}')
    a('s_waitcnt vmcnt(8) lgkmcnt(0)')
    a('s_barrier')
    if st: st.stamp(1)
    def rdK(kt):
        return [f'ds_read_b128 {vr(KF+8*(kt&1)+4*s,4)}, v{vK} offset:{(kt&7)*4096+s*1024}' for s in range(2)]
    def rdV(kt):
        return [f'ds_read_b128 {vr(VF+8*(kt&1)+4*s,4)}, v{vV} offset:{(kt&7)*4096+2048+s*1024}' for s in range(2)]
    def qk(i):
        kt, t = i >> 1, i & 1; D = vr(S + 16 * (i & 3), 16); K = KF + 8 * (kt & 1)
        return [f'v_mfma_f32_32x32x16_bf16 {D}, {vr(K,4)}, {vr(Q+8*t,4)}, {vr(C+16*t,16)}',
                f'v_mfma_f32_32x32x16_bf16 {D}, {vr(K+4,4)}, {vr(Q+8*t+4,4)}, {D}']
    def pv(i):
        kt, t = i >> 1, i & 1; P = S + 16 * (i & 3); V = VF + 8 * (kt & 1)
        return [f'v_smfmac_f32_32x32x32_bf16 {vr(O+16*t,16)}, {vr(V,4)}, {vr(P,8)}, v{vIdx}',
                f'v_smfmac_f32_16x16x64_bf16 {vr(lac+4*t,4)}, {vr(ones,4)}, {vr(P,8)}, v{vIdx}',
                f'v_smfmac_f32_32x32x32_bf16 {vr(O+16*t,16)}, {vr(V+4,4)}, {vr(P+8,8)}, v{vIdx}',
                f'v_smfmac_f32_16x16x64_bf16 {vr(lac+4*t,4)}, {vr(ones,4)}, {vr(P+8,8)}, v{vIdx}']
    for r in rdK(0) + rdK(1): a(r)
    a('s_waitcnt lgkmcnt(2)')
    for m in qk(0): a(m)
    a(f's_mov_b32 {sr(sCnt)}, 8')
    a('s_nop 9')
    a(f'{Ll}:')
    for i in range(16):
        kt = i >> 1
        ex = [f'v_exp_f32 v{S+16*(i&3)+r}, v{S+16*(i&3)+r}' for r in range(16)]
        mf = qk(i + 1) + pv(i - 1)
        extra = []
        if i == 13:
            a('s_waitcnt vmcnt(4)')
            a('s_barrier')
            a(f'v_add_u32 v{vK}, 32768, v{vK}')
            a(f'v_and_b32 v{vK}, 0x1ffff, v{vK}')
            extra = dma()
        if i & 1: rd = rdK((i + 1) // 2 + 1)
        else: rd = rdV(kt)
        if i & 1: a('s_waitcnt lgkmcnt(0)')
        gaps = [3, 3, 3, 2, 3, 2]
        for j, m in enumerate(mf):
            if extra: a(extra[0][0])
            a(m)
            if extra: a(extra.pop(0)[1])
            if j < 2: a(rd[j])
            for _ in range(gaps[j]): a(ex.pop(0))
        if i == 14:
            a(f'v_add_u32 v{vV}, 32768, v{vV}')
            a(f'v_and_b32 v{vV}, 0x1ffff, v{vV}')
    a(f's_sub_u32 {sr(sCnt)}, {sr(sCnt)}, 1')
    a(f's_cmp_lg_u32 {sr(sCnt)}, 0')
    a(f's_cbranch_scc1 {Ll}')
    for m in pv(15): a(m)
    if st: st.stamp(2)
    a(f's_cmp_lg_u32 {sr(sPass)}, 0')
    a(f's_cbranch_scc1 {Ldone}')
    lo = (127 - 64) << 23; span = 128 << 23
    a(f'v_subrev_u32 v{T1}, {lo:#x}, v{lac}')
    a(f'v_subrev_u32 v{T2}, {lo:#x}, v{lac+4}')
    a(f'v_max_u32 v{T1}, v{T1}, v{T2}')
    a(f'v_cmp_lt_u32 vcc, {span:#x}, v{T1}')
    Lok = a.lab('aa_ok')
    a(f'v_mov_b32 v{T1}, 131072')
    a(f's_cbranch_vccz {Lok}')
    a(f'ds_write_b32 v{T1}, v{T1}')
    a(f'{Lok}:')
    a('s_waitcnt vmcnt(0) lgkmcnt(0)')
    a('s_barrier')
    a(f'ds_read_b32 v{T2}, v{T1}')
    a('s_waitcnt lgkmcnt(0)')
    a(f'v_readfirstlane_b32 {sr(sX)}, v{T2}')
    a(f's_cmp_eq_u32 {sr(sX)}, 0')
    a(f's_cbranch_scc1 {Ldone}')
    a('s_barrier')
    a(f's_mov_b32 {sr(sPass)}, 1')
    a(f'v_lshlrev_b32 v{vK}, 4, v{L}')
    a(f'v_mov_b32 v{T1}, 0xff7fffff')
    a(f'v_mov_b32 v{T2}, 0xff7fffff')
    a(f's_mov_b32 {sr(sSrc)}, 0')
    Lm = a.lab('aa_mx')
    a(f'{Lm}:')
    a(f'buffer_load_dwordx4 {vr(KF,4)}, v{vK}, {sr(SKV,4)}, {sr(sSrc)} offen{ldmod}')
    a(f'buffer_load_dwordx4 {vr(KF+4,4)}, v{vK}, {sr(SKV,4)}, {sr(sSrc)} offen offset:1024{ldmod}')
    a('s_waitcnt vmcnt(0)')
    for t in range(2):
        D = vr(S + 16 * t, 16)
        a(f'v_mfma_f32_32x32x16_bf16 {D}, {vr(KF,4)}, {vr(Q+8*t,4)}, 0')
        a(f'v_mfma_f32_32x32x16_bf16 {D}, {vr(KF+4,4)}, {vr(Q+8*t+4,4)}, {D}')
    for t in range(2):
        for r in range(0, 16, 2):
            a(f'v_max3_f32 v{T1+t}, v{T1+t}, v{S+16*t+r}, v{S+16*t+r+1}')
    a(f's_add_u32 {sr(sSrc)}, {sr(sSrc)}, 4096')
    a(f's_cmp_lt_u32 {sr(sSrc)}, 262144')
    a(f's_cbranch_scc1 {Lm}')
    for t in range(2):
        a(f'v_mov_b32 v{S}, v{T1+t}')
        a(f'v_permlane32_swap_b32 v{S}, v{T1+t}')
        a(f'v_max_f32 v{S}, v{S}, v{T1+t}')
        for r in range(16): a(f'v_sub_f32 v{C+16*t+r}, 0, v{S}')
    a(f's_branch {Lre}')
    a(f'{Ldone}:')
    a('s_waitcnt vmcnt(0)')
    a(f's_mul_i32 {sr(sX)}, {sr(sTok)}, 2048')
    for t in range(2):
        a(f'v_rcp_f32 v{T1}, v{lac+4*t}')
        a(f'v_mul_f32 v{T1}, v{T1}, v{vG+t}')
        for r in range(16): a(f'v_mul_f32 v{O+16*t+r}, v{T1}, v{O+16*t+r}')
        for r in range(8): a(f'v_cvt_pk_bf16_f32 v{O+16*t+r}, v{O+16*t+2*r}, v{O+16*t+2*r+1}')
        a(f'buffer_store_dwordx4 {vr(O+16*t,4)}, v{vQO}, {sr(SO,4)}, {sr(sX)} offen{storemod}')
        a(f'buffer_store_dwordx4 {vr(O+16*t+4,4)}, v{vQO}, {sr(SO,4)}, {sr(sX)} offen offset:16{storemod}')
        a(f's_add_u32 {sr(sX)}, {sr(sX)}, 2048')

def gen_attna(name='attna_kernel', diag=False):
    a = Asm()
    sreg = Regs(4, 100, 's')
    kWs = sreg.get(2, 2); sW = sreg.get(); sT = sreg.get(6); S0 = sreg.get(16, 4)
    st = Stamps(a, sreg, 8, diag)
    a(kstart(name))
    st.stamp(0); st.stamp(6, True)
    a('s_cmp_ge_u32 s2, 128')
    a(f's_cbranch_scc1 {name}_end')
    a(f's_load_dwordx2 {sr(kWs,2)}, s[0:1], {D_WS}')
    a(f'v_lshrrev_b32 v1, 6, v0')
    a(f'v_readfirstlane_b32 {sr(sW)}, v1')
    a('s_waitcnt lgkmcnt(0)')
    attnA_job(a, 's2', sr(sW), S0, sT, kWs, st=st if diag else None)
    st.stamp(3); st.stamp(4); st.stamp(5); st.stamp(7, True)
    st.flush(sr(kWs), sr(kWs+1), STAMP, 1)
    a(f'{name}_end:')
    a('s_endpgm')
    a.pad()
    return a.text() + kd(name, 256, 256), 131072 + 16
```

```python
from asm import *
from layout import *
from small import srd

def attnB_setup(a, sW, SWS, kWs, v):
    class X: pass
    x = X()
    x.L = v.get(); x.T = v.get(); x.T2 = v.get(); x.vF = v.get(); x.vKm = v.get(); x.vVm = v.get(); x.vTr = v.get(); x.vTm = v.get()
    x.vO = v.get(); x.vG = v.get(); x.G = v.get(2, 2); x.mx = v.get(2)
    x.C = v.get(20, 4); x.ones = v.get(4, 4)
    x.Q = v.get(32, 4); x.K = v.get(32, 4); x.Km = v.get(16, 4); x.S = v.get(24, 4); x.P = v.get(16, 4)
    x.V = v.get(32, 4); x.Vm = v.get(32, 4); x.l = v.get(8, 4)
    L, T, T2 = x.L, x.T, x.T2
    a(f'v_and_b32 v{L}, 63, v0')
    a(f'v_lshlrev_b32 v{x.vF}, 4, v{L}')
    a(f'v_and_b32 v{T}, 7, v{L}')
    a(f'v_and_b32 v{T2}, 48, v{L}')
    a(f'v_lshl_add_u32 v{x.vKm}, v{T}, 13, v{T2}')
    a(f'v_and_b32 v{T}, 15, v{L}')
    a(f'v_lshlrev_b32 v{T}, 4, v{T}')
    a(f'v_lshl_add_u32 v{x.vVm}, v{T2}, 9, v{T}')
    a(f'v_and_b32 v{T}, 32, v{L}')
    a(f'v_lshlrev_b32 v{T}, 5, v{T}')
    a(f'v_and_b32 v{T2}, 16, v{L}')
    a(f'v_lshl_add_u32 v{T}, v{T2}, 3, v{T}')
    a(f'v_and_b32 v{T2}, 12, v{L}')
    a(f'v_lshl_add_u32 v{T}, v{T2}, 2, v{T}')
    a(f'v_and_b32 v{T2}, 2, v{L}')
    a(f'v_lshl_add_u32 v{T}, v{T2}, 7, v{T}')
    a(f'v_and_b32 v{T2}, 1, v{L}')
    a(f'v_lshl_add_u32 v{T}, v{T2}, 3, v{T}')
    a(f'v_mov_b32 v{T2}, 10240')
    a(f'v_mad_u32_u24 v{x.vTr}, v{T2}, {sW}, v{T}')
    a(f'v_and_b32 v{T}, 28, v{L}')
    a(f'v_lshlrev_b32 v{T}, 6, v{T}')
    a(f'v_and_b32 v{x.vTm}, 3, v{L}')
    a(f'v_lshl_add_u32 v{T}, v{x.vTm}, 3, v{T}')
    a(f'v_mad_u32_u24 v{x.vTm}, v{T2}, {sW}, v{T}')
    a(f'v_and_b32 v{T}, 15, v{L}')
    a(f'v_lshlrev_b32 v{x.vG}, 2, v{T}')
    a(f'v_mul_u32_u24 v{T}, 10240, v{T}')
    a(f'v_and_b32 v{T2}, 16, v{L}')
    a(f'v_lshl_add_u32 v{T}, v{T2}, 1, v{T}')
    a(f'v_lshrrev_b32 v{T2}, 5, v{L}')
    a(f'v_lshl_add_u32 v{x.vO}, v{T2}, 4, v{T}')
    a(f'v_and_b32 v{T}, 15, v{L}')
    a(f'v_lshrrev_b32 v{T2}, 1, v{L}')
    a(f'v_and_b32 v{T2}, 24, v{T2}')
    a(f'v_sub_u32 v{T}, v{T}, v{T2}')
    a(f'v_mov_b32 v{T2}, {f32bits(-1e30):#x}')
    for tq in range(2):
        for t in range(2):
            for r in range(4):
                a(f'v_cmp_le_i32 vcc, {4*t+r-16*tq}, v{T}')
                a(f'v_cndmask_b32 v{x.C+tq*8+t*4+r}, v{T2}, 0, vcc')
    a(f'v_cmp_gt_u32 vcc, 32, v{L}')
    for r in range(4): a(f'v_cndmask_b32 v{x.C+16+r}, v{T2}, 0, vcc')
    for r in range(4): a(f'v_mov_b32 v{x.ones+r}, 0x3f803f80')
    for t in range(8):
        a(f'v_mov_b32 v{x.Vm+4*t+2}, 0'); a(f'v_mov_b32 v{x.Vm+4*t+3}, 0')
    for tq in range(2):
        a(f'v_mov_b32 v{x.P+8*tq+6}, 0'); a(f'v_mov_b32 v{x.P+8*tq+7}, 0')
    return x

def attnB_job(a, x, sSeg, sHead, sW, SWS, sT, ldm='', ldmm='', stm=''):
    WS = sr(SWS, 4); T, T2 = x.T, x.T2
    s0, s1, s2, s3 = (sr(sT + i) for i in range(4))
    a(f's_lshl_b32 {s0}, {sSeg}, 18')
    a(f's_lshl_b32 {s1}, {sHead}, 13')
    a(f's_add_u32 {s0}, {s0}, {s1}')
    def frag(R, base):
        a(f's_add_u32 {s1}, {s0}, {base}')
        a(f's_add_u32 {s2}, {s0}, {base+4096}')
        for ks in range(4):
            for t in range(2):
                a(f'buffer_load_dwordx4 {vr(R+16*t+4*ks,4)}, v{x.vF}, {WS}, {s2 if ks>=2 else s1} offen offset:{2048*(ks&1)+1024*t}{ldm}')
    frag(x.Q, QX); frag(x.K, KX)
    a(f's_lshl_b32 {s1}, {sSeg}, 16')
    a(f's_lshl_b32 {s2}, {sHead}, 8')
    a(f's_add_u32 {s1}, {s1}, {s2}')
    a(f's_add_u32 {s2}, {s1}, {KM}')
    for ks in range(4):
        a(f'buffer_load_dwordx4 {vr(x.Km+4*ks,4)}, v{x.vKm}, {WS}, {s2} offen offset:{64*ks}{ldmm}')
    a(f's_lshl_b32 {s2}, {sSeg}, 7')
    a(f's_add_u32 {s2}, {s2}, {GT+8192}')
    for tq in range(2):
        a(f'buffer_load_dword v{x.G+tq}, v{x.vG}, {WS}, {s2} offen offset:{64*tq}{ldm}')
    a(f's_mul_i32 {s3}, {sW}, 10240')
    a(f's_add_u32 {s0}, {s0}, {VX}')
    for m in range(8):
        a(f's_add_u32 m0, {s3}, {1024*m}')
        a(f'buffer_load_dwordx4 v{x.vF}, {WS}, {s0} offen lds{ldm}')
        a(f's_add_u32 {s0}, {s0}, 1024')
    a(f's_add_u32 {s1}, {s1}, {VM}')
    for m in range(2):
        a(f's_add_u32 m0, {s3}, {8192+1024*m}')
        a(f'buffer_load_dwordx4 v{x.vVm}, {WS}, {s1} offen lds{ldmm}')
        a(f's_add_u32 {s1}, {s1}, 32768')
    a(f's_mul_i32 {s0}, {sSeg}, {32*10240}')
    a(f's_lshl_b32 {s1}, {sHead}, 8')
    a(f's_add_u32 {s0}, {s0}, {s1}')
    a(f's_add_u32 {s0}, {s0}, {OCAT+2048}')
    a(f's_add_u32 {s1}, {s0}, {16*10240}')
    a('s_waitcnt vmcnt(12)')
    for ks in range(4):
        for tq in range(2):
            for t in range(3):
                D = vr(x.S + 12 * tq + 4 * t, 4)
                A = vr(x.K + 16 * t + 4 * ks, 4) if t < 2 else vr(x.Km + 4 * ks, 4)
                Cc = vr(x.C + (8 * tq + 4 * t if t < 2 else 16), 4)
                a(f'v_mfma_f32_16x16x32_bf16 {D}, {A}, {vr(x.Q+16*tq+4*ks,4)}, {D if ks else Cc}')
    a('s_waitcnt vmcnt(0)')
    for t in range(8):
        for w in range(2):
            a(f'ds_read_b64_tr_b16 {vr(x.V+4*t+2*w,2)}, v{x.vTr} offset:{(t>>1)*2048+(t&1)*512+w*64}')
    for t in range(8):
        a(f'ds_read_b64_tr_b16 {vr(x.Vm+4*t,2)}, v{x.vTm} offset:{8192+32*t}')
    for tq in range(2):
        S = x.S + 12 * tq; m = x.mx + tq
        a(f'v_max3_f32 v{m}, v{S}, v{S+1}, v{S+2}')
        for i in range(3, 11, 2): a(f'v_max3_f32 v{m}, v{m}, v{S+i}, v{S+i+1}')
        a(f'v_max_f32 v{m}, v{m}, v{S+11}')
    for op in ('v_permlane16_swap_b32', 'v_permlane32_swap_b32'):
        a(f'v_mov_b32 v{T}, v{x.mx}'); a(f'v_mov_b32 v{T2}, v{x.mx+1}')
        a(f'{op} v{T}, v{x.mx}'); a(f'{op} v{T2}, v{x.mx+1}')
        a(f'v_max_f32 v{x.mx}, v{x.mx}, v{T}'); a(f'v_max_f32 v{x.mx+1}, v{x.mx+1}, v{T2}')
    for tq in range(2):
        S = x.S + 12 * tq
        for i in range(12): a(f'v_sub_f32 v{S+i}, v{S+i}, v{x.mx+tq}')
        for i in range(12): a(f'v_exp_f32 v{S+i}, v{S+i}')
        for i in range(6): a(f'v_cvt_pk_bf16_f32 v{x.P+8*tq+i}, v{S+2*i}, v{S+2*i+1}')
    O = x.Q
    assert x.K == x.Q + 32
    for tq in range(2):
        D = vr(x.l + 4 * tq, 4)
        a(f'v_mfma_f32_16x16x32_bf16 {D}, {vr(x.ones,4)}, {vr(x.P+8*tq,4)}, 0')
    for tq in range(2):
        D = vr(x.l + 4 * tq, 4)
        a(f'v_mfma_f32_16x16x32_bf16 {D}, {vr(x.ones,4)}, {vr(x.P+8*tq+4,4)}, {D}')
    a('s_waitcnt lgkmcnt(8)')
    for tq in range(2):
        for t in range(8):
            a(f'v_mfma_f32_16x16x32_bf16 {vr(O+32*tq+4*t,4)}, {vr(x.V+4*t,4)}, {vr(x.P+8*tq,4)}, 0')
    a('s_waitcnt lgkmcnt(0)')
    for tq in range(2):
        a(f'v_rcp_f32 v{x.mx+tq}, v{x.l+4*tq}')
    for tq in range(2):
        a(f'v_mul_f32 v{x.mx+tq}, v{x.mx+tq}, v{x.G+tq}')
    for tq in range(2):
        for t in range(8):
            D = vr(O + 32 * tq + 4 * t, 4)
            a(f'v_mfma_f32_16x16x32_bf16 {D}, {vr(x.Vm+4*t,4)}, {vr(x.P+8*tq+4,4)}, {D}')
    for tq in range(2):
        for tp in range(4):
            b = O + 32 * tq + 8 * tp
            for r in range(8): a(f'v_mul_f32 v{b+r}, v{x.mx+tq}, v{b+r}')
            for r in range(4): a(f'v_cvt_pk_bf16_f32 v{b+r}, v{b+2*r}, v{b+2*r+1}')
        for tp in range(4):
            b = O + 32 * tq + 8 * tp
            a(f'v_permlane16_swap_b32 v{b}, v{b+2}')
            a(f'v_permlane16_swap_b32 v{b+1}, v{b+3}')
        for tp in range(4):
            b = O + 32 * tq + 8 * tp
            a(f'buffer_store_dwordx4 {vr(b,4)}, v{x.vO}, {WS}, {s1 if tq else s0} offen offset:{64*tp}{stm}')

def gen_attnb(name='attnb_kernel'):
    a = Asm()
    sreg = Regs(4, 100, 's')
    kWs = sreg.get(2, 2); sW = sreg.get(); sT = sreg.get(4); SWS = sreg.get(4, 4); sS = sreg.get(); sH = sreg.get()
    a(kstart(name))
    a('s_cmp_ge_u32 s2, 256')
    a(f's_cbranch_scc1 {name}_end')
    a(f's_load_dwordx2 {sr(kWs,2)}, s[0:1], {D_WS}')
    a(f'v_lshrrev_b32 v1, 6, v0')
    a(f'v_readfirstlane_b32 {sr(sW)}, v1')
    a(f's_lshr_b32 {sr(sS)}, s2, 2')
    a(f's_and_b32 {sr(sH)}, s2, 3')
    a(f's_lshl_b32 {sr(sH)}, {sr(sH)}, 3')
    a(f's_add_u32 {sr(sH)}, {sr(sH)}, {sr(sW)}')
    v = Regs(1, 256)
    x = attnB_setup(a, sr(sW), SWS, kWs, v)
    a('s_waitcnt lgkmcnt(0)')
    srd(a, SWS, sr(kWs), sr(kWs+1), WS_BYTES)
    attnB_job(a, x, sr(sS), sr(sH), sr(sW), SWS, sT)
    a(f'{name}_end:')
    a('s_endpgm')
    a.pad()
    return a.text() + kd(name, 256, 256), 81920
```

```python
from asm import *
from layout import *
from small import srd

NSTEP = 64
EXP = set()
def LM(): return 'nt' if 'nt' in EXP else ('sc0 sc1' if 'sc01' in EXP else 'sc1')
SPIN = 400000

class ChainCtx:
    pass

def chain_common(a, sreg):
    c = ChainCtx()
    c.sW = sreg.get(); c.sG = sreg.get(); c.sC = sreg.get(); c.sMode = sreg.get()
    c.SWS = sreg.get(4, 4); c.SA = sreg.get(4, 4); c.SB = sreg.get(4, 4); c.SC = sreg.get(4, 4)
    c.sS = sreg.get(); c.sSlot = sreg.get(); c.sArm = sreg.get(); c.sPrev = sreg.get(); c.sSpin = sreg.get()
    c.sT = sreg.get(4); c.sAr = sreg.get(); c.sAr2 = sreg.get(); c.sD = sreg.get(); c.sFb = sreg.get(); c.sMask = sreg.get(2, 2)
    return c

def checkmax(a, T, regs):
    regs = list(regs)
    out = []
    if len(regs) >= 3:
        out.append(f'v_max3_u32 v{T}, v{regs[0]}, v{regs[1]}, v{regs[2]}'); regs = regs[3:]
    else:
        out.append(f'v_max_u32 v{T}, v{regs[0]}, v{regs[1]}'); regs = regs[2:]
    while regs:
        if len(regs) >= 2: out.append(f'v_max3_u32 v{T}, v{T}, v{regs[0]}, v{regs[1]}'); regs = regs[2:]
        else: out.append(f'v_max_u32 v{T}, v{T}, v{regs[0]}'); regs = regs[1:]
    return out

def step_slots(a, c):
    a(f's_and_b32 {sr(c.sSlot)}, {sr(c.sS)}, 3')
    a(f's_lshl_b32 {sr(c.sSlot)}, {sr(c.sSlot)}, 18')
    a(f's_xor_b32 {sr(c.sArm)}, {sr(c.sSlot)}, {2<<18}')
    a(f's_add_u32 {sr(c.sPrev)}, {sr(c.sSlot)}, {3<<18}')
    a(f's_and_b32 {sr(c.sPrev)}, {sr(c.sPrev)}, {3<<18}')

def bwave(a, c, Lend, tr=None):
    b = sr(c.sW); T0 = c.sT
    v = Regs(1, 256)
    L = v.get(); T = v.get(); T2 = v.get()
    vPA = v.get(); vMS = v.get(); vML = v.get(); vQS = v.get(); vAr = v.get(); vLW = v.get(); vLWv = v.get(); vLR = v.get()
    vIdx = v.get(); vSc = v.get(); M1 = v.get(2, 2)
    AF = v.get(16, 4); ACC = v.get(24, 4); W = v.get(192, 4)
    WS = sr(c.SWS, 4)
    a(f's_load_dwordx2 {sr(c.SA,2)}, s[0:1], {B_WQ}')
    a(f's_load_dwordx2 {sr(c.SB,2)}, s[0:1], {B_WK}')
    a(f's_load_dwordx2 {sr(c.SC,2)}, s[0:1], {B_WV}')
    a(f'v_and_b32 v{L}, 63, v0')
    a(f's_lshl_b32 {sr(T0)}, {sr(c.sG)}, 4')
    a(f's_add_u32 {sr(T0)}, {sr(T0)}, {sr(c.sC)}')
    a(f's_lshl_b32 {sr(T0+1)}, {sr(T0)}, 6')
    a(f's_lshl_b32 {sr(T0+2)}, {b}, 21')
    a(f's_add_u32 {sr(T0+2)}, {sr(T0+2)}, {sr(T0+1)}')
    a(f'v_lshrrev_b32 v{T}, 2, v{L}')
    a(f'v_lshlrev_b32 v{T}, 13, v{T}')
    a(f'v_and_b32 v{T2}, 3, v{L}')
    a(f'v_lshl_add_u32 v{T}, v{T2}, 4, v{T}')
    a(f'v_add_u32 v{vPA}, {sr(T0+2)}, v{T}')
    a(f'v_lshrrev_b32 v{T}, 2, v{L}')
    a(f'v_and_b32 v{T}, 3, v{T}')
    a(f'v_lshrrev_b32 v{vMS}, 4, v{L}')
    a(f'v_lshl_add_u32 v{T}, v{vMS}, 3, v{T}')
    a(f'v_lshlrev_b32 v{T}, 6, v{T}')
    a(f'v_lshl_add_u32 v{T}, v{T2}, 3, v{T}')
    a(f's_mul_i32 {sr(T0+3)}, {b}, 24576')
    a(f'v_add_u32 v{vMS}, {sr(T0+3)}, v{T}')
    a('s_waitcnt lgkmcnt(0)')
    for S in (c.SA, c.SB, c.SC): srd(a, S, sr(S), sr(S+1), 1024*8192)
    for rho in range(2):
        for m in range(8):
            a(f's_mov_b32 {sr(T0+2)}, {(128*rho+16*m)*8192}')
            for ty, S in enumerate((c.SA, c.SB, c.SC)):
                a(f's_add_u32 m0, {sr(T0+3)}, {ty*8192+m*1024}')
                a(f'buffer_load_dwordx4 v{vPA}, {sr(S,4)}, {sr(T0+2)} offen lds')
        a('s_waitcnt vmcnt(0)')
        for t in range(6):
            for jj in range(2):
                for q in range(4):
                    off = (t >> 1) * 8192 + (jj * 64 + 32 * (q >> 1) + 4 * (q & 1)) * 64 + (t & 1) * 32
                    a(f'ds_read_b64_tr_b16 {vr(W+(t*4+2*rho+jj)*8+2*q,2)}, v{vMS} offset:{off}')
            a('s_waitcnt lgkmcnt(0)')
    a(f's_load_dwordx2 {sr(c.SA,2)}, s[0:1], {B_MEM0}')
    a(f's_lshl_b32 {sr(T0+1)}, {sr(c.sC)}, 14')
    a(f's_lshl_b32 {sr(T0+2)}, {b}, 12')
    a(f's_add_u32 {sr(T0+1)}, {sr(T0+1)}, {sr(T0+2)}')
    a(f's_add_u32 {sr(T0+1)}, {sr(T0+1)}, {PART}')
    a(f'v_lshlrev_b32 v{T}, 4, v{L}')
    a(f'v_add_u32 v{vPA}, {sr(T0+1)}, v{T}')
    a(f's_lshl_b32 {sr(T0+1)}, {sr(c.sG)}, 14')
    a(f's_add_u32 {sr(T0+1)}, {sr(T0+1)}, {sr(T0+2)}')
    a(f's_add_u32 {sr(T0+1)}, {sr(T0+1)}, {MEMB}')
    a(f'v_add_u32 v{vML}, {sr(T0+1)}, v{T}')
    a(f's_lshl_b32 {sr(T0+1)}, {b}, 10')
    a(f'v_add_u32 v{vLR}, {sr(T0+1)}, v{T}')
    a(f's_lshl_b32 {sr(T0+1)}, {sr(T0)}, 10')
    a(f's_lshl_b32 {sr(T0+2)}, {b}, 8')
    a(f's_add_u32 {sr(T0+1)}, {sr(T0+1)}, {sr(T0+2)}')
    a(f's_add_u32 {sr(T0+1)}, {sr(T0+1)}, {MEMB}')
    a(f'v_lshlrev_b32 v{T}, 2, v{L}')
    a(f'v_add_u32 v{vMS}, {sr(T0+1)}, v{T}')
    a(f's_lshr_b32 {sr(T0+1)}, {sr(T0)}, 2')
    a(f's_lshl_b32 {sr(T0+1)}, {sr(T0+1)}, 13')
    a(f's_and_b32 {sr(T0+2)}, {sr(T0)}, 3')
    a(f's_lshl_b32 {sr(T0+2)}, {sr(T0+2)}, 9')
    a(f's_add_u32 {sr(T0+1)}, {sr(T0+1)}, {sr(T0+2)}')
    a(f's_lshl_b32 {sr(T0+2)}, {b}, 11')
    a(f's_add_u32 {sr(T0+1)}, {sr(T0+1)}, {sr(T0+2)}')
    a(f's_add_u32 {sr(T0+1)}, {sr(T0+1)}, {QKV}')
    a(f'v_lshlrev_b32 v{T}, 3, v{L}')
    a(f'v_add_u32 v{vQS}, {sr(T0+1)}, v{T}')
    a(f'v_and_b32 v{T}, 4, v{L}')
    a(f'v_lshlrev_b32 v{T}, 3, v{T}')
    a(f'v_and_b32 v{T2}, 1, v{L}')
    a(f'v_lshl_add_u32 v{T}, v{T2}, 4, v{T}')
    a(f'v_and_b32 v{T2}, 2, v{L}')
    a(f'v_lshl_add_u32 v{T}, v{T2}, 1, v{T}')
    a(f'v_and_b32 v{T2}, 7, v{L}')
    a(f'v_lshlrev_b32 v{T2}, 3, v{T2}')
    a(f's_cmp_eq_u32 {b}, 2')
    a(f's_cselect_b64 vcc, -1, 0')
    a(f's_cselect_b32 {sr(c.sD)}, 8, 4')
    a(f's_mov_b32 {sr(T0+1)}, {KM}')
    a(f's_cselect_b32 {sr(T0+1)}, {VM}, {sr(T0+1)}')
    a(f'v_cndmask_b32 v{T}, v{T2}, v{T}, vcc')
    a(f'v_lshrrev_b32 v{T2}, 3, v{L}')
    a(f'v_lshl_add_u32 v{T}, v{T2}, 13, v{T}')
    a(f's_lshl_b32 {sr(T0+2)}, {sr(T0)}, 6')
    a(f's_add_u32 {sr(T0+1)}, {sr(T0+1)}, {sr(T0+2)}')
    a(f'v_add_u32 v{vAr}, {sr(T0+1)}, v{T}')
    a(f's_mul_i32 {sr(T0+1)}, {b}, 3072')
    a(f'v_and_b32 v{T}, 16, v{L}')
    a(f'v_lshlrev_b32 v{T}, 5, v{T}')
    a(f'v_and_b32 v{T2}, 32, v{L}')
    a(f'v_lshl_add_u32 v{T}, v{T2}, 1, v{T}')
    a(f'v_add_u32 v{T}, {sr(T0+1)}, v{T}')
    a(f'v_and_b32 v{T2}, 15, v{L}')
    a(f'v_lshl_add_u32 v{vLW}, v{T2}, 2, v{T}')
    a(f'v_and_b32 v{T2}, 1, v{L}')
    a(f'v_lshl_add_u32 v{T}, v{T2}, 2, v{T}')
    a(f'v_and_b32 v{T2}, 2, v{L}')
    a(f'v_lshl_add_u32 v{T}, v{T2}, 4, v{T}')
    a(f'v_and_b32 v{T2}, 12, v{L}')
    a(f'v_lshl_add_u32 v{vLWv}, v{T2}, 1, v{T}')
    a(f'v_and_b32 v{T}, 8, v{L}')
    a(f'v_cmp_eq_u32 vcc, 0, v{T}')
    a(f'v_mov_b32 v{T}, 0xeeeeeeee')
    a(f'v_mov_b32 v{T2}, 0x44444444')
    a(f'v_cndmask_b32 v{vIdx}, v{T}, v{T2}, vcc')
    a(f's_cmp_eq_u32 {b}, 0')
    a(f's_cselect_b32 {sr(T0+1)}, {f32bits(128**-0.5*LOG2E):#x}, 1.0')
    a(f'v_mov_b32 v{vSc}, {sr(T0+1)}')
    a(f'v_mov_b32 v{M1}, -1')
    a(f'v_mov_b32 v{M1+1}, -1')
    a(f'v_and_b32 v{T}, 7, v{L}')
    a(f'v_lshlrev_b32 v{T}, 11, v{T}')
    a(f'v_and_b32 v{T2}, 8, v{L}')
    a(f'v_lshrrev_b32 v{T2}, 1, v{T2}')
    a(f'v_add_u32 v{T}, v{T}, v{T2}')
    a(f'v_and_b32 v{T2}, 48, v{L}')
    a(f'v_lshl_add_u32 v{T}, v{T2}, 1, v{T}')
    a(f's_lshl_b32 {sr(T0+1)}, {b}, 9')
    a('s_waitcnt lgkmcnt(0)')
    srd(a, c.SA, sr(c.SA), sr(c.SA+1), 16384)
    for j in range(4):
        for p in range(4):
            a(f'buffer_load_dword v{AF+4*j+p}, v{T}, {sr(c.SA,4)}, {sr(T0+1)} offen offset:{128*j+8*p}')
    a(f's_mov_b32 {sr(c.sS)}, 0')
    a(f's_mov_b32 {sr(c.sSpin)}, {SPIN}')
    a(f's_mov_b32 {sr(c.sAr)}, 0')
    step_slots(a, c)
    for i in range(24): a(f'v_mov_b32 v{ACC+i}, 0')
    a('s_waitcnt vmcnt(0)')
    for i in range(16): a(f'v_min_u32 v{AF+i}, -2, v{AF+i}')
    a('s_barrier')
    ent = [a.lab('b_ent0'), a.lab('b_ent1')]
    a(f's_cmp_eq_u32 {sr(c.sMode)}, 0')
    a(f's_cbranch_scc1 {ent[0]}')
    a(f's_branch {ent[1]}')
    for mode in range(2):
        sm = ' sc1' if mode else ''
        Lt = a.lab('b_top'); LpA = a.lab('b_pa'); LpB = a.lab('b_pb'); Lsk = a.lab('b_sk'); Lz = a.lab('b_z')
        G = ACC
        a(f'{Lt}:')
        if tr: tr(0)
        a(f'{LpA}:')
        for j in range(4):
            a(f'buffer_load_dwordx4 {vr(G+4*j,4)}, v{vPA}, {WS}, {sr(c.sPrev)} offen offset:{1024*j} sc1')
        a(f's_sub_u32 {sr(c.sSpin)}, {sr(c.sSpin)}, 1')
        a(f's_cbranch_scc1 {Lend}')
        a('s_waitcnt vmcnt(0)')
        for x in checkmax(a, T, [G, G+4, G+8, G+12]): a(x)
        a(f'v_cmp_eq_u32 vcc, -1, v{T}')
        for r in range(4): a(f'v_add_f32 v{G+r}, v{G+r}, v{G+4+r}')
        a(f's_cbranch_vccnz {LpA}')
        if tr: tr(1)
        for r in range(4): a(f'v_add_f32 v{G+8+r}, v{G+8+r}, v{G+12+r}')
        for r in range(4): a(f'v_add_f32 v{G+r}, v{G+r}, v{G+8+r}')
        a(f'v_permlane32_swap_b32 v{G}, v{G+2}')
        a(f'v_permlane32_swap_b32 v{G+1}, v{G+3}')
        a(f'v_add_f32 v{G}, v{G}, v{G+2}')
        a(f'v_add_f32 v{G+1}, v{G+1}, v{G+3}')
        a(f'v_cvt_pk_bf16_f32 v{T2}, v{G}, v{G+1}')
        a(f'v_min_u32 v{T2}, -2, v{T2}')
        a(f'buffer_store_dword v{T2}, v{vMS}, {WS}, {sr(c.sSlot)} offen{sm}')
        a(f'buffer_store_dword v{M1}, v{vMS}, {WS}, {sr(c.sArm)} offen{sm}')
        a(f'{Lz}:')
        for i in range(24): a(f'v_mov_b32 v{ACC+i}, 0')
        a(f'{LpB}:')
        for j in range(4):
            a(f'buffer_load_dwordx4 {vr(AF+4*j,4)}, v{vML}, {WS}, {sr(c.sSlot)} offen offset:{1024*j} {LM()}')
        a(f's_sub_u32 {sr(c.sSpin)}, {sr(c.sSpin)}, 1')
        a(f's_cbranch_scc1 {Lend}')
        a('s_waitcnt vmcnt(0)')
        for x in checkmax(a, T, [AF, AF+4, AF+8, AF+12]): a(x)
        a(f'v_cmp_eq_u32 vcc, -1, v{T}')
        a(f's_cbranch_vccnz {LpB}')
        a(f'{ent[mode]}:')
        if tr: tr(2)
        def sm_(t, j): return f'v_smfmac_f32_16x16x64_bf16 {vr(ACC+4*t,4)}, {vr(AF+4*j,4)}, {vr(W+(t*4+j)*8,8)}, v{vIdx}'
        def post(ty):
            X = ACC + 8 * ty; o = []
            for r in range(4): o.append(f'v_permlane32_swap_b32 v{X+r}, v{X+4+r}')
            for r in range(4): o.append(f'v_add_f32 v{X+r}, v{X+r}, v{X+4+r}')
            for r in range(4): o.append(f'ds_write_b32 v{vLWv if ty==2 else vLW}, v{X+r} offset:{ty*1024+r*128}')
            return o
        full = checkmax(a, T, [AF+i for i in range(16) if i % 4]) + [f'v_cmp_eq_u32 vcc, -1, v{T}']
        for ty in range(3):
            mf = [sm_(2*ty + (i & 1), i >> 1) for i in range(8)]
            fill = full if ty == 0 else post(ty - 1)
            start = 0 if ty == 0 else 3
            for i, m in enumerate(mf):
                a(m)
                if i >= start:
                    for _ in range(1 if ty == 0 else 3):
                        if fill: a(fill.pop(0))
            for x in fill: a(x)
            if ty == 0: a(f's_cbranch_vccnz {Lz}')
        for x in post(2): a(x)
        a('s_waitcnt lgkmcnt(0)')
        a('s_barrier')
        if tr: tr(3)
        a(f's_cmp_eq_u32 {b}, 3')
        a(f's_cbranch_scc1 {Lsk}')
        for q in range(4): a(f'ds_read_b128 {vr(G+4*q,4)}, v{vLR} offset:{3072*q}')
        a('s_waitcnt lgkmcnt(2)')
        for r in range(4): a(f'v_add_f32 v{G+r}, v{G+r}, v{G+4+r}')
        a('s_waitcnt lgkmcnt(0)')
        for r in range(4): a(f'v_add_f32 v{G+8+r}, v{G+8+r}, v{G+12+r}')
        for r in range(4): a(f'v_add_f32 v{G+r}, v{G+r}, v{G+8+r}')
        for r in range(4): a(f'v_mul_f32 v{G+r}, v{vSc}, v{G+r}')
        a(f'v_cvt_pk_bf16_f32 v{G+4}, v{G}, v{G+1}')
        a(f'v_cvt_pk_bf16_f32 v{G+5}, v{G+2}, v{G+3}')
        a(f'v_min_u32 v{G+4}, -2, v{G+4}')
        a(f'buffer_store_dwordx2 {vr(G+4,2)}, v{vQS}, {WS}, {sr(c.sSlot)} offen{sm}')
        a(f'buffer_store_dwordx2 {vr(M1,2)}, v{vQS}, {WS}, {sr(c.sArm)} offen{sm}')
        a(f's_cmp_eq_u32 {b}, 0')
        a(f's_cbranch_scc1 {Lsk}')
        a(f's_add_u32 {sr(c.sAr2)}, {sr(c.sAr)}, {sr(c.sD)}')
        if 'noar' not in EXP:
            a(f'buffer_store_dword v{G+4}, v{vAr}, {WS}, {sr(c.sAr)} offen')
            a(f'buffer_store_dword v{G+5}, v{vAr}, {WS}, {sr(c.sAr2)} offen')
        a(f'{Lsk}:')
        a(f's_add_u32 {sr(c.sS)}, {sr(c.sS)}, 1')
        a(f's_add_u32 {sr(c.sAr)}, {sr(c.sAr)}, 65536')
        step_slots(a, c)
        a(f's_cmp_eq_u32 {sr(c.sS)}, {NSTEP}')
        a(f's_cbranch_scc1 {Lend}')
        a('s_barrier')
        a(f's_branch {Lt}')

def cwave(a, c, Lend, tr=None):
    T0 = c.sT; j = sr(c.sD)
    v = Regs(1, 256)
    L = v.get(); T = v.get(); T2 = v.get()
    vQL = v.get(); vVL = v.get(); vKX = v.get(); vVX = v.get(); vCW = v.get(); vCR = v.get(); vPS = v.get(); vIdx = v.get()
    M1 = v.get(4, 4); P = v.get(4, 4); S = v.get(12, 4); VMr = v.get(8, 4); E = v.get(6, 2)
    Q = v.get(16, 4); KMr = v.get(16, 4); KXr = v.get(32, 4); UM = v.get(16, 4); OUT = v.get(20, 4)
    U = v.get(40, 4); WO = v.get(64, 4)
    assert KMr == Q + 16 and OUT == UM + 16
    VXr = Q; UD = UM
    sMask = c.sMask
    WS = sr(c.SWS, 4)
    a(f's_load_dwordx2 {sr(c.SA,2)}, s[0:1], {B_WO}')
    a(f's_sub_u32 {j}, {sr(c.sW)}, 4')
    a(f'v_and_b32 v{L}, 63, v0')
    a(f's_lshl_b32 {sr(T0)}, {sr(c.sG)}, 2')
    a(f's_add_u32 {sr(T0)}, {sr(T0)}, {j}')
    a(f's_lshl_b32 {sr(T0+1)}, {sr(T0)}, 18')
    a(f's_lshl_b32 {sr(T0+2)}, {sr(c.sC)}, 7')
    a(f's_add_u32 {sr(T0+1)}, {sr(T0+1)}, {sr(T0+2)}')
    a(f'v_lshrrev_b32 v{T}, 3, v{L}')
    a(f'v_lshlrev_b32 v{T}, 11, v{T}')
    a(f'v_and_b32 v{T2}, 7, v{L}')
    a(f'v_lshl_add_u32 v{T}, v{T2}, 4, v{T}')
    a(f'v_add_u32 v{vPS}, {sr(T0+1)}, v{T}')
    a(f's_lshl_b32 {sr(T0+3)}, {j}, 14')
    a(f's_add_u32 {sr(T0+3)}, {sr(T0+3)}, 98304')
    a('s_waitcnt lgkmcnt(0)')
    srd(a, c.SA, sr(c.SA), sr(c.SA+1), 4096*2048)
    for m in range(16):
        a(f's_mov_b32 {sr(T0+2)}, {m*8*2048}')
        a(f's_add_u32 m0, {sr(T0+3)}, {m*1024}')
        a(f'buffer_load_dwordx4 v{vPS}, {sr(c.SA,4)}, {sr(T0+2)} offen lds')
    a(f's_lshl_b32 {sr(T0+1)}, {sr(T0)}, 13')
    a(f'v_lshlrev_b32 v{T}, 4, v{L}')
    a(f'v_add_u32 v{T}, {sr(T0+1)}, v{T}')
    a(f'v_add_u32 v{vVX}, {VX}, v{T}')
    a(f'v_add_u32 v{vKX}, {KX}, v{T}')
    def ldK():
        a(f's_add_u32 {sr(c.sAr2)}, {sr(c.sAr)}, 4096')
        for t in range(2):
            for ks in range(4):
                if 'nok' in EXP: continue
                a(f'buffer_load_dwordx4 {vr(KXr+16*t+4*ks,4)}, v{vKX}, {WS}, {sr(c.sAr2 if ks>=2 else c.sAr)} offen offset:{2048*(ks&1)+1024*t}')
    def ldV():
        o = [f's_add_u32 {sr(c.sAr2)}, {sr(c.sAr)}, 4096']
        for t in range(2):
            for ks in range(4):
                o.append('s_nop 0' if 'nov' in EXP else f'buffer_load_dwordx4 {vr(VXr+16*t+4*ks,4)}, v{vVX}, {WS}, {sr(c.sAr2 if ks>=2 else c.sAr)} offen offset:{2048*(ks&1)+1024*t}')
        return o
    a(f's_mov_b32 {sr(c.sAr)}, 0')
    for x in ldV(): a(x)
    a(f'v_lshrrev_b32 v{T}, 2, v{L}')
    a(f'v_and_b32 v{T}, 3, v{T}')
    a(f'v_lshrrev_b32 v{T2}, 4, v{L}')
    a(f'v_lshl_add_u32 v{T}, v{T2}, 3, v{T}')
    a(f'v_lshlrev_b32 v{T}, 7, v{T}')
    a(f'v_and_b32 v{T2}, 3, v{L}')
    a(f'v_lshl_add_u32 v{T}, v{T2}, 3, v{T}')
    a(f'v_add_u32 v{vCR}, {sr(T0+3)}, v{T}')
    a(f's_lshl_b32 {sr(T0+1)}, {sr(T0)}, 13')
    a(f's_add_u32 {sr(T0+1)}, {sr(T0+1)}, {QKV}')
    a(f'v_and_b32 v{T}, 7, v{L}')
    a(f'v_lshlrev_b32 v{T}, 6, v{T}')
    a(f'v_and_b32 v{T2}, 48, v{L}')
    a(f'v_add3_u32 v{vQL}, v{T}, v{T2}, {sr(T0+1)}')
    a(f's_add_u32 {sr(T0+1)}, {sr(T0+1)}, 4096')
    a(f'v_and_b32 v{T}, 32, v{L}')
    a(f'v_lshlrev_b32 v{T}, 4, v{T}')
    a(f'v_and_b32 v{T2}, 3, v{L}')
    a(f'v_lshl_add_u32 v{T}, v{T2}, 6, v{T}')
    a(f'v_and_b32 v{T2}, 8, v{L}')
    a(f'v_lshl_add_u32 v{T}, v{T2}, 5, v{T}')
    a(f'v_and_b32 v{T2}, 16, v{L}')
    a(f'v_lshl_add_u32 v{T}, v{T2}, 1, v{T}')
    a(f'v_and_b32 v{T2}, 4, v{L}')
    a(f'v_lshl_add_u32 v{T}, v{T2}, 2, v{T}')
    a(f'v_add_u32 v{vVL}, {sr(T0+1)}, v{T}')
    a(f's_lshl_b32 {sr(T0+1)}, {j}, 11')
    a(f's_add_u32 {sr(T0+1)}, {sr(T0+1)}, 16384')
    a(f'v_and_b32 v{T}, 48, v{L}')
    a(f'v_lshlrev_b32 v{T}, 4, v{T}')
    a(f'v_and_b32 v{T2}, 15, v{L}')
    a(f'v_lshl_add_u32 v{T}, v{T2}, 2, v{T}')
    a(f'v_add_u32 v{vCW}, {sr(T0+1)}, v{T}')
    a(f'v_and_b32 v{T}, 8, v{L}')
    a(f'v_cmp_ne_u32 {sr(sMask,2)}, 0, v{T}')
    a(f'v_mov_b32 v{T}, 0x4444')
    a(f'v_mov_b32 v{T2}, 0xeeee')
    a(f'v_cndmask_b32 v{vIdx}, v{T}, v{T2}, {sr(sMask,2)}')
    a(f'v_and_b32 v{P}, 4, v{L}')
    a(f'v_cmp_ne_u32 vcc, 0, v{P}')
    a(f'v_cndmask_b32 v{T}, v{T}, v{T2}, vcc')
    a(f'v_lshl_or_b32 v{vIdx}, v{T}, 16, v{vIdx}')
    for i in range(4): a(f'v_mov_b32 v{M1+i}, -1')
    for t in range(5):
        a(f'v_mov_b32 v{U+8*t+4}, 0'); a(f'v_mov_b32 v{U+8*t+5}, 0')
    for r in (2, 3, 6, 7): a(f'v_mov_b32 v{U+32+r}, 0x3f803f80')
    a(f'v_and_b32 v{T}, 16, v{L}')
    a(f'v_cmp_eq_u32 vcc, 0, v{T}')
    a(f'v_cndmask_b32 v{U+32}, 0, v{U+34}, vcc')
    a(f'v_cndmask_b32 v{U+33}, 0, v{U+34}, vcc')
    a('s_waitcnt vmcnt(0)')
    for t in range(4):
        for ch in range(2):
            for q in range(4):
                off = (ch * 64 + 32 * (q >> 1) + 4 * (q & 1)) * 128 + t * 32
                a(f'ds_read_b64_tr_b16 {vr(WO+(t*2+ch)*8+2*q,2)}, v{vCR} offset:{off}')
        a('s_waitcnt lgkmcnt(0)')
    a(f's_and_b32 {sr(T0+1)}, {j}, 1')
    a(f's_lshl_b32 {sr(T0+2)}, {sr(T0+1)}, 10')
    a(f's_add_u32 {sr(T0+2)}, {sr(T0+2)}, 16384')
    a(f'v_lshlrev_b32 v{T}, 4, v{L}')
    a(f'v_add_u32 v{vCR}, {sr(T0+2)}, v{T}')
    a(f's_lshl_b32 {sr(T0+1)}, {sr(T0+1)}, 13')
    a(f's_lshl_b32 {sr(T0+2)}, {sr(c.sC)}, 14')
    a(f's_add_u32 {sr(T0+1)}, {sr(T0+1)}, {sr(T0+2)}')
    a(f's_lshl_b32 {sr(T0+2)}, {sr(c.sG)}, 9')
    a(f's_add_u32 {sr(T0+1)}, {sr(T0+1)}, {sr(T0+2)}')
    a(f's_add_u32 {sr(T0+1)}, {sr(T0+1)}, {PART}')
    a(f'v_and_b32 v{T}, 31, v{L}')
    a(f'v_lshlrev_b32 v{T}, 4, v{T}')
    a(f'v_and_b32 v{T2}, 32, v{L}')
    a(f'v_lshl_add_u32 v{T}, v{T2}, 7, v{T}')
    a(f'v_add_u32 v{vPS}, {sr(T0+1)}, v{T}')
    a(f's_mov_b32 {sr(c.sS)}, 0')
    a(f's_mov_b32 {sr(c.sSpin)}, {SPIN}')
    a('s_barrier')
    Lt = a.lab('c_top'); Lp = a.lab('c_p'); Lsm = a.lab('c_sm'); Lfb = a.lab('c_fb'); Lnp = a.lab('c_np'); Lz = a.lab('c_z')
    ldK()
    a('s_waitcnt vmcnt(8)')
    a(f'{Lt}:')
    for t in range(4):
        for ks in range(4):
            for kt in range(2):
                D = vr(UD + (t * 2 + kt) * 4, 4)
                a(f'v_mfma_f32_16x16x32_bf16 {D}, {vr(VXr+16*kt+4*ks,4)}, {vr(WO+(t*2+(ks>>1))*8+(ks&1)*4,4)}, {D if ks else 0}')
    step_slots(a, c)
    for t in range(4):
        for kt in range(2):
            D = UD + (t * 2 + kt) * 4
            a(f'v_cvt_pk_bf16_f32 v{U+8*t+2+4*kt}, v{D}, v{D+1}')
            a(f'v_cvt_pk_bf16_f32 v{U+8*t+3+4*kt}, v{D+2}, v{D+3}')
    for i in range(36): a(f'v_mov_b32 v{UM+i}, 0')
    a(f's_mov_b32 {sr(c.sFb)}, 0')
    a(f's_add_u32 {sr(c.sAr)}, {sr(c.sAr)}, {1<<18}')
    if tr: tr(0)
    a('s_barrier')
    if tr: tr(1)
    a(f'{Lp}:')
    for ks in range(4):
        a(f'buffer_load_dwordx4 {vr(Q+4*ks,4)}, v{vQL}, {WS}, {sr(c.sSlot)} offen offset:{512*ks} {LM()}')
    for ks in range(4):
        a(f'buffer_load_dwordx4 {vr(KMr+4*ks,4)}, v{vQL}, {WS}, {sr(c.sSlot)} offen offset:{2048+512*ks} {LM()}')
    for ch in range(2):
        a(f'buffer_load_dwordx4 {vr(VMr+4*ch,4)}, v{vVL}, {WS}, {sr(c.sSlot)} offen offset:{1024*ch} {LM()}')
    a(f's_sub_u32 {sr(c.sSpin)}, {sr(c.sSpin)}, 1')
    a(f's_cbranch_scc1 {Lend}')
    a('s_waitcnt vmcnt(0)')
    allr = [Q + 4 * i for i in range(8)] + [VMr, VMr + 4]
    for x in checkmax(a, T, allr): a(x)
    a(f'v_cmp_eq_u32 vcc, -1, v{T}')
    a(f's_cbranch_vccnz {Lp}')
    if tr: tr(2)
    full = checkmax(a, T, [r + 2 for r in allr]) + [f'v_cmp_eq_u32 vcc, -1, v{T}']
    for ks in range(4):
        for t, A in enumerate((KMr, KXr, KXr + 16)):
            D = vr(S + 4 * t, 4)
            a(f'v_mfma_f32_16x16x32_bf16 {D}, {vr(A+4*ks,4)}, {vr(Q+4*ks,4)}, {D if ks else 0}')
            if full: a(full.pop(0))
    a(f's_cbranch_vccnz {Lp}')
    um = [f'v_smfmac_f32_16x16x64_bf16 {vr(UM+4*t,4)}, {vr(VMr+4*ch,4)}, {vr(WO+(t*2+ch)*8,8)}, v{vIdx} abid:1' for ch in range(2) for t in range(4)]
    lv = ldV()
    for i in range(4):
        a(um[i]); a(lv.pop(0)); a(lv.pop(0))
    a(lv.pop(0))
    def soft():
        o = []
        for t in range(3):
            o.append(f'v_cndmask_b32 v{E+2*t}, v{S+4*t}, v{S+4*t+2}, {sr(sMask,2)}')
            o.append(f'v_cndmask_b32 v{E+2*t+1}, v{S+4*t+1}, v{S+4*t+3}, {sr(sMask,2)}')
        for i in range(6): o.append(f'v_exp_f32 v{E+i}, v{E+i}')
        o.append(f'v_cvt_pk_bf16_f32 v{P}, v{E}, v{E+1}')
        o.append(f'v_cvt_pk_bf16_f32 v{P+2}, v{E}, v{E+1}')
        o.append(f'v_cvt_pk_bf16_f32 v{P+1}, v{E+2}, v{E+3}')
        o.append(f'v_cvt_pk_bf16_f32 v{P+3}, v{E+4}, v{E+5}')
        return o
    so = soft()
    for i in range(4, 8):
        a(um[i]); a(so.pop(0)); a(so.pop(0))
    for x in so: a(x)
    for t in range(4):
        a(f'v_cvt_pk_bf16_f32 v{U+8*t}, v{UM+4*t}, v{UM+4*t+1}')
        a(f'v_cvt_pk_bf16_f32 v{U+8*t+1}, v{UM+4*t+2}, v{UM+4*t+3}')
    a(f'{Lsm}:')
    for t in (4, 0, 1, 2, 3):
        a(f'v_smfmac_f32_16x16x64_bf16 {vr(OUT+4*t,4)}, {vr(P,4)}, {vr(U+8*t,8)}, v{vIdx}')
    Lr = OUT + 16
    for r in range(4): a(f'v_mov_b32 v{E+r}, v{Lr+r}')
    for r in range(4): a(f'v_permlane32_swap_b32 v{E+r}, v{Lr+r}')
    for r in range(4): a(f'v_add_f32 v{Lr+r}, v{Lr+r}, v{E+r}')
    lo = (127 - 64) << 23; span = 128 << 23
    for r in range(4): a(f'v_rcp_f32 v{E+r}, v{Lr+r}')
    for pr in range(2):
        for r in range(4): a(f'v_permlane32_swap_b32 v{OUT+8*pr+r}, v{OUT+8*pr+4+r}')
    for pr in range(2):
        for r in range(4): a(f'v_add_f32 v{OUT+8*pr+r}, v{OUT+8*pr+r}, v{OUT+8*pr+4+r}')
    for pr in range(2):
        for r in range(4):
            a(f'v_mul_f32 v{OUT+8*pr+r}, v{OUT+8*pr+r}, v{E+r}')
            a(f'ds_write_b32 v{vCW}, v{OUT+8*pr+r} offset:{pr*1024+r*64}')
    for r in range(4): a(f'v_subrev_u32 v{Lr+r}, {lo:#x}, v{Lr+r}')
    for x in checkmax(a, T, [Lr + r for r in range(4)]): a(x)
    a(f'v_cmp_lt_u32 vcc, {span:#x}, v{T}')
    a(f's_cbranch_vccnz {Lfb}')
    a(f'{Lz}:')
    a('s_waitcnt lgkmcnt(0)')
    if tr: tr(3)
    a('s_barrier')
    a(f's_add_u32 {sr(c.sS)}, {sr(c.sS)}, 1')
    a(f's_cmp_ge_u32 {j}, 2')
    a(f's_cbranch_scc1 {Lnp}')
    for q in range(4): a(f'ds_read_b128 {vr(UM+4*q,4)}, v{vCR} offset:{2048*q}')
    a('s_waitcnt lgkmcnt(2)')
    for r in range(4): a(f'v_add_f32 v{UM+r}, v{UM+r}, v{UM+4+r}')
    a('s_waitcnt lgkmcnt(0)')
    for r in range(4): a(f'v_add_f32 v{UM+8+r}, v{UM+8+r}, v{UM+12+r}')
    for r in range(4): a(f'v_add_f32 v{P+r}, v{UM+r}, v{UM+8+r}')
    a(f'v_min_u32 v{P}, -2, v{P}')
    a(f'buffer_store_dwordx4 {vr(P,4)}, v{vPS}, {WS}, {sr(c.sSlot)} offen sc1')
    a(f'buffer_store_dwordx4 {vr(M1,4)}, v{vPS}, {WS}, {sr(c.sArm)} offen sc1')
    if tr: tr(4)
    a(f's_cmp_eq_u32 {sr(c.sS)}, {NSTEP-1}')
    a(f's_cbranch_scc1 {Lend}')
    ldK()
    a('s_waitcnt vmcnt(10)')
    a(f's_branch {Lt}')
    a(f'{Lnp}:')
    a(f's_cmp_eq_u32 {sr(c.sS)}, {NSTEP-1}')
    a(f's_cbranch_scc1 {Lend}')
    ldK()
    a('s_waitcnt vmcnt(8)')
    a(f's_branch {Lt}')
    a(f'{Lfb}:')
    a(f's_cmp_lg_u32 {sr(c.sFb)}, 0')
    a(f's_cbranch_scc1 {Lz}')
    a(f's_mov_b32 {sr(c.sFb)}, 1')
    a(f'v_max3_f32 v{T}, v{S}, v{S+1}, v{S+2}')
    for i in range(3, 11, 2): a(f'v_max3_f32 v{T}, v{T}, v{S+i}, v{S+i+1}')
    a(f'v_max_f32 v{T}, v{T}, v{S+11}')
    a(f'v_mov_b32 v{T2}, v{T}')
    a(f'v_permlane16_swap_b32 v{T}, v{T2}')
    a(f'v_max_f32 v{T}, v{T}, v{T2}')
    a(f'v_mov_b32 v{T2}, v{T}')
    a(f'v_permlane32_swap_b32 v{T}, v{T2}')
    a(f'v_max_f32 v{T}, v{T}, v{T2}')
    for i in range(12): a(f'v_sub_f32 v{S+i}, v{S+i}, v{T}')
    for x in soft(): a(x)
    for i in range(20): a(f'v_mov_b32 v{OUT+i}, 0')
    a(f's_branch {Lsm}')
```

```python
from asm import *

class GemmCfg:
    def __init__(self, TN=256, TM=256, WN=4, WT=2):
        self.TN, self.TM, self.WN, self.WT = TN, TM, WN, WT
        self.tn = TN // 32 // WN
        self.tt = TM // 32 // WT
        self.wbytes = 64 * TN * 2
        self.xbytes = TM * 128
        self.wp = TN // 64
        self.xp = TM // 64
        self.rpp = 512 // TN
        self.lds = 2 * (self.wbytes + self.xbytes)
        self.xoff = 2 * self.wbytes

def interleave(mf, fill, per=1, start=0):
    out = []; f = list(fill)
    for i, m in enumerate(mf):
        out.append(m)
        if i >= start:
            for _ in range(per):
                if f: out.append(f.pop(0))
    out += f
    return out

class Gemm:
    def __init__(self, a, cfg, sreg, vreg):
        self.a = a; self.c = cfg
        c = cfg
        self.SX = sreg.get(4, 4, 'SX'); self.SW = sreg.get(4, 4, 'SW'); self.SO = sreg.get(4, 4, 'SO')
        self.sLdx = sreg.get(); self.sLdw = sreg.get(); self.sLdo = sreg.get(); self.sWv = sreg.get()
        self.sOx = sreg.get(); self.sOw = sreg.get(); self.sDw = sreg.get(); self.sM0 = sreg.get(); self.sCnt = sreg.get()
        self.sScale = sreg.get(); self.sT = sreg.get()
        nacc = c.tn * c.tt * 16
        self.vWr = vreg.get(c.tn); self.vXr = vreg.get(4); self.vWg = vreg.get(c.wp); self.vXg = vreg.get(c.xp)
        self.vO = vreg.get(1); self.vT = vreg.get(4)
        self.fA = [vreg.get(4 * c.tn, 4) for _ in range(2)]
        self.fB = [vreg.get(4 * c.tt, 4) for _ in range(2)]
        self.acc = vreg.get(nacc, 4)
        self.switch = None

    def setup(self):
        a, c = self.a, self.c
        T = self.vT
        w = sr(self.sWv)
        a(f'v_and_b32 v{T}, 63, v0')
        a(f's_lshl_b32 {sr(self.sM0)}, {w}, 10')
        a(f's_lshl_b32 {sr(self.sDw)}, {sr(self.sLdw)}, 6')
        lpr = 64 // c.rpp; sh = lpr.bit_length() - 1
        a(f'v_lshrrev_b32 v{T+1}, {sh}, v{T}')
        a(f's_mul_i32 {sr(self.sT)}, {w}, {c.rpp}')
        a(f'v_add_u32 v{T+1}, {sr(self.sT)}, v{T+1}')
        a(f'v_and_b32 v{T+2}, 3, v{T+1}')
        a(f'v_lshlrev_b32 v{T+2}, 2, v{T+2}')
        a(f'v_and_b32 v{T+3}, {lpr-1}, v{T}')
        a(f'v_xor_b32 v{T+2}, v{T+2}, v{T+3}')
        assert c.TN >= 128
        a(f'v_lshlrev_b32 v{T+2}, 4, v{T+2}')
        a(f'v_mul_lo_u32 v{T+1}, v{T+1}, {sr(self.sLdw)}')
        a(f'v_add_u32 v{self.vWg}, v{T+1}, v{T+2}')
        a(f's_mul_i32 {sr(self.sT)}, {sr(self.sLdw)}, {8*c.rpp}')
        for m in range(1, c.wp):
            a(f'v_add_u32 v{self.vWg+m}, {sr(self.sT)}, v{self.vWg+m-1}')
        a(f'v_lshrrev_b32 v{T+1}, 3, v{T}')
        a(f's_lshl_b32 {sr(self.sT)}, {w}, 3')
        a(f'v_add_u32 v{T+1}, {sr(self.sT)}, v{T+1}')
        a(f'v_lshrrev_b32 v{T+2}, 1, v{T+1}')
        a(f'v_xor_b32 v{T+2}, v{T+2}, v{T}')
        a(f'v_and_b32 v{T+2}, 7, v{T+2}')
        a(f'v_lshlrev_b32 v{T+2}, 4, v{T+2}')
        a(f'v_mul_lo_u32 v{T+1}, v{T+1}, {sr(self.sLdx)}')
        a(f'v_add_u32 v{self.vXg}, v{T+1}, v{T+2}')
        a(f's_lshl_b32 {sr(self.sT)}, {sr(self.sLdx)}, 6')
        for m in range(1, c.xp):
            a(f'v_add_u32 v{self.vXg+m}, {sr(self.sT)}, v{self.vXg+m-1}')
        rowb = c.TN * 2
        a(f'v_lshrrev_b32 v{T+1}, 2, v{T}')
        a(f'v_and_b32 v{T+1}, 3, v{T+1}')
        a(f'v_lshrrev_b32 v{T+2}, 5, v{T}')
        a(f'v_lshl_add_u32 v{T+2}, v{T+2}, 3, v{T+1}')
        a(f'v_mul_u32_u24 v{T+2}, {rowb}, v{T+2}')
        a(f's_and_b32 {sr(self.sT)}, {w}, {c.WN-1}')
        a(f's_mul_i32 {sr(self.sT)}, {sr(self.sT)}, {c.tn}')
        a(f'v_xor_b32 v{T+1}, {sr(self.sT)}, v{T+1}')
        a(f'v_lshl_add_u32 v{T+2}, v{T+1}, 6, v{T+2}')
        a(f'v_and_b32 v{T+1}, 1, v{T}')
        a(f'v_lshl_add_u32 v{T+2}, v{T+1}, 5, v{T+2}')
        a(f'v_and_b32 v{T+1}, 2, v{T}')
        a(f'v_lshl_add_u32 v{T+2}, v{T+1}, 2, v{T+2}')
        a(f'v_and_b32 v{T+1}, 16, v{T}')
        a(f'v_add_u32 v{self.vWr}, v{T+1}, v{T+2}')
        for t in range(1, c.tn):
            a(f'v_xor_b32 v{self.vWr+t}, {64*t}, v{self.vWr}')
        a(f's_lshr_b32 {sr(self.sT)}, {w}, {c.WN.bit_length()-1}')
        a(f's_mul_i32 {sr(self.sT)}, {sr(self.sT)}, {32*c.tt}')
        a(f'v_and_b32 v{T+1}, 31, v{T}')
        a(f'v_add_u32 v{T+3}, {sr(self.sT)}, v{T+1}')
        a(f'v_lshrrev_b32 v{T+1}, 1, v{T+1}')
        a(f'v_lshrrev_b32 v{T+2}, 5, v{T}')
        a(f'v_xor_b32 v{T+1}, v{T+1}, v{T+2}')
        a(f'v_and_b32 v{T+1}, 7, v{T+1}')
        a(f'v_lshlrev_b32 v{T+1}, 4, v{T+1}')
        a(f'v_lshl_add_u32 v{T+1}, v{T+3}, 7, v{T+1}')
        a(f'v_add_u32 v{self.vXr}, {c.xoff}, v{T+1}')
        for s in range(1, 4):
            a(f'v_xor_b32 v{self.vXr+s}, {32*s}, v{self.vXr}')
        a(f'v_mul_lo_u32 v{T+3}, v{T+3}, {sr(self.sLdo)}')
        a(f'v_lshl_add_u32 v{T+3}, v{T+2}, 5, v{T+3}')
        a(f's_and_b32 {sr(self.sT)}, {w}, {c.WN-1}')
        a(f's_mul_i32 {sr(self.sT)}, {sr(self.sT)}, {c.tn*64}')
        a(f'v_add_u32 v{self.vO}, {sr(self.sT)}, v{T+3}')

    def dma(self, buf):
        c = self.c; L = []
        for m in range(c.wp):
            L.append(f's_add_u32 m0, {sr(self.sM0)}, {buf*c.wbytes + m*8192}\n'
                     f'buffer_load_dwordx4 v{self.vWg+m}, {sr(self.SW,4)}, {sr(self.sOw)} offen lds')
        for m in range(c.xp):
            L.append(f's_add_u32 m0, {sr(self.sM0)}, {c.xoff + buf*c.xbytes + m*8192}\n'
                     f'buffer_load_dwordx4 v{self.vXg+m}, {sr(self.SX,4)}, {sr(self.sOx)} offen lds')
        L[-1] += f'\ns_add_u32 {sr(self.sOx)}, {sr(self.sOx)}, 128\ns_add_u32 {sr(self.sOw)}, {sr(self.sOw)}, {sr(self.sDw)}'
        if self.switch: L[-1] += '\n' + self.switch()
        return L

    def reads(self, buf, sub, st):
        c = self.c; rowb = c.TN * 2
        def ra(t):
            o = buf * c.wbytes + sub * 16 * rowb
            return [f'ds_read_b64_tr_b16 {vr(self.fA[st]+4*t, 2)}, v{self.vWr+t} offset:{o}',
                    f'ds_read_b64_tr_b16 {vr(self.fA[st]+4*t+2, 2)}, v{self.vWr+t} offset:{o+4*rowb}']
        def rb(u):
            return [f'ds_read_b128 {vr(self.fB[st]+4*u, 4)}, v{self.vXr+sub} offset:{buf*c.xbytes + u*4096}']
        L = ra(0)
        for u in range(c.tt): L += rb(u)
        for t in range(1, c.tn): L += ra(t)
        return L

    def mfmas(self, st):
        c = self.c; L = []
        for t in range(c.tn):
            for u in range(c.tt):
                acc = vr(self.acc + 16 * (t * c.tt + u), 16)
                need_i = (2 + u) if t == 0 else (2 + c.tt + 2 * t - 1)
                L.append((f'v_mfma_f32_32x32x16_bf16 {acc}, {vr(self.fA[st]+4*t,4)}, {vr(self.fB[st]+4*u,4)}, {acc}', need_i))
        return L

    def substep(self, st, rd, extra=(), waits=True, per=1):
        a = self.a
        mf = self.mfmas(st); nr = 2 * self.c.tn + self.c.tt
        rd = list(rd); extra = list(extra); issued = 0; done = -1
        for i, (m, ni) in enumerate(mf):
            if waits and ni > done:
                a(f's_waitcnt lgkmcnt({nr - 1 - ni + issued})'); done = ni
            a(m)
            for _ in range(per):
                if rd: a(rd.pop(0)); issued += 1
            if extra: a(extra.pop(0))
        for r in rd: a(r)
        for e in extra: a(e)

    def kstep(self, buf, do_dma, last):
        a = self.a
        self.substep(0, self.reads(buf, 1, 1))
        self.substep(1, self.reads(buf, 2, 0))
        self.substep(0, self.reads(buf, 3, 1), per=2)
        if last:
            a('s_waitcnt lgkmcnt(0)')
            self.substep(1, [], waits=False)
        else:
            a('s_waitcnt vmcnt(0) lgkmcnt(0)')
            a('s_barrier')
            self.substep(1, self.reads(buf ^ 1, 0, 0), self.dma(buf) if do_dma else [], waits=False)

    def main(self, nk):
        a, c = self.a, self.c
        if getattr(self,'st',None): self.st.stamp(1)
        for d in self.dma(0): a(d)
        for d in self.dma(1): a(d)
        for i in range(c.tn * c.tt * 16): a(f'v_mov_b32 v{self.acc+i}, 0')
        a(f's_waitcnt vmcnt({c.wp + c.xp})')
        a('s_barrier')
        if getattr(self,'st',None): self.st.stamp(2); a('s_waitcnt lgkmcnt(0)')
        for r in self.reads(0, 0, 0): a(r)
        a(f's_mov_b32 {sr(self.sCnt)}, {nk//2 - 1}')
        L = a.lab('gk')
        a(f'{L}:')
        self.kstep(0, True, False)
        self.kstep(1, True, False)
        a(f's_sub_u32 {sr(self.sCnt)}, {sr(self.sCnt)}, 1')
        a(f's_cmp_lg_u32 {sr(self.sCnt)}, 0')
        a(f's_cbranch_scc1 {L}')
        self.kstep(0, False, False)
        self.kstep(1, False, True)

    def epilogue(self, scale=True):
        a, c = self.a, self.c
        for t in range(c.tn):
            for u in range(c.tt):
                b = self.acc + 16 * (t * c.tt + u)
                if scale:
                    for r in range(16): a(f'v_mul_f32 v{b+r}, {sr(self.sScale)}, v{b+r}')
                for r in range(8): a(f'v_cvt_pk_bf16_f32 v{b+r}, v{b+2*r}, v{b+2*r+1}')
                a(f's_mul_i32 {sr(self.sT)}, {sr(self.sLdo)}, {32*u}')
                a(f'buffer_store_dwordx4 {vr(b,4)}, v{self.vO}, {sr(self.SO,4)}, {sr(self.sT)} offen offset:{64*t}')
                a(f'buffer_store_dwordx4 {vr(b+4,4)}, v{self.vO}, {sr(self.SO,4)}, {sr(self.sT)} offen offset:{64*t+16}')
```

```python
from asm import *

class GemmCfg16:
    def __init__(self, TN=256, TM=256, WN=4, WT=2):
        self.TN, self.TM, self.WN, self.WT = TN, TM, WN, WT
        self.tn = TN // 16 // WN
        self.tt = TM // 16 // WT
        self.wbytes = 64 * TN * 2
        self.xbytes = TM * 128
        self.wp = TN // 64
        self.xp = TM // 64
        self.rpp = 512 // TN
        self.lds = 2 * (self.wbytes + self.xbytes)
        self.xoff = 2 * self.wbytes

class Gemm16:
    def __init__(self, a, cfg, sreg, vreg):
        self.a = a; self.c = cfg
        c = cfg
        self.SX = sreg.get(4, 4, 'SX'); self.SW = sreg.get(4, 4, 'SW'); self.SO = sreg.get(4, 4, 'SO')
        self.sLdx = sreg.get(); self.sLdw = sreg.get(); self.sLdo = sreg.get(); self.sWv = sreg.get()
        self.sOx = sreg.get(); self.sOw = sreg.get(); self.sDw = sreg.get(); self.sM0 = sreg.get(); self.sCnt = sreg.get()
        self.sScale = sreg.get(); self.sT = sreg.get()
        self.sOM = sreg.get(); self.sU1 = sreg.get(); self.sU2 = sreg.get(); self.sTP = sreg.get(); self.sT2 = sreg.get()
        nacc = c.tn * c.tt * 4
        self.vWr = vreg.get(c.tn); self.vXr = vreg.get(2); self.vWg = vreg.get(c.wp); self.vXg = vreg.get(c.xp)
        self.vO = vreg.get(1); self.vT = vreg.get(4)
        self.fA = [vreg.get(4 * c.tn, 4) for _ in range(2)]
        self.fB = [vreg.get(4 * c.tt, 4) for _ in range(2)]
        self.acc = vreg.get(nacc, 4)
        self.switch = None
        self.st = None
        self.storemod = ''

    def setup(self):
        a, c = self.a, self.c
        T = self.vT
        w = sr(self.sWv)
        a(f'v_and_b32 v{T}, 63, v0')
        a(f's_lshl_b32 {sr(self.sM0)}, {w}, 10')
        a(f's_lshl_b32 {sr(self.sDw)}, {sr(self.sLdw)}, 6')
        lpr = 64 // c.rpp; sh = lpr.bit_length() - 1
        assert c.TN >= 128
        a(f'v_lshrrev_b32 v{T+1}, {sh}, v{T}')
        a(f's_mul_i32 {sr(self.sT)}, {w}, {c.rpp}')
        a(f'v_add_u32 v{T+1}, {sr(self.sT)}, v{T+1}')
        a(f'v_and_b32 v{T+2}, 3, v{T+1}')
        a(f'v_lshlrev_b32 v{T+2}, 1, v{T+2}')
        a(f'v_and_b32 v{T+3}, 8, v{T+1}')
        a(f'v_or_b32 v{T+2}, v{T+2}, v{T+3}')
        a(f'v_and_b32 v{T+3}, {lpr-1}, v{T}')
        a(f'v_xor_b32 v{T+2}, v{T+2}, v{T+3}')
        a(f'v_lshlrev_b32 v{T+2}, 4, v{T+2}')
        a(f'v_mul_lo_u32 v{T+1}, v{T+1}, {sr(self.sLdw)}')
        a(f'v_add_u32 v{self.vWg}, v{T+1}, v{T+2}')
        a(f's_mul_i32 {sr(self.sT)}, {sr(self.sLdw)}, {8*c.rpp}')
        for m in range(1, c.wp):
            a(f'v_add_u32 v{self.vWg+m}, {sr(self.sT)}, v{self.vWg+m-1}')
        a(f'v_lshrrev_b32 v{T+1}, 3, v{T}')
        a(f's_lshl_b32 {sr(self.sT)}, {w}, 3')
        a(f'v_add_u32 v{T+1}, {sr(self.sT)}, v{T+1}')
        a(f'v_lshrrev_b32 v{T+2}, 1, v{T+1}')
        a(f'v_xor_b32 v{T+2}, v{T+2}, v{T}')
        a(f'v_and_b32 v{T+2}, 7, v{T+2}')
        a(f'v_lshlrev_b32 v{T+2}, 4, v{T+2}')
        a(f'v_mul_lo_u32 v{T+1}, v{T+1}, {sr(self.sLdx)}')
        a(f'v_add_u32 v{self.vXg}, v{T+1}, v{T+2}')
        a(f's_lshl_b32 {sr(self.sT)}, {sr(self.sLdx)}, 6')
        for m in range(1, c.xp):
            a(f'v_add_u32 v{self.vXg+m}, {sr(self.sT)}, v{self.vXg+m-1}')
        rowb = c.TN * 2
        a(f'v_lshrrev_b32 v{T+1}, 2, v{T}')
        a(f'v_and_b32 v{T+3}, 7, v{T+1}')
        a(f'v_and_b32 v{T+1}, 3, v{T+1}')
        a(f'v_lshrrev_b32 v{T+2}, 4, v{T}')
        a(f'v_lshl_add_u32 v{T+2}, v{T+2}, 3, v{T+1}')
        a(f'v_mul_u32_u24 v{T+2}, {rowb}, v{T+2}')
        a(f's_and_b32 {sr(self.sT)}, {w}, {c.WN-1}')
        a(f's_mul_i32 {sr(self.sT)}, {sr(self.sT)}, {c.tn}')
        a(f'v_xor_b32 v{T+3}, {sr(self.sT)}, v{T+3}')
        a(f'v_lshl_add_u32 v{T+2}, v{T+3}, 5, v{T+2}')
        a(f'v_and_b32 v{T+1}, 3, v{T}')
        a(f'v_lshl_add_u32 v{self.vWr}, v{T+1}, 3, v{T+2}')
        for t in range(1, c.tn):
            a(f'v_xor_b32 v{self.vWr+t}, {32*t}, v{self.vWr}')
        a(f's_lshr_b32 {sr(self.sT)}, {w}, {c.WN.bit_length()-1}')
        a(f's_mul_i32 {sr(self.sT)}, {sr(self.sT)}, {16*c.tt}')
        a(f'v_and_b32 v{T+1}, 15, v{T}')
        a(f'v_add_u32 v{T+3}, {sr(self.sT)}, v{T+1}')
        a(f'v_lshrrev_b32 v{T+1}, 1, v{T+1}')
        a(f'v_lshrrev_b32 v{T+2}, 4, v{T}')
        a(f'v_xor_b32 v{T+1}, v{T+1}, v{T+2}')
        a(f'v_lshlrev_b32 v{T+1}, 4, v{T+1}')
        a(f'v_lshl_add_u32 v{T+1}, v{T+3}, 7, v{T+1}')
        a(f'v_add_u32 v{self.vXr}, {c.xoff}, v{T+1}')
        a(f'v_xor_b32 v{self.vXr+1}, 64, v{self.vXr}')
        self.setup_out()

    def setup_out(self):
        a, c = self.a, self.c; T = self.vT; w = sr(self.sWv)
        Lf = a.lab('go_f'); Lk = a.lab('go_k'); Ld = a.lab('go_d')
        a(f's_and_b32 {sr(self.sT)}, {w}, {c.WN-1}')
        a(f's_lshr_b32 {sr(self.sT2)}, {w}, {c.WN.bit_length()-1}')
        a(f'v_and_b32 v{T+1}, 15, v{T}')
        a(f's_cmp_lg_u32 {sr(self.sOM)}, 0')
        a(f's_cbranch_scc1 {Lf}')
        a(f's_mul_i32 {sr(self.sT2)}, {sr(self.sT2)}, {16*c.tt}')
        a(f'v_add_u32 v{T+3}, {sr(self.sT2)}, v{T+1}')
        a(f'v_mul_lo_u32 v{T+3}, v{T+3}, {sr(self.sLdo)}')
        a(f'v_and_b32 v{T+1}, 16, v{T}')
        a(f'v_lshl_add_u32 v{T+3}, v{T+1}, 1, v{T+3}')
        a(f'v_lshrrev_b32 v{T+1}, 5, v{T}')
        a(f'v_lshl_add_u32 v{T+3}, v{T+1}, 4, v{T+3}')
        a(f's_mul_i32 {sr(self.sT)}, {sr(self.sT)}, {c.tn*32}')
        a(f'v_add_u32 v{self.vO}, {sr(self.sT)}, v{T+3}')
        a(f's_lshl_b32 {sr(self.sU1)}, {sr(self.sLdo)}, 4')
        a(f's_lshl_b32 {sr(self.sU2)}, {sr(self.sLdo)}, 5')
        a(f's_mov_b32 {sr(self.sTP)}, 64')
        a(f's_branch {Ld}')
        a(f'{Lf}:')
        a(f'v_lshlrev_b32 v{T+3}, 4, v{T+1}')
        a(f's_mov_b32 {sr(self.sU1)}, 1024')
        a(f's_cmp_eq_u32 {sr(self.sOM)}, 1')
        a(f's_cbranch_scc1 {Lk}')
        a(f'v_and_b32 v{T+3}, 3, v{T}')
        a(f'v_lshlrev_b32 v{T+3}, 4, v{T+3}')
        a(f'v_and_b32 v{T+1}, 8, v{T}')
        a(f'v_lshl_add_u32 v{T+3}, v{T+1}, 3, v{T+3}')
        a(f'v_and_b32 v{T+1}, 4, v{T}')
        a(f'v_lshl_add_u32 v{T+3}, v{T+1}, 8, v{T+3}')
        a(f's_mov_b32 {sr(self.sU1)}, 128')
        a(f'{Lk}:')
        a(f'v_and_b32 v{T+1}, 16, v{T}')
        a(f'v_lshl_add_u32 v{T+3}, v{T+1}, 5, v{T+3}')
        a(f'v_and_b32 v{T+1}, 32, v{T}')
        a(f'v_lshl_add_u32 v{T+3}, v{T+1}, 3, v{T+3}')
        a(f's_mul_i32 {sr(self.sT)}, {sr(self.sT)}, {c.tn*1024}')
        a(f's_mul_i32 {sr(self.sT2)}, {sr(self.sT2)}, {c.tt//2*262144}')
        a(f's_add_u32 {sr(self.sT)}, {sr(self.sT)}, {sr(self.sT2)}')
        a(f'v_add_u32 v{self.vO}, {sr(self.sT)}, v{T+3}')
        a(f's_mov_b32 {sr(self.sU2)}, 262144')
        a(f's_mov_b32 {sr(self.sTP)}, 2048')
        a(f'{Ld}:')

    def dma(self, buf):
        c = self.c; L = []
        for m in range(c.wp):
            L.append((f's_add_u32 m0, {sr(self.sM0)}, {buf*c.wbytes + m*8192}',
                     f'buffer_load_dwordx4 v{self.vWg+m}, {sr(self.SW,4)}, {sr(self.sOw)} offen lds'))
        for m in range(c.xp):
            L.append((f's_add_u32 m0, {sr(self.sM0)}, {c.xoff + buf*c.xbytes + m*8192}',
                     f'buffer_load_dwordx4 v{self.vXg+m}, {sr(self.SX,4)}, {sr(self.sOx)} offen lds'))
        tail = f'\ns_add_u32 {sr(self.sOx)}, {sr(self.sOx)}, 128\ns_add_u32 {sr(self.sOw)}, {sr(self.sOw)}, {sr(self.sDw)}'
        if self.switch: tail += '\n' + self.switch()
        L[-1] = (L[-1][0], L[-1][1] + tail)
        return L

    def reads(self, buf, sub, st):
        c = self.c; rowb = c.TN * 2
        def ra(t):
            o = buf * c.wbytes + sub * 32 * rowb
            return [f'ds_read_b64_tr_b16 {vr(self.fA[st]+4*t, 2)}, v{self.vWr+t} offset:{o}',
                    f'ds_read_b64_tr_b16 {vr(self.fA[st]+4*t+2, 2)}, v{self.vWr+t} offset:{o+4*rowb}']
        def rb(u):
            return [f'ds_read_b128 {vr(self.fB[st]+4*u, 4)}, v{self.vXr+sub} offset:{buf*c.xbytes + u*2048}']
        L = ra(0)
        for u in range(c.tt): L += rb(u)
        for t in range(1, c.tn): L += ra(t)
        return L

    def accr(self, t, u): return self.acc + 4 * (u * self.c.tn + t)

    def mfmas(self, st):
        c = self.c; L = []
        for t in range(c.tn):
            for u in range(c.tt):
                acc = vr(self.accr(t, u), 4)
                need_i = (2 + u) if t == 0 else (2 + c.tt + 2 * t - 1)
                L.append((f'v_mfma_f32_16x16x32_bf16 {acc}, {vr(self.fA[st]+4*t,4)}, {vr(self.fB[st]+4*u,4)}, {acc}', need_i))
        return L

    def substep(self, st, rd, extra=(), waits=True, rgap=1, egap=2, estart=0):
        a = self.a
        mf = self.mfmas(st); nr = 2 * self.c.tn + self.c.tt
        rd = list(rd); extra = list(extra); issued = 0; done = -1
        for i, (m, ni) in enumerate(mf):
            if waits and ni > done:
                a(f's_waitcnt lgkmcnt({min(15, nr - 1 - ni + issued)})'); done = ni
            doe = extra and i >= estart and (i - estart) % egap == 0
            if doe: a(extra[0][0])
            a(m)
            if doe: a(extra.pop(0)[1])
            if rd and i % rgap == 0: a(rd.pop(0)); issued += 1
        for r in rd: a(r)
        for e in extra: a(e[0]); a(e[1])

    def kstep(self, buf, do_dma, last):
        a = self.a
        self.substep(0, self.reads(buf, 1, 1))
        if last:
            a('s_waitcnt lgkmcnt(0)')
            self.substep(1, [], waits=False)
        else:
            a('s_waitcnt vmcnt(0) lgkmcnt(0)')
            a('s_barrier')
            self.substep(1, self.reads(buf ^ 1, 0, 0), self.dma(buf) if do_dma else [], waits=False, rgap=2)

    def main(self, nk):
        a, c = self.a, self.c
        if self.st: self.st.stamp(1)
        for d in self.dma(0): a(d[0]); a(d[1])
        for d in self.dma(1): a(d[0]); a(d[1])
        for i in range(c.tn * c.tt * 4): a(f'v_mov_b32 v{self.acc+i}, 0')
        a(f's_waitcnt vmcnt({c.wp + c.xp})')
        a('s_barrier')
        if self.st: self.st.stamp(2); a('s_waitcnt lgkmcnt(0)')
        for r in self.reads(0, 0, 0): a(r)
        a(f's_mov_b32 {sr(self.sCnt)}, {nk//2 - 1}')
        L = a.lab('gk')
        a(f'{L}:')
        self.kstep(0, True, False)
        self.kstep(1, True, False)
        a(f's_sub_u32 {sr(self.sCnt)}, {sr(self.sCnt)}, 1')
        a(f's_cmp_lg_u32 {sr(self.sCnt)}, 0')
        a(f's_cbranch_scc1 {L}')
        self.kstep(0, False, False)
        self.kstep(1, False, True)

    def epilogue(self, scale=True):
        a, c = self.a, self.c
        a(f's_mov_b32 {sr(self.sT)}, 0')
        for u in range(c.tt):
            for t in range(0, c.tn, 2):
                b = self.accr(t, u)
                if scale:
                    for r in range(8): a(f'v_mul_f32 v{b+r}, {sr(self.sScale)}, v{b+r}')
                for r in range(4): a(f'v_cvt_pk_bf16_f32 v{b+r}, v{b+2*r}, v{b+2*r+1}')
            for t in range(0, c.tn, 2):
                b = self.accr(t, u)
                a(f'v_permlane16_swap_b32 v{b}, v{b+2}')
                a(f'v_permlane16_swap_b32 v{b+1}, v{b+3}')
            if u & 1: a(f's_add_u32 {sr(self.sT2)}, {sr(self.sT)}, {sr(self.sU1)}')
            else: a(f's_mov_b32 {sr(self.sT2)}, {sr(self.sT)}')
            for t in range(0, c.tn, 2):
                b = self.accr(t, u)
                a(f'buffer_store_dwordx4 {vr(b,4)}, v{self.vO}, {sr(self.SO,4)}, {sr(self.sT2)} offen{self.storemod}')
                if t + 2 < c.tn: a(f's_add_u32 {sr(self.sT2)}, {sr(self.sT2)}, {sr(self.sTP)}')
            if u & 1: a(f's_add_u32 {sr(self.sT)}, {sr(self.sT)}, {sr(self.sU2)}')
```

```python
from asm import *
from gemm import *
from gemm16 import *
from layout import *

from small import *

def gen_k1(name='proj_kernel', diag=False, njobs=480, half=False, m16=True):
    a = Asm()
    sreg = Regs(4, 100, 's'); vreg = Regs(1, 256, 'v')
    kX = sreg.get(2, 2); kWq = sreg.get(2, 2); kB = sreg.get(8, 4); kWs = sreg.get(2, 2)
    t0 = sreg.get(); t1 = sreg.get(); t2 = sreg.get(); t3 = sreg.get(); p0 = sreg.get(2, 2)
    g = Gemm16(a, GemmCfg16(), sreg, vreg) if m16 else Gemm(a, GemmCfg(), sreg, vreg)
    st = Stamps(a, sreg, 8, diag); g.st = st
    a(kstart(name))
    st.stamp(0); st.stamp(6, True)
    a(f's_cmp_ge_u32 s2, {njobs}')
    a(f's_cbranch_scc1 {name}_end')
    if half:
        a('s_bitcmp1_b32 s2, 2')
        a(f's_cbranch_scc1 {name}_end')
    a(f'v_lshrrev_b32 v1, 6, v0')
    a(f'v_readfirstlane_b32 {sr(g.sWv)}, v1')
    a(f's_cmp_ge_u32 s2, 416')
    a(f's_cbranch_scc1 {name}_small')
    a(f's_load_dwordx2 {sr(kX,2)}, s[0:1], {A_X}')
    a(f's_load_dwordx2 {sr(kWq,2)}, s[0:1], {A_WQ}')
    a(f's_load_dwordx2 {sr(kB,2)}, s[0:1], {B_WQ}')
    a(f's_load_dwordx2 {sr(kB+2,2)}, s[0:1], {B_WK}')
    a(f's_load_dwordx2 {sr(kB+4,2)}, s[0:1], {B_WV}')
    a(f's_load_dwordx2 {sr(kWs,2)}, s[0:1], {D_WS}')
    a(f's_lshr_b32 {sr(t0)}, s2, 7')
    a(f's_and_b32 {sr(t1)}, s2, 7')
    a(f's_bfe_u32 {sr(t2)}, s2, 0x40003')
    a(f's_waitcnt lgkmcnt(0)')
    lq = a.lab('k1qa'); lj = a.lab('k1j')
    a(f's_cmp_eq_u32 {sr(t0)}, 3')
    a(f's_cbranch_scc1 {lq}')
    a(f's_cmp_eq_u32 {sr(t0)}, 0')
    a(f's_cselect_b32 {sr(p0)}, {sr(kB+2)}, {sr(kB+4)}')
    a(f's_cselect_b32 {sr(p0+1)}, {sr(kB+3)}, {sr(kB+5)}')
    a(f's_mov_b32 {sr(t3)}, {VX}')
    a(f's_cselect_b32 {sr(t3)}, {KX}, {sr(t3)}')
    a(f's_mov_b32 {sr(g.sOM)}, 1')
    a(f's_cselect_b32 {sr(g.sScale)}, {f32bits(128**-0.5*LOG2E)}, 1.0')
    a(f's_cmp_eq_u32 {sr(t0)}, 2')
    a(f's_cselect_b32 {sr(p0)}, {sr(kB)}, {sr(p0)}')
    a(f's_cselect_b32 {sr(p0+1)}, {sr(kB+1)}, {sr(p0+1)}')
    a(f's_cselect_b32 {sr(t3)}, {QX}, {sr(t3)}')
    a(f's_lshl_b32 {sr(t1)}, {sr(t1)}, 1')
    a(f's_and_b32 {sr(t0)}, {sr(t2)}, 1')
    a(f's_add_u32 {sr(t1)}, {sr(t1)}, {sr(t0)}')
    a(f's_lshr_b32 {sr(t2)}, {sr(t2)}, 1')
    a(f's_mov_b32 {sr(g.sLdw)}, 8192')
    a(f's_branch {lj}')
    a(f'{lq}:')
    a(f's_mov_b32 {sr(p0)}, {sr(kWq)}')
    a(f's_mov_b32 {sr(p0+1)}, {sr(kWq+1)}')
    a(f's_mov_b32 {sr(t3)}, {QA}')
    a(f's_mov_b32 {sr(g.sOM)}, 0')
    a(f's_mov_b32 {sr(g.sScale)}, {f32bits(32**-0.5*LOG2E)}')
    a(f's_mov_b32 {sr(t0)}, {sr(t1)}')
    a(f's_mov_b32 {sr(t1)}, {sr(t2)}')
    a(f's_mov_b32 {sr(t2)}, {sr(t0)}')
    a(f's_mov_b32 {sr(g.sLdw)}, 2048')
    a(f'{lj}:')
    a(f's_mov_b32 {sr(g.sLdo)}, {sr(g.sLdw)}')
    a(f's_mov_b32 {sr(g.sLdx)}, 2048')
    a(f's_lshl_b32 {sr(t0)}, {sr(t2)}, 19')
    a(f's_add_u32 {sr(g.SX)}, {sr(kX)}, {sr(t0)}')
    a(f's_addc_u32 {sr(g.SX+1)}, {sr(kX+1)}, 0')
    srd(a, g.SX, sr(g.SX), sr(g.SX+1), 256*2048)
    a(f's_lshl_b32 {sr(t1)}, {sr(t1)}, 9')
    a(f's_add_u32 {sr(g.SW)}, {sr(p0)}, {sr(t1)}')
    a(f's_addc_u32 {sr(g.SW+1)}, {sr(p0+1)}, 0')
    a(f's_lshl_b32 {sr(t0)}, {sr(g.sLdw)}, 10')
    a(f's_sub_u32 {sr(t0)}, {sr(t0)}, {sr(t1)}')
    srd(a, g.SW, sr(g.SW), sr(g.SW+1), sr(t0))
    a(f's_cmp_eq_u32 {sr(g.sOM)}, 0')
    a(f's_cselect_b32 {sr(t0)}, 0, 5')
    a(f's_lshl_b32 {sr(t1)}, {sr(t1)}, {sr(t0)}')
    a(f's_lshl_b32 {sr(t0)}, {sr(g.sLdo)}, 8')
    a(f's_mul_i32 {sr(t2)}, {sr(t2)}, {sr(t0)}')
    a(f's_add_u32 {sr(t2)}, {sr(t2)}, {sr(t3)}')
    a(f's_add_u32 {sr(t2)}, {sr(t2)}, {sr(t1)}')
    a(f's_add_u32 {sr(g.SO)}, {sr(kWs)}, {sr(t2)}')
    a(f's_addc_u32 {sr(g.SO+1)}, {sr(kWs+1)}, 0')
    a(f's_sub_u32 {sr(t0)}, {sr(t0)}, {sr(t1)}')
    srd(a, g.SO, sr(g.SO), sr(g.SO+1), sr(t0))
    a(f's_mov_b32 {sr(g.sOx)}, 0')
    a(f's_mov_b32 {sr(g.sOw)}, 0')
    g.setup()
    g.main(16)
    st.stamp(3)
    g.epilogue()
    st.stamp(4)
    a('s_waitcnt vmcnt(0)')
    st.stamp(5); st.stamp(7, True)
    st.flush(sr(kWs), sr(kWs+1), STAMP, g.vT)
    a(f'{name}_end:')
    a('s_endpgm')
    a(f'{name}_small:')
    S0 = 64
    a(f's_cmp_ge_u32 s2, 424')
    a(f's_cbranch_scc1 {name}_gate')
    a(f's_sub_u32 s3, s2, 416')
    kva_job(a, 's3', sr(g.sWv), S0, t0)
    a('s_endpgm')
    a(f'{name}_gate:')
    a(f's_cmp_ge_u32 s2, 456')
    a(f's_cbranch_scc1 {name}_arm')
    a(f's_sub_u32 s3, s2, 424')
    gate_job(a, 's3', sr(g.sWv), S0, t0)
    a('s_endpgm')
    a(f'{name}_arm:')
    a(f's_load_dwordx2 {sr(S0,2)}, s[0:1], {D_WS}')
    a(f's_sub_u32 s3, s2, 456')
    a(f's_lshl_b32 s3, s3, 18')
    a(f'v_lshlrev_b32 v1, 4, v0')
    for i in range(4): a(f'v_mov_b32 v{4+i}, -1')
    a('s_waitcnt lgkmcnt(0)')
    srd(a, S0, sr(S0), sr(S0+1), RING_BYTES, off=COMM)
    for i in range(32):
        a(f'buffer_store_dwordx4 v[4:7], v1, {sr(S0,4)}, s3 offen')
        a(f's_add_u32 s3, s3, 8192')
    a('s_endpgm')
    a.pad()
    return a.text() + kd(name, 256, 256), g.c.lds
```

```python
from asm import *
from layout import *
from small import srd
from chain import *
from attna import attnA_job

class Trace:
    def __init__(self, a, sreg, n):
        self.a = a; self.n = n
        self.cur = sreg.get(2, 2); self.last = sreg.get(); self.acc = sreg.get(n)
    def init(self):
        a = self.a
        for i in range(self.n): a(f's_mov_b32 {sr(self.acc+i)}, 0')
        a(f's_memtime {sr(self.cur,2)}'); a('s_waitcnt lgkmcnt(0)'); a(f's_mov_b32 {sr(self.last)}, {sr(self.cur)}')
    def __call__(self, i):
        a = self.a
        a(f's_memtime {sr(self.cur,2)}'); a('s_waitcnt lgkmcnt(0)')
        a(f's_sub_u32 {sr(self.last)}, {sr(self.cur)}, {sr(self.last)}')
        a(f's_add_u32 {sr(self.acc+i)}, {sr(self.acc+i)}, {sr(self.last)}')
        a(f's_mov_b32 {sr(self.last)}, {sr(self.cur)}')

def gen_k2(name='chain_kernel', diag=False, trace=False, workers=True, force_slow=False, layout4=False, exp=()):
    import chain; chain.EXP.clear(); chain.EXP.update(exp)
    a = Asm()
    sreg = Regs(4, 100, 's')
    c = chain_common(a, sreg)
    kWs = sreg.get(2, 2); SD = sreg.get(4, 4); sX = sreg.get(); sE = sreg.get(2, 2); sJob = sreg.get()
    wT = sreg.get(6); wS = sreg.get(16, 4)
    rt0 = sreg.get(2, 2); rt1 = sreg.get(2, 2)
    tr = Trace(a, sreg, 6) if trace else None
    Lend = f'{name}_end'; Lfin = f'{name}_fin'
    a(kstart(name))
    a('s_cmp_ge_u32 s2, 256')
    a(f's_cbranch_scc1 {Lend}')
    if diag: a(f's_memrealtime {sr(rt0,2)}')
    a(f's_load_dwordx2 {sr(kWs,2)}, s[0:1], {D_WS}')
    a(f's_load_dwordx2 {sr(SD,2)}, s[0:1], {D_DBG}')
    a(f'v_lshrrev_b32 v1, 6, v0')
    a(f'v_readfirstlane_b32 {sr(c.sW)}, v1')
    a(f's_getreg_b32 {sr(sX)}, hwreg(HW_REG_XCC_ID)')
    a(f's_and_b32 {sr(sX)}, {sr(sX)}, 7')
    a('s_waitcnt lgkmcnt(0)')
    srd(a, c.SWS, sr(kWs), sr(kWs+1), WS_BYTES)
    srd(a, SD, sr(SD), sr(SD+1), 256)
    Lr = a.lab('role'); Lw = a.lab('rolew')
    a(f's_cmp_lg_u32 {sr(c.sW)}, 0')
    a(f's_cbranch_scc1 {Lr}')
    a(f's_mov_b64 exec, 1')
    a(f's_lshl_b32 {sr(c.sT)}, {sr(sX)}, 2')
    a(f'v_mov_b32 v1, {sr(c.sT)}')
    a(f'v_mov_b32 v2, 1')
    a(f'v_mov_b32 v3, 1')
    a(f'buffer_atomic_add v2, v1, {sr(SD,4)}, 0 offen sc0 sc1')
    a('s_waitcnt vmcnt(0)')
    a(f'buffer_atomic_add v3, off, {sr(SD,4)}, 0 offset:32 sc0 sc1')
    a(f's_mov_b64 exec, -1')
    a(f'v_lshlrev_b32 v1, 2, v0')
    a(f'v_min_u32 v1, 32, v1')
    a(f's_mov_b32 {sr(c.sSpin)}, {SPIN}')
    a(f'{Lw}:')
    a(f'buffer_load_dword v4, v1, {sr(SD,4)}, 0 offen sc1')
    a(f's_mov_b32 {sr(c.sT)}, 0xfffe')
    a(f's_sub_u32 {sr(c.sSpin)}, {sr(c.sSpin)}, 1')
    a(f's_cbranch_scc1 {Lw}_to')
    a('s_waitcnt vmcnt(0)')
    a(f'v_readlane_b32 {sr(c.sT)}, v4, 8')
    a(f's_cmp_lt_u32 {sr(c.sT)}, 256')
    a(f's_cbranch_scc1 {Lw}')
    a(f'buffer_load_dword v4, v1, {sr(SD,4)}, 0 offen sc1')
    a('s_waitcnt vmcnt(0)')
    a(f'v_readfirstlane_b32 {sr(c.sT)}, v2')
    a(f'v_readfirstlane_b32 {sr(c.sT+1)}, v3')
    if layout4:
        a(f'v_cmp_gt_u32 vcc, 32, v4')
        a(f's_and_b32 vcc_lo, vcc_lo, 15')
        a(f's_lshl_b32 {sr(c.sT+2)}, {sr(sX)}, 5')
        a(f's_add_u32 {sr(c.sT+2)}, {sr(c.sT+2)}, {sr(c.sT)}')
        a(f's_cmp_lt_u32 {sr(c.sT)}, 32')
        a(f's_cselect_b32 {sr(c.sT+2)}, {sr(c.sT+2)}, 128')
    else:
        a(f'v_cmp_gt_u32 vcc, 16, v4')
        a(f's_lshl_b32 {sr(c.sT+2)}, {sr(sX)}, 4')
        a(f's_add_u32 {sr(c.sT+2)}, {sr(c.sT+2)}, {sr(c.sT)}')
        a(f's_cmp_lt_u32 {sr(c.sT)}, 16')
        a(f's_cselect_b32 {sr(c.sT+2)}, {sr(c.sT+2)}, 128')
    a(f's_or_b32 {sr(c.sT+1)}, {sr(c.sT+1)}, 0x10000')
    if force_slow: a(f's_cmp_eq_u32 0, 1')
    else: a(f's_cmp_eq_u32 vcc_lo, 0')
    a(f's_cselect_b32 {sr(c.sT)}, {sr(c.sT+2)}, {sr(c.sT+1)}')
    a(f'{Lw}_to:')
    a('s_waitcnt vmcnt(0)')
    a(f'v_mov_b32 v1, 0')
    a(f'v_mov_b32 v2, {sr(c.sT)}')
    a(f'ds_write_b32 v1, v2')
    a('s_waitcnt lgkmcnt(0)')
    a(f'{Lr}:')
    a('s_barrier')
    a(f'v_mov_b32 v1, 0')
    a(f'ds_read_b32 v2, v1')
    a('s_waitcnt lgkmcnt(0)')
    a(f'v_readfirstlane_b32 {sr(c.sT)}, v2')
    a('s_barrier')
    a(f's_cmp_eq_u32 {sr(c.sT)}, 0xfffe')
    a(f's_cbranch_scc1 {Lend}')
    a(f's_lshr_b32 {sr(c.sMode)}, {sr(c.sT)}, 16')
    a(f's_and_b32 {sr(c.sT)}, {sr(c.sT)}, 0xffff')
    a(f's_cmp_ge_u32 {sr(c.sT)}, 128')
    a(f's_cbranch_scc1 {name}_worker')
    a(f's_lshr_b32 {sr(c.sG)}, {sr(c.sT)}, 4')
    a(f's_and_b32 {sr(c.sC)}, {sr(c.sT)}, 15')
    if tr: tr.init()
    a(f's_cmp_ge_u32 {sr(c.sW)}, 4')
    a(f's_cbranch_scc1 {name}_c')
    bwave(a, c, Lfin, tr)
    a(f'{name}_c:')
    cwave(a, c, Lfin, tr)
    a(f'{Lfin}:')
    if diag:
        a(f's_memrealtime {sr(rt1,2)}')
        a('s_waitcnt vmcnt(0) lgkmcnt(0)')
        a(f's_lshl_b32 {sr(c.sT)}, {sr(c.sG)}, 4')
        a(f's_add_u32 {sr(c.sT)}, {sr(c.sT)}, {sr(c.sC)}')
        a(f's_lshl_b32 {sr(c.sT)}, {sr(c.sT)}, 3')
        a(f's_add_u32 {sr(c.sT)}, {sr(c.sT)}, {sr(c.sW)}')
        a(f's_lshl_b32 {sr(c.sT)}, {sr(c.sT)}, 6')
        a(f's_add_u32 {sr(c.sT)}, {sr(c.sT)}, {STAMP}')
        vals = [sr(rt0), sr(rt1), sr(c.sSpin), sr(c.sS), sr(c.sMode), sr(sX)] + ([sr(tr.acc+i) for i in range(6)] if tr else [])
        a(f'v_mov_b32 v1, {sr(c.sT)}')
        for i, x in enumerate(vals):
            a(f'v_mov_b32 v2, {x}')
            a(f'buffer_store_dword v2, v1, {sr(c.SWS,4)}, 0 offen offset:{4*i}')
    a(f'{Lend}:')
    a('s_endpgm')
    a(f'{name}_worker:')
    if workers:
        Lq = a.lab('wq'); Lq2 = a.lab('wq2')
        a(f'{Lq}:')
        a(f's_cmp_lg_u32 {sr(c.sW)}, 0')
        a(f's_cbranch_scc1 {Lq2}')
        a(f's_mov_b64 exec, 1')
        a(f'v_mov_b32 v2, 1')
        a(f'buffer_atomic_add v2, off, {sr(SD,4)}, 0 offset:128 sc0 sc1')
        a(f'v_mov_b32 v1, {131072+64}')
        a('s_waitcnt vmcnt(0)')
        a(f'ds_write_b32 v1, v2')
        a(f's_mov_b64 exec, -1')
        a('s_waitcnt lgkmcnt(0)')
        a(f'{Lq2}:')
        a('s_barrier')
        a(f'v_mov_b32 v1, {131072+64}')
        a(f'ds_read_b32 v2, v1')
        a('s_waitcnt lgkmcnt(0)')
        a(f'v_readfirstlane_b32 {sr(sJob)}, v2')
        a(f's_cmp_ge_u32 {sr(sJob)}, 128')
        a(f's_cbranch_scc1 {Lend}')
        attnA_job(a, sr(sJob), sr(c.sW), wS, wT, kWs)
        a('s_barrier')
        a(f's_branch {Lq}')
    else:
        a('s_endpgm')
    a.pad()
    return a.text() + kd(name, 256, 256), 163840
```

```python
from asm import *
from gemm16 import *
from layout import *
from small import *

def gen_k4(name='fin_kernel', TN=128, TM=128):
    a = Asm()
    sreg = Regs(4, 100, 's'); vreg = Regs(1, 256, 'v')
    kWo = sreg.get(2, 2); kWo2 = sreg.get(2, 2); kWs = sreg.get(2, 2); kO = sreg.get(2, 2)
    t0 = sreg.get(); t1 = sreg.get(); t2 = sreg.get(); nr2 = sreg.get()
    g = Gemm16(a, GemmCfg16(TN, TM), sreg, vreg)
    nn = 1024 // TN; nm = 2048 // TM
    a(kstart(name))
    a(f's_cmp_ge_u32 s2, {nn*nm}')
    a(f's_cbranch_scc1 {name}_end')
    a(f's_load_dwordx2 {sr(kWo,2)}, s[0:1], {A_WO}')
    a(f's_load_dwordx2 {sr(kWo2,2)}, s[0:1], {B_WO}')
    a(f's_load_dwordx2 {sr(kWs,2)}, s[0:1], {D_WS}')
    a(f's_load_dwordx2 {sr(kO,2)}, s[0:1], {D_OUT}')
    a(f'v_lshrrev_b32 v1, 6, v0')
    a(f'v_readfirstlane_b32 {sr(g.sWv)}, v1')
    a(f's_lshr_b32 {sr(t0)}, s2, 3')
    a(f's_and_b32 {sr(t1)}, {sr(t0)}, {nn-1}')
    a(f's_lshr_b32 {sr(t0)}, {sr(t0)}, {nn.bit_length()-1}')
    a(f's_lshl_b32 {sr(t0)}, {sr(t0)}, 3')
    a(f's_and_b32 {sr(t2)}, s2, 7')
    a(f's_add_u32 {sr(t2)}, {sr(t2)}, {sr(t0)}')
    a(f's_mov_b32 {sr(g.sLdw)}, 2048')
    a(f's_mov_b32 {sr(g.sLdo)}, 2048')
    a(f's_mov_b32 {sr(g.sLdx)}, 10240')
    a(f's_mov_b32 {sr(g.sOM)}, 0')
    a(f's_mul_i32 {sr(t1)}, {sr(t1)}, {TN*2}')
    a('s_waitcnt lgkmcnt(0)')
    a(f's_mul_i32 {sr(t0)}, {sr(t2)}, {TM*10240}')
    a(f's_add_u32 {sr(t0)}, {sr(t0)}, {OCAT}')
    srd(a, g.SX, sr(kWs), sr(kWs+1), TM*10240, off=sr(t0))
    a(f's_sub_u32 {sr(t0)}, {1024*2048}, {sr(t1)}')
    srd(a, g.SW, sr(kWo), sr(kWo+1), sr(t0), off=sr(t1))
    a(f's_add_u32 {sr(kWo2)}, {sr(kWo2)}, {sr(t1)}')
    a(f's_addc_u32 {sr(kWo2+1)}, {sr(kWo2+1)}, 0')
    a(f's_and_b32 {sr(kWo2+1)}, {sr(kWo2+1)}, 0xffff')
    a(f's_sub_u32 {sr(nr2)}, {4096*2048}, {sr(t1)}')
    a(f's_mul_i32 {sr(t0)}, {sr(t2)}, {TM*2048}')
    a(f's_add_u32 {sr(t0)}, {sr(t0)}, {sr(t1)}')
    a(f's_sub_u32 {sr(t1)}, {TM*2048}, {sr(t1)}')
    srd(a, g.SO, sr(kO), sr(kO+1), sr(t1), off=sr(t0))
    a(f's_mov_b32 {sr(g.sOx)}, 0')
    a(f's_mov_b32 {sr(g.sOw)}, 0')
    def switch():
        return '\n'.join([f's_cmp_eq_u32 {sr(g.sOx)}, 2048',
            f's_cselect_b32 {sr(g.SW)}, {sr(kWo2)}, {sr(g.SW)}',
            f's_cselect_b32 {sr(g.SW+1)}, {sr(kWo2+1)}, {sr(g.SW+1)}',
            f's_cselect_b32 {sr(g.SW+2)}, {sr(nr2)}, {sr(g.SW+2)}',
            f's_cselect_b32 {sr(g.sOw)}, 0, {sr(g.sOw)}'])
    g.switch = switch
    g.setup()
    g.main(80)
    g.epilogue(scale=False)
    a(f'{name}_end:')
    a('s_endpgm')
    a.pad()
    return a.text() + kd(name, 256, 256), g.c.lds, nn*nm
```

```python
QX = 0x0000000; KX = 0x1000000; VX = 0x2000000
QA = 0x3000000; KVF = 0x3400000; GT = 0x3440000
OCAT = 0x4000000
KM = 0x6000000; VM = 0x6400000
COMM = 0x7000000
PART = COMM; MEMB = COMM + 0x100000; QKV = COMM + 0x200000; RING_BYTES = 0x300000
STAMP = 0xF000000
WS_BYTES = 268435456
A_X=0; A_WQ=8; A_WK=16; A_WV=24; A_WO=32; B_X=40; B_MEM0=48; B_WQ=56; B_WK=64; B_WV=72; B_WO=80; B_SEG=88; GATE_W=96; D_OUT=104; D_DBG=112; D_WS=120
import struct, math
def f32bits(x): return struct.unpack('<I', struct.pack('<f', x))[0]
LOG2E = 1.4426950408889634
```

```python
from asm import *
from layout import *

def srd(a, S, lo, hi, nrec, off=None):
    if off is not None:
        a(f's_add_u32 {sr(S)}, {lo}, {off}')
        a(f's_addc_u32 {sr(S+1)}, {hi}, 0')
        a(f's_and_b32 {sr(S+1)}, {sr(S+1)}, 0xffff')
    else:
        if lo != sr(S): a(f's_mov_b32 {sr(S)}, {lo}')
        a(f's_and_b32 {sr(S+1)}, {hi}, 0xffff')
    a(f's_mov_b32 {sr(S+2)}, {nrec}')
    a(f's_mov_b32 {sr(S+3)}, 0x20000')

def kva_job(a, sJob, sW, S0, sT, storemod='', late=None):
    SX, SK, SV, SO = S0, S0 + 4, S0 + 8, S0 + 12
    a(f's_load_dwordx2 {sr(SX,2)}, s[0:1], {A_X}')
    a(f's_load_dwordx2 {sr(SK,2)}, s[0:1], {A_WK}')
    a(f's_load_dwordx2 {sr(SV,2)}, s[0:1], {A_WV}')
    a(f's_load_dwordx2 {sr(SO,2)}, s[0:1], {D_WS}')
    L, T1, T2, vX, vWk, vWv, vOk, vOv = 1, 2, 3, 4, 5, 6, 7, 8
    acc = 12; fw = 44; fx = 76
    a(f'v_and_b32 v{L}, 63, v0')
    a(f'v_lshlrev_b32 v{T1}, 4, v0')
    a(f's_waitcnt lgkmcnt(0)')
    srd(a, SX, sr(SX), sr(SX+1), 2048*2048)
    srd(a, SK, sr(SK), sr(SK+1), 65536)
    srd(a, SV, sr(SV), sr(SV+1), 65536)
    srd(a, SO, sr(SO), sr(SO+1), 262144, off=KVF)
    a(f's_lshl_b32 {sr(sT)}, {sW}, 10')
    for m in range(8):
        a(f's_add_u32 m0, {sr(sT)}, {m*8192}')
        a(f's_mov_b32 {sr(sT+1)}, {m*8192}')
        a(f'buffer_load_dwordx4 v{T1}, {sr(SK,4)}, {sr(sT+1)} offen lds')
        a(f's_add_u32 m0, {sr(sT)}, {65536+m*8192}')
        a(f'buffer_load_dwordx4 v{T1}, {sr(SV,4)}, {sr(sT+1)} offen lds')
    a(f's_lshl_b32 {sr(sT)}, {sJob}, 3')
    a(f's_add_u32 {sr(sT)}, {sr(sT)}, {sW}')
    a(f'v_and_b32 v{T1}, 15, v{L}')
    a(f'v_lshrrev_b32 v{T2}, 4, v{L}')
    a(f'v_lshlrev_b32 v{vX}, 11, v{T1}')
    a(f'v_lshl_add_u32 v{vX}, v{T2}, 4, v{vX}')
    a(f's_lshl_b32 {sr(sT+1)}, {sr(sT)}, 16')
    a(f'v_add_u32 v{vX}, {sr(sT+1)}, v{vX}')
    a(f's_mov_b32 {sr(sT+1)}, 32768')
    def xload(b):
        for ks in range(8):
            for u in range(2):
                r = fx + (b & 1) * 64 + ks * 8 + u * 4
                a(f'buffer_load_dwordx4 {vr(r,4)}, v{vX}, {sr(SX,4)}, {sr(sT+1) if u else 0} offen offset:{(b*8+ks)*64}')
    xload(0)
    a(f'v_lshrrev_b32 v{vWk}, 2, v{L}')
    a(f'v_and_b32 v{vWk}, 3, v{vWk}')
    a(f'v_lshl_add_u32 v{vWk}, v{T2}, 3, v{vWk}')
    a(f'v_lshlrev_b32 v{vWk}, 6, v{vWk}')
    a(f'v_and_b32 v{vWv}, 3, v{L}')
    a(f'v_lshl_add_u32 v{vWk}, v{vWv}, 3, v{vWk}')
    a(f'v_add_u32 v{vWv}, 65536, v{vWk}')
    a(f'v_lshrrev_b32 v{vOk}, 5, v{L}')
    a(f'v_lshlrev_b32 v{vOk}, 10, v{vOk}')
    a(f'v_lshl_add_u32 v{vOk}, v{T1}, 4, v{vOk}')
    a(f'v_and_b32 v{vOv}, 16, v{L}')
    a(f'v_lshl_add_u32 v{vOk}, v{vOv}, 5, v{vOk}')
    a(f's_lshl_b32 {sr(sT)}, {sr(sT)}, 12')
    a(f'v_add_u32 v{vOk}, {sr(sT)}, v{vOk}')
    a(f'v_lshlrev_b32 v{vOv}, 6, v{vOv}')
    a(f'v_lshrrev_b32 v{T2}, 5, v{L}')
    a(f'v_lshl_add_u32 v{vOv}, v{T2}, 9, v{vOv}')
    a(f'v_and_b32 v{T2}, 3, v{L}')
    a(f'v_lshl_add_u32 v{vOv}, v{T2}, 4, v{vOv}')
    a(f'v_and_b32 v{T2}, 12, v{L}')
    a(f'v_lshl_add_u32 v{vOv}, v{T2}, 5, v{vOv}')
    a(f'v_add_u32 v{vOv}, {sr(sT)}, v{vOv}')
    for i in range(32): a(f'v_mov_b32 v{acc+i}, 0')
    a('s_waitcnt vmcnt(16)')
    a('s_barrier')
    def wread(ks, st):
        for t in range(4):
            base = vWk if t < 2 else vWv
            for wh in range(2):
                a(f'ds_read_b64_tr_b16 {vr(fw+st*16+t*4+wh*2,2)}, v{base} offset:{ks*2048+wh*256+(t&1)*32}')
    wread(0, 0)
    for b in range(4):
        if b < 3: xload(b + 1); a('s_waitcnt vmcnt(16)')
        else: a('s_waitcnt vmcnt(0)')
        for ks in range(8):
            g = b * 8 + ks; st = g & 1
            if g < 31: wread(g + 1, st ^ 1); a('s_waitcnt lgkmcnt(8)')
            else: a('s_waitcnt lgkmcnt(0)')
            for u in range(2):
                X = vr(fx + (b & 1) * 64 + ks * 8 + u * 4, 4)
                for t in range(2):
                    A = vr(acc + (u * 2 + t) * 4, 4)
                    a(f'v_mfma_f32_16x16x32_bf16 {A}, {vr(fw+st*16+t*4,4)}, {X}, {A}')
                for t in range(2):
                    A = vr(acc + 16 + (t * 2 + u) * 4, 4)
                    a(f'v_mfma_f32_16x16x32_bf16 {A}, {X}, {vr(fw+st*16+8+t*4,4)}, {A}')
    if late: a('s_barrier'); late()
    for p in range(4):
        b = acc + 8 * p
        for r in range(4): a(f'v_cvt_pk_bf16_f32 v{b+r}, v{b+2*r}, v{b+2*r+1}')
    for p in range(4):
        b = acc + 8 * p
        a(f'v_permlane16_swap_b32 v{b}, v{b+2}')
        a(f'v_permlane16_swap_b32 v{b+1}, v{b+3}')
    for u in range(2):
        a(f'buffer_store_dwordx4 {vr(acc+8*u,4)}, v{vOk}, {sr(SO,4)}, 0 offen offset:{256*u}{storemod}')
    for t in range(2):
        a(f'buffer_store_dwordx4 {vr(acc+16+8*t,4)}, v{vOv}, {sr(SO,4)}, 0 offen offset:{2048+64*t}{storemod}')

def wave_sum(a, regs):
    for ctl in ('row_shr:1', 'row_shr:2', 'row_shr:4', 'row_shr:8'):
        for r in regs: a(f'v_add_f32_dpp v{r}, v{r}, v{r} {ctl} row_mask:0xf bank_mask:0xf bound_ctrl:0')
    for r in regs: a(f'v_add_f32_dpp v{r}, v{r}, v{r} row_bcast:15 row_mask:0xa bank_mask:0xf')
    for r in regs: a(f'v_add_f32_dpp v{r}, v{r}, v{r} row_bcast:31 row_mask:0xc bank_mask:0xf')

def gate_job(a, sJob, sW, S0, sT, storemod=''):
    SX, SG, SO = S0, S0 + 4, S0 + 8
    a(f's_load_dwordx2 {sr(SX,2)}, s[0:1], {A_X}')
    a(f's_load_dwordx2 {sr(SG,2)}, s[0:1], {GATE_W}')
    a(f's_load_dwordx2 {sr(SO,2)}, s[0:1], {D_WS}')
    L, T = 1, 2
    gw = 8; gf = 16; xs = 32; sm = 96; tp = 112
    a(f'v_and_b32 v{L}, 63, v0')
    a(f'v_lshlrev_b32 v{L}, 5, v{L}')
    a(f's_waitcnt lgkmcnt(0)')
    srd(a, SX, sr(SX), sr(SX+1), 2048*2048)
    srd(a, SG, sr(SG), sr(SG+1), 2048)
    srd(a, SO, sr(SO), sr(SO+1), 16384, off=GT)
    a(f'buffer_load_dwordx4 {vr(gw,4)}, v{L}, {sr(SG,4)}, 0 offen')
    a(f'buffer_load_dwordx4 {vr(gw+4,4)}, v{L}, {sr(SG,4)}, 0 offen offset:16')
    a(f's_lshl_b32 {sr(sT)}, {sJob}, 3')
    a(f's_add_u32 {sr(sT)}, {sr(sT)}, {sW}')
    a(f's_lshl_b32 {sr(sT+1)}, {sr(sT)}, 14')
    for t in range(8):
        a(f'buffer_load_dwordx4 {vr(xs+8*t,4)}, v{L}, {sr(SX,4)}, {sr(sT+1)} offen')
        a(f'buffer_load_dwordx4 {vr(xs+8*t+4,4)}, v{L}, {sr(SX,4)}, {sr(sT+1)} offen offset:16')
        a(f's_add_u32 {sr(sT+1)}, {sr(sT+1)}, 2048')
    a('s_waitcnt vmcnt(16)')
    for i in range(8):
        a(f'v_lshlrev_b32 v{gf+2*i}, 16, v{gw+i}')
        a(f'v_and_b32 v{gf+2*i+1}, 0xffff0000, v{gw+i}')
    for t in range(8):
        a(f's_waitcnt vmcnt({14-2*t})')
        for i in range(8):
            a(f'v_lshlrev_b32 v{tp+2*i}, 16, v{xs+8*t+i}')
            a(f'v_and_b32 v{tp+2*i+1}, 0xffff0000, v{xs+8*t+i}')
        for i in range(16): a(f'v_mul_f32 v{tp+i}, v{tp+i}, v{gf+i}')
        for i in range(8): a(f'v_cvt_pk_bf16_f32 v{tp+i}, v{tp+2*i}, v{tp+2*i+1}')
        for i in range(8):
            a(f'v_lshlrev_b32 v{tp+8+i}, 16, v{tp+i}')
            a(f'v_and_b32 v{tp+i}, 0xffff0000, v{tp+i}')
        for i in range(8): a(f'v_add_f32 v{tp+i}, v{tp+i}, v{tp+8+i}')
        for i in range(4): a(f'v_add_f32 v{tp+i}, v{tp+i}, v{tp+4+i}')
        for i in range(2): a(f'v_add_f32 v{tp+i}, v{tp+i}, v{tp+2+i}')
        a(f'v_add_f32 v{sm+t}, v{tp}, v{tp+1}')
    wave_sum(a, [sm + t for t in range(8)])
    for t in range(8): a(f'v_cvt_pk_bf16_f32 v{sm+t}, v{sm+t}, v{sm+t}')
    for t in range(8): a(f'v_and_b32 v{sm+t}, 0xffff0000, v{sm+t}')
    for t in range(8): a(f'v_mul_f32 v{sm+t}, {f32bits(-LOG2E):#x}, v{sm+t}')
    for t in range(8): a(f'v_exp_f32 v{sm+t}, v{sm+t}')
    for t in range(8): a(f'v_add_f32 v{sm+t}, 1.0, v{sm+t}')
    for t in range(8): a(f'v_rcp_f32 v{sm+t}, v{sm+t}')
    for t in range(8): a(f'v_cvt_pk_bf16_f32 v{sm+t}, v{sm+t}, v{sm+t}')
    for t in range(8): a(f'v_and_b32 v{sm+t}, 0xffff0000, v{sm+t}')
    for t in range(8): a(f'v_sub_f32 v{sm+8+t}, 1.0, v{sm+t}')
    for t in range(8): a(f'v_cvt_pk_bf16_f32 v{sm+8+t}, v{sm+8+t}, v{sm+8+t}')
    for t in range(8): a(f'v_and_b32 v{sm+8+t}, 0xffff0000, v{sm+8+t}')
    a(f's_lshl_b32 {sr(sT)}, {sr(sT)}, 5')
    a(f'v_mov_b32 v{T}, {sr(sT)}')
    a(f's_mov_b64 exec, 0x8000000000000000') if False else None
    a(f's_mov_b32 exec_lo, 0')
    a(f's_mov_b32 exec_hi, 0x80000000')
    a(f'buffer_store_dwordx4 {vr(sm,4)}, v{T}, {sr(SO,4)}, 0 offen{storemod}')
    a(f'buffer_store_dwordx4 {vr(sm+4,4)}, v{T}, {sr(SO,4)}, 0 offen offset:16{storemod}')
    a(f's_mov_b32 {sr(sT+1)}, 8192')
    a(f'buffer_store_dwordx4 {vr(sm+8,4)}, v{T}, {sr(SO,4)}, {sr(sT+1)} offen{storemod}')
    a(f'buffer_store_dwordx4 {vr(sm+12,4)}, v{T}, {sr(SO,4)}, {sr(sT+1)} offen offset:16{storemod}')
    a(f's_mov_b64 exec, -1')
```

```python
import sys
sys.path.insert(0, 'gen')
from asm import *
from k1 import gen_k1
from attna import gen_attna
from attnb import gen_attnb
from k2 import gen_k2
from k4 import gen_k4
HDR = open('gated_mix__grouped_kv_mqa__memory_aug_recurrent_mem_tr__prompt.s.ref').read().split('; Override launch')[0]
def build(parts):
    o = HDR
    for n, t, g, b, l in parts:
        o += f'; @launch kernel={n} grid=({g},1,1) block=({b},1,1) lds={l}\n'
    o += '.amdgcn_target "amdgcn-amd-amdhsa--gfx950"\n.text\n'
    seen = set()
    for n, t, g, b, l in parts:
        if n not in seen: o += t
        seen.add(n)
    return o
if __name__ == '__main__':
    t, l = gen_k1()
    kw = dict(diag=True); kw.update(eval('dict(' + (sys.argv[2] if len(sys.argv) > 2 else '') + ')'))
    t2, l2 = gen_k2(**kw)
    t3, l3 = gen_attnb()
    t4, l4, g4 = gen_k4()
    s = build([('proj_kernel', t, 480, 512, l), ('chain_kernel', t2, 256, 512, l2), ('attnb_kernel', t3, 256, 512, l3), ('fin_kernel', t4, g4, 512, l4)])
    open(sys.argv[1] if len(sys.argv) > 1 else 'out.s', 'w').write(s)
```

```python
from asm import *
from layout import *
from small import srd

NSTEP = 64
SPIN = 400000
P = dict(d1=0, d1b=2, depth1=2, dq=0, pub='quad', vint=3, nov=0, nok=0, noar=0)
SCL = f32bits(128**-0.5*LOG2E)
QI = 0; KI = 2560; KF = 8192; CO = 16384; FLAG = 24576; VB = 65536

class ChainCtx: pass

def chain_common(a, sreg):
    c = ChainCtx()
    c.sW = sreg.get(); c.sG = sreg.get(); c.sC = sreg.get(); c.sMode = sreg.get()
    c.SWS = sreg.get(4, 4); c.SA = sreg.get(4, 4); c.SB = sreg.get(4, 4); c.SC = sreg.get(4, 4)
    c.sS = sreg.get(); c.sSlot = sreg.get(); c.sArm = sreg.get(); c.sSpin = sreg.get()
    c.sT = sreg.get(4, 2); c.sAr = sreg.get(); c.sD = sreg.get(); c.sFb = sreg.get(); c.sMask = sreg.get(2, 2)
    c.sB1 = sreg.get(); c.sB2 = sreg.get(); c.sO1 = sreg.get(); c.sO2 = sreg.get(); c.sV = sreg.get(); c.sM0 = sreg.get()
    c.sEx = sreg.get(2, 2)
    return c

def bits(a, D, L, T, spec, base=None):
    first = True
    for mask, sh in spec:
        a(f'v_and_b32 v{T}, {mask}, v{L}')
        if sh < 0:
            a(f'v_lshrrev_b32 v{T}, {-sh}, v{T}'); sh = 0
        if first: a(f'v_lshlrev_b32 v{D}, {sh}, v{T}')
        else: a(f'v_lshl_add_u32 v{D}, v{T}, {sh}, v{D}')
        first = False
    if base is not None: a(f'v_add_u32 v{D}, {base}, v{D}')

def delay(a, n):
    if n > 0: a(f's_sleep {n}')

def spin(a, c, Lend):
    a(f's_sub_u32 {sr(c.sSpin)}, {sr(c.sSpin)}, 1')
    a(f's_cbranch_scc1 {Lend}')

PERM4 = [(1, 2), (12, 1), (2, 4), (48, 2)]

def bwave(a, c, Lend, tr=None):
    b = sr(c.sW); T0 = c.sT
    v = Regs(1, 256)
    L = v.get(); T = v.get(); L16 = v.get()
    vMS = v.get(); vQS = v.get(); vAr = v.get(); vLW = v.get(); vLWk = v.get(); vLWv = v.get(); vIdx = v.get(); vFl = v.get()
    M1 = v.get(2, 2); PK = v.get(2, 2); SEL = v.get(4, 4)
    AF = v.get(16, 4); ACC = v.get(24, 4); W = v.get(192, 4)
    T2 = PK
    WS = sr(c.SWS, 4)
    a(f's_load_dwordx2 {sr(c.SA,2)}, s[0:1], {B_WQ}')
    a(f's_load_dwordx2 {sr(c.SB,2)}, s[0:1], {B_WK}')
    a(f's_load_dwordx2 {sr(c.SC,2)}, s[0:1], {B_WV}')
    a(f'v_and_b32 v{L}, 63, v0')
    a(f'v_lshlrev_b32 v{L16}, 4, v{L}')
    a(f's_lshl_b32 {sr(T0)}, {sr(c.sG)}, 4')
    a(f's_add_u32 {sr(T0)}, {sr(T0)}, {sr(c.sC)}')
    a(f's_lshl_b32 {sr(T0+1)}, {sr(T0)}, 6')
    a(f's_lshl_b32 {sr(T0+2)}, {b}, 21')
    a(f's_add_u32 {sr(T0+2)}, {sr(T0+2)}, {sr(T0+1)}')
    bits(a, vQS, L, T, [(60, 11), (3, 4)], sr(T0+2))
    a(f's_mul_i32 {sr(T0+3)}, {b}, 24576')
    bits(a, vMS, L, T, [(12, 4), (48, 5), (3, 3)], sr(T0+3))
    a('s_waitcnt lgkmcnt(0)')
    for S in (c.SA, c.SB, c.SC): srd(a, S, sr(S), sr(S+1), 1024*8192)
    for rho in range(2):
        for m in range(8):
            a(f's_mov_b32 {sr(T0+2)}, {(128*rho+16*m)*8192}')
            for ty, S in enumerate((c.SA, c.SB, c.SC)):
                a(f's_add_u32 m0, {sr(T0+3)}, {ty*8192+m*1024}')
                a(f'buffer_load_dwordx4 v{vQS}, {sr(S,4)}, {sr(T0+2)} offen lds')
        a('s_waitcnt vmcnt(0)')
        for t in range(6):
            for jj in range(2):
                for q in range(4):
                    off = (t >> 1) * 8192 + (jj * 64 + 32 * (q >> 1) + 4 * (q & 1)) * 64 + (t & 1) * 32
                    a(f'ds_read_b64_tr_b16 {vr(W+(t*4+2*rho+jj)*8+2*q,2)}, v{vMS} offset:{off}')
            a('s_waitcnt lgkmcnt(0)')
    a(f's_load_dwordx2 {sr(c.SA,2)}, s[0:1], {B_MEM0}')
    a(f's_lshl_b32 {sr(c.sB1)}, {sr(c.sC)}, 13')
    a(f's_lshl_b32 {sr(T0+1)}, {b}, 11')
    a(f's_add_u32 {sr(c.sB1)}, {sr(c.sB1)}, {sr(T0+1)}')
    a(f's_add_u32 {sr(c.sB1)}, {sr(c.sB1)}, {PART}')
    a(f's_lshl_b32 {sr(c.sB2)}, {sr(c.sG)}, 14')
    a(f's_lshl_b32 {sr(T0+1)}, {b}, 12')
    a(f's_add_u32 {sr(c.sB2)}, {sr(c.sB2)}, {sr(T0+1)}')
    a(f's_add_u32 {sr(c.sB2)}, {sr(c.sB2)}, {MEMB}')
    a(f's_lshl_b32 {sr(T0+1)}, {sr(T0)}, 10')
    a(f's_lshl_b32 {sr(T0+2)}, {b}, 8')
    a(f's_add_u32 {sr(T0+1)}, {sr(T0+1)}, {sr(T0+2)}')
    a(f's_add_u32 {sr(T0+1)}, {sr(T0+1)}, {MEMB}')
    bits(a, vMS, L, T, [(15, 4), (16, -1)], sr(T0+1))
    a(f's_lshr_b32 {sr(T0+1)}, {sr(T0)}, 2')
    a(f's_lshl_b32 {sr(T0+1)}, {sr(T0+1)}, 13')
    a(f's_and_b32 {sr(T0+2)}, {sr(T0)}, 3')
    a(f's_lshl_b32 {sr(T0+2)}, {sr(T0+2)}, 9')
    a(f's_add_u32 {sr(T0+1)}, {sr(T0+1)}, {sr(T0+2)}')
    a(f's_add_u32 {sr(T0+1)}, {sr(T0+1)}, {QKV+4096}')
    bits(a, vQS, L, T, [(1, 3), (2, 3), (4, 5), (8, 3), (16, 1), (32, 3)], sr(T0+1))
    bits(a, vAr, L, T, [(1, 4), (2, 1)])
    bits(a, T2, L, T, [(3, 3)])
    a(f's_cmp_eq_u32 {b}, 2')
    a(f's_cselect_b64 vcc, -1, 0')
    a(f's_mov_b32 {sr(T0+1)}, {KM}')
    a(f's_cselect_b32 {sr(T0+1)}, {VM}, {sr(T0+1)}')
    a(f'v_cndmask_b32 v{T2}, v{T2}, v{vAr}, vcc')
    a(f's_lshl_b32 {sr(T0+2)}, {sr(T0)}, 6')
    a(f's_add_u32 {sr(T0+1)}, {sr(T0+1)}, {sr(T0+2)}')
    bits(a, vAr, L, T, [(12, 12), (16, 9), (32, 0)], sr(T0+1))
    a(f'v_add_u32 v{vAr}, v{vAr}, v{T2}')
    a(f's_lshr_b32 {sr(T0+1)}, {b}, 1')
    a(f's_mul_i32 {sr(T0+1)}, {sr(T0+1)}, 1280')
    a(f's_and_b32 {sr(T0+2)}, {b}, 1')
    a(f's_lshl_b32 {sr(T0+2)}, {sr(T0+2)}, 2')
    a(f's_add_u32 {sr(T0+1)}, {sr(T0+1)}, {sr(T0+2)}')
    bits(a, vLW, L, T, [(15, 5), (15, 3), (48, -1)], sr(T0+1))
    a(f's_lshl_b32 {sr(T0+1)}, {b}, 11')
    a(f's_add_u32 {sr(T0+1)}, {sr(T0+1)}, {KF}')
    bits(a, vLWk, L, T, [(63, 2)], sr(T0+1))
    bits(a, vLWv, L, T, PERM4, sr(T0+1))
    bits(a, vFl, L, T, [(3, 2)], FLAG)
    a(f'v_and_b32 v{T}, 2, v{L}')
    a(f'v_cmp_eq_u32 vcc, 0, v{T}')
    a(f'v_mov_b32 v{T}, 0xeeeeeeee')
    a(f'v_mov_b32 v{T2}, 0x44444444')
    a(f'v_cndmask_b32 v{vIdx}, v{T}, v{T2}, vcc')
    a(f'v_mov_b32 v{M1}, -1')
    a(f'v_mov_b32 v{M1+1}, -1')
    bits(a, T2, L, T, [(1, 4)])
    a(f'v_mov_b32 v{T}, 0x3f80')
    a(f'v_lshlrev_b32 v{T2}, v{T2}, v{T}')
    a(f'v_and_b32 v{T}, 6, v{L}')
    for p in range(4):
        a(f'v_cmp_eq_u32 vcc, {2*p}, v{T}')
        a(f'v_cndmask_b32 v{SEL+p}, 0, v{T2}, vcc')
    bits(a, T2, L, T, [(1, 11), (12, 10), (2, 1), (48, 1)])
    a(f's_lshl_b32 {sr(T0+1)}, {b}, 9')
    a('s_waitcnt lgkmcnt(0)')
    srd(a, c.SA, sr(c.SA), sr(c.SA+1), 16384)
    for j in range(4):
        for p in range(4):
            a(f'buffer_load_dword v{AF+4*j+p}, v{T2}, {sr(c.SA,4)}, {sr(T0+1)} offen offset:{128*j+8*p}')
    a(f's_lshl_b32 {sr(c.sV)}, {sr(c.sG)}, 2')
    a(f's_add_u32 {sr(c.sV)}, {sr(c.sV)}, {b}')
    a(f's_lshl_b32 {sr(c.sV)}, {sr(c.sV)}, 13')
    a(f's_add_u32 {sr(c.sV)}, {sr(c.sV)}, {VX}')
    a(f's_lshl_b32 {sr(c.sM0)}, {b}, 13')
    a(f's_add_u32 {sr(c.sM0)}, {sr(c.sM0)}, {VB}')
    def vdma():
        for m in range(8):
            a(f's_add_u32 m0, {sr(c.sM0)}, {1024*m}')
            a(f'buffer_load_dwordx4 v{L16}, {WS}, {sr(c.sV)} offen lds')
            a(f's_add_u32 {sr(c.sV)}, {sr(c.sV)}, {1024 if m < 7 else 262144-7168}')
        a(f's_xor_b32 {sr(c.sM0)}, {sr(c.sM0)}, 32768')
    a(f's_mov_b32 {sr(c.sS)}, 0')
    a(f's_mov_b32 {sr(c.sSpin)}, {SPIN}')
    a(f's_mov_b32 {sr(c.sAr)}, 0')
    a(f's_mov_b32 {sr(c.sSlot)}, 0')
    a(f's_mov_b32 {sr(c.sArm)}, {2<<18}')
    a(f's_mov_b32 {sr(c.sO2)}, {sr(c.sB2)}')
    for i in range(24): a(f'v_mov_b32 v{ACC+i}, 0')
    a('s_barrier')
    vdma(); vdma()
    a('s_waitcnt vmcnt(0)')
    a('s_barrier')
    ent = [a.lab('b_ent0'), a.lab('b_ent1')]
    a(f's_cmp_eq_u32 {sr(c.sMode)}, 0')
    a(f's_cbranch_scc1 {ent[0]}')
    a(f's_branch {ent[1]}')
    for mode in range(2):
        sm = ' sc1' if mode else ''
        Lt = a.lab('b_top'); LpA = a.lab('b_pa'); Lsk = a.lab('b_sk'); Lk = a.lab('b_k'); Lf = a.lab('b_f')
        LI = [a.lab('b_i') for _ in range(4)]; LM = [a.lab('b_m') for _ in range(4)]
        D = AF + 8
        def ldA():
            for j in range(2):
                a(f'buffer_load_dwordx4 {vr(AF+4*j,4)}, v{L16}, {WS}, {sr(c.sO1)} offen offset:{1024*j} sc1')
        def ldM(j): return f'buffer_load_dwordx4 {vr(AF+4*j,4)}, v{L16}, {WS}, {sr(c.sO2)} offen offset:{1024*j} sc1'
        a(f'{Lt}:')
        if tr: tr(0)
        delay(a, P['d1'])
        for _ in range(P['depth1'] - 1):
            ldA(); delay(a, P['d1b'])
        a(f'{LpA}:')
        ldA()
        spin(a, c, Lend)
        a(f's_waitcnt vmcnt({2*(P["depth1"]-1)})')
        a(f'v_mfma_f32_16x16x32_bf16 {vr(D,4)}, {vr(SEL,4)}, {vr(AF,4)}, 0')
        a(f'v_mfma_f32_16x16x32_bf16 {vr(D,4)}, {vr(SEL,4)}, {vr(AF+4,4)}, {vr(D,4)}')
        a(f'v_cmp_u_f32 vcc, v{D}, v{D}')
        a(f'v_cvt_pk_bf16_f32 v{PK}, v{D}, v{D+1}')
        a(f'v_cvt_pk_bf16_f32 v{PK+1}, v{D+2}, v{D+3}')
        a(f's_cbranch_vccnz {LpA}')
        a(f'buffer_store_dwordx2 {vr(PK,2)}, v{vMS}, {WS}, {sr(c.sSlot)} offen{sm}')
        if tr: tr(1)
        a(f'{LI[0]}:')
        for j in range(4): a(ldM(j))
        spin(a, c, Lend)
        a('s_waitcnt vmcnt(3)')
        a(f'v_cmp_u_f32 vcc, v{AF}, v{AF+2}')
        a(f's_cbranch_vccnz {LI[0]}')
        a(f'{ent[mode]}:')
        def sm_(t, j): return f'v_smfmac_f32_16x16x64_bf16 {vr(ACC+4*t,4)}, {vr(AF+4*j,4)}, {vr(W+(t*4+j)*8,8)}, v{vIdx}'
        for j in range(4):
            a(f'{LM[j]}:')
            for t in range(3): a(sm_(t, j))
            if j < 3:
                a(f's_waitcnt vmcnt({2-j})')
                a(f'v_cmp_u_f32 vcc, v{AF+4*j+4}, v{AF+4*j+6}')
            a(sm_(3, j))
            if j < 3: a(f's_cbranch_vccnz {LI[j+1]}')
        if tr: tr(2)
        post = []
        for t in range(4):
            X = ACC + 4 * t
            post += [f'v_add_f32 v{X}, v{X}, v{X+2}', f'v_add_f32 v{X+1}, v{X+1}, v{X+3}',
                     f'v_cvt_pk_bf16_f32 v{X+2}, v{X}, v{X+1}', f'ds_write_b32 v{vLW}, v{X+2} offset:{(t>>1)*KI+(t&1)*640}']
        vm = [sm_(4 + (i & 1), i >> 1) for i in range(8)]
        a(vm.pop(0))
        while post:
            for _ in range(P['vint']):
                if post: a(post.pop(0))
            if vm: a(vm.pop(0))
        if vm: a(vm.pop(0))
        a('s_waitcnt lgkmcnt(0)')
        a('s_barrier')
        kw = [f'ds_write2st64_b32 v{vLWk}, v{ACC+8+4*t}, v{ACC+8+4*t+1} offset0:{2*t} offset1:{2*t+1}' for t in range(2)]
        while vm:
            a(vm.pop(0))
            if kw: a(kw.pop(0))
        for x in kw: a(x)
        for t in range(2):
            X = ACC + 16 + 4 * t
            a(f'v_add_f32 v{X}, v{X}, v{X+2}'); a(f'v_add_f32 v{X+1}, v{X+1}, v{X+3}')
            a(f'ds_write2st64_b32 v{vLWv}, v{X}, v{X+1} offset0:{4+2*t} offset1:{4+2*t+1}')
        a(f's_cmp_eq_u32 {b}, 2')
        a('s_waitcnt lgkmcnt(0)')
        a('s_barrier')
        if tr: tr(3); a(f's_cmp_eq_u32 {b}, 2')
        G = AF
        def red(ty):
            for q in range(4): a(f'ds_read_b128 {vr(G+4*q,4)}, v{L16} offset:{KF+2048*q+1024*ty}')
            a('s_waitcnt lgkmcnt(2)')
            for r in range(4): a(f'v_add_f32 v{G+r}, v{G+r}, v{G+4+r}')
            a('s_waitcnt lgkmcnt(1)')
            for r in range(4): a(f'v_add_f32 v{G+r}, v{G+r}, v{G+8+r}')
            a('s_waitcnt lgkmcnt(0)')
            for r in range(4): a(f'v_add_f32 v{G+r}, v{G+r}, v{G+12+r}')
            if ty == 0:
                for r in range(4): a(f'v_mul_f32 v{G+r}, {SCL:#x}, v{G+r}')
            a(f'v_cvt_pk_bf16_f32 v{PK}, v{G}, v{G+1}')
            a(f'v_cvt_pk_bf16_f32 v{PK+1}, v{G+2}, v{G+3}')
        a(f's_cbranch_scc0 {Lk}')
        red(1)
        a(f'buffer_store_dwordx2 {vr(PK,2)}, v{vQS}, {WS}, {sr(c.sSlot)} offen{sm}')
        a(f'buffer_store_dwordx2 {vr(M1,2)}, v{vQS}, {WS}, {sr(c.sArm)} offen{sm}')
        a(f'buffer_store_dword v{PK}, v{vAr}, {WS}, {sr(c.sAr)} offen')
        a(f'buffer_store_dword v{PK+1}, v{vAr}, {WS}, {sr(c.sAr)} offen offset:8')
        a(f's_branch {Lsk}')
        a(f'{Lk}:')
        a(f's_cmp_eq_u32 {b}, 1')
        a(f's_cbranch_scc0 {Lsk}')
        red(0)
        a(f'buffer_store_dwordx2 {vr(PK,2)}, v{vAr}, {WS}, {sr(c.sAr)} offen')
        a(f'{Lsk}:')
        a(f's_add_u32 {sr(c.sS)}, {sr(c.sS)}, 1')
        a(f's_cmp_eq_u32 {sr(c.sS)}, {NSTEP}')
        a(f's_cbranch_scc1 {Lend}')
        if tr: tr(5); tr.flush(ACC)
        for i in range(24): a(f'v_mov_b32 v{ACC+i}, 0')
        a(f'{Lf}:')
        a(f'ds_read_b32 v{T}, v{vFl}')
        spin(a, c, Lend)
        a('s_waitcnt lgkmcnt(0)')
        a(f'v_cmp_gt_u32 vcc, {sr(c.sS)}, v{T}')
        a(f's_cbranch_vccnz {Lf}')
        if tr: tr(4)
        a(f'buffer_store_dwordx2 {vr(M1,2)}, v{vMS}, {WS}, {sr(c.sArm)} offen{sm}')
        if not P['nov']: vdma()
        if not P['noar']: a(f's_add_u32 {sr(c.sAr)}, {sr(c.sAr)}, 65536')
        a(f's_add_u32 {sr(c.sO1)}, {sr(c.sB1)}, {sr(c.sSlot)}')
        a(f's_add_u32 {sr(c.sSlot)}, {sr(c.sSlot)}, {1<<18}')
        a(f's_and_b32 {sr(c.sSlot)}, {sr(c.sSlot)}, {3<<18}')
        a(f's_xor_b32 {sr(c.sArm)}, {sr(c.sSlot)}, {2<<18}')
        a(f's_add_u32 {sr(c.sO2)}, {sr(c.sB2)}, {sr(c.sSlot)}')
        a('s_barrier')
        a(f's_branch {Lt}')
        for j in range(1, 4):
            a(f'{LI[j]}:')
            for jj in range(j, 4): a(ldM(jj))
            spin(a, c, Lend)
            a(f's_waitcnt vmcnt({3-j})')
            a(f'v_cmp_u_f32 vcc, v{AF+4*j}, v{AF+4*j+2}')
            a(f's_cbranch_vccnz {LI[j]}')
            a(f's_branch {LM[j]}')

def cwave(a, c, Lend, tr=None):
    T0 = c.sT; j = sr(c.sD)
    v = Regs(1, 256)
    L = v.get(); T = v.get(); T2 = v.get(); L16 = v.get(); L4 = v.get()
    vK = v.get(); vVR = v.get(); vQR = v.get(); vSS = v.get(); vCW = v.get(); vCR = v.get(); vPS = v.get(); vIdx = v.get(); vFl = v.get(); vOne = v.get()
    M1 = v.get(4, 4); PP = v.get(4, 4); KX_ = v.get(4, 4)
    SX = v.get(16, 4); SM = v.get(4, 4); VMr = v.get(8, 4); E = v.get(6, 2); R = v.get(4, 4)
    VXr = v.get(32, 4); UM = v.get(16, 4); OUT = v.get(20, 4); U = v.get(40, 4); WO = v.get(64, 4)
    assert OUT == UM + 16
    UD = UM; QB = VXr; KA_ = VXr + 8; DS = VXr + 16
    sMask = c.sMask
    WS = sr(c.SWS, 4)
    a(f's_load_dwordx2 {sr(c.SA,2)}, s[0:1], {B_WO}')
    a(f's_sub_u32 {j}, {sr(c.sW)}, 4')
    a(f'v_and_b32 v{L}, 63, v0')
    a(f'v_lshlrev_b32 v{L16}, 4, v{L}')
    a(f'v_lshlrev_b32 v{L4}, 2, v{L}')
    a(f's_lshl_b32 {sr(T0)}, {sr(c.sG)}, 2')
    a(f's_add_u32 {sr(T0)}, {sr(T0)}, {j}')
    a(f's_lshl_b32 {sr(T0+1)}, {sr(T0)}, 18')
    a(f's_lshl_b32 {sr(T0+2)}, {sr(c.sC)}, 7')
    a(f's_add_u32 {sr(T0+1)}, {sr(T0+1)}, {sr(T0+2)}')
    bits(a, vPS, L, T, [(56, 8), (7, 4)], sr(T0+1))
    a(f's_lshl_b32 {sr(T0+3)}, {j}, 14')
    a(f's_add_u32 {sr(T0+3)}, {sr(T0+3)}, 98304')
    a('s_waitcnt lgkmcnt(0)')
    srd(a, c.SA, sr(c.SA), sr(c.SA+1), 4096*2048)
    for m in range(16):
        a(f's_mov_b32 {sr(T0+2)}, {m*8*2048}')
        a(f's_add_u32 m0, {sr(T0+3)}, {m*1024}')
        a(f'buffer_load_dwordx4 v{vPS}, {sr(c.SA,4)}, {sr(T0+2)} offen lds')
    bits(a, vCR, L, T, [(12, 5), (48, 6), (3, 3)], sr(T0+3))
    a(f's_lshl_b32 {sr(c.sB1)}, {sr(T0)}, 13')
    a(f's_add_u32 {sr(c.sB1)}, {sr(c.sB1)}, {QKV}')
    a(f's_lshl_b32 {sr(T0)}, {sr(c.sG)}, 4')
    a(f's_add_u32 {sr(T0)}, {sr(T0)}, {sr(c.sC)}')
    a(f's_lshl_b32 {sr(T0+1)}, {sr(T0)}, 11')
    a(f's_and_b32 {sr(T0+2)}, {j}, 1')
    a(f's_lshl_b32 {sr(T0+2)}, {sr(T0+2)}, 5')
    a(f's_add_u32 {sr(T0+1)}, {sr(T0+1)}, {sr(T0+2)}')
    a(f's_add_u32 {sr(T0+1)}, {sr(T0+1)}, {KX}')
    bits(a, vK, L, T, [(61, 4), (2, 9)], sr(T0+1))
    a(f'buffer_load_dwordx4 {vr(KX_,4)}, v{vK}, {WS}, 0 offen')
    a(f's_lshr_b32 {sr(T0+1)}, {sr(T0)}, 2')
    a(f's_lshl_b32 {sr(T0+1)}, {sr(T0+1)}, 13')
    a(f's_add_u32 {sr(T0+1)}, {sr(T0+1)}, {QKV}')
    a(f's_and_b32 {sr(T0)}, {sr(T0)}, 3')
    a(f's_lshl_b32 {sr(c.sO1)}, {sr(T0)}, 10')
    a(f's_add_u32 {sr(c.sO1)}, {sr(c.sO1)}, {sr(T0+2)}')
    a(f's_lshl_b32 {sr(c.sO2)}, {sr(T0)}, 8')
    a(f's_add_u32 {sr(c.sO2)}, {sr(c.sO2)}, 6144')
    a(f's_cmp_lt_u32 {j}, 2')
    a(f's_cselect_b32 {sr(c.sO1)}, {sr(c.sO1)}, {sr(c.sO2)}')
    a(f's_cselect_b64 vcc, -1, 0')
    a(f's_add_u32 {sr(T0+1)}, {sr(T0+1)}, {sr(c.sO1)}')
    bits(a, vSS, L, T, [(61, 4)])
    a(f'v_cndmask_b32 v{vSS}, v{L4}, v{vSS}, vcc')
    a(f'v_add_u32 v{vSS}, {sr(T0+1)}, v{vSS}')
    bits(a, vQR, L, T, [(12, 3), (12, 1), (48, 4), (48, 2), (3, 3)])
    a(f's_lshl_b32 {sr(T0+1)}, {j}, 13')
    a(f's_add_u32 {sr(T0+1)}, {sr(T0+1)}, {VB}')
    a(f'v_add_u32 v{vVR}, {sr(T0+1)}, v{L16}')
    a(f's_lshl_b32 {sr(T0+1)}, {j}, 11')
    a(f's_add_u32 {sr(T0+1)}, {sr(T0+1)}, {CO}')
    bits(a, vCW, L, T, PERM4, sr(T0+1))
    a(f's_lshl_b32 {sr(T0+1)}, {j}, 2')
    a(f's_add_u32 {sr(T0+1)}, {sr(T0+1)}, {FLAG}')
    a(f'v_mov_b32 v{vFl}, {sr(T0+1)}')
    a(f'v_mov_b32 v{vOne}, 0')
    a(f'v_and_b32 v{T}, 2, v{L}')
    a(f'v_cmp_ne_u32 {sr(sMask,2)}, 0, v{T}')
    a(f'v_mov_b32 v{T}, 0x4444')
    a(f'v_mov_b32 v{T2}, 0xeeee')
    a(f'v_cndmask_b32 v{vIdx}, v{T}, v{T2}, {sr(sMask,2)}')
    a(f'v_and_b32 v{PP}, 1, v{L}')
    a(f'v_cmp_ne_u32 vcc, 0, v{PP}')
    a(f'v_cndmask_b32 v{T}, v{T}, v{T2}, vcc')
    a(f'v_lshl_or_b32 v{vIdx}, v{T}, 16, v{vIdx}')
    for i in range(4): a(f'v_mov_b32 v{M1+i}, -1')
    for t in range(5):
        a(f'v_mov_b32 v{U+8*t+4}, 0'); a(f'v_mov_b32 v{U+8*t+5}, 0')
    for r in (2, 3, 6, 7): a(f'v_mov_b32 v{U+32+r}, 0x3f803f80')
    for r in (0, 1): a(f'v_mov_b32 v{U+32+r}, 0x3f80')
    a(f's_mov_b32 {sr(c.sEx)}, 0x11111111')
    a(f's_mov_b32 {sr(c.sEx+1)}, 0x11111111')
    a('s_waitcnt vmcnt(0)')
    for t in range(4):
        for ch in range(2):
            for q in range(4):
                off = (ch * 64 + 32 * (q >> 1) + 4 * (q & 1)) * 128 + t * 32
                a(f'ds_read_b64_tr_b16 {vr(WO+(t*2+ch)*8+2*q,2)}, v{vCR} offset:{off}')
        a('s_waitcnt lgkmcnt(0)')
    a(f's_lshl_b32 {sr(T0+1)}, {j}, 9')
    a(f's_add_u32 {sr(T0+1)}, {sr(T0+1)}, {CO}')
    bits(a, vCR, L, T, [(63, 3)], sr(T0+1))
    a(f's_lshl_b32 {sr(T0+1)}, {j}, 11')
    a(f's_lshl_b32 {sr(T0+2)}, {sr(c.sC)}, 13')
    a(f's_add_u32 {sr(T0+1)}, {sr(T0+1)}, {sr(T0+2)}')
    a(f's_lshl_b32 {sr(T0+2)}, {sr(c.sG)}, 8')
    a(f's_add_u32 {sr(T0+1)}, {sr(T0+1)}, {sr(T0+2)}')
    a(f's_add_u32 {sr(T0+1)}, {sr(T0+1)}, {PART}')
    bits(a, vPS, L, T, [(3, 2), (28, 3), (32, -1)], sr(T0+1))
    a(f's_mov_b32 {sr(c.sS)}, 0')
    a(f's_mov_b32 {sr(c.sSpin)}, {SPIN}')
    a(f's_mov_b32 {sr(c.sAr)}, 0')
    a(f's_mov_b32 {sr(c.sSlot)}, 0')
    a('s_barrier')
    a(f'ds_write_b32 v{vFl}, v{vOne}')
    a('s_waitcnt lgkmcnt(0)')
    a('s_barrier')
    tops = [a.lab('c_top0'), a.lab('c_top1')]
    a(f's_cmp_lg_u32 {sr(c.sMode)}, 0')
    a(f's_cbranch_scc1 {tops[1]}')
    for mode in range(2):
        sm = ' sc1' if mode else ''
        Lt = tops[mode]; Lp = a.lab('c_p'); Lps = a.lab('c_ps'); Lpz = a.lab('c_pz'); Lsm = a.lab('c_sm'); Lfb = a.lab('c_fb'); Lz = a.lab('c_z')
        L2 = a.lab('c_r2'); L3 = a.lab('c_r3'); Lj = a.lab('c_j'); Lok = a.lab('c_ok'); Lnk = a.lab('c_nk')
        a(f'{Lt}:')
        if tr: tr.flush(VXr)
        for ks in range(4):
            for kt in range(2):
                a(f'ds_read_b128 {vr(VXr+16*kt+4*ks,4)}, v{vVR} offset:{2048*ks+1024*kt}')
        a(f's_xor_b32 {sr(c.sArm)}, {sr(c.sSlot)}, {2<<18}')
        a(f's_add_u32 {sr(c.sO1)}, {sr(c.sB1)}, {sr(c.sSlot)}')
        a(f's_add_u32 {sr(c.sO2)}, {sr(c.sO1)}, 4096')
        a(f's_add_u32 {sr(c.sAr)}, {sr(c.sAr)}, {1<<18}')
        a(f's_mov_b32 {sr(c.sFb)}, 0')
        a('s_waitcnt lgkmcnt(0)')
        a(f'v_xor_b32 v{vVR}, 32768, v{vVR}')
        a(f'v_add_u32 v{vOne}, 1, v{vOne}')
        cv = []
        for t in range(4):
            for ks in range(4):
                for kt in range(2):
                    D = vr(UD + (t * 2 + kt) * 4, 4)
                    a(f'v_mfma_f32_16x16x32_bf16 {D}, {vr(VXr+16*kt+4*ks,4)}, {vr(WO+(t*2+(ks>>1))*8+(ks&1)*4,4)}, {D if ks else 0}')
                    if ks >= 1:
                        for _ in range(2):
                            if cv: a(cv.pop(0))
            for kt in range(2):
                D = UD + (t * 2 + kt) * 4
                cv += [f'v_cvt_pk_bf16_f32 v{U+8*t+2+4*kt}, v{D}, v{D+1}', f'v_cvt_pk_bf16_f32 v{U+8*t+3+4*kt}, v{D+2}, v{D+3}']
            cv += [f'v_mov_b32 v{UD+8*t+i}, 0' for i in range(8)]
        for i in range(32, 36): a(f'v_mov_b32 v{UM+i}, 0')
        for x in cv: a(x)
        a('s_waitcnt vmcnt(0)')
        if tr: tr(0)
        a(f's_cmp_ge_u32 {j}, 2')
        a(f's_cbranch_scc1 {L2}')
        def rdq(R_, base):
            for u in range(2):
                for wh in range(2):
                    a(f'ds_read_b64_tr_b16 {vr(R_+4*u+2*wh,2)}, v{vQR} offset:{base+1280*u+160*wh}')
        a('s_barrier')
        rdq(QB, QI)
        a('s_waitcnt lgkmcnt(2)')
        a(f'v_mfma_f32_16x16x32_bf16 {vr(DS,4)}, {vr(KX_,4)}, {vr(QB,4)}, 0')
        a('s_waitcnt lgkmcnt(0)')
        a(f'v_mfma_f32_16x16x32_bf16 {vr(DS,4)}, {vr(KX_,4)}, {vr(QB+4,4)}, {vr(DS,4)}')
        a('s_barrier')
        for r in range(4): a(f'v_add_f32_dpp v{DS+r}, v{DS+r}, v{DS+r} quad_perm:[2,3,0,1] row_mask:0xf bank_mask:0xf')
        a(f'buffer_store_dwordx4 {vr(DS,4)}, v{vSS}, {WS}, {sr(c.sSlot)} offen{sm}')
        a(f'buffer_store_dwordx4 {vr(M1,4)}, v{vSS}, {WS}, {sr(c.sArm)} offen{sm}')
        a(f's_branch {Lj}')
        a(f'{L2}:')
        a(f's_cmp_eq_u32 {j}, 3')
        a(f's_cbranch_scc1 {L3}')
        a('s_barrier')
        for u in range(2):
            for R_, base in ((QB, QI), (KA_, KI)):
                for wh in range(2):
                    a(f'ds_read_b64_tr_b16 {vr(R_+4*u+2*wh,2)}, v{vQR} offset:{base+1280*u+160*wh}')
        a('s_waitcnt lgkmcnt(4)')
        a(f'v_mfma_f32_16x16x32_bf16 {vr(DS,4)}, {vr(KA_,4)}, {vr(QB,4)}, 0')
        a('s_waitcnt lgkmcnt(2)')
        a(f'v_mfma_f32_16x16x32_bf16 {vr(DS,4)}, {vr(KA_,4)}, {vr(QB+4,4)}, {vr(DS,4)}')
        a('s_waitcnt lgkmcnt(0)')
        a('s_barrier')
        a(f'v_mfma_f32_16x16x32_bf16 {vr(DS,4)}, {vr(KA_+4,4)}, {vr(QB,4)}, {vr(DS,4)}')
        a(f'v_mfma_f32_16x16x32_bf16 {vr(DS,4)}, {vr(KA_+4,4)}, {vr(QB+4,4)}, {vr(DS,4)}')
        a(f'v_add_f32 v{DS}, v{DS}, v{DS+2}')
        a(f'v_add_f32 v{DS+1}, v{DS+1}, v{DS+3}')
        a(f'v_cndmask_b32 v{DS+2}, v{DS+1}, v{DS}, {sr(sMask,2)}')
        a(f'v_cndmask_b32 v{DS+3}, v{DS}, v{DS+1}, {sr(sMask,2)}')
        a(f'v_add_f32_dpp v{DS}, v{DS+2}, v{DS+3} quad_perm:[2,3,0,1] row_mask:0xf bank_mask:0xf')
        a(f'v_mul_f32 v{DS}, {SCL:#x}, v{DS}')
        a(f'buffer_store_dword v{DS}, v{vSS}, {WS}, {sr(c.sSlot)} offen{sm}')
        a(f'buffer_store_dword v{M1}, v{vSS}, {WS}, {sr(c.sArm)} offen{sm}')
        a(f's_branch {Lj}')
        a(f'{L3}:')
        a('s_barrier')
        a('s_barrier')
        delay(a, 1)
        a(f'{Lj}:')
        if tr: tr(1)
        delay(a, P['dq'])
        def ldS():
            for k in range(4): a(f'buffer_load_dwordx4 {vr(SX+4*k,4)}, v{L16}, {WS}, {sr(c.sO1)} offen offset:{1024*k} sc1')
            for k in range(4): a(f'buffer_load_dword v{SM+k}, v{L4}, {WS}, {sr(c.sO2)} offen offset:{2048+256*k} sc1')
        def adds():
            o = ['s_waitcnt vmcnt(6)']
            o += [f'v_add_f32 v{E+r}, v{SX+r}, v{SX+4+r}' for r in range(4)]
            o += ['s_waitcnt vmcnt(5)']
            o += [f'v_add_f32 v{E+r}, v{E+r}, v{SX+8+r}' for r in range(4)]
            o += ['s_waitcnt vmcnt(4)']
            o += [f'v_add_f32 v{E+r}, v{E+r}, v{SX+12+r}' for r in range(4)]
            o += ['s_waitcnt vmcnt(0)', f'v_add_f32 v{E+4}, v{SM}, v{SM+1}', f'v_add_f32 v{E+5}, v{SM+2}, v{SM+3}', f'v_add_f32 v{E+4}, v{E+4}, v{E+5}',
                  f'v_cmp_u_f32 vcc, v{E}, v{E+4}']
            return o
        a(f'{Lp}:')
        for ch in range(2):
            a(f'buffer_load_dwordx4 {vr(VMr+4*ch,4)}, v{L16}, {WS}, {sr(c.sO2)} offen offset:{1024*ch} sc1')
        ldS()
        spin(a, c, Lend)
        a('s_waitcnt vmcnt(8)')
        um = [f'v_smfmac_f32_16x16x64_bf16 {vr(UM+4*t,4)}, {vr(VMr+4*ch,4)}, {vr(WO+(t*2+ch)*8,8)}, v{vIdx} abid:1' for t in range(4) for ch in range(2)]
        a(f'v_cmp_u_f32 {sr(c.sT,2)}, v{VMr}, v{VMr+2}')
        a(f'v_cmp_u_f32 vcc, v{VMr+4}, v{VMr+6}')
        a(um.pop(0))
        a(f's_or_b64 vcc, vcc, {sr(c.sT,2)}')
        a(f's_cbranch_vccnz {Lpz}')
        ad = adds()
        while um:
            a(um.pop(0))
            n = 0
            while ad and n < 2:
                x = ad.pop(0); a(x)
                if not x.startswith('s_'): n += 1
        for x in ad: a(x)
        ucv = []
        for t in range(4):
            ucv += [f'v_cvt_pk_bf16_f32 v{U+8*t}, v{UM+4*t}, v{UM+4*t+1}', f'v_cvt_pk_bf16_f32 v{U+8*t+1}, v{UM+4*t+2}, v{UM+4*t+3}']
        a(f's_cbranch_vccnz {Lps}')
        a(f'{Lok}:')
        if tr: tr(2)
        def soft():
            X = SX
            return [f'v_exp_f32 v{X+4}, v{E+4}'] + [f'v_exp_f32 v{X+i}, v{E+i}' for i in range(2)] + \
                   [f'v_cvt_pk_bf16_f32 v{PP}, v{X+4}, v{X+4}', f'v_cvt_pk_bf16_f32 v{PP+2}, v{X+4}, v{X+4}'] + \
                   [f'v_exp_f32 v{X+i}, v{E+i}' for i in range(2, 4)] + \
                   [f'v_permlane32_swap_b32 v{PP}, v{PP+2}', f'v_cvt_pk_bf16_f32 v{PP+1}, v{X}, v{X+1}', f'v_cvt_pk_bf16_f32 v{PP+3}, v{X+2}, v{X+3}']
        for x in soft(): a(x)
        a(f'ds_write_b32 v{vFl}, v{vOne}')
        a(ucv.pop(0)); a(ucv.pop(0))
        def pv(t): return f'v_smfmac_f32_16x16x64_bf16 {vr(OUT+4*t,4)}, {vr(PP,4)}, {vr(U+8*t,8)}, v{vIdx}'
        a(pv(4))
        a(ucv.pop(0)); a(ucv.pop(0))
        a(pv(0))
        a(ucv.pop(0)); a(ucv.pop(0))
        a(pv(1))
        a(ucv.pop(0)); a(ucv.pop(0))
        a(f'{Lsm}:')
        Lr = OUT + 16
        a(pv(2))
        a(f'v_add_f32 v{Lr}, v{Lr}, v{Lr+2}'); a(f'v_add_f32 v{Lr+1}, v{Lr+1}, v{Lr+3}')
        a(pv(3))
        a(f'v_rcp_f32 v{R}, v{Lr}'); a(f'v_rcp_f32 v{R+1}, v{Lr+1}')
        lo = (127 - 64) << 23; span = 128 << 23
        for t in range(4):
            X = OUT + 4 * t
            a(f'v_add_f32 v{X}, v{X}, v{X+2}'); a(f'v_add_f32 v{X+1}, v{X+1}, v{X+3}')
            a(f'v_mul_f32 v{X}, v{X}, v{R}'); a(f'v_mul_f32 v{X+1}, v{X+1}, v{R+1}')
            a(f'ds_write2st64_b32 v{vCW}, v{X}, v{X+1} offset0:{2*t} offset1:{2*t+1}')
        a(f'v_subrev_u32 v{Lr}, {lo:#x}, v{Lr}'); a(f'v_subrev_u32 v{Lr+1}, {lo:#x}, v{Lr+1}')
        a(f'v_max_u32 v{T}, v{Lr}, v{Lr+1}')
        a(f'v_cmp_lt_u32 vcc, {span:#x}, v{T}')
        a(f's_add_u32 {sr(c.sS)}, {sr(c.sS)}, 1')
        a(f's_cbranch_vccnz {Lfb}')
        a(f'{Lz}:')
        a('s_waitcnt lgkmcnt(0)')
        if tr: tr(3)
        a('s_barrier')
        if tr: tr(5)
        for q in range(4): a(f'ds_read_b64 {vr(SX+2*q,2)}, v{vCR} offset:{2048*q}')
        a('s_waitcnt lgkmcnt(2)')
        for r in range(2): a(f'v_add_f32 v{SX+r}, v{SX+r}, v{SX+2+r}')
        a('s_waitcnt lgkmcnt(0)')
        for r in range(2): a(f'v_add_f32 v{SX+4+r}, v{SX+4+r}, v{SX+6+r}')
        for r in range(2): a(f'v_add_f32 v{SX+r}, v{SX+r}, v{SX+4+r}')
        a(f'v_cvt_pk_bf16_f32 v{R}, v{SX}, v{SX+1}')
        if P['pub'] == 'quad':
            for r in range(1, 4): a(f'v_mov_b32_dpp v{R+r}, v{R} quad_perm:[{r},{r},{r},{r}] row_mask:0xf bank_mask:0xf')
            a(f's_mov_b64 exec, {sr(c.sEx,2)}')
            a(f'buffer_store_dwordx4 {vr(R,4)}, v{vPS}, {WS}, {sr(c.sSlot)} offen sc1')
            a(f'buffer_store_dwordx4 {vr(M1,4)}, v{vPS}, {WS}, {sr(c.sArm)} offen sc1')
            a(f's_mov_b64 exec, -1')
        else:
            a(f'buffer_store_dword v{R}, v{vPS}, {WS}, {sr(c.sSlot)} offen sc1')
            a(f'buffer_store_dword v{M1}, v{vPS}, {WS}, {sr(c.sArm)} offen sc1')
        if tr: tr(4)
        a(f's_cmp_ge_u32 {j}, 2')
        a(f's_cbranch_scc1 {Lnk}')
        if not P['nok']: a(f'buffer_load_dwordx4 {vr(KX_,4)}, v{vK}, {WS}, {sr(c.sAr)} offen')
        a(f'{Lnk}:')
        a(f's_add_u32 {sr(c.sSlot)}, {sr(c.sSlot)}, {1<<18}')
        a(f's_and_b32 {sr(c.sSlot)}, {sr(c.sSlot)}, {3<<18}')
        a(f's_cmp_eq_u32 {sr(c.sS)}, {NSTEP-1}')
        a(f's_cbranch_scc1 {Lend}')
        a(f's_branch {Lt}')
        a(f'{Lpz}:')
        for i in range(4): a(f'v_mov_b32 v{UM+i}, 0')
        a(f's_branch {Lp}')
        a(f'{Lps}:')
        ldS()
        spin(a, c, Lend)
        for x in adds(): a(x)
        a(f's_cbranch_vccnz {Lps}')
        a(f's_branch {Lok}')
        a(f'{Lfb}:')
        a(f's_cmp_lg_u32 {sr(c.sFb)}, 0')
        a(f's_cbranch_scc1 {Lz}')
        a(f's_mov_b32 {sr(c.sFb)}, 1')
        a(f's_sub_u32 {sr(c.sS)}, {sr(c.sS)}, 1')
        a(f'v_max3_f32 v{T}, v{E}, v{E+1}, v{E+2}')
        a(f'v_max3_f32 v{T}, v{T}, v{E+3}, v{E+4}')
        a(f'v_max_f32_dpp v{T}, v{T}, v{T} quad_perm:[2,3,0,1] row_mask:0xf bank_mask:0xf')
        for op in ('v_permlane16_swap_b32', 'v_permlane32_swap_b32'):
            a(f'v_mov_b32 v{T2}, v{T}')
            a(f'{op} v{T}, v{T2}')
            a(f'v_max_f32 v{T}, v{T}, v{T2}')
        for i in range(5): a(f'v_sub_f32 v{E+i}, v{E+i}, v{T}')
        for x in soft(): a(x)
        for i in range(20): a(f'v_mov_b32 v{OUT+i}, 0')
        for t in (4, 0, 1): a(pv(t))
        a('s_nop 7')
        a(f's_branch {Lsm}')
```

```python
from asm import *
from layout import *
from small import srd
from chain2 import *
from attna import attnA_job

class Trace:
    def __init__(self, a, sreg, n):
        self.a = a; self.n = n
        self.cur = sreg.get(2, 2); self.last = sreg.get(); self.acc = sreg.get(n)
    def init(self):
        a = self.a
        for i in range(self.n): a(f's_mov_b32 {sr(self.acc+i)}, 0')
        a(f's_memtime {sr(self.cur,2)}'); a('s_waitcnt lgkmcnt(0)'); a(f's_mov_b32 {sr(self.last)}, {sr(self.cur)}')
    def __call__(self, i):
        a = self.a
        a(f's_memtime {sr(self.cur,2)}'); a('s_waitcnt lgkmcnt(0)')
        a(f's_sub_u32 {sr(self.last)}, {sr(self.cur)}, {sr(self.last)}')
        a(f's_add_u32 {sr(self.acc+i)}, {sr(self.acc+i)}, {sr(self.last)}')
        a(f's_mov_b32 {sr(self.last)}, {sr(self.cur)}')
    def flush(self, V): pass

class Trace2:
    def __init__(self, a, sreg, c, r):
        self.a = a; self.c = c; self.r = r; self.off = sreg.get(); self.n = 8
    def init(self):
        a = self.a; c = self.c
        for i in range(16): a(f's_mov_b32 {sr(self.r+i)}, 0')
        a(f's_lshl_b32 {sr(self.off)}, {sr(c.sG)}, 4')
        a(f's_add_u32 {sr(self.off)}, {sr(self.off)}, {sr(c.sC)}')
        a(f's_lshl_b32 {sr(self.off)}, {sr(self.off)}, 3')
        a(f's_add_u32 {sr(self.off)}, {sr(self.off)}, {sr(c.sW)}')
        a(f's_lshl_b32 {sr(self.off)}, {sr(self.off)}, 11')
        a(f's_add_u32 {sr(self.off)}, {sr(self.off)}, {STAMP+0x100000}')
    def __call__(self, i):
        self.a(f's_memrealtime {sr(self.r+2*i,2)}')
    def flush(self, V):
        a = self.a; c = self.c
        a('s_waitcnt lgkmcnt(0)')
        for i in range(7): a(f'v_mov_b32 v{V+i}, {sr(self.r+2*i)}')
        a(f'v_mov_b32 v{V+7}, {sr(c.sSpin)}')
        a('s_mov_b64 exec, 1')
        a(f'buffer_store_dwordx4 {vr(V,4)}, off, {sr(c.SWS,4)}, {sr(self.off)}')
        a(f'buffer_store_dwordx4 {vr(V+4,4)}, off, {sr(c.SWS,4)}, {sr(self.off)} offset:16')
        a('s_mov_b64 exec, -1')
        a(f's_add_u32 {sr(self.off)}, {sr(self.off)}, 32')
        a('s_nop 1')

def gen_k2(name='chain_kernel', diag=False, trace=False, workers=True, force_slow=False, layout4=False, **pp):
    import chain2; chain2.P.update(pp)
    a = Asm()
    sreg = Regs(4, 100, 's')
    c = chain_common(a, sreg)
    kWs = sreg.get(2, 2); SD = sreg.get(4, 4); sX = sreg.get(); sE = sreg.get(2, 2); sJob = sreg.get()
    wT = sreg.get(6); wS = sreg.get(16, 4)
    rt0 = sreg.get(2, 2); rt1 = sreg.get(2, 2)
    tr = (Trace2(a, sreg, c, wS) if trace == 2 else Trace(a, sreg, 6)) if trace else None
    Lend = f'{name}_end'; Lfin = f'{name}_fin'
    a(kstart(name))
    a('s_cmp_ge_u32 s2, 256')
    a(f's_cbranch_scc1 {Lend}')
    if diag: a(f's_memrealtime {sr(rt0,2)}')
    a(f's_load_dwordx2 {sr(kWs,2)}, s[0:1], {D_WS}')
    a(f's_load_dwordx2 {sr(SD,2)}, s[0:1], {D_DBG}')
    a(f'v_lshrrev_b32 v1, 6, v0')
    a(f'v_readfirstlane_b32 {sr(c.sW)}, v1')
    a(f's_getreg_b32 {sr(sX)}, hwreg(HW_REG_XCC_ID)')
    a(f's_and_b32 {sr(sX)}, {sr(sX)}, 7')
    a('s_waitcnt lgkmcnt(0)')
    srd(a, c.SWS, sr(kWs), sr(kWs+1), WS_BYTES)
    srd(a, SD, sr(SD), sr(SD+1), 256)
    Lr = a.lab('role'); Lw = a.lab('rolew')
    a(f's_cmp_lg_u32 {sr(c.sW)}, 0')
    a(f's_cbranch_scc1 {Lr}')
    a(f's_mov_b64 exec, 1')
    a(f's_lshl_b32 {sr(c.sT)}, {sr(sX)}, 2')
    a(f'v_mov_b32 v1, {sr(c.sT)}')
    a(f'v_mov_b32 v2, 1')
    a(f'v_mov_b32 v3, 1')
    a(f'buffer_atomic_add v2, v1, {sr(SD,4)}, 0 offen sc0 sc1')
    a('s_waitcnt vmcnt(0)')
    a(f'buffer_atomic_add v3, off, {sr(SD,4)}, 0 offset:32 sc0 sc1')
    a(f's_mov_b64 exec, -1')
    a(f'v_lshlrev_b32 v1, 2, v0')
    a(f'v_min_u32 v1, 32, v1')
    a(f's_mov_b32 {sr(c.sSpin)}, {SPIN}')
    a(f'{Lw}:')
    a(f'buffer_load_dword v4, v1, {sr(SD,4)}, 0 offen sc1')
    a(f's_mov_b32 {sr(c.sT)}, 0xfffe')
    a(f's_sub_u32 {sr(c.sSpin)}, {sr(c.sSpin)}, 1')
    a(f's_cbranch_scc1 {Lw}_to')
    a('s_waitcnt vmcnt(0)')
    a(f'v_readlane_b32 {sr(c.sT)}, v4, 8')
    a(f's_cmp_lt_u32 {sr(c.sT)}, 256')
    a(f's_cbranch_scc1 {Lw}')
    a(f'buffer_load_dword v4, v1, {sr(SD,4)}, 0 offen sc1')
    a('s_waitcnt vmcnt(0)')
    a(f'v_readfirstlane_b32 {sr(c.sT)}, v2')
    a(f'v_readfirstlane_b32 {sr(c.sT+1)}, v3')
    if layout4:
        a(f'v_cmp_gt_u32 vcc, 32, v4')
        a(f's_and_b32 vcc_lo, vcc_lo, 15')
        a(f's_lshl_b32 {sr(c.sT+2)}, {sr(sX)}, 5')
        a(f's_add_u32 {sr(c.sT+2)}, {sr(c.sT+2)}, {sr(c.sT)}')
        a(f's_cmp_lt_u32 {sr(c.sT)}, 32')
        a(f's_cselect_b32 {sr(c.sT+2)}, {sr(c.sT+2)}, 128')
    else:
        a(f'v_cmp_gt_u32 vcc, 16, v4')
        a(f's_lshl_b32 {sr(c.sT+2)}, {sr(sX)}, 4')
        a(f's_add_u32 {sr(c.sT+2)}, {sr(c.sT+2)}, {sr(c.sT)}')
        a(f's_cmp_lt_u32 {sr(c.sT)}, 16')
        a(f's_cselect_b32 {sr(c.sT+2)}, {sr(c.sT+2)}, 128')
    a(f's_or_b32 {sr(c.sT+1)}, {sr(c.sT+1)}, 0x10000')
    if force_slow: a(f's_cmp_eq_u32 0, 1')
    else: a(f's_cmp_eq_u32 vcc_lo, 0')
    a(f's_cselect_b32 {sr(c.sT)}, {sr(c.sT+2)}, {sr(c.sT+1)}')
    a(f'{Lw}_to:')
    a('s_waitcnt vmcnt(0)')
    a(f'v_mov_b32 v1, 0')
    a(f'v_mov_b32 v2, {sr(c.sT)}')
    a(f'ds_write_b32 v1, v2')
    a('s_waitcnt lgkmcnt(0)')
    a(f'{Lr}:')
    a('s_barrier')
    a(f'v_mov_b32 v1, 0')
    a(f'ds_read_b32 v2, v1')
    a('s_waitcnt lgkmcnt(0)')
    a(f'v_readfirstlane_b32 {sr(c.sT)}, v2')
    a('s_barrier')
    a(f's_cmp_eq_u32 {sr(c.sT)}, 0xfffe')
    a(f's_cbranch_scc1 {Lend}')
    a(f's_lshr_b32 {sr(c.sMode)}, {sr(c.sT)}, 16')
    a(f's_and_b32 {sr(c.sT)}, {sr(c.sT)}, 0xffff')
    a(f's_cmp_ge_u32 {sr(c.sT)}, 128')
    a(f's_cbranch_scc1 {name}_worker')
    a(f's_lshr_b32 {sr(c.sG)}, {sr(c.sT)}, 4')
    a(f's_and_b32 {sr(c.sC)}, {sr(c.sT)}, 15')
    if tr: tr.init()
    a(f's_cmp_ge_u32 {sr(c.sW)}, 4')
    a(f's_cbranch_scc1 {name}_c')
    bwave(a, c, Lfin, tr)
    a(f'{name}_c:')
    cwave(a, c, Lfin, tr)
    a(f'{Lfin}:')
    if diag:
        a(f's_memrealtime {sr(rt1,2)}')
        a('s_waitcnt vmcnt(0) lgkmcnt(0)')
        a(f's_lshl_b32 {sr(c.sT)}, {sr(c.sG)}, 4')
        a(f's_add_u32 {sr(c.sT)}, {sr(c.sT)}, {sr(c.sC)}')
        a(f's_lshl_b32 {sr(c.sT)}, {sr(c.sT)}, 3')
        a(f's_add_u32 {sr(c.sT)}, {sr(c.sT)}, {sr(c.sW)}')
        a(f's_lshl_b32 {sr(c.sT)}, {sr(c.sT)}, 6')
        a(f's_add_u32 {sr(c.sT)}, {sr(c.sT)}, {STAMP}')
        vals = [sr(rt0), sr(rt1), sr(c.sSpin), sr(c.sS), sr(c.sMode), sr(sX)] + ([sr(tr.acc+i) for i in range(6)] if trace == 1 else [])
        a(f'v_mov_b32 v1, {sr(c.sT)}')
        for i, x in enumerate(vals):
            a(f'v_mov_b32 v2, {x}')
            a(f'buffer_store_dword v2, v1, {sr(c.SWS,4)}, 0 offen offset:{4*i}')
    a(f'{Lend}:')
    a('s_endpgm')
    a(f'{name}_worker:')
    if workers:
        Lq = a.lab('wq'); Lq2 = a.lab('wq2')
        a(f'{Lq}:')
        a(f's_cmp_lg_u32 {sr(c.sW)}, 0')
        a(f's_cbranch_scc1 {Lq2}')
        a(f's_mov_b64 exec, 1')
        a(f'v_mov_b32 v2, 1')
        a(f'buffer_atomic_add v2, off, {sr(SD,4)}, 0 offset:128 sc0 sc1')
        a(f'v_mov_b32 v1, {131072+64}')
        a('s_waitcnt vmcnt(0)')
        a(f'ds_write_b32 v1, v2')
        a(f's_mov_b64 exec, -1')
        a('s_waitcnt lgkmcnt(0)')
        a(f'{Lq2}:')
        a('s_barrier')
        a(f'v_mov_b32 v1, {131072+64}')
        a(f'ds_read_b32 v2, v1')
        a('s_waitcnt lgkmcnt(0)')
        a(f'v_readfirstlane_b32 {sr(sJob)}, v2')
        a(f's_cmp_ge_u32 {sr(sJob)}, 128')
        a(f's_cbranch_scc1 {Lend}')
        attnA_job(a, sr(sJob), sr(c.sW), wS, wT, kWs)
        a('s_barrier')
        a(f's_branch {Lq}')
    else:
        a('s_endpgm')
    a.pad()
    return a.text() + kd(name, 256, 256), 163840
```

```python
import sys
sys.path.insert(0, 'gen')
from asm import *
from k1 import gen_k1
from k2 import gen_k2
from xjobs import *
HDR = open('gated_mix__grouped_kv_mqa__memory_aug_recurrent_mem_tr__prompt.s.ref').read().split('; Override launch')[0]
def build(parts):
    o = HDR
    for n, t, g, b, l in parts:
        o += f'; @launch kernel={n} grid=({g},1,1) block=({b},1,1) lds={l}\n'
    o += '.amdgcn_target "amdgcn-amd-amdhsa--gfx950"\n.text\n'
    seen = set()
    for n, t, g, b, l in parts:
        if n not in seen: o += t
        seen.add(n)
    return o
if __name__ == '__main__':
    t, l = gen_k1()
    kw = dict(diag=True); kw.update(eval('dict(' + (sys.argv[2] if len(sys.argv) > 2 else '') + ')'))
    tp, lp = gen_px()
    t2, l2 = gen_k2(**kw)
    t3, l3, g3 = gen_fina()
    t4, l4 = gen_red()
    s = build([('proj_kernel', t, 480, 512, l), ('px_kernel', tp, 256, 512, lp), ('chain_kernel', t2, 256, 512, l2), ('fina_kernel', t3, g3, 512, l3), ('red_kernel', t4, 256, 256, l4)])
    open(sys.argv[1] if len(sys.argv) > 1 else 'out.s', 'w').write(s)
```

```python
from asm import *
from layout import *
from small import srd

NSTEP = 64
SPIN = 400000
P = dict(d1=3, dm=0, dq=3, vint=3, nv1=8, nox=0, bprio=2, cprio=2, dx=0, probe=None, nov=0, nokq=0, noop=0, opm=' sc1', fused=0, pf=1, pfg=128, pfa=0, pfb=13, prog=1, d0=3, optop=1, armtop=0, noflag=1, larm=2, fsl=0, nvc=4, kqtop=1, vfirst=1, fo=7, cst=0, bst=0, vl=2)
SCL = f32bits(128**-0.5*LOG2E)
QI = 0; KI = 2560; KF = 8192; CO = 16384; FLAG = 24576; XR = 28672; XO = 32768; VB = 65536

class ChainCtx: pass

def chain_common(a, sreg):
    c = ChainCtx()
    c.sW = sreg.get(); c.sG = sreg.get(); c.sC = sreg.get(); c.sMode = sreg.get()
    c.SWS = sreg.get(4, 4); c.SA = sreg.get(4, 4); c.SB = sreg.get(4, 4); c.SC = sreg.get(4, 4)
    c.sS = sreg.get(); c.sSlot = sreg.get(); c.sArm = sreg.get(); c.sSpin = sreg.get()
    c.sT = sreg.get(4, 2); c.sAr = sreg.get(); c.sD = sreg.get(); c.sFb = sreg.get(); c.sMask = sreg.get(2, 2)
    c.sB1 = sreg.get(); c.sB2 = sreg.get(); c.sO1 = sreg.get(); c.sO2 = sreg.get(); c.sV = sreg.get(); c.sM0 = sreg.get()
    c.sPart = sreg.get()
    c.sRd = sreg.get(); c.sRv = sreg.get(); c.sPg = sreg.get(); c.sPf = sreg.get(); c.sPp = sreg.get(); c.sJk = sreg.get()
    c.sMS = sreg.get(); c.sO3 = sreg.get(); c.sVP = sreg.get(); c.sO4 = sreg.get(); c.sQA = sreg.get(); c.sOP = sreg.get(); c.sXb = sreg.get()
    return c

def bits(a, D, L, T, spec, base=None):
    first = True
    for mask, sh in spec:
        a(f'v_and_b32 v{T}, {mask}, v{L}')
        if sh < 0:
            a(f'v_lshrrev_b32 v{T}, {-sh}, v{T}'); sh = 0
        if first: a(f'v_lshlrev_b32 v{D}, {sh}, v{T}')
        else: a(f'v_lshl_add_u32 v{D}, v{T}, {sh}, v{D}')
        first = False
    if base is not None: a(f'v_add_u32 v{D}, {base}, v{D}')

def ssum(a, D, T, terms, const=0):
    first = True
    for r, sh in terms:
        if first: a(f's_lshl_b32 {D}, {r}, {sh}')
        else:
            a(f's_lshl_b32 {T}, {r}, {sh}'); a(f's_add_u32 {D}, {D}, {T}')
        first = False
    if const: a(f's_add_u32 {D}, {D}, {const}')

def delay(a, n):
    if n > 0: a(f's_sleep {n}')

def spin(a, c, Lend):
    a(f's_sub_u32 {sr(c.sSpin)}, {sr(c.sSpin)}, 1')
    a(f's_cbranch_scc1 {Lend}')

def make_sel(a, SEL, L, T, T2, mask=6, mul=2):
    bits(a, T2, L, T, [(1, 4)])
    a(f'v_mov_b32 v{T}, 0x3f80')
    a(f'v_lshlrev_b32 v{T2}, v{T2}, v{T}')
    a(f'v_and_b32 v{T}, {mask}, v{L}')
    for p in range(4):
        a(f'v_cmp_eq_u32 vcc, {mul*p}, v{T}')
        a(f'v_cndmask_b32 v{SEL+p}, 0, v{T2}, vcc')

PERM4 = [(1, 2), (12, 3), (2, 6), (48, -1)]

def bwave(a, c, Lend, tr=None, getpar=None, Ldone=None):
    b = sr(c.sW); T0 = c.sT
    v = Regs(1, 256)
    L8 = 0
    T = v.get(); L16 = v.get()
    vL2 = v.get(); vLW = v.get(); vLWv = v.get(); vLR = v.get(); vIdx = v.get(); vFl = v.get()
    M1 = v.get(2, 2); PK = v.get(2, 2); SEL = v.get(4, 4)
    AF = v.get(16, 4); ACC = v.get(24, 4); W = v.get(192, 4)
    T2 = PK; L = ACC; vMS = ACC + 1
    WS = sr(c.SWS, 4)
    sDone = c.sAr; sNew = c.sFb
    a(f's_load_dwordx2 {sr(c.SA,2)}, s[0:1], {B_WQ}')
    a(f's_load_dwordx2 {sr(c.SB,2)}, s[0:1], {B_WK}')
    a(f's_load_dwordx2 {sr(c.SC,2)}, s[0:1], {B_WV}')
    a(f'v_and_b32 v{L}, 63, v0')
    a(f'v_lshlrev_b32 v{L16}, 4, v{L}')
    a(f'v_lshlrev_b32 v{L8}, 3, v{L}')
    a(f's_lshl_b32 {sr(T0)}, {sr(c.sG)}, 4')
    a(f's_add_u32 {sr(T0)}, {sr(T0)}, {sr(c.sC)}')
    ssum(a, sr(T0+2), sr(T0+1), [(b, 21), (sr(T0), 6)])
    bits(a, vL2, L, T, [(60, 11), (3, 4)], sr(T0+2))
    a(f's_mul_i32 {sr(T0+3)}, {b}, 24576')
    bits(a, vMS, L, T, [(12, 4), (48, 5), (3, 3)], sr(T0+3))
    a('s_waitcnt lgkmcnt(0)')
    for S in (c.SA, c.SB, c.SC): srd(a, S, sr(S), sr(S+1), 1024*8192)
    def wdma(rho, ty):
        S = (c.SA, c.SB, c.SC)[ty]
        for m in range(8):
            a(f's_mov_b32 {sr(T0+2)}, {(128*rho+16*m)*8192}')
            a(f's_add_u32 m0, {sr(T0+3)}, {ty*8192+m*1024}')
            a(f'buffer_load_dwordx4 v{vL2}, {sr(S,4)}, {sr(T0+2)} offen lds')
    for ty in range(3): wdma(0, ty)
    for rho in range(2):
        for ty in range(3):
            a(f's_waitcnt vmcnt({16 if rho == 0 else 16 - 8*ty})')
            for t in (2*ty, 2*ty+1):
                for jj in range(2):
                    for q in range(4):
                        off = (t >> 1) * 8192 + (jj * 64 + 32 * (q >> 1) + 4 * (q & 1)) * 64 + (t & 1) * 32
                        a(f'ds_read_b64_tr_b16 {vr(W+(t*4+2*rho+jj)*8+2*q,2)}, v{vMS} offset:{off}')
                a('s_waitcnt lgkmcnt(0)')
            if rho == 0: wdma(1, ty)
    a(f's_load_dwordx2 {sr(c.SA,2)}, s[0:1], {B_MEM0}')
    if getpar: getpar(AF)
    ssum(a, sr(c.sB1), sr(T0+1), [(sr(c.sC), 14), (b, 11)])
    a(f's_add_u32 {sr(c.sB1)}, {sr(c.sB1)}, {sr(c.sPart)}')
    ssum(a, sr(c.sB2), sr(T0+1), [(sr(c.sG), 14), (b, 12)], MEMB)
    ssum(a, sr(c.sMS), sr(T0+1), [(sr(T0), 10)], MEMB - KF)
    a(f's_lshr_b32 {sr(T0+2)}, {sr(T0)}, 2')
    a(f's_and_b32 {sr(T0+3)}, {sr(T0)}, 3')
    ssum(a, sr(c.sVP), sr(T0+1), [(sr(T0+2), 13), (sr(T0+3), 9), (b, 7)], QKV)
    ssum(a, sr(c.sQA), sr(T0+1), [(sr(T0), 11), (b, 9)], QKV)
    ssum(a, sr(c.sOP), sr(T0+1), [(sr(c.sG), 22), (sr(c.sC), 12), (b, 10)], OP - 65536)
    ssum(a, sr(c.sXb), sr(T0+1), [(b, 10)], XO + 16384)
    ssum(a, sr(c.sD), sr(T0+1), [(sr(c.sG), 8)])
    a(f's_add_u32 {sr(c.sD)}, {sr(c.sD)}, {sr(c.sB1)}')
    ssum(a, sr(T0+1), None, [(b, 8)], KF)
    a(f's_sub_u32 {sr(c.sD)}, {sr(c.sD)}, {sr(T0+1)}')
    a(f'v_lshlrev_b32 v{vL2}, 1, v{L}')
    a(f's_lshr_b32 {sr(T0+1)}, {b}, 1')
    a(f's_mul_i32 {sr(T0+1)}, {sr(T0+1)}, 1280')
    a(f's_and_b32 {sr(T0+2)}, {b}, 1')
    a(f's_lshl_b32 {sr(T0+2)}, {sr(T0+2)}, 2')
    a(f's_add_u32 {sr(T0+1)}, {sr(T0+1)}, {sr(T0+2)}')
    bits(a, vLW, L, T, [(15, 5), (15, 3), (48, -1)], sr(T0+1))
    ssum(a, sr(T0+1), sr(T0+2), [(b, 10)], KF)
    bits(a, vLWv, L, T, [(1, 2), (2, 4), (12, 1), (16, 4), (32, 2)], sr(T0+1))
    ssum(a, sr(T0+1), sr(T0+2), [(b, 8)], KF)
    bits(a, vLR, L, T, [(63, 2)], sr(T0+1))
    bits(a, vFl, L, T, [(3, 2)], FLAG)
    a(f'v_and_b32 v{T}, 2, v{L}')
    a(f'v_cmp_eq_u32 vcc, 0, v{T}')
    a(f'v_mov_b32 v{T}, 0xeeeeeeee')
    a(f'v_mov_b32 v{T2}, 0x44444444')
    a(f'v_cndmask_b32 v{vIdx}, v{T}, v{T2}, vcc')
    a(f'v_mov_b32 v{M1}, -1')
    a(f'v_mov_b32 v{M1+1}, -1')
    make_sel(a, SEL, L, T, T2, 14, 4)
    bits(a, T2, L, T, [(1, 11), (12, 10), (2, 1), (48, 1)])
    a(f's_lshl_b32 {sr(T0+1)}, {b}, 9')
    a('s_waitcnt lgkmcnt(0)')
    srd(a, c.SA, sr(c.SA), sr(c.SA+1), 16384)
    for j in range(4):
        for p in range(4):
            a(f'buffer_load_dword v{AF+4*j+p}, v{T2}, {sr(c.SA,4)}, {sr(T0+1)} offen offset:{128*j+8*p}')
    ssum(a, sr(c.sV), sr(T0+1), [(sr(c.sG), 15), (b, 13)], VX)
    ssum(a, sr(c.sM0), sr(T0+1), [(b, 13)], VB)
    def vd(i): return f'buffer_load_dwordx4 v{L16}, {WS}, {sr(c.sV)} offen offset:{1024*i} lds'
    def vdA():
        a(f's_mov_b32 m0, {sr(c.sM0)}')
        for i in range(4): a(vd(i))
        a(f's_add_u32 m0, {sr(c.sM0)}, 4096')
        a(f's_add_u32 {sr(c.sV)}, {sr(c.sV)}, 4096')
        for i in range(P['nvc'], 4): a(vd(i))
    def vdB():
        a(f's_add_u32 {sr(c.sV)}, {sr(c.sV)}, {-4096 if P["nov"] else 262144-4096}')
        a(f's_xor_b32 {sr(c.sM0)}, {sr(c.sM0)}, 32768')
    a(f's_mov_b32 {sr(c.sS)}, 0')
    a(f's_mov_b32 {sr(c.sSpin)}, {SPIN}')
    a(f's_mov_b32 {sr(c.sSlot)}, 0')
    a(f's_mov_b32 {sr(c.sArm)}, {2<<18}')
    a(f's_mov_b32 {sr(c.sO2)}, {sr(c.sB2)}')
    a(f's_mov_b32 {sr(c.sO4)}, {sr(c.sVP)}')
    for i in range(24): a(f'v_mov_b32 v{ACC+i}, 0')
    def rdywait():
        Lr = a.lab('b_rw')
        a(f'{Lr}:')
        a(f'buffer_load_dword v{T}, off, {WS}, {sr(c.sRd)} sc1')
        spin(a, c, Lend)
        a('s_waitcnt vmcnt(0)')
        a(f'v_cmp_gt_u32 vcc, 12, v{T}')
        a(f's_cbranch_vccnz {Lr}')
    if P['fused']:
        Lx = a.lab('b_r0')
        ssum(a, sr(c.sRd), None, [(sr(c.sG), 10)], RDY)
        ssum(a, sr(c.sPg), sr(T0+1), [(sr(c.sC), 10), (sr(c.sG), 7)], PROG)
        a(f's_mov_b32 {sr(c.sRv)}, 0')
        a(f's_cmp_lg_u32 {b}, 0')
        a(f's_cbranch_scc1 {Lx}')
        rdywait()
        a(f'{Lx}:')
        a(f's_add_u32 {sr(c.sRd)}, {sr(c.sRd)}, 128')
    vPf = 252; vJk = 253
    def pref():
        if not P['pf']: return
        a(f'buffer_load_dword v{vJk}, v{vPf}, {WS}, {sr(c.sPf)} offen')
        a(f's_add_u32 {sr(c.sPf)}, {sr(c.sPf)}, {1<<18}')
    if P['pf']:
        a(f'v_lshrrev_b32 v{vJk}, 4, v{L16}')
        ssum(a, sr(T0+1), sr(T0+2), [(sr(c.sG), 15), (sr(c.sC), 11), (b, 9)])
        bits(a, vPf, vJk, T, [(3, 7), (12, 22)], sr(T0+1))
        ssum(a, sr(T0+1), sr(T0+2), [(sr(c.sG), 13), (sr(c.sC), 9), (b, 7)], PX)
        a(f'v_mov_b32 v{T}, {sr(T0+1)}')
        a(f'v_cmp_eq_u32 vcc, 12, v{vJk}')
        a(f'v_cndmask_b32 v{vPf}, v{vPf}, v{T}, vcc')
        a(f'v_mov_b32 v{T}, 0x80000000')
        a(f'v_cmp_lt_u32 vcc, 12, v{vJk}')
        a(f'v_cndmask_b32 v{vPf}, v{vPf}, v{T}, vcc')
        a(f's_mov_b32 {sr(c.sPf)}, {1<<18}')
    a('s_barrier')
    pref(); pref()
    vdA()
    for i in range(P['nvc']): a(vd(i))
    vdB(); vdA()
    a('s_waitcnt vmcnt(0)')
    a('s_barrier')
    def xred():
        a(f'v_add_u32 v{T}, {sr(c.sXb)}, v{L16}')
        a(f's_lshr_b32 {sr(T0)}, {sr(c.sXb)}, 3')
        a(f's_and_b32 {sr(T0)}, {sr(T0)}, 2048')
        a(f'v_add_u32 v{PK+1}, {sr(T0)}, v{L8}')
        a(f's_xor_b32 {sr(c.sXb)}, {sr(c.sXb)}, 16384')
        for j in range(4):
            a(f'ds_read_b128 {vr(AF+4*j,4)}, v{T} offset:{4096*j}')
            a(f'ds_read_b64 {vr(ACC+8+2*j,2)}, v{PK+1} offset:{XR+512*j}')
        for j in range(4):
            a(f's_waitcnt lgkmcnt({6-2*j})')
            for d in range(4):
                a(f'v_lshlrev_b32 v{ACC+16+d}, 16, v{AF+4*j+d}')
                a(f'v_and_b32 v{AF+4*j+d}, 0xffff0000, v{AF+4*j+d}')
            op = 'v_mul_f32' if j == 0 else 'v_fmac_f32'
            for d in range(4):
                a(f'{op} v{ACC+2*d}, v{ACC+16+d}, v{ACC+8+2*j+(d>>1)}')
                a(f'{op} v{ACC+2*d+1}, v{AF+4*j+d}, v{ACC+8+2*j+(d>>1)}')
        for d in range(4): a(f'v_cvt_pk_bf16_f32 v{AF+d}, v{ACC+2*d}, v{ACC+2*d+1}')
    ent = [a.lab('b_ent0'), a.lab('b_ent1')]; Lfin = a.lab('b_fin')
    a(f's_cmp_eq_u32 {sr(c.sMode)}, 0')
    a(f's_cbranch_scc1 {ent[0]}')
    a(f's_branch {ent[1]}')
    for mode in range(2):
        sm = ' sc1' if mode else ''
        Lt = a.lab('b_top'); LpA = a.lab('b_pa'); Lf = a.lab('b_f'); Lpost = a.lab('b_post'); Lslow = a.lab('b_slow'); Lno = a.lab('b_no')
        LI = [a.lab('b_i') for _ in range(4)]
        D = AF + 8
        def ldM(j): return f'buffer_load_dwordx4 {vr(AF+4*j,4)}, v{L16}, {WS}, {sr(c.sO2)} offen offset:{1024*j} sc1'
        def arms(k=3):
            if k & 1: a(f'buffer_store_dword v{M1}, v{vLR}, {WS}, {sr(T0+2)} offen sc1')
            if k & 2:
                a(f'buffer_store_dword v{M1}, v{vLR}, {WS}, {sr(T0)} offen{sm}')
                a(f'buffer_store_dwordx2 {vr(M1,2)}, v{L8}, {WS}, {sr(T0+1)} offen{sm}')
        def opst():
            Lno = a.lab('b_no')
            a(f's_cmp_eq_u32 {sr(c.sS)}, 1')
            a(f's_cbranch_scc1 {Lno}')
            if not P['noop']: a(f'buffer_store_dwordx4 {vr(AF,4)}, v{L16}, {WS}, {sr(c.sOP)} offen{P["opm"]}')
            a(f'{Lno}:')
            a(f's_add_u32 {sr(c.sOP)}, {sr(c.sOP)}, 65536')
        Lpg = a.lab('b_pg'); Lpg2 = a.lab('b_pg2')
        a(f'{Lt}:')
        if tr: tr(0)
        delay(a, P['d0'])
        a(f's_cbranch_vccnz {Lpg}')
        a(f'{Lpg2}:')
        if P['larm'] == 0: arms(2)
        if P['vfirst']: vdA()
        if P['larm'] == 1: arms(2)
        if not P['fo'] & 4: arms(1)
        if not P['fo'] & 2: opst()
        if not P['fo'] & 1: pref()
        if not P['vfirst']: vdA()
        if P['larm'] == 2: arms(2)
        delay(a, P['d1'])
        if P['probe'] is not None: a(f's_waitcnt vmcnt({P["probe"]})'); tr(6)
        if P['bprio']: a(f's_setprio {P["bprio"]}')
        a(f'{LpA}:')
        for j in range(2):
            a(f'buffer_load_dwordx4 {vr(AF+4*j,4)}, v{L16}, {WS}, {sr(c.sO1)} offen offset:{1024*j} sc1')
        spin(a, c, Lend)
        a(f's_waitcnt vmcnt(1)')
        a(f'v_mfma_f32_16x16x32_bf16 {vr(D,4)}, {vr(SEL,4)}, {vr(AF,4)}, 0')
        a(f's_waitcnt vmcnt(0)')
        a(f'v_mfma_f32_16x16x32_bf16 {vr(D,4)}, {vr(SEL,4)}, {vr(AF+4,4)}, {vr(D,4)}')
        a(f'v_cmp_u_f32 vcc, v{D}, v{D}')
        a(f'v_cvt_pk_bf16_f32 v{PK}, v{D}, v{D+1}')
        a(f's_cbranch_vccnz {LpA}')
        a(f'buffer_store_dword v{PK}, v{vLR}, {WS}, {sr(c.sO3)} offen{sm}')
        if tr: tr(1)
        delay(a, P['dm'])
        def sm_(t, j): return f'v_smfmac_f32_16x16x64_bf16 {vr(ACC+4*t,4)}, {vr(AF+4*j,4)}, {vr(W+(t*4+j)*8,8)}, v{vIdx}'
        def post(t):
            X = ACC + 4 * t
            o = [f'v_add_f32 v{X}, v{X}, v{X+2}', f'v_add_f32 v{X+1}, v{X+1}, v{X+3}']
            if t < 4: return o + [f'v_cvt_pk_bf16_f32 v{X+2}, v{X}, v{X+1}', f'ds_write_b32 v{vLW}, v{X+2} offset:{(t>>1)*KI+(t&1)*640}']
            return o + [f'ds_write2_b32 v{vLWv}, v{X}, v{X+1} offset0:{128*(t-4)} offset1:{128*(t-4)+16}']
        uid = a.lab('m')
        NL = lambda S, j: f'{uid}_n{S}_{j}'
        FL_ = lambda S, j: f'{uid}_f{S}_{j}'
        def nxt(S, j):
            for d in range(1, 5):
                if S >> ((j + d) & 3) & 1: return (j + d) & 3
        def chk(S, k):
            a(f's_waitcnt vmcnt({bin(S).count("1")-1})')
            if tr and P['bst'] == 1: tr(6)
            a(f'v_cmp_u_f32 vcc, v{AF+4*k}, v{AF+4*k+3}')
        emitted = set()
        def node(S, j):
            while True:
                if (S, j) in emitted:
                    a(f's_branch {NL(S,j)}'); return
                emitted.add((S, j))
                a(f'{NL(S,j)}:')
                R_ = S & ~(1 << j)
                if R_ == 0:
                    nv = 0
                    for t in range(6):
                        a(sm_(t, j))
                        if t < P['vl'] and nv < P['nvc']: a(vd(nv)); nv += 1
                        if t >= 2:
                            for x in post(t - 2): a(x)
                    if tr: tr(2)
                    for t in (4, 5):
                        for x in post(t): a(x)
                    while nv < P['nvc']: a(vd(nv)); nv += 1
                    if j != 3: a(f's_branch {Lpost}')
                    return
                for t in range(5): a(sm_(t, j))
                k = nxt(R_, j)
                chk(R_, k)
                a(sm_(5, j))
                a(f's_cbranch_vccnz {FL_(R_,k)}')
                S, j = R_, k
        def slow_nodes():
            for S in range(15, 0, -1):
                mem = [j for j in range(4) if S >> j & 1]
                for j in mem:
                    a(f'{FL_(S,j)}:')
                    a(ldM(j))
                    if j == mem[-1]: spin(a, c, Lend)
                    k = nxt(S, j)
                    chk(S, k)
                    if j != mem[-1]:
                        a(f's_cbranch_vccz {NL(S,k)}')
                    else:
                        a(f's_cbranch_vccnz {FL_(S,k)}')
                        node(S, k)
                for j in mem:
                    if (S, j) not in emitted: node(S, j)
        for j in range(4): a(ldM(j))
        chk(15, 0)
        a(f's_cbranch_vccnz {FL_(15,0)}')
        a(f'{ent[mode]}:')
        node(15, 0)
        a(f'{Lpost}:')
        a('s_waitcnt lgkmcnt(0)')
        a('s_barrier')
        if tr: tr(3)
        a(f'ds_read2st64_b32 {vr(AF,2)}, v{vLR} offset0:0 offset1:4')
        a(f'ds_read2st64_b32 {vr(AF+2,2)}, v{vLR} offset0:8 offset1:12')
        a(f's_add_u32 {sr(c.sS)}, {sr(c.sS)}, 1')
        a('s_waitcnt lgkmcnt(1)')
        a(f'v_add_f32 v{AF}, v{AF}, v{AF+1}')
        a('s_waitcnt lgkmcnt(0)')
        a(f'v_add_f32 v{AF+2}, v{AF+2}, v{AF+3}')
        a(f'v_add_f32 v{AF}, v{AF}, v{AF+2}')
        a(f'v_cvt_pk_bf16_f32 v{PK}, v{AF}, v{AF}')
        a(f'buffer_store_short v{PK}, v{vL2}, {WS}, {sr(c.sO4)} offen{sm}')
        if P['bprio']: a(f's_setprio 0')
        if tr: tr(5); tr.flush(ACC)
        delay(a, P['dx'])
        if not P['nox']: xred()
        for i in range(24): a(f'v_mov_b32 v{ACC+i}, 0')
        a(f's_add_u32 {sr(T0)}, {sr(c.sMS)}, {sr(c.sArm)}')
        a(f's_add_u32 {sr(T0+1)}, {sr(c.sQA)}, {sr(c.sArm)}')
        a(f's_add_u32 {sr(T0+2)}, {sr(c.sD)}, {sr(c.sArm)}')
        a(f's_add_u32 {sr(c.sO1)}, {sr(c.sB1)}, {sr(c.sSlot)}')
        a(f's_add_u32 {sr(c.sSlot)}, {sr(c.sSlot)}, {1<<18}')
        a(f's_and_b32 {sr(c.sSlot)}, {sr(c.sSlot)}, {3<<18}')
        a(f's_xor_b32 {sr(c.sArm)}, {sr(c.sSlot)}, {2<<18}')
        a(f's_add_u32 {sr(c.sO2)}, {sr(c.sB2)}, {sr(c.sSlot)}')
        a(f's_add_u32 {sr(c.sO3)}, {sr(c.sMS)}, {sr(c.sSlot)}')
        a(f's_add_u32 {sr(c.sO4)}, {sr(c.sVP)}, {sr(c.sSlot)}')
        vdB()
        a('s_waitcnt vmcnt(0)')
        if P['fo']:
            a(f'{Lf}:')
            a(f'ds_read_b32 v{T}, v{vFl}')
            spin(a, c, Lend)
            delay(a, P['fsl'])
            a('s_waitcnt lgkmcnt(0)')
            a(f'v_cmp_gt_u32 vcc, {sr(c.sS)}, v{T}')
            a(f's_cbranch_vccnz {Lf}')
        if tr: tr(4)
        if P['larm'] == 3: arms(2)
        if P['fo'] & 1: pref()
        if P['fo'] & 2: opst()
        if P['fo'] & 4: arms(1)
        Lck = a.lab('b_ck'); Lb2 = a.lab('b_b2')
        a(f's_mov_b64 vcc, 0')
        a(f's_cmp_eq_u32 {b}, 0')
        a(f's_cbranch_scc1 {Lck}')
        a(f'{Lb2}:')
        a(f's_cmp_eq_u32 {sr(c.sS)}, {NSTEP}')
        a('s_barrier')
        a(f's_cbranch_scc0 {Lt}')
        if not P['fo'] & 2: opst()
        a(f's_branch {Lfin}')
        Lc2 = a.lab('b_c2'); Lc3 = a.lab('b_c3')
        a(f'{Lck}:')
        a(f's_and_b32 {sr(T0+3)}, {sr(c.sS)}, 7')
        a(f's_cmp_gt_u32 {sr(c.sS)}, {NSTEP-7}')
        a(f's_cselect_b32 {sr(T0+3)}, 2, {sr(T0+3)}')
        a(f's_cmp_eq_u32 {sr(T0+3)}, 2')
        a(f's_cselect_b32 vcc_lo, 1, 0')
        a(f's_cmp_eq_u32 {sr(T0+3)}, 5')
        a(f's_cbranch_scc1 {Lc2}')
        a(f's_cmp_eq_u32 {sr(T0+3)}, 4')
        a(f's_cbranch_scc0 {Lb2}')
        a(f's_buffer_load_dword {sr(c.sRv)}, {WS}, {sr(c.sRd)} glc')
        a(f's_branch {Lb2}')
        a(f'{Lc2}:')
        a(f's_cmp_ge_u32 {sr(c.sRv)}, 12')
        a(f's_cbranch_scc1 {Lc3}')
        rdywait()
        a(f'{Lc3}:')
        a(f's_add_u32 {sr(c.sRd)}, {sr(c.sRd)}, 128')
        a(f's_branch {Lb2}')
        a(f'{Lpg}:')
        a(f's_sub_u32 {sr(T0+3)}, {sr(c.sS)}, 2')
        a(f'v_mov_b32 v{T}, {sr(T0+3)}')
        a(f's_mov_b64 exec, 1')
        if P['prog']: a(f'buffer_store_dword v{T}, off, {WS}, {sr(c.sPg)} sc1')
        a(f's_mov_b64 exec, -1')
        a(f's_branch {Lpg2}')
        slow_nodes()
    a(f'{Lfin}:')
    a('s_barrier')
    xred()
    a(f'buffer_store_dwordx4 {vr(AF,4)}, v{L16}, {WS}, {sr(c.sOP)} offen sc1')
    a('s_waitcnt vmcnt(0)')
    if P['fused']:
        a('s_barrier')
        a(f's_cmp_lg_u32 {b}, 0')
        a(f's_cbranch_scc1 {Ldone}')
        a(f'v_mov_b32 v{T}, {NSTEP}')
        a(f's_mov_b64 exec, 1')
        a(f'buffer_store_dword v{T}, off, {WS}, {sr(c.sPg)} sc1')
        a(f's_mov_b64 exec, -1')
    a(f's_branch {Ldone or Lend}')

def cwave(a, c, Lend, tr=None, getpar=None, Ldone=None):
    T0 = c.sT; j = sr(c.sD)
    v = Regs(1, 256)
    L8 = 0
    L = v.get(); T = v.get(); T2 = v.get(); L16 = v.get()
    vK = v.get(); vVR = v.get(); vQR = v.get(); vSS = v.get(); vCW = v.get(); vCR = v.get(); vPS = v.get(); vIdx = v.get(); vFl = v.get(); vOne = v.get()
    vXW = v.get(); vXR = v.get()
    vK2 = 240; vF4 = 241; FL4 = 244
    R = v.get(2, 2); SELM = v.get(2, 2); PX_ = v.get(10, 2)
    SELA = v.get(4, 4); SELB = v.get(4, 4); PP = v.get(4, 4); KQ = v.get(8, 4)
    XL = v.get(8, 4); E = v.get(8, 4)
    VXr = v.get(32, 4); UM = v.get(16, 4); OUT = v.get(20, 4); U = v.get(40, 4); WO = v.get(64, 4)
    assert OUT == UM + 16
    UD = UM; QB = VXr; KA_ = VXr + 8; DS = VXr + 16; VMr = VXr + 24
    SL = VXr; SML = VXr + 8; X = VXr + 10
    E4 = E + 4
    sMask = c.sMask; sPX = c.sV; sSCL = c.sM0; sKQ = c.sAr
    WS = sr(c.SWS, 4)
    a(f's_load_dwordx2 {sr(c.SA,2)}, s[0:1], {B_WO}')
    a(f's_sub_u32 {j}, {sr(c.sW)}, 4')
    a(f'v_and_b32 v{L}, 63, v0')
    a(f'v_lshlrev_b32 v{L16}, 4, v{L}')
    a(f'v_lshlrev_b32 v{L8}, 3, v{L}')
    a(f's_lshl_b32 {sr(T0)}, {sr(c.sG)}, 2')
    a(f's_add_u32 {sr(T0)}, {sr(T0)}, {j}')
    ssum(a, sr(T0+1), sr(T0+2), [(sr(T0), 18), (sr(c.sC), 7)])
    bits(a, vPS, L, T, [(56, 8), (7, 4)], sr(T0+1))
    ssum(a, sr(T0+3), None, [(j, 14)], 98304)
    a('s_waitcnt lgkmcnt(0)')
    srd(a, c.SA, sr(c.SA), sr(c.SA+1), 4096*2048)
    for m in range(16):
        a(f's_mov_b32 {sr(T0+2)}, {m*8*2048}')
        a(f's_add_u32 m0, {sr(T0+3)}, {m*1024}')
        a(f'buffer_load_dwordx4 v{vPS}, {sr(c.SA,4)}, {sr(T0+2)} offen lds')
    bits(a, vCR, L, T, [(12, 5), (48, 6), (3, 3)], sr(T0+3))
    ssum(a, sr(c.sB1), None, [(sr(T0), 13)], QKV)
    ssum(a, sr(sPX), None, [(sr(T0), 11)], PX)
    a(f's_mov_b32 {sr(sSCL)}, {SCL:#x}')
    a(f's_lshl_b32 {sr(T0)}, {sr(c.sG)}, 4')
    a(f's_add_u32 {sr(T0)}, {sr(T0)}, {sr(c.sC)}')
    bits(a, vK, L, T, [(1, 4), (2, 5), (4, 5), (8, 7), (48, 4)])
    ssum(a, sr(T0+1), None, [(j, 5)], KX)
    a(f's_cmp_lt_u32 {j}, 2')
    a(f's_cselect_b32 {sr(T0+1)}, {sr(T0+1)}, {QX}')
    a(f's_cselect_b64 vcc, -1, 0')
    a(f's_lshl_b32 {sr(T0+2)}, {sr(T0)}, 11')
    a(f's_add_u32 {sr(sKQ)}, {sr(T0+1)}, {sr(T0+2)}')
    a(f'v_cndmask_b32 v{vK}, v{L16}, v{vK}, vcc')
    bits(a, vSS, L, T, [(13, 4), (16, -1), (32, 5)])
    bits(a, T2, L, T, [(15, 4), (16, 6), (32, -2)])
    a(f'v_cndmask_b32 v{vSS}, v{T2}, v{vSS}, vcc')
    bits(a, T2, L, T, [(15, 3), (48, -3)])
    a(f's_and_b32 {sr(T0+2)}, {sr(T0)}, 3')
    ssum(a, sr(T0+1), None, [(j, 5)], 2048)
    a(f's_cmp_lt_u32 {j}, 2')
    a(f's_cselect_b32 {sr(T0+1)}, {sr(T0+1)}, 4096')
    a(f's_lshl_b32 {sr(T0+3)}, {sr(T0+2)}, 8')
    a(f's_add_u32 {sr(T0+1)}, {sr(T0+1)}, {sr(T0+3)}')
    ssum(a, sr(T0+3), None, [(sr(T0+2), 7)], 6144)
    a(f's_cmp_eq_u32 {j}, 2')
    a(f's_cselect_b32 {sr(T0+1)}, {sr(T0+3)}, {sr(T0+1)}')
    a(f's_cselect_b64 vcc, -1, 0')
    a(f's_lshr_b32 {sr(T0+2)}, {sr(T0)}, 2')
    ssum(a, sr(T0+2), None, [(sr(T0+2), 13)], QKV)
    a(f's_add_u32 {sr(T0+1)}, {sr(T0+1)}, {sr(T0+2)}')
    a(f'v_cndmask_b32 v{vSS}, v{vSS}, v{T2}, vcc')
    a(f'v_add_u32 v{vSS}, {sr(T0+1)}, v{vSS}')
    bits(a, vQR, L, T, [(12, 3), (12, 1), (48, 4), (48, 2), (3, 3)])
    ssum(a, sr(T0+1), None, [(j, 13)], VB)
    a(f'v_add_u32 v{vVR}, {sr(T0+1)}, v{L16}')
    ssum(a, sr(T0+1), None, [(j, 12)], XO)
    a(f'v_add_u32 v{vXW}, {sr(T0+1)}, v{L16}')
    ssum(a, sr(T0+1), None, [(j, 9)], XR)
    a(f'v_add_u32 v{vXR}, {sr(T0+1)}, v{L8}')
    ssum(a, sr(T0+1), None, [(j, 11)], CO)
    bits(a, vCW, L, T, PERM4, sr(T0+1))
    ssum(a, sr(T0+1), None, [(j, 2)], FLAG)
    a(f'v_mov_b32 v{vFl}, {sr(T0+1)}')
    a(f'v_mov_b32 v{vOne}, 0')
    a(f'v_and_b32 v{T}, 2, v{L}')
    a(f'v_cmp_ne_u32 {sr(sMask,2)}, 0, v{T}')
    a(f'v_mov_b32 v{T}, 0x4444')
    a(f'v_mov_b32 v{T2}, 0xeeee')
    a(f'v_cndmask_b32 v{vIdx}, v{T}, v{T2}, {sr(sMask,2)}')
    a(f'v_and_b32 v{PP}, 1, v{L}')
    a(f'v_cmp_ne_u32 vcc, 0, v{PP}')
    a(f'v_cndmask_b32 v{T}, v{T}, v{T2}, vcc')
    a(f'v_lshl_or_b32 v{vIdx}, v{T}, 16, v{vIdx}')
    make_sel(a, SELA, L, T, T2)
    a(f'v_and_b32 v{T}, 8, v{L}')
    a(f'v_cmp_ne_u32 vcc, 0, v{T}')
    for p in range(4):
        a(f'v_cndmask_b32 v{SELB+p}, 0, v{SELA+p}, vcc')
        a(f'v_sub_u32 v{SELA+p}, v{SELA+p}, v{SELB+p}')
    bits(a, T2, L, T, [(4, 2)])
    a(f'v_mov_b32 v{T}, 0x3f80')
    a(f'v_lshlrev_b32 v{T2}, v{T2}, v{T}')
    a(f'v_cndmask_b32 v{SELM+1}, 0, v{T2}, vcc')
    a(f'v_sub_u32 v{SELM}, v{T2}, v{SELM+1}')
    for t in range(5):
        a(f'v_mov_b32 v{U+8*t+4}, 0'); a(f'v_mov_b32 v{U+8*t+5}, 0')
    for r in (2, 3, 6, 7): a(f'v_mov_b32 v{U+32+r}, 0x3f803f80')
    for r in (0, 1): a(f'v_mov_b32 v{U+32+r}, 0x3f80')
    a('s_waitcnt vmcnt(0)')
    for t in range(4):
        for ch in range(2):
            for q in range(4):
                off = (ch * 64 + 32 * (q >> 1) + 4 * (q & 1)) * 128 + t * 32
                a(f'ds_read_b64_tr_b16 {vr(WO+(t*2+ch)*8+2*q,2)}, v{vCR} offset:{off}')
        a('s_waitcnt lgkmcnt(0)')
    if getpar: getpar(VXr)
    ssum(a, sr(T0+1), None, [(j, 9)], CO)
    a(f'v_add_u32 v{vCR}, {sr(T0+1)}, v{L8}')
    ssum(a, sr(T0+1), sr(T0+2), [(j, 11), (sr(c.sC), 14), (sr(c.sG), 8)])
    a(f's_add_u32 {sr(T0+1)}, {sr(T0+1)}, {sr(c.sPart)}')
    bits(a, vPS, L, T, [(15, 2), (16, 3), (32, 1)], sr(T0+1))
    a(f's_mov_b32 {sr(c.sS)}, 0')
    a(f's_mov_b32 {sr(c.sSpin)}, {SPIN}')
    a(f's_mov_b32 {sr(c.sSlot)}, 0')
    a('s_barrier')
    a(f'ds_write_b32 v{vFl}, v{vOne}')
    a(f'ds_write_b32 v{vFl}, v{vOne} offset:16')
    a('s_waitcnt lgkmcnt(0)')
    a('s_barrier')

    a(f'v_mov_b32 v{T}, 0x80000000')
    a(f's_cmp_eq_u32 {j}, 3')
    a(f's_cselect_b64 vcc, -1, 0')
    a(f'v_cndmask_b32 v{vK2}, v{T}, v{vK}, vcc')
    a(f's_cmp_eq_u32 {j}, 2')
    a(f's_cselect_b64 vcc, -1, 0')
    a(f'v_cndmask_b32 v{vK}, v{vK}, v{T}, vcc')
    a(f'v_mov_b32 v{vF4}, {FLAG+16}')
    def ldKQ():
        a(f'buffer_load_dwordx4 {vr(KQ,4)}, v{vK}, {WS}, {sr(sKQ)} offen')
        a(f'buffer_load_dwordx4 {vr(KQ+4,4)}, v{vK2}, {WS}, {sr(sKQ)} offen offset:1024')
        a(f's_add_u32 {sr(sKQ)}, {sr(sKQ)}, {0 if P["nokq"] else 1<<18}')
    def ldPX():
        return [f'buffer_load_dwordx4 {vr(PX_,4)}, v{L16}, {WS}, {sr(sPX)} offen',
                f'buffer_load_dwordx4 {vr(PX_+6,4)}, v{L16}, {WS}, {sr(sPX)} offen offset:1024',
                f's_add_u32 {sr(sPX)}, {sr(sPX)}, {0 if P["nokq"] else 1<<18}']
    def ldXL():
        for k in range(2): a(f'buffer_load_dwordx4 {vr(XL+4*k,4)}, v{L16}, {WS}, {sr(c.sO2)} offen offset:{1024*k} sc1')
    def rdV():
        for ks in range(4):
            for kt in range(2):
                a(f'ds_read_b128 {vr(VXr+16*kt+4*ks,4)}, v{vVR} offset:{2048*ks+1024*kt}')
    def xpv_head(Lretry, Lbad, Lgood):
        a(f'{Lretry}:')
        a(f'v_mfma_f32_16x16x32_bf16 {vr(E,4)}, {vr(SELA,4)}, {vr(XL,4)}, 0')
        a(f'v_mfma_f32_16x16x32_bf16 {vr(E,4)}, {vr(SELB,4)}, {vr(XL+4,4)}, {vr(E,4)}')
        for r in range(4): a(f'v_fma_f32 v{E+r}, v{E+r}, {sr(sSCL)}, -v{PX_+(r>>1)}')
        a(f'v_max3_f32 v{T}, v{E}, v{E+1}, v{E+2}')
        a(f'v_max_f32 v{T}, v{T}, v{E+3}')
        a(f'v_cmp_nge_f32 vcc, 0x42800000, v{T}')
        a(f's_cbranch_vccnz {Lbad}')
        a(f'{Lgood}:')
        for r in range(4): a(f'v_exp_f32 v{E+r}, v{E+r}')
        for r in range(4): a(f'v_cvt_pk_bf16_f32 v{PX_+(r&1)+4*(r>>1)}, v{E+r}, v{E+r}')
    def xpv_bad(Lretry, Lbad, Lgood):
        Lbig = a.lab('c_big')
        a(f'{Lbad}:')
        a(f'v_cmp_u_f32 vcc, v{T}, v{T}')
        a(f's_cbranch_vccz {Lbig}')
        ldXL()
        spin(a, c, Lend)
        a('s_waitcnt vmcnt(0)')
        a(f's_branch {Lretry}')
        a(f'{Lbig}:')
        for tq in range(2):
            a(f'v_max3_f32 v{T}, v{E+2*tq}, v{E+2*tq+1}, 0')
            for op in ('v_permlane16_swap_b32', 'v_permlane32_swap_b32'):
                a(f'v_mov_b32 v{T2}, v{T}')
                a(f'{op} v{T}, v{T2}')
                a(f'v_max_f32 v{T}, v{T}, v{T2}')
            a(f'v_sub_f32 v{E+2*tq}, v{E+2*tq}, v{T}')
            a(f'v_sub_f32 v{E+2*tq+1}, v{E+2*tq+1}, v{T}')
            a(f'v_exp_f32 v{T}, -v{T}')
            for r in ((2, 3) if tq == 0 else (6, 7, 8, 9)):
                a(f'v_lshlrev_b32 v{T2}, 16, v{PX_+r}')
                a(f'v_and_b32 v{PX_+r}, 0xffff0000, v{PX_+r}')
                a(f'v_mul_f32 v{T2}, v{T2}, v{T}')
                a(f'v_mul_f32 v{PX_+r}, v{PX_+r}, v{T}')
                a(f'v_cvt_pk_bf16_f32 v{PX_+r}, v{T2}, v{PX_+r}')
        a(f's_branch {Lgood}')
    def xpv_mfma(t):
        D0 = UD + 8 * t if t < 4 else OUT + 16
        D1 = UD + 8 * t + 4 if t < 4 else E4
        return [f'v_mfma_f32_16x16x32_bf16 {vr(D1,4)}, {vr(U+8*t,4)}, {vr(PX_+4,4)}, 0',
                f'v_mfma_f32_16x16x32_bf16 {vr(D0,4)}, {vr(U+8*t,4)}, {vr(PX_,4)}, 0',
                f'v_mfma_f32_16x16x32_bf16 {vr(D1,4)}, {vr(U+8*t+4,4)}, {vr(PX_+6,4)}, {vr(D1,4)}']
    def xpv_post(t):
        if t == 4:
            return [f'v_rcp_f32 v{R}, v{OUT+16}', f'v_rcp_f32 v{R+1}, v{E4}', f'ds_write_b64 v{vXR}, {vr(R,2)}']
        Y = XL + 4 * (t & 1); D = UD + 8 * t
        return [f'v_cvt_pk_bf16_f32 v{Y+i}, v{D+2*i}, v{D+2*i+1}' for i in range(4)] + [f'ds_write_b128 v{vXW}, {vr(Y,4)} offset:{1024*t}']
    def xpv_body():
        cv = []
        for t in (4, 0, 1, 2, 3):
            for i, m in enumerate(xpv_mfma(t)):
                a(m)
                if i >= 1:
                    for _ in range(3):
                        if cv: a(cv.pop(0))
            cv += xpv_post(t)
        return cv
    def ux(cv):
        a(f's_add_u32 {sr(c.sO1)}, {sr(c.sB1)}, {sr(c.sSlot)}')
        a(f's_add_u32 {sr(c.sO2)}, {sr(c.sO1)}, 4096')
        a(f's_mov_b32 {sr(c.sFb)}, 0')
        a(f'v_xor_b32 v{vVR}, 32768, v{vVR}')
        a(f'v_add_u32 v{vOne}, 1, v{vOne}')
        for t in range(4):
            for ks in range(4):
                for kt in range(2):
                    D = vr(UD + (t * 2 + kt) * 4, 4)
                    a(f'v_mfma_f32_16x16x32_bf16 {D}, {vr(VXr+16*kt+4*ks,4)}, {vr(WO+(t*2+(ks>>1))*8+(ks&1)*4,4)}, {D if ks else 0}')
                    if ks >= 1 or (t == 0 and kt == 1):
                        for _ in range(2):
                            if cv: a(cv.pop(0))
            for kt in range(2):
                D = UD + (t * 2 + kt) * 4
                cv += [f'v_cvt_pk_bf16_f32 v{U+8*t+2+4*kt}, v{D}, v{D+1}', f'v_cvt_pk_bf16_f32 v{U+8*t+3+4*kt}, v{D+2}, v{D+3}']
            cv += [f'v_mov_b32 v{UD+8*t+i}, 0' for i in range(8)]
        for i in range(32, 36): a(f'v_mov_b32 v{UM+i}, 0')
        for x in cv: a(x)

    ents = [a.lab('c_ent0'), a.lab('c_ent1')]; Lfin = a.lab('c_fin')
    ldKQ(); rdV()
    a('s_waitcnt vmcnt(0) lgkmcnt(0)')
    ux([])
    a(f's_cmp_eq_u32 {sr(c.sMode)}, 0')
    a(f's_cbranch_scc1 {ents[0]}')
    a(f's_branch {ents[1]}')
    for mode in range(2):
        sm = ' sc1' if mode else ''
        Lt = a.lab('c_top'); Lp = a.lab('c_p'); Lpz = a.lab('c_pz'); Lsm = a.lab('c_sm'); Lfb = a.lab('c_fb'); Lz = a.lab('c_z')
        L2 = a.lab('c_r2'); L3 = a.lab('c_r3'); Lj = a.lab('c_j')
        xl = [a.lab('c_xr'), a.lab('c_xb'), a.lab('c_xg')]
        a(f'{Lt}:')
        a('s_waitcnt vmcnt(1)')
        if tr: tr.flush(VXr)
        if tr and P['cst'] == 1: tr(6)
        if P['kqtop']: ldKQ()
        if tr and P['cst'] == 2: tr(6)
        rdV()
        if P['nox']:
            cv = []
        else:
            xpv_head(*xl)
            cv = xpv_body()
        a(f's_waitcnt lgkmcnt({0 if P["nox"] else 4})')
        if tr and P['cst'] == 3: tr(6)
        ux(cv)
        a(f'v_xor_b32 v{vXW}, 16384, v{vXW}')
        a(f'v_xor_b32 v{vXR}, 2048, v{vXR}')
        if tr and P['cst'] == 0: tr(6)
        a(f'{ents[mode]}:')
        a(f's_waitcnt vmcnt(0) lgkmcnt(0)')
        if P['cprio']: a(f's_setprio {P["cprio"]}')
        if tr: tr(0)
        a(f's_cmp_ge_u32 {j}, 2')
        a(f's_cbranch_scc1 {L2}')
        def rdq(R_, base):
            for u in range(2):
                for wh in range(2):
                    a(f'ds_read_b64_tr_b16 {vr(R_+4*u+2*wh,2)}, v{vQR} offset:{base+1280*u+160*wh}')
        a('s_barrier')
        rdq(QB, QI)
        a('s_waitcnt lgkmcnt(2)')
        a(f'v_mfma_f32_16x16x32_bf16 {vr(DS,4)}, {vr(KQ,4)}, {vr(QB,4)}, 0')
        a('s_waitcnt lgkmcnt(0)')
        a(f'v_mfma_f32_16x16x32_bf16 {vr(DS,4)}, {vr(KQ,4)}, {vr(QB+4,4)}, {vr(DS,4)}')
        for r in range(4): a(f'v_add_f32_dpp v{DS+r}, v{DS+r}, v{DS+r} quad_perm:[2,3,0,1] row_mask:0xf bank_mask:0xf')
        a(f'v_cvt_pk_bf16_f32 v{DS}, v{DS}, v{DS+1}')
        a(f'v_cvt_pk_bf16_f32 v{DS+1}, v{DS+2}, v{DS+3}')
        a(f'buffer_store_dwordx2 {vr(DS,2)}, v{vSS}, {WS}, {sr(c.sSlot)} offen{sm}')
        a(f's_branch {Lj}')
        a(f'{L2}:')
        a(f's_cmp_eq_u32 {j}, 3')
        a(f's_cbranch_scc1 {L3}')
        a('s_barrier')
        for u in range(2):
            for R_, base in ((QB, QI), (KA_, KI)):
                for wh in range(2):
                    a(f'ds_read_b64_tr_b16 {vr(R_+4*u+2*wh,2)}, v{vQR} offset:{base+1280*u+160*wh}')
        a('s_waitcnt lgkmcnt(4)')
        a(f'v_mfma_f32_16x16x32_bf16 {vr(DS,4)}, {vr(KA_,4)}, {vr(QB,4)}, 0')
        a('s_waitcnt lgkmcnt(2)')
        a(f'v_mfma_f32_16x16x32_bf16 {vr(DS,4)}, {vr(KA_,4)}, {vr(QB+4,4)}, {vr(DS,4)}')
        a('s_waitcnt lgkmcnt(0)')
        a(f'v_mfma_f32_16x16x32_bf16 {vr(DS,4)}, {vr(KA_+4,4)}, {vr(QB,4)}, {vr(DS,4)}')
        a(f'v_mfma_f32_16x16x32_bf16 {vr(DS,4)}, {vr(KA_+4,4)}, {vr(QB+4,4)}, {vr(DS,4)}')
        a(f'v_add_f32 v{DS}, v{DS}, v{DS+2}')
        a(f'v_add_f32 v{DS+1}, v{DS+1}, v{DS+3}')
        a(f'v_cndmask_b32 v{DS+2}, v{DS+1}, v{DS}, {sr(sMask,2)}')
        a(f'v_cndmask_b32 v{DS+3}, v{DS}, v{DS+1}, {sr(sMask,2)}')
        a(f'v_add_f32_dpp v{DS}, v{DS+2}, v{DS+3} quad_perm:[2,3,0,1] row_mask:0xf bank_mask:0xf')
        a(f'v_mul_f32 v{DS}, {sr(sSCL)}, v{DS}')
        a(f'v_cvt_pk_bf16_f32 v{DS}, v{DS}, v{DS}')
        a(f'buffer_store_short v{DS}, v{vSS}, {WS}, {sr(c.sSlot)} offen{sm}')
        a(f's_branch {Lj}')
        a(f'{L3}:')
        a('s_barrier')
        rdq(KA_, KI)
        a('s_waitcnt lgkmcnt(2)')
        for tq in range(2): a(f'v_mfma_f32_16x16x32_bf16 {vr(DS+4*tq,4)}, {vr(KA_,4)}, {vr(KQ+4*tq,4)}, 0')
        a('s_waitcnt lgkmcnt(0)')
        for tq in range(2): a(f'v_mfma_f32_16x16x32_bf16 {vr(DS+4*tq,4)}, {vr(KA_+4,4)}, {vr(KQ+4*tq,4)}, {vr(DS+4*tq,4)}')
        for tq in range(2):
            a(f'v_add_f32 v{DS+4*tq}, v{DS+4*tq}, v{DS+4*tq+2}')
            a(f'v_add_f32 v{DS+4*tq+1}, v{DS+4*tq+1}, v{DS+4*tq+3}')
            a(f'v_cvt_pk_bf16_f32 v{DS+tq}, v{DS+4*tq}, v{DS+4*tq+1}')
        a(f'buffer_store_dwordx2 {vr(DS,2)}, v{vSS}, {WS}, {sr(c.sSlot)} offen{sm}')
        a(f'{Lj}:')
        if tr: tr(1)
        delay(a, P['dq'])
        a(f'{Lp}:')
        for k in range(2): a(f'buffer_load_dwordx4 {vr(SL+4*k,4)}, v{L16}, {WS}, {sr(c.sO1)} offen offset:{2048+1024*k} sc1')
        a(f'buffer_load_dwordx2 {vr(SML,2)}, v{L8}, {WS}, {sr(c.sO2)} offen offset:2048 sc1')
        for ch in range(2):
            a(f'buffer_load_dwordx4 {vr(VMr+4*ch,4)}, v{L16}, {WS}, {sr(c.sO1)} offen offset:{1024*ch} sc1')
        spin(a, c, Lend)
        def um(t, ch): return f'v_smfmac_f32_16x16x64_bf16 {vr(UM+4*t,4)}, {vr(VMr+4*ch,4)}, {vr(WO+(t*2+ch)*8,8)}, v{vIdx} abid:1'
        def ucv(t): return [f'v_cvt_pk_bf16_f32 v{U+8*t}, v{UM+4*t}, v{UM+4*t+1}', f'v_cvt_pk_bf16_f32 v{U+8*t+1}, v{UM+4*t+2}, v{UM+4*t+3}']
        def pv(t): return f'v_smfmac_f32_16x16x64_bf16 {vr(OUT+4*t,4)}, {vr(PP,4)}, {vr(U+8*t,8)}, v{vIdx}'
        def soft():
            return [f'v_exp_f32 v{X+i}, v{E+i}' for i in range(2)] + [f'v_exp_f32 v{X+4}, v{E4}'] + \
                   [f'v_exp_f32 v{X+i}, v{E+i}' for i in range(2, 4)] + \
                   [f'v_cvt_pk_bf16_f32 v{PP}, v{X+4}, v{X+4}', f'v_cvt_pk_bf16_f32 v{PP+2}, v{X+4}, v{X+4}',
                    f'v_cvt_pk_bf16_f32 v{PP+1}, v{X}, v{X+1}', f'v_cvt_pk_bf16_f32 v{PP+3}, v{X+2}, v{X+3}',
                    f'v_permlane32_swap_b32 v{PP}, v{PP+2}']
        a('s_waitcnt vmcnt(4)')
        a(f'v_mfma_f32_16x16x32_bf16 {vr(E,4)}, {vr(SELA,4)}, {vr(SL,4)}, 0')
        a('s_waitcnt vmcnt(3)')
        a(f'v_mfma_f32_16x16x32_bf16 {vr(E,4)}, {vr(SELB,4)}, {vr(SL+4,4)}, {vr(E,4)}')
        a('s_waitcnt vmcnt(2)')
        a(f'v_mfma_f32_16x16x16_bf16 {vr(E4,4)}, {vr(SELM,2)}, {vr(SML,2)}, 0')
        a('s_waitcnt vmcnt(1)')
        a(um(0, 0))
        a('s_waitcnt vmcnt(0)')
        a(um(0, 1))
        so = soft()
        a(so.pop(0))
        a(um(1, 0))
        a(so.pop(0))
        a(um(1, 1))
        a(so.pop(0))
        a(f'v_cmp_u_f32 {sr(c.sT,2)}, v{E}, v{E4}')
        a(um(2, 0))
        a(so.pop(0))
        a(f'v_cmp_u_f32 {sr(c.sT+2,2)}, v{UM}, v{UM+1}')
        a(f'v_cmp_u_f32 vcc, v{UM+2}, v{UM+3}')
        a(um(2, 1))
        a(so.pop(0))
        a(f's_or_b64 {sr(c.sT,2)}, {sr(c.sT,2)}, {sr(c.sT+2,2)}')
        a(f's_or_b64 vcc, vcc, {sr(c.sT,2)}')
        a(f's_cbranch_vccnz {Lpz}')
        if tr: tr(2)
        a(um(3, 0))
        a(so.pop(0)); a(so.pop(0))
        a(um(3, 1))
        for x in so: a(x)
        ldXL()
        for x in ldPX(): a(x)
        if not P['kqtop']: ldKQ()
        if P['fo']: a(f'ds_write_b32 v{vFl}, v{vOne}')
        for x in ucv(0): a(x)
        a(pv(4))
        for x in ucv(1): a(x)
        a(pv(0))
        for x in ucv(2): a(x)
        a(pv(1))
        for x in ucv(3): a(x)
        a(f'{Lsm}:')
        Lr = OUT + 16
        a(pv(2))
        a(f'v_add_f32 v{Lr}, v{Lr}, v{Lr+2}'); a(f'v_add_f32 v{Lr+1}, v{Lr+1}, v{Lr+3}')
        a(pv(3))
        a(f'v_rcp_f32 v{R}, v{Lr}'); a(f'v_rcp_f32 v{R+1}, v{Lr+1}')
        lo = (127 - 64) << 23; span = 128 << 23
        for t in range(4):
            Y = OUT + 4 * t
            a(f'v_add_f32 v{Y}, v{Y}, v{Y+2}'); a(f'v_add_f32 v{Y+1}, v{Y+1}, v{Y+3}')
            a(f'v_mul_f32 v{Y}, v{Y}, v{R}'); a(f'v_mul_f32 v{Y+1}, v{Y+1}, v{R+1}')
            a(f'ds_write2st64_b32 v{vCW}, v{Y}, v{Y+1} offset0:{2*t} offset1:{2*t+1}')
        a(f'v_subrev_u32 v{Lr}, {lo:#x}, v{Lr}'); a(f'v_subrev_u32 v{Lr+1}, {lo:#x}, v{Lr+1}')
        a(f'v_max_u32 v{T}, v{Lr}, v{Lr+1}')
        a(f'v_cmp_lt_u32 vcc, {span:#x}, v{T}')
        a(f's_add_u32 {sr(c.sS)}, {sr(c.sS)}, 1')
        a(f's_cbranch_vccnz {Lfb}')
        a(f'{Lz}:')
        a('s_waitcnt lgkmcnt(0)')
        if tr: tr(3)
        a('s_barrier')
        if tr: tr(5)
        for q in range(4): a(f'ds_read_b64 {vr(SL+2*q,2)}, v{vCR} offset:{2048*q}')
        a(f's_cmp_eq_u32 {sr(c.sS)}, {NSTEP}')
        a('s_waitcnt lgkmcnt(2)')
        for r in range(2): a(f'v_add_f32 v{SL+r}, v{SL+r}, v{SL+2+r}')
        a('s_waitcnt lgkmcnt(0)')
        for r in range(2): a(f'v_add_f32 v{SL+4+r}, v{SL+4+r}, v{SL+6+r}')
        for r in range(2): a(f'v_add_f32 v{SL+r}, v{SL+r}, v{SL+4+r}')
        a(f'v_cvt_pk_bf16_f32 v{R}, v{SL}, v{SL+1}')
        a(f'buffer_store_dword v{R}, v{vPS}, {WS}, {sr(c.sSlot)} offen sc1')
        if P['cprio']: a(f's_setprio 0')
        if tr: tr(4)
        a(f's_cbranch_scc1 {Lfin}')
        a(f's_add_u32 {sr(c.sSlot)}, {sr(c.sSlot)}, {1<<18}')
        a(f's_and_b32 {sr(c.sSlot)}, {sr(c.sSlot)}, {3<<18}')
        a(f's_branch {Lt}')
        a(f'{Lpz}:')
        a('s_nop 7')
        for i in range(12): a(f'v_mov_b32 v{UM+i}, 0')
        a(f's_branch {Lp}')
        if not P['nox']: xpv_bad(*xl)
        a(f'{Lfb}:')
        a(f's_cmp_lg_u32 {sr(c.sFb)}, 0')
        a(f's_cbranch_scc1 {Lz}')
        a(f's_mov_b32 {sr(c.sFb)}, 1')
        a(f's_sub_u32 {sr(c.sS)}, {sr(c.sS)}, 1')
        a(f'v_max3_f32 v{T}, v{E}, v{E+1}, v{E+2}')
        a(f'v_max3_f32 v{T}, v{T}, v{E+3}, v{E4}')
        a(f'v_max_f32_dpp v{T}, v{T}, v{T} quad_perm:[2,3,0,1] row_mask:0xf bank_mask:0xf')
        for op in ('v_permlane16_swap_b32', 'v_permlane32_swap_b32'):
            a(f'v_mov_b32 v{T2}, v{T}')
            a(f'{op} v{T}, v{T2}')
            a(f'v_max_f32 v{T}, v{T}, v{T2}')
        for i in range(5): a(f'v_sub_f32 v{E+i}, v{E+i}, v{T}')
        for x in soft(): a(x)
        for i in range(20): a(f'v_mov_b32 v{OUT+i}, 0')
        for t in (4, 0, 1): a(pv(t))
        a('s_nop 7')
        a(f's_branch {Lsm}')
    xl = [a.lab('c_xr'), a.lab('c_xb'), a.lab('c_xg')]
    a(f'{Lfin}:')
    a('s_waitcnt vmcnt(1)')
    xpv_head(*xl)
    for x in xpv_body(): a(x)
    a('s_waitcnt lgkmcnt(0)')
    a('s_barrier')
    if P['fused']: a('s_barrier')
    a(f's_branch {Ldone or Lend}')
    xpv_bad(*xl)
```

```python
from asm import *

class GemmCfg16:
    def __init__(self, TN=256, TM=256, WN=4, WT=2, dual=False, nbuf=2):
        self.TN, self.TM, self.WN, self.WT = TN, TM, WN, WT
        self.dual = dual; self.nbuf = nbuf
        self.tn = TN // 16 // WN
        self.tt = TM // 16 // WT
        self.wbytes = 64 * TN * 2
        self.xbytes = TM * 128
        self.wp = TN // 64
        self.xp = TM // 64
        self.rpp = 512 // TN
        self.rowb = TN * 2
        self.nwg = self.wp
        if dual:
            assert TN == 256
            self.rpp = 4; self.rowb = 256; self.nwg = 2
        self.lds = nbuf * (self.wbytes + self.xbytes)
        self.xoff = nbuf * self.wbytes

class Gemm16:
    def __init__(self, a, cfg, sreg, vreg, SO=None, sWv=None):
        self.a = a; self.c = cfg
        c = cfg
        self.SX = sreg.get(4, 4, 'SX'); self.SW = sreg.get(4, 4, 'SW'); self.SO = sreg.get(4, 4, 'SO') if SO is None else SO
        self.SW2 = sreg.get(4, 4, 'SW2') if c.dual else None
        self.sOB = sreg.get() if SO is not None else None
        self.sLdx = sreg.get(); self.sLdw = sreg.get(); self.sLdo = sreg.get(); self.sWv = sreg.get() if sWv is None else sWv
        self.sOx = sreg.get(); self.sOw = sreg.get(); self.sDw = sreg.get(); self.sM0 = sreg.get(); self.sCnt = sreg.get()
        self.sScale = sreg.get(); self.sT = sreg.get()
        self.sOM = sreg.get(); self.sU1 = sreg.get(); self.sU2 = sreg.get(); self.sTP = sreg.get(); self.sT2 = sreg.get()
        nacc = c.tn * c.tt * 4
        self.vWr = vreg.get(c.tn); self.vXr = vreg.get(2); self.vWg = vreg.get(c.nwg); self.vXg = vreg.get(c.xp)
        self.vWr2 = vreg.get(c.tn) if c.xoff > 65536 else None
        self.vO = vreg.get(1); self.vT = vreg.get(4)
        self.fA = [vreg.get(4 * c.tn, 4) for _ in range(2)]
        self.fB = [vreg.get(4 * c.tt, 4) for _ in range(2)]
        self.acc = vreg.get(nacc, 4)
        self.switch = None
        self.st = None
        self.storemod = ''

    def setup(self):
        a, c = self.a, self.c
        T = self.vT
        w = sr(self.sWv)
        a(f'v_and_b32 v{T}, 63, v0')
        a(f's_lshl_b32 {sr(self.sM0)}, {w}, 10')
        a(f's_lshl_b32 {sr(self.sDw)}, {sr(self.sLdw)}, 6')
        lpr = 64 // c.rpp; sh = lpr.bit_length() - 1
        assert c.TN >= 128
        a(f'v_lshrrev_b32 v{T+1}, {sh}, v{T}')
        a(f's_mul_i32 {sr(self.sT)}, {w}, {c.rpp}')
        a(f'v_add_u32 v{T+1}, {sr(self.sT)}, v{T+1}')
        a(f'v_and_b32 v{T+2}, 3, v{T+1}')
        a(f'v_lshlrev_b32 v{T+2}, 1, v{T+2}')
        a(f'v_and_b32 v{T+3}, 8, v{T+1}')
        a(f'v_or_b32 v{T+2}, v{T+2}, v{T+3}')
        a(f'v_and_b32 v{T+3}, {lpr-1}, v{T}')
        a(f'v_xor_b32 v{T+2}, v{T+2}, v{T+3}')
        a(f'v_lshlrev_b32 v{T+2}, 4, v{T+2}')
        a(f'v_mul_lo_u32 v{T+1}, v{T+1}, {sr(self.sLdw)}')
        a(f'v_add_u32 v{self.vWg}, v{T+1}, v{T+2}')
        a(f's_mul_i32 {sr(self.sT)}, {sr(self.sLdw)}, {8*c.rpp}')
        for m in range(1, c.nwg):
            a(f'v_add_u32 v{self.vWg+m}, {sr(self.sT)}, v{self.vWg+m-1}')
        a(f'v_lshrrev_b32 v{T+1}, 3, v{T}')
        a(f's_lshl_b32 {sr(self.sT)}, {w}, 3')
        a(f'v_add_u32 v{T+1}, {sr(self.sT)}, v{T+1}')
        a(f'v_lshrrev_b32 v{T+2}, 1, v{T+1}')
        a(f'v_xor_b32 v{T+2}, v{T+2}, v{T}')
        a(f'v_and_b32 v{T+2}, 7, v{T+2}')
        a(f'v_lshlrev_b32 v{T+2}, 4, v{T+2}')
        a(f'v_mul_lo_u32 v{T+1}, v{T+1}, {sr(self.sLdx)}')
        a(f'v_add_u32 v{self.vXg}, v{T+1}, v{T+2}')
        a(f's_lshl_b32 {sr(self.sT)}, {sr(self.sLdx)}, 6')
        for m in range(1, c.xp):
            a(f'v_add_u32 v{self.vXg+m}, {sr(self.sT)}, v{self.vXg+m-1}')
        rowb = c.rowb
        a(f'v_lshrrev_b32 v{T+1}, 2, v{T}')
        a(f'v_and_b32 v{T+3}, 7, v{T+1}')
        a(f'v_and_b32 v{T+1}, 3, v{T+1}')
        a(f'v_lshrrev_b32 v{T+2}, 4, v{T}')
        a(f'v_lshl_add_u32 v{T+2}, v{T+2}, 3, v{T+1}')
        a(f'v_mul_u32_u24 v{T+2}, {rowb}, v{T+2}')
        a(f's_and_b32 {sr(self.sT)}, {w}, {1 if c.dual else c.WN-1}')
        a(f's_mul_i32 {sr(self.sT)}, {sr(self.sT)}, {c.tn}')
        a(f'v_xor_b32 v{T+3}, {sr(self.sT)}, v{T+3}')
        a(f'v_lshl_add_u32 v{T+2}, v{T+3}, 5, v{T+2}')
        if c.dual:
            a(f's_and_b32 {sr(self.sT)}, {w}, 2')
            a(f's_lshl_b32 {sr(self.sT)}, {sr(self.sT)}, 13')
            a(f'v_add_u32 v{T+2}, {sr(self.sT)}, v{T+2}')
        a(f'v_and_b32 v{T+1}, 3, v{T}')
        a(f'v_lshl_add_u32 v{self.vWr}, v{T+1}, 3, v{T+2}')
        for t in range(1, c.tn):
            a(f'v_xor_b32 v{self.vWr+t}, {32*t}, v{self.vWr}')
        if self.vWr2 is not None:
            for t in range(c.tn): a(f'v_add_u32 v{self.vWr2+t}, 65536, v{self.vWr+t}')
        a(f's_lshr_b32 {sr(self.sT)}, {w}, {c.WN.bit_length()-1}')
        a(f's_mul_i32 {sr(self.sT)}, {sr(self.sT)}, {16*c.tt}')
        a(f'v_and_b32 v{T+1}, 15, v{T}')
        a(f'v_add_u32 v{T+3}, {sr(self.sT)}, v{T+1}')
        a(f'v_lshrrev_b32 v{T+1}, 1, v{T+1}')
        a(f'v_lshrrev_b32 v{T+2}, 4, v{T}')
        a(f'v_xor_b32 v{T+1}, v{T+1}, v{T+2}')
        a(f'v_lshlrev_b32 v{T+1}, 4, v{T+1}')
        a(f'v_lshl_add_u32 v{T+1}, v{T+3}, 7, v{T+1}')
        a(f'v_add_u32 v{self.vXr}, {c.xoff}, v{T+1}')
        a(f'v_xor_b32 v{self.vXr+1}, 64, v{self.vXr}')
        self.setup_out()

    def setup_out(self):
        a, c = self.a, self.c; T = self.vT; w = sr(self.sWv)
        Lf = a.lab('go_f'); Lk = a.lab('go_k'); Ld = a.lab('go_d')
        a(f's_and_b32 {sr(self.sT)}, {w}, {c.WN-1}')
        a(f's_lshr_b32 {sr(self.sT2)}, {w}, {c.WN.bit_length()-1}')
        a(f'v_and_b32 v{T+1}, 15, v{T}')
        a(f's_cmp_lg_u32 {sr(self.sOM)}, 0')
        a(f's_cbranch_scc1 {Lf}')
        a(f's_mul_i32 {sr(self.sT2)}, {sr(self.sT2)}, {16*c.tt}')
        a(f'v_add_u32 v{T+3}, {sr(self.sT2)}, v{T+1}')
        a(f'v_mul_lo_u32 v{T+3}, v{T+3}, {sr(self.sLdo)}')
        a(f'v_and_b32 v{T+1}, 16, v{T}')
        a(f'v_lshl_add_u32 v{T+3}, v{T+1}, 1, v{T+3}')
        a(f'v_lshrrev_b32 v{T+1}, 5, v{T}')
        a(f'v_lshl_add_u32 v{T+3}, v{T+1}, 4, v{T+3}')
        a(f's_mul_i32 {sr(self.sT)}, {sr(self.sT)}, {c.tn*32}')
        a(f'v_add_u32 v{self.vO}, {sr(self.sT)}, v{T+3}')
        a(f's_lshl_b32 {sr(self.sU1)}, {sr(self.sLdo)}, 4')
        a(f's_lshl_b32 {sr(self.sU2)}, {sr(self.sLdo)}, 5')
        a(f's_mov_b32 {sr(self.sTP)}, 64')
        a(f's_branch {Ld}')
        a(f'{Lf}:')
        a(f'v_lshlrev_b32 v{T+3}, 4, v{T+1}')
        a(f's_mov_b32 {sr(self.sU1)}, 1024')
        a(f's_cmp_eq_u32 {sr(self.sOM)}, 1')
        a(f's_cbranch_scc1 {Lk}')
        a(f'v_and_b32 v{T+3}, 3, v{T}')
        a(f'v_lshlrev_b32 v{T+3}, 4, v{T+3}')
        a(f'v_and_b32 v{T+1}, 8, v{T}')
        a(f'v_lshl_add_u32 v{T+3}, v{T+1}, 3, v{T+3}')
        a(f'v_and_b32 v{T+1}, 4, v{T}')
        a(f'v_lshl_add_u32 v{T+3}, v{T+1}, 8, v{T+3}')
        a(f's_mov_b32 {sr(self.sU1)}, 128')
        a(f'{Lk}:')
        a(f'v_and_b32 v{T+1}, 16, v{T}')
        a(f'v_lshl_add_u32 v{T+3}, v{T+1}, 5, v{T+3}')
        a(f'v_and_b32 v{T+1}, 32, v{T}')
        a(f'v_lshl_add_u32 v{T+3}, v{T+1}, 3, v{T+3}')
        a(f's_mul_i32 {sr(self.sT)}, {sr(self.sT)}, {c.tn*1024}')
        a(f's_mul_i32 {sr(self.sT2)}, {sr(self.sT2)}, {c.tt//2*262144}')
        a(f's_add_u32 {sr(self.sT)}, {sr(self.sT)}, {sr(self.sT2)}')
        a(f'v_add_u32 v{self.vO}, {sr(self.sT)}, v{T+3}')
        a(f's_mov_b32 {sr(self.sU2)}, 262144')
        a(f's_mov_b32 {sr(self.sTP)}, 2048')
        a(f'{Ld}:')

    def dma(self, buf):
        c = self.c; L = []
        for m in range(c.wp):
            S = self.SW2 if (c.dual and m >= 2) else self.SW
            L.append((f's_add_u32 m0, {sr(self.sM0)}, {buf*c.wbytes + m*8192}',
                     f'buffer_load_dwordx4 v{self.vWg+m%c.nwg}, {sr(S,4)}, {sr(self.sOw)} offen lds'))
        for m in range(c.xp):
            L.append((f's_add_u32 m0, {sr(self.sM0)}, {c.xoff + buf*c.xbytes + m*8192}',
                     f'buffer_load_dwordx4 v{self.vXg+m}, {sr(self.SX,4)}, {sr(self.sOx)} offen lds'))
        tail = f'\ns_add_u32 {sr(self.sOx)}, {sr(self.sOx)}, 128\ns_add_u32 {sr(self.sOw)}, {sr(self.sOw)}, {sr(self.sDw)}'
        if self.switch: tail += '\n' + self.switch()
        L[-1] = (L[-1][0], L[-1][1] + tail)
        return L

    def reads(self, buf, sub, st):
        c = self.c; rowb = c.rowb
        def ra(t):
            o = buf * c.wbytes + sub * 32 * rowb; V = self.vWr
            if o >= 65536: o -= 65536; V = self.vWr2
            return [f'ds_read_b64_tr_b16 {vr(self.fA[st]+4*t, 2)}, v{V+t} offset:{o}',
                    f'ds_read_b64_tr_b16 {vr(self.fA[st]+4*t+2, 2)}, v{V+t} offset:{o+4*rowb}']
        def rb(u):
            return [f'ds_read_b128 {vr(self.fB[st]+4*u, 4)}, v{self.vXr+sub} offset:{buf*c.xbytes + u*2048}']
        L = ra(0)
        for u in range(c.tt): L += rb(u)
        for t in range(1, c.tn): L += ra(t)
        return L

    def accr(self, t, u): return self.acc + 4 * (u * self.c.tn + t)

    def mfmas(self, st):
        c = self.c; L = []
        for t in range(c.tn):
            for u in range(c.tt):
                acc = vr(self.accr(t, u), 4)
                need_i = (2 + u) if t == 0 else (2 + c.tt + 2 * t - 1)
                L.append((f'v_mfma_f32_16x16x32_bf16 {acc}, {vr(self.fA[st]+4*t,4)}, {vr(self.fB[st]+4*u,4)}, {acc}', need_i))
        return L

    def substep(self, st, rd, extra=(), waits=True, rgap=1, egap=2, estart=0):
        a = self.a
        mf = self.mfmas(st); nr = 2 * self.c.tn + self.c.tt
        rd = list(rd); extra = list(extra); issued = 0; done = -1
        for i, (m, ni) in enumerate(mf):
            if waits and ni > done:
                a(f's_waitcnt lgkmcnt({min(15, nr - 1 - ni + issued)})'); done = ni
            doe = extra and i >= estart and (i - estart) % egap == 0
            if doe: a(extra[0][0])
            a(m)
            if doe: a(extra.pop(0)[1])
            if rd and i % rgap == 0: a(rd.pop(0)); issued += 1
        for r in rd: a(r)
        for e in extra: a(e[0]); a(e[1])

    def kstep(self, buf, do_dma, last, pend=0):
        a = self.a; c = self.c
        self.substep(0, self.reads(buf, 1, 1))
        if last:
            a('s_waitcnt lgkmcnt(0)')
            self.substep(1, [], waits=False)
        else:
            a(f's_waitcnt vmcnt({pend*(c.wp+c.xp)}) lgkmcnt(0)')
            a('s_barrier')
            self.substep(1, self.reads((buf + 1) % c.nbuf, 0, 0), self.dma(buf) if do_dma else [], waits=False, rgap=2)

    def main(self, nk):
        a, c = self.a, self.c
        nb = c.nbuf
        if self.st: self.st.stamp(1)
        for b in range(nb):
            for d in self.dma(b): a(d[0]); a(d[1])
        for i in range(c.tn * c.tt * 4): a(f'v_mov_b32 v{self.acc+i}, 0')
        a(f's_waitcnt vmcnt({(nb-1)*(c.wp + c.xp)})')
        a('s_barrier')
        if self.st: self.st.stamp(2); a('s_waitcnt lgkmcnt(0)')
        for r in self.reads(0, 0, 0): a(r)
        nd = nk - nb
        it = nd // nb
        a(f's_mov_b32 {sr(self.sCnt)}, {it}')
        L = a.lab('gk')
        a(f'{L}:')
        for b in range(nb): self.kstep(b, True, False, nb - 2)
        a(f's_sub_u32 {sr(self.sCnt)}, {sr(self.sCnt)}, 1')
        a(f's_cmp_lg_u32 {sr(self.sCnt)}, 0')
        a(f's_cbranch_scc1 {L}')
        for k in range(it * nb, nk):
            self.kstep(k % nb, k < nd, k == nk - 1, max(0, min(nb - 2, nk - 2 - k)))

    def epilogue(self, scale=True):
        a, c = self.a, self.c
        a(f's_mov_b32 {sr(self.sT)}, {0 if self.sOB is None else sr(self.sOB)}')
        for u in range(c.tt):
            for t in range(0, c.tn, 2):
                b = self.accr(t, u)
                if scale:
                    for r in range(8): a(f'v_mul_f32 v{b+r}, {sr(self.sScale)}, v{b+r}')
                for r in range(4): a(f'v_cvt_pk_bf16_f32 v{b+r}, v{b+2*r}, v{b+2*r+1}')
            for t in range(0, c.tn, 2):
                b = self.accr(t, u)
                a(f'v_permlane16_swap_b32 v{b}, v{b+2}')
                a(f'v_permlane16_swap_b32 v{b+1}, v{b+3}')
            if u & 1: a(f's_add_u32 {sr(self.sT2)}, {sr(self.sT)}, {sr(self.sU1)}')
            else: a(f's_mov_b32 {sr(self.sT2)}, {sr(self.sT)}')
            for t in range(0, c.tn, 2):
                b = self.accr(t, u)
                a(f'buffer_store_dwordx4 {vr(b,4)}, v{self.vO}, {sr(self.SO,4)}, {sr(self.sT2)} offen{self.storemod}')
                if t + 2 < c.tn: a(f's_add_u32 {sr(self.sT2)}, {sr(self.sT2)}, {sr(self.sTP)}')
            if u & 1: a(f's_add_u32 {sr(self.sT)}, {sr(self.sT)}, {sr(self.sU2)}')
```

```python
from asm import *
from layout import *
from small import srd
from chain3 import *
from attna import attnA_job

class Trace:
    def __init__(self, a, sreg, n):
        self.a = a; self.n = n
        self.cur = sreg.get(2, 2); self.last = sreg.get(); self.acc = sreg.get(n)
    def init(self):
        a = self.a
        for i in range(self.n): a(f's_mov_b32 {sr(self.acc+i)}, 0')
        a(f's_memtime {sr(self.cur,2)}'); a('s_waitcnt lgkmcnt(0)'); a(f's_mov_b32 {sr(self.last)}, {sr(self.cur)}')
    def __call__(self, i):
        a = self.a
        a(f's_memtime {sr(self.cur,2)}'); a('s_waitcnt lgkmcnt(0)')
        a(f's_sub_u32 {sr(self.last)}, {sr(self.cur)}, {sr(self.last)}')
        a(f's_add_u32 {sr(self.acc+i)}, {sr(self.acc+i)}, {sr(self.last)}')
        a(f's_mov_b32 {sr(self.last)}, {sr(self.cur)}')
    def flush(self, V): pass

class Trace2:
    def __init__(self, a, sreg, c, r):
        self.a = a; self.c = c; self.r = r; self.off = sreg.get(); self.n = 8
    def init(self):
        a = self.a; c = self.c
        for i in range(16): a(f's_mov_b32 {sr(self.r+i)}, 0')
        a(f's_lshl_b32 {sr(self.off)}, {sr(c.sG)}, 4')
        a(f's_add_u32 {sr(self.off)}, {sr(self.off)}, {sr(c.sC)}')
        a(f's_lshl_b32 {sr(self.off)}, {sr(self.off)}, 3')
        a(f's_add_u32 {sr(self.off)}, {sr(self.off)}, {sr(c.sW)}')
        a(f's_lshl_b32 {sr(self.off)}, {sr(self.off)}, 11')
        a(f's_add_u32 {sr(self.off)}, {sr(self.off)}, {STAMP+0x100000}')
    def __call__(self, i):
        self.a(f's_memrealtime {sr(self.r+2*i,2)}')
    def flush(self, V):
        a = self.a; c = self.c
        a('s_waitcnt lgkmcnt(0)')
        for i in range(7): a(f'v_mov_b32 v{V+i}, {sr(self.r+2*i)}')
        a(f'v_mov_b32 v{V+7}, {sr(c.sSpin)}')
        a('s_mov_b64 exec, 1')
        a(f'buffer_store_dwordx4 {vr(V,4)}, off, {sr(c.SWS,4)}, {sr(self.off)}')
        a(f'buffer_store_dwordx4 {vr(V+4,4)}, off, {sr(c.SWS,4)}, {sr(self.off)} offset:16')
        a('s_mov_b64 exec, -1')
        a(f's_add_u32 {sr(self.off)}, {sr(self.off)}, 32')
        a('s_nop 1')

def gen_k2(name='chain_kernel', diag=False, trace=False, workers=True, force_slow=False, layout4=True, par=None, cal=(0,1), NVOTE=192, **pp):
    import chain3; chain3.P.update(pp)
    a = Asm()
    sreg = Regs(4, 100, 's')
    c = chain_common(a, sreg)
    kWs = sreg.get(2, 2); SD = sreg.get(4, 4); sX = sreg.get(); sE = sreg.get(2, 2); sJob = sreg.get()
    wT = sreg.get(6); wS = sreg.get(16, 4)
    rt0 = sreg.get(2, 2); rt1 = sreg.get(2, 2); ct0 = sreg.get(2, 2); ct1 = wT + (wT & 1)
    tr = (Trace2(a, sreg, c, wS) if trace == 2 else Trace(a, sreg, 6)) if trace else None
    Lend = f'{name}_end'; Lfin = f'{name}_fin'
    a(kstart(name))
    a('s_cmp_ge_u32 s2, 256')
    a(f's_cbranch_scc1 {Lend}')
    if diag: a(f's_memrealtime {sr(rt0,2)}'); a(f's_memtime {sr(ct0,2)}')
    a(f's_load_dwordx2 {sr(kWs,2)}, s[0:1], {D_WS}')
    a(f's_load_dwordx2 {sr(SD,2)}, s[0:1], {D_DBG}')
    a(f'v_lshrrev_b32 v1, 6, v0')
    a(f'v_readfirstlane_b32 {sr(c.sW)}, v1')
    a(f's_getreg_b32 {sr(sX)}, hwreg(HW_REG_XCC_ID)')
    a(f's_and_b32 {sr(sX)}, {sr(sX)}, 7')
    a('s_waitcnt lgkmcnt(0)')
    srd(a, c.SWS, sr(kWs), sr(kWs+1), WS_BYTES)
    srd(a, SD, sr(SD), sr(SD+1), 256)
    a(f's_sub_u32 {sr(c.sPart)}, 0, {sr(kWs)}')
    a(f's_and_b32 {sr(c.sPart)}, {sr(c.sPart)}, 0x1fffff')
    a(f's_add_u32 {sr(c.sPart)}, {sr(c.sPart)}, {PARTA}')
    Lr = a.lab('role'); Lw = a.lab('rolew'); Lnc = a.lab('nocal')
    def getpar(V):
        Lg = a.lab('gp')
        a(f's_mov_b32 {sr(c.sSpin)}, {SPIN}')
        a(f'{Lg}:')
        a(f'buffer_load_dword v{V}, off, {sr(SD,4)}, 0 offset:64 sc1')
        spin(a, c, Lfin)
        a('s_waitcnt vmcnt(0)')
        a(f'v_readfirstlane_b32 {sr(c.sS)}, v{V}')
        a(f's_and_b32 {sr(c.sSlot)}, {sr(c.sS)}, 0xffff')
        a(f's_cmp_lt_u32 {sr(c.sSlot)}, {NVOTE}')
        a(f's_cbranch_scc1 {Lg}')
        if diag: a(f's_mov_b32 {sr(sJob)}, {sr(c.sS)}')
        a(f's_cmp_gt_u32 {sr(c.sS)}, {(NVOTE//2<<16)+256}')
        if par is None: a(f's_cselect_b32 {sr(c.sS)}, 8192, 0')
        elif par == 'inv': a(f's_cselect_b32 {sr(c.sS)}, 0, 8192')
        else: a(f's_mov_b32 {sr(c.sS)}, {par*8192}')
        a(f's_add_u32 {sr(c.sPart)}, {sr(c.sPart)}, {sr(c.sS)}')
    a(f's_cmp_lg_u32 {sr(c.sW)}, 0')
    a(f's_cbranch_scc1 {Lr}')
    cT = c.sB1; assert c.sO2 == cT + 3
    a(f's_lshr_b32 {sr(cT)}, s2, 5')
    a(f's_and_b32 {sr(cT+1)}, s2, 31')
    ssum(a, sr(cT), sr(cT+1), [(sr(cT), 14), (sr(cT+1), 8)], 0x100000)
    a(f's_add_u32 {sr(cT)}, {sr(cT)}, {sr(c.sPart)}')
    a(f's_add_u32 {sr(cT+1)}, {sr(cT)}, 8192')
    a(f'v_lshlrev_b32 v5, 2, v0')
    a(f'v_mov_b32 v6, -1')
    for k in range(2): a(f'buffer_store_dword v6, v5, {sr(c.SWS,4)}, {sr(cT+k)} offen sc1')
    a(f's_mov_b64 exec, 1')
    a(f's_lshl_b32 {sr(c.sT)}, {sr(sX)}, 2')
    a(f'v_mov_b32 v1, {sr(c.sT)}')
    a(f'v_mov_b32 v2, 1')
    a(f'v_mov_b32 v3, 1')
    a(f'buffer_atomic_add v2, v1, {sr(SD,4)}, 0 offen sc0 sc1')
    a('s_waitcnt vmcnt(0)')
    a(f'buffer_atomic_add v3, off, {sr(SD,4)}, 0 offset:32 sc0 sc1')
    a(f's_mov_b64 exec, -1')
    a(f's_mov_b32 {sr(cT+2)}, 0')
    a(f's_mov_b32 {sr(c.sSpin)}, 100000')
    a('s_waitcnt vmcnt(0)')
    a(f'v_readfirstlane_b32 {sr(cT+3)}, v3')
    a(f's_cmp_ge_u32 {sr(cT+3)}, {NVOTE}')
    a(f's_cbranch_scc1 {Lnc}')
    for k in cal:
        Lc = a.lab('cal')
        a(f'buffer_store_dword v6, v5, {sr(c.SWS,4)}, {sr(cT+k)} offen sc1')
        a(f'{Lc}:')
        a(f's_getreg_b32 {sr(cT+3)}, hwreg(HW_REG_IB_STS, 0, 4)')
        a(f's_add_u32 {sr(cT+2)}, {sr(cT+2)}, {-1 if k else 1}')
        a(f's_sub_u32 {sr(c.sSpin)}, {sr(c.sSpin)}, 1')
        a(f's_cselect_b32 {sr(cT+3)}, 0, {sr(cT+3)}')
        a(f's_cmp_lg_u32 {sr(cT+3)}, 0')
        a(f's_cbranch_scc1 {Lc}')
    a(f's_cmp_gt_i32 {sr(cT+2)}, 0')
    a(f's_cselect_b32 {sr(cT+2)}, 1, 0')
    a(f's_lshr_b32 {sr(cT+3)}, {sr(sX)}, 2')
    a(f's_xor_b32 {sr(cT+2)}, {sr(cT+2)}, {sr(cT+3)}')
    ssum(a, sr(cT+2), None, [(sr(cT+2), 16)], 1)
    a(f's_mov_b64 exec, 1')
    a(f'v_mov_b32 v6, {sr(cT+2)}')
    a(f'buffer_atomic_add v6, off, {sr(SD,4)}, 0 offset:64 sc1')
    a(f's_mov_b64 exec, -1')
    a(f'{Lnc}:')
    a(f'v_lshlrev_b32 v1, 2, v0')
    a(f'v_min_u32 v1, 32, v1')
    a(f's_mov_b32 {sr(c.sSpin)}, {SPIN}')
    a(f'{Lw}:')
    a(f'buffer_load_dword v4, v1, {sr(SD,4)}, 0 offen sc1')
    a(f's_mov_b32 {sr(c.sT)}, 0xfffe')
    a(f's_sub_u32 {sr(c.sSpin)}, {sr(c.sSpin)}, 1')
    a(f's_cbranch_scc1 {Lw}_to')
    a('s_waitcnt vmcnt(0)')
    a(f'v_readlane_b32 {sr(c.sT)}, v4, 8')
    a(f's_cmp_lt_u32 {sr(c.sT)}, 256')
    a(f's_cbranch_scc1 {Lw}')
    a(f'buffer_load_dword v4, v1, {sr(SD,4)}, 0 offen sc1')
    a('s_waitcnt vmcnt(0)')
    a(f'v_readfirstlane_b32 {sr(c.sT)}, v2')
    a(f'v_readfirstlane_b32 {sr(c.sT+1)}, v3')
    if layout4:
        a(f'v_cmp_gt_u32 vcc, 32, v4')
        a(f's_and_b32 vcc_lo, vcc_lo, 15')
        a(f's_lshl_b32 {sr(c.sT+2)}, {sr(sX)}, 5')
        a(f's_add_u32 {sr(c.sT+2)}, {sr(c.sT+2)}, {sr(c.sT)}')
        a(f's_cmp_lt_u32 {sr(c.sT)}, 32')
        a(f's_cselect_b32 {sr(c.sT+2)}, {sr(c.sT+2)}, 128')
    else:
        a(f'v_cmp_gt_u32 vcc, 16, v4')
        a(f's_lshl_b32 {sr(c.sT+2)}, {sr(sX)}, 4')
        a(f's_add_u32 {sr(c.sT+2)}, {sr(c.sT+2)}, {sr(c.sT)}')
        a(f's_cmp_lt_u32 {sr(c.sT)}, 16')
        a(f's_cselect_b32 {sr(c.sT+2)}, {sr(c.sT+2)}, 128')
    a(f's_or_b32 {sr(c.sT+1)}, {sr(c.sT+1)}, 0x10000')
    if force_slow: a(f's_cmp_eq_u32 0, 1')
    else: a(f's_cmp_eq_u32 vcc_lo, 0')
    a(f's_cselect_b32 {sr(c.sT)}, {sr(c.sT+2)}, {sr(c.sT+1)}')
    a(f'{Lw}_to:')
    a('s_waitcnt vmcnt(0)')
    a(f'v_mov_b32 v1, 0')
    a(f'v_mov_b32 v2, {sr(c.sT)}')
    a(f'ds_write_b32 v1, v2')
    a('s_waitcnt lgkmcnt(0)')
    a(f'{Lr}:')
    a('s_barrier')
    a(f'v_mov_b32 v1, 0')
    a(f'ds_read_b32 v2, v1')
    a('s_waitcnt lgkmcnt(0)')
    a(f'v_readfirstlane_b32 {sr(c.sT)}, v2')
    a('s_barrier')
    a(f's_cmp_eq_u32 {sr(c.sT)}, 0xfffe')
    a(f's_cbranch_scc1 {Lend}')
    a(f's_lshr_b32 {sr(c.sMode)}, {sr(c.sT)}, 16')
    a(f's_and_b32 {sr(c.sT)}, {sr(c.sT)}, 0xffff')
    a(f's_cmp_ge_u32 {sr(c.sT)}, 128')
    a(f's_cbranch_scc1 {name}_worker')
    a(f's_lshr_b32 {sr(c.sG)}, {sr(c.sT)}, 4')
    a(f's_and_b32 {sr(c.sC)}, {sr(c.sT)}, 15')
    if tr: tr.init()
    a(f's_cmp_ge_u32 {sr(c.sW)}, 4')
    a(f's_cbranch_scc1 {name}_c')
    bwave(a, c, Lfin, tr, getpar)
    a(f'{name}_c:')
    cwave(a, c, Lfin, tr, getpar)
    a(f'{Lfin}:')
    if diag:
        a(f's_memrealtime {sr(rt1,2)}')
        a(f's_memtime {sr(ct1,2)}')
        a('s_waitcnt vmcnt(0) lgkmcnt(0)')
        a(f's_sub_u32 {sr(ct1)}, {sr(ct1)}, {sr(ct0)}')
        a(f's_lshl_b32 {sr(ct1)}, {sr(ct1)}, 1')
        a(f's_add_u32 {sr(c.sMode)}, {sr(c.sMode)}, {sr(ct1)}')
        a(f's_lshl_b32 {sr(c.sT)}, {sr(c.sG)}, 4')
        a(f's_add_u32 {sr(c.sT)}, {sr(c.sT)}, {sr(c.sC)}')
        a(f's_lshl_b32 {sr(c.sT)}, {sr(c.sT)}, 3')
        a(f's_add_u32 {sr(c.sT)}, {sr(c.sT)}, {sr(c.sW)}')
        a(f's_lshl_b32 {sr(c.sT)}, {sr(c.sT)}, 6')
        a(f's_add_u32 {sr(c.sT)}, {sr(c.sT)}, {STAMP}')
        vals = [sr(rt0), sr(rt1), sr(c.sSpin), sr(c.sS), sr(c.sMode), sr(sJob)] + ([sr(tr.acc+i) for i in range(6)] if trace == 1 else [])
        a(f'v_mov_b32 v1, {sr(c.sT)}')
        for i, x in enumerate(vals):
            a(f'v_mov_b32 v2, {x}')
            a(f'buffer_store_dword v2, v1, {sr(c.SWS,4)}, 0 offen offset:{4*i}')
    a(f'{Lend}:')
    a('s_endpgm')
    a(f'{name}_worker:')
    if workers:
        Lq = a.lab('wq'); Lq2 = a.lab('wq2')
        a(f'{Lq}:')
        a(f's_cmp_lg_u32 {sr(c.sW)}, 0')
        a(f's_cbranch_scc1 {Lq2}')
        a(f's_mov_b64 exec, 1')
        a(f'v_mov_b32 v2, 1')
        a(f'buffer_atomic_add v2, off, {sr(SD,4)}, 0 offset:128 sc0 sc1')
        a(f'v_mov_b32 v1, {131072+64}')
        a('s_waitcnt vmcnt(0)')
        a(f'ds_write_b32 v1, v2')
        a(f's_mov_b64 exec, -1')
        a('s_waitcnt lgkmcnt(0)')
        a(f'{Lq2}:')
        a('s_barrier')
        a(f'v_mov_b32 v1, {131072+64}')
        a(f'ds_read_b32 v2, v1')
        a('s_waitcnt lgkmcnt(0)')
        a(f'v_readfirstlane_b32 {sr(sJob)}, v2')
        a(f's_cmp_ge_u32 {sr(sJob)}, 128')
        a(f's_cbranch_scc1 {Lend}')
        attnA_job(a, sr(sJob), sr(c.sW), wS, wT, kWs)
        a('s_barrier')
        a(f's_branch {Lq}')
    else:
        a('s_endpgm')
    a.pad()
    return a.text() + kd(name, 256, 256), 163840
```

```python
QX = 0x0000000; KX = 0x1000000; VX = 0x2000000
QA = 0x3000000; KVF = 0x3400000; GT = 0x3440000
PX = 0x8000000
OA = 0x4000000
OPA = 0x4400000
OP = 0x5000000
OCAT = 0x4000000
KM = 0x6000000; VM = 0x6400000
COMM = 0x7000000
MEMB = COMM; QKV = COMM + 0x100000
PARTA = COMM + 0x200000
RING_BYTES = 0x600000
FL = COMM + 0x700000
RDY = FL + 32768
QAC = FL + 8192
KVC = FL + 9216
ATC = FL + 10240
FNC = FL + 12288
FNC2 = FL
PROG = FL + 16384
PX0 = COMM + 0x780000
STAMP = 0xF000000
WS_BYTES = 268435456
A_X=0; A_WQ=8; A_WK=16; A_WV=24; A_WO=32; B_X=40; B_MEM0=48; B_WQ=56; B_WK=64; B_WV=72; B_WO=80; B_SEG=88; GATE_W=96; D_OUT=104; D_DBG=112; D_WS=120
import struct, math
def f32bits(x): return struct.unpack('<I', struct.pack('<f', x))[0]
LOG2E = 1.4426950408889634
```

```python
from asm import *
from layout import *
from small import srd
from gemm16 import *

def px_setup(a, v):
    class X: pass
    x = X()
    x.L16 = v.get(); x.T = v.get(); x.T2 = v.get()
    x.C = v.get(4, 4); x.Q = v.get(32, 4); x.K = v.get(32, 4); x.S = v.get(12, 4); x.O = v.get(8, 4)
    T, T2 = x.T, x.T2
    a(f'v_and_b32 v{T}, 63, v0')
    a(f'v_lshlrev_b32 v{x.L16}, 4, v{T}')
    a(f'v_lshrrev_b32 v{T2}, 2, v{T}')
    a(f'v_and_b32 v{T2}, 12, v{T2}')
    a(f'v_and_b32 v{T}, 15, v{T}')
    a(f'v_sub_u32 v{T}, v{T}, v{T2}')
    a(f'v_mov_b32 v{T2}, {f32bits(-1e30):#x}')
    for r in range(4):
        a(f'v_cmp_le_i32 vcc, {r}, v{T}')
        a(f'v_cndmask_b32 v{x.C+r}, v{T2}, 0, vcc')
    return x

def px_job(a, x, sIdx, SWS, sT, stm=''):
    WS = sr(SWS, 4); T, T2 = x.T, x.T2
    s0, s1 = sr(sT), sr(sT + 1)
    for ksh in range(2):
        a(f's_lshl_b32 {s0}, {sIdx}, 13')
        a(f's_add_u32 {s1}, {s0}, {KX+4096*ksh}')
        a(f's_add_u32 {s0}, {s0}, {QX+4096*ksh}')
        for kl in range(2):
            ks = 2 * ksh + kl
            for t in range(2):
                a(f'buffer_load_dwordx4 {vr(x.K+16*t+4*ks,4)}, v{x.L16}, {WS}, {s1} offen offset:{2048*kl+1024*t}')
                a(f'buffer_load_dwordx4 {vr(x.Q+16*t+4*ks,4)}, v{x.L16}, {WS}, {s0} offen offset:{2048*kl+1024*t}')
    a(f's_lshr_b32 {s0}, {sIdx}, 5')
    a(f's_lshl_b32 {s0}, {s0}, 18')
    a(f's_and_b32 {s1}, {sIdx}, 31')
    a(f's_lshl_b32 {s1}, {s1}, 11')
    a(f's_add_u32 {s0}, {s0}, {s1}')
    a(f's_add_u32 {s0}, {s0}, {PX}')
    for ks in range(4):
        a(f's_waitcnt vmcnt({12-4*ks})')
        for i, (tq, kt) in enumerate(((0, 0), (1, 0), (1, 1))):
            D = vr(x.S + 4 * i, 4)
            Cc = vr(x.C, 4) if tq == kt else '0'
            a(f'v_mfma_f32_16x16x32_bf16 {D}, {vr(x.K+16*kt+4*ks,4)}, {vr(x.Q+16*tq+4*ks,4)}, {D if ks else Cc}')
    S = x.S; m0, m1 = x.O, x.O + 1
    a(f'v_max3_f32 v{m0}, v{S}, v{S+1}, v{S+2}')
    a(f'v_max3_f32 v{m1}, v{S+4}, v{S+5}, v{S+6}')
    a(f'v_max_f32 v{m0}, v{m0}, v{S+3}')
    a(f'v_max3_f32 v{m1}, v{m1}, v{S+7}, v{S+8}')
    a(f'v_max3_f32 v{m1}, v{m1}, v{S+9}, v{S+10}')
    a(f'v_max_f32 v{m1}, v{m1}, v{S+11}')
    for op in ('v_permlane16_swap_b32', 'v_permlane32_swap_b32'):
        a(f'v_mov_b32 v{T}, v{m0}'); a(f'v_mov_b32 v{T2}, v{m1}')
        a(f'{op} v{T}, v{m0}'); a(f'{op} v{T2}, v{m1}')
        a(f'v_max_f32 v{m0}, v{m0}, v{T}'); a(f'v_max_f32 v{m1}, v{m1}, v{T2}')
    for i in range(12): a(f'v_sub_f32 v{S+i}, v{S+i}, v{m0 if i < 4 else m1}')
    for i in range(12): a(f'v_exp_f32 v{S+i}, v{S+i}')
    for i in range(6): a(f'v_cvt_pk_bf16_f32 v{x.O+2+i}, v{S+2*i}, v{S+2*i+1}')
    a(f'buffer_store_dwordx4 {vr(x.O,4)}, v{x.L16}, {WS}, {s0} offen{stm}')
    a(f'buffer_store_dwordx4 {vr(x.O+4,4)}, v{x.L16}, {WS}, {s0} offen offset:1024{stm}')

def gen_px(name='px_kernel'):
    a = Asm()
    sreg = Regs(4, 100, 's')
    kWs = sreg.get(2, 2); sW = sreg.get(); sT = sreg.get(2); SWS = sreg.get(4, 4); sI = sreg.get()
    a(kstart(name))
    a('s_cmp_ge_u32 s2, 256')
    a(f's_cbranch_scc1 {name}_end')
    a(f's_load_dwordx2 {sr(kWs,2)}, s[0:1], {D_WS}')
    a(f'v_lshrrev_b32 v1, 6, v0')
    a(f'v_readfirstlane_b32 {sr(sW)}, v1')
    a(f's_lshl_b32 {sr(sI)}, s2, 3')
    a(f's_add_u32 {sr(sI)}, {sr(sI)}, {sr(sW)}')
    v = Regs(1, 128)
    x = px_setup(a, v)
    a('s_waitcnt lgkmcnt(0)')
    srd(a, SWS, sr(kWs), sr(kWs+1), WS_BYTES)
    px_job(a, x, sr(sI), SWS, sT)
    a(f'{name}_end:')
    a('s_endpgm')
    a.pad()
    return a.text() + kd(name, 128, 128), 0

def red_setup(a, v):
    class X: pass
    x = X()
    x.L16 = v.get(); x.T = v.get(); x.vA = v.get(); x.vO = v.get(); x.vG = v.get(); x.G = v.get(2, 2)
    x.A = v.get(16, 4); x.P = v.get(128, 4); x.acc = v.get(32, 4); x.t = v.get(4)
    T = x.T
    a(f'v_and_b32 v{T}, 63, v0')
    a(f'v_lshlrev_b32 v{x.L16}, 4, v{T}')
    a(f'v_and_b32 v{x.vG}, 15, v{T}')
    a(f'v_lshlrev_b32 v{x.vO}, 11, v{x.vG}')
    a(f'v_lshlrev_b32 v{x.vG}, 2, v{x.vG}')
    a(f'v_lshrrev_b32 v{x.vA}, 4, v{T}')
    a(f'v_lshl_add_u32 v{x.vA}, v{x.vA}, 3, v{x.vO}')
    a(f'v_and_b32 v{x.G}, 16, v{T}')
    a(f'v_lshl_add_u32 v{x.vO}, v{x.G}, 1, v{x.vO}')
    a(f'v_lshrrev_b32 v{x.G}, 5, v{T}')
    a(f'v_lshl_add_u32 v{x.vO}, v{x.G}, 4, v{x.vO}')
    return x

def red_job(a, x, sIdx, SWS, SO, sT, ldm=''):
    WS = sr(SWS, 4); s0, s1, s2 = sr(sT), sr(sT + 1), sr(sT + 2)
    a(f's_lshr_b32 {s0}, {sIdx}, 4')
    a(f's_lshl_b32 {s1}, {s0}, 7')
    a(f's_add_u32 {s1}, {s1}, {GT+8192}')
    for tq in range(2): a(f'buffer_load_dword v{x.G+tq}, v{x.vG}, {WS}, {s1} offen offset:{64*tq}{ldm}')
    a(f's_lshl_b32 {s1}, {sIdx}, 12')
    a(f's_add_u32 {s1}, {s1}, {OP}')
    for g in range(8):
        for b in range(4): a(f'buffer_load_dwordx4 {vr(x.P+16*g+4*b,4)}, v{x.L16}, {WS}, {s1} offen offset:{1024*b}{ldm}')
        if g < 7: a(f's_add_u32 {s1}, {s1}, {1<<22}')
    a(f's_lshl_b32 {s0}, {s0}, 16')
    a(f's_and_b32 {s1}, {sIdx}, 15')
    a(f's_lshl_b32 {s1}, {s1}, 7')
    a(f's_add_u32 {s0}, {s0}, {s1}')
    a(f's_add_u32 {s1}, {s0}, {OPA}')
    a(f's_add_u32 {s2}, {s0}, {OPA+32768}')
    for tq in range(2):
        for b in range(4): a(f'buffer_load_dwordx2 {vr(x.A+4*b+2*tq,2)}, v{x.vA}, {WS}, {s2 if tq else s1} offen offset:{32*b}{ldm}')
    a(f's_add_u32 {s1}, {s0}, 32768')
    for g in range(8):
        a(f's_waitcnt vmcnt({8+28-4*g})')
        for i in range(16):
            p = x.P + 16 * g + i
            if g == 0:
                a(f'v_lshlrev_b32 v{x.acc+2*i}, 16, v{p}')
                a(f'v_and_b32 v{x.acc+2*i+1}, 0xffff0000, v{p}')
            else:
                a(f'v_lshlrev_b32 v{x.t+(i&1)}, 16, v{p}')
                a(f'v_and_b32 v{p}, 0xffff0000, v{p}')
                a(f'v_add_f32 v{x.acc+2*i}, v{x.acc+2*i}, v{x.t+(i&1)}')
                a(f'v_add_f32 v{x.acc+2*i+1}, v{x.acc+2*i+1}, v{p}')
    a('s_waitcnt vmcnt(0)')
    for i in range(16):
        p = x.A + i; G = x.G + ((i >> 1) & 1)
        a(f'v_lshlrev_b32 v{x.t+(i&1)}, 16, v{p}')
        a(f'v_and_b32 v{p}, 0xffff0000, v{p}')
        a(f'v_fma_f32 v{x.acc+2*i}, v{x.acc+2*i}, v{G}, v{x.t+(i&1)}')
        a(f'v_fma_f32 v{x.acc+2*i+1}, v{x.acc+2*i+1}, v{G}, v{p}')
    O = x.P
    for b in range(4):
        for d in range(4):
            i = 4 * b + d
            a(f'v_cvt_pk_bf16_f32 v{O+8*(d>>1)+4*(b>>1)+2*(b&1)+(d&1)}, v{x.acc+2*i}, v{x.acc+2*i+1}')
    for q in range(4):
        a(f'v_permlane16_swap_b32 v{O+4*q}, v{O+4*q+2}')
        a(f'v_permlane16_swap_b32 v{O+4*q+1}, v{O+4*q+3}')
    for q in range(4):
        a(f'buffer_store_dwordx4 {vr(O+4*q,4)}, v{x.vO}, {sr(SO,4)}, {s1 if q>>1 else s0} offen offset:{64*(q&1)}')

def gen_red(name='red_kernel'):
    a = Asm()
    sreg = Regs(4, 100, 's')
    kWs = sreg.get(2, 2); sW = sreg.get(); sT = sreg.get(3); SWS = sreg.get(4, 4); SO = sreg.get(4, 4); sI = sreg.get()
    a(kstart(name))
    a('s_cmp_ge_u32 s2, 256')
    a(f's_cbranch_scc1 {name}_end')
    a(f's_load_dwordx2 {sr(kWs,2)}, s[0:1], {D_WS}')
    a(f's_load_dwordx2 {sr(SO,2)}, s[0:1], {D_OUT}')
    a(f'v_lshrrev_b32 v1, 6, v0')
    a(f'v_readfirstlane_b32 {sr(sW)}, v1')
    a(f's_lshl_b32 {sr(sI)}, s2, 2')
    a(f's_add_u32 {sr(sI)}, {sr(sI)}, {sr(sW)}')
    v = Regs(1, 256)
    x = red_setup(a, v)
    a('s_waitcnt lgkmcnt(0)')
    srd(a, SWS, sr(kWs), sr(kWs+1), WS_BYTES)
    srd(a, SO, sr(SO), sr(SO+1), 2048*2048)
    red_job(a, x, sr(sI), SWS, SO, sT)
    a(f'{name}_end:')
    a('s_endpgm')
    a.pad()
    return a.text() + kd(name, 256, 256), 0

def gen_fina(name='fina_kernel', TN=128, TM=128):
    a = Asm()
    sreg = Regs(4, 100, 's'); vreg = Regs(1, 256, 'v')
    kWo = sreg.get(2, 2); kWs = sreg.get(2, 2)
    t0 = sreg.get(); t1 = sreg.get(); t2 = sreg.get()
    g = Gemm16(a, GemmCfg16(TN, TM), sreg, vreg)
    nn = 1024 // TN; nm = 2048 // TM
    a(kstart(name))
    a(f's_cmp_ge_u32 s2, {nn*nm}')
    a(f's_cbranch_scc1 {name}_end')
    a(f's_load_dwordx2 {sr(kWo,2)}, s[0:1], {A_WO}')
    a(f's_load_dwordx2 {sr(kWs,2)}, s[0:1], {D_WS}')
    a(f'v_lshrrev_b32 v1, 6, v0')
    a(f'v_readfirstlane_b32 {sr(g.sWv)}, v1')
    a(f's_lshr_b32 {sr(t0)}, s2, 3')
    a(f's_and_b32 {sr(t1)}, {sr(t0)}, {nn-1}')
    a(f's_lshr_b32 {sr(t0)}, {sr(t0)}, {nn.bit_length()-1}')
    a(f's_lshl_b32 {sr(t0)}, {sr(t0)}, 3')
    a(f's_and_b32 {sr(t2)}, s2, 7')
    a(f's_add_u32 {sr(t2)}, {sr(t2)}, {sr(t0)}')
    a(f's_mov_b32 {sr(g.sLdw)}, 2048')
    a(f's_mov_b32 {sr(g.sLdo)}, 2048')
    a(f's_mov_b32 {sr(g.sLdx)}, 2048')
    a(f's_mov_b32 {sr(g.sOM)}, 0')
    a(f's_mul_i32 {sr(t1)}, {sr(t1)}, {TN*2}')
    a('s_waitcnt lgkmcnt(0)')
    a(f's_mul_i32 {sr(t2)}, {sr(t2)}, {TM*2048}')
    a(f's_add_u32 {sr(t0)}, {sr(t2)}, {OA}')
    srd(a, g.SX, sr(kWs), sr(kWs+1), TM*2048, off=sr(t0))
    a(f's_sub_u32 {sr(t0)}, {1024*2048}, {sr(t1)}')
    srd(a, g.SW, sr(kWo), sr(kWo+1), sr(t0), off=sr(t1))
    a(f's_add_u32 {sr(t0)}, {sr(t2)}, {sr(t1)}')
    a(f's_add_u32 {sr(t0)}, {sr(t0)}, {OPA}')
    a(f's_sub_u32 {sr(t1)}, {TM*2048}, {sr(t1)}')
    srd(a, g.SO, sr(kWs), sr(kWs+1), sr(t1), off=sr(t0))
    a(f's_mov_b32 {sr(g.sOx)}, 0')
    a(f's_mov_b32 {sr(g.sOw)}, 0')
    g.setup()
    g.main(16)
    g.epilogue(scale=False)
    a(f'{name}_end:')
    a('s_endpgm')
    a.pad()
    return a.text() + kd(name, 256, 256), g.c.lds, nn*nm
```

```python
from asm import *
from layout import *
from small import *
from chain3 import *
from attna import attnA_job
from gemm16 import *
from xjobs import *
from k2 import Trace, Trace2

JSLOT = 163840 - 64
Q_B2 = 48; Q_KVA = 72; Q_GATE = 74; Q_QA = 76; Q_B4 = 84; Q_ATT = 132; Q_FIN = 164; Q_END = 196
NRED = 128

def gen_k5(name, diag=False, trace=False, force_slow=False, par=None, cal=(0,1), NVOTE=192, stm=' sc1', join=True, rsl=8, nbs=3, nbf=4, **pp):
    import chain3; chain3.P.update(fused=1); chain3.P.update(pp)
    a = Asm()
    sreg = Regs(4, 100, 's')
    kWs = sreg.get(2, 2); sX = sreg.get(); sJob = sreg.get(); SD = sreg.get(4, 4)
    rt0 = sreg.get(2, 2); ct0 = sreg.get(2, 2); sJp = sreg.get(); sLog = sreg.get()
    base = sreg.p
    c = chain_common(a, sreg)
    assert c.sW == base
    wT = sreg.get(6); wS = sreg.get(16, 4); rt1 = sreg.get(2, 2); ct1 = wT + (wT & 1)
    tr = (Trace2(a, sreg, c, wS) if trace == 2 else Trace(a, sreg, 6)) if trace else None
    Lend = f'{name}_end'; Lfin = f'{name}_fin'; Ldone = f'{name}_done'; Lwork = f'{name}_worker'
    WS = sr(c.SWS, 4); sW = sr(c.sW)
    a(kstart(name))
    a('s_cmp_ge_u32 s2, 256')
    a(f's_cbranch_scc1 {Lend}')
    if diag: a(f's_memrealtime {sr(rt0,2)}'); a(f's_memtime {sr(ct0,2)}')
    a(f's_load_dwordx2 {sr(kWs,2)}, s[0:1], {D_WS}')
    a(f's_load_dwordx2 {sr(SD,2)}, s[0:1], {D_DBG}')
    a(f'v_lshrrev_b32 v1, 6, v0')
    a(f'v_readfirstlane_b32 {sW}, v1')
    a(f's_and_b32 {sr(sX)}, s2, 3')
    a(f's_lshr_b32 {sr(sJob)}, s2, 3')
    if diag:
        a(f's_and_b32 {sr(sLog)}, s2, 7')
        ssum(a, sr(sLog), sr(c.sT), [(sr(sLog), 15), (sr(sJob), 10)], STAMP + 0x400000)
    a('s_waitcnt lgkmcnt(0)')
    srd(a, c.SWS, sr(kWs), sr(kWs+1), WS_BYTES)
    srd(a, SD, sr(SD), sr(SD+1), 256)
    a('s_bitcmp1_b32 s2, 2')
    a(f's_cbranch_scc1 {Lwork}')
    ssum(a, sr(c.sT+3), None, [(sr(sX), 5)])
    a(f's_add_u32 {sr(c.sT+3)}, {sr(c.sT+3)}, {sr(sJob)}')
    a(f's_lshr_b32 {sr(c.sG)}, {sr(c.sT+3)}, 4')
    a(f's_and_b32 {sr(c.sC)}, {sr(c.sT+3)}, 15')
    a(f's_getreg_b32 {sr(c.sMode)}, hwreg(HW_REG_XCC_ID)')
    a(f's_and_b32 {sr(c.sMode)}, {sr(c.sMode)}, 7')
    a(f's_mul_i32 {sr(c.sT)}, {sr(c.sMode)}, {sr(c.sMode)}')
    ssum(a, sr(c.sMode), sr(c.sT), [(sr(c.sMode), 12), (sr(c.sT), 20)])
    a(f'v_lshlrev_b32 v1, 4, v0')
    for i in range(4): a(f'v_mov_b32 v{4+i}, -1')
    a(f'v_mov_b32 v8, 0')
    a(f's_sub_u32 {sr(c.sPart)}, 0, {sr(kWs)}')
    a(f's_and_b32 {sr(c.sPart)}, {sr(c.sPart)}, 0x1fffff')
    a(f's_add_u32 {sr(c.sPart)}, {sr(c.sPart)}, {PARTA}')
    ssum(a, sr(c.sT), None, [(sr(c.sT+3), 14)], COMM)
    a(f'buffer_store_dwordx4 v[4:7], v1, {WS}, {sr(c.sT)} offen sc1')
    a(f's_add_u32 {sr(c.sT)}, {sr(c.sT)}, 8192')
    a(f'buffer_store_dwordx4 v[4:7], v1, {WS}, {sr(c.sT)} offen sc1')
    ssum(a, sr(c.sT+1), None, [(sr(c.sT+3), 13)])
    a(f's_add_u32 {sr(c.sT+1)}, {sr(c.sT+1)}, {sr(c.sPart)}')
    a(f'buffer_store_dwordx4 v[4:7], v1, {WS}, {sr(c.sT+1)} offen sc1')
    ssum(a, sr(c.sT+2), None, [(sr(c.sT+3), 9)], FL)
    a(f'v_and_b32 v3, 0x1fc, v0')
    a(f'buffer_store_dword v8, v3, {WS}, {sr(c.sT+2)} offen sc1')
    def pst(i):
        if diag: a(f's_memrealtime {sr(wS+2*i,2)}')
    Lr = a.lab('role')
    def arrived(V, Lfail, sSp):
        Lg = a.lab('gp')
        a(f's_mov_b32 {sSp}, {SPIN}')
        a(f'{Lg}:')
        a(f'buffer_load_dwordx4 {vr(V,4)}, off, {sr(SD,4)}, 0 sc1')
        a(f's_sub_u32 {sSp}, {sSp}, 1')
        a(f's_cbranch_scc1 {Lfail}')
        a('s_waitcnt vmcnt(0)')
        a(f'v_and_b32 v{V+4}, v{V}, v{V+1}')
        a(f'v_and_b32 v{V+5}, v{V+2}, v{V+3}')
        a(f'v_and_b32 v{V+4}, v{V+4}, v{V+5}')
        a(f'v_and_b32 v{V+4}, 32, v{V+4}')
        a(f'v_cmp_eq_u32 vcc, 0, v{V+4}')
        a(f's_cbranch_vccnz {Lg}')
    def getpar(V):
        arrived(V, Lfin, sr(c.sSpin))
        for i in range(4): a(f'v_bfe_u32 v{V+4+i}, v{V+i}, 6, 6')
        a(f'v_add3_u32 v{V+4}, v{V+4}, v{V+5}, v{V+6}')
        a(f'v_add_u32 v{V+4}, v{V+4}, v{V+7}')
        a(f'v_readfirstlane_b32 {sr(c.sS)}, v{V+4}')
        if diag: a(f's_lshl_b32 {sr(sJob)}, {sr(c.sS)}, 16')
        a(f's_cmp_gt_u32 {sr(c.sS)}, 64')
        if par is None: a(f's_cselect_b32 {sr(c.sS)}, 8192, 0')
        elif par == 'inv': a(f's_cselect_b32 {sr(c.sS)}, 0, 8192')
        else: a(f's_mov_b32 {sr(c.sS)}, {par*8192}')
        a(f's_add_u32 {sr(c.sPart)}, {sr(c.sPart)}, {sr(c.sS)}')
        for i in (1, 2, 3):
            a(f's_cmp_eq_u32 {sr(sX)}, {i}')
            a(f's_cselect_b64 vcc, -1, 0')
            a(f'v_cndmask_b32 v{V}, v{V}, v{V+i}, vcc')
        a(f'v_readfirstlane_b32 {sr(c.sS)}, v{V}')
        a(f's_and_b32 {sr(c.sS)}, {sr(c.sS)}, 0xfffff000')
        a(f's_lshl_b32 {sr(c.sMode)}, {sr(c.sMode)}, 5')
        if force_slow: a(f's_cmp_eq_u32 0, 1')
        else: a(f's_cmp_eq_u32 {sr(c.sS)}, {sr(c.sMode)}')
        a(f's_cselect_b32 {sr(c.sMode)}, 0, 1')
    a(f's_cmp_lg_u32 {sW}, 0')
    a(f's_cbranch_scc1 {Lr}')
    cT = c.sB1; assert c.sO2 == cT + 3
    a(f's_lshr_b32 {sr(cT)}, {sr(c.sT+3)}, 5')
    a(f's_and_b32 {sr(cT+1)}, {sr(c.sT+3)}, 31')
    ssum(a, sr(cT), sr(cT+1), [(sr(cT), 14), (sr(cT+1), 8)], 0x100000)
    a(f's_add_u32 {sr(cT)}, {sr(cT)}, {sr(c.sPart)}')
    a(f's_add_u32 {sr(cT+1)}, {sr(cT)}, 8192')
    a(f'v_lshlrev_b32 v2, 2, v0')
    for k in range(2): a(f'buffer_store_dword v4, v2, {WS}, {sr(cT+k)} offen sc1')
    a(f's_mov_b32 {sr(cT+2)}, 0')
    a(f's_mov_b32 {sr(c.sSpin)}, 100000')
    a('s_waitcnt vmcnt(0)')
    pst(0)
    for k in cal:
        Lc = a.lab('cal')
        a(f'buffer_store_dword v4, v2, {WS}, {sr(cT+k)} offen sc1')
        a(f'{Lc}:')
        a(f's_getreg_b32 {sr(cT+3)}, hwreg(HW_REG_IB_STS, 0, 4)')
        a(f's_add_u32 {sr(cT+2)}, {sr(cT+2)}, {-1 if k else 1}')
        a(f's_sub_u32 {sr(c.sSpin)}, {sr(c.sSpin)}, 1')
        a(f's_cselect_b32 {sr(cT+3)}, 0, {sr(cT+3)}')
        a(f's_cmp_lg_u32 {sr(cT+3)}, 0')
        a(f's_cbranch_scc1 {Lc}')
    a(f's_cmp_gt_i32 {sr(cT+2)}, 0')
    a(f's_cselect_b32 {sr(cT+2)}, 65, 1')
    a(f's_add_u32 {sr(cT+2)}, {sr(cT+2)}, {sr(c.sMode)}')
    a(f's_lshl_b32 {sr(cT+3)}, {sr(sX)}, 2')
    a(f'v_mov_b32 v6, {sr(cT+2)}')
    pst(1)
    a('s_barrier')
    a(f's_mov_b64 exec, 1')
    a(f'buffer_atomic_add v6, off, {sr(SD,4)}, {sr(cT+3)} sc1')
    a(f's_mov_b64 exec, -1')
    if diag:
        a('s_waitcnt lgkmcnt(0)')
        ssum(a, sr(c.sT+1), None, [(sr(c.sT+3), 5)], STAMP + 0x500000)
        a(f'v_mov_b32 v4, {sr(rt0)}')
        for i in range(2): a(f'v_mov_b32 v{5+i}, {sr(wS+2*i)}')
        a(f'v_mov_b32 v7, {sr(c.sMode)}')
        a(f'buffer_store_dwordx4 v[4:7], off, {WS}, {sr(c.sT+1)}')
    a(f's_branch {Lr}2')
    a(f'{Lr}:')
    a('s_waitcnt vmcnt(0)')
    a('s_barrier')
    a(f'{Lr}2:')
    if tr: tr.init()
    a(f's_cmp_ge_u32 {sW}, 4')
    a(f's_cbranch_scc1 {name}_c')
    bwave(a, c, Lfin, tr, getpar, Ldone)
    a(f'{name}_c:')
    cwave(a, c, Lfin, tr, getpar, Ldone)
    def chain_diag():
        a(f's_memrealtime {sr(rt1,2)}')
        a(f's_memtime {sr(ct1,2)}')
        a('s_waitcnt vmcnt(0) lgkmcnt(0)')
        a(f's_sub_u32 {sr(ct1)}, {sr(ct1)}, {sr(ct0)}')
        a(f's_lshl_b32 {sr(ct1)}, {sr(ct1)}, 1')
        a(f's_add_u32 {sr(c.sMode)}, {sr(c.sMode)}, {sr(ct1)}')
        ssum(a, sr(c.sT), sr(c.sT+1), [(sr(c.sG), 13), (sr(c.sC), 9), (sW, 6)], STAMP)
        vals = [sr(rt0), sr(rt1), sr(c.sSpin), sr(c.sS), sr(c.sMode), sr(sJob)] + ([sr(tr.acc+i) for i in range(6)] if trace == 1 else [])
        a(f'v_mov_b32 v1, {sr(c.sT)}')
        for i, x in enumerate(vals):
            a(f'v_mov_b32 v2, {x}')
            a(f'buffer_store_dword v2, v1, {WS}, 0 offen offset:{4*i}')
    a(f'{Lfin}:')
    if diag: chain_diag()
    a(f'{Lend}:')
    a('s_endpgm')
    a(f'{Ldone}:')
    if diag: chain_diag()
    if not join: a('s_endpgm')
    a(f'v_mbcnt_lo_u32_b32 v0, -1, 0')
    a(f'v_mbcnt_hi_u32_b32 v0, -1, v0')
    a(f's_lshl_b32 {sr(c.sT)}, {sW}, 6')
    a(f'v_add_u32 v0, {sr(c.sT)}, v0')
    a(f's_mov_b32 {sr(sJob)}, -1')
    a(f'{Lwork}:')
    wr = Regs(c.SWS + 4, 100, 's')
    sQo = wr.get(); sSig = wr.get(); sInc = wr.get(); sSp = wr.get(); t0 = wr.get(4, 2); jt = wr.get(2, 2); sChk = wr.get()
    wb = wr.p
    Lloop = a.lab('w_loop'); Lnext = a.lab('w_next'); Lsig = a.lab('w_sig')
    def pop():
        a(f's_mov_b64 exec, 1')
        a(f'v_mov_b32 v255, 1')
        a(f'buffer_atomic_add v255, off, {sr(SD,4)}, {sr(sQo)} sc0 sc1')
        a(f's_mov_b64 exec, -1')
    def dep(off, cnt, allw=False):
        Lx = a.lab('dp'); Ly = a.lab('dpx')
        a(f's_cmp_lg_u32 {sW}, 0')
        a(f's_cbranch_scc1 {Ly}')
        a(f's_mov_b32 {sr(sSp)}, {SPIN}')
        a(f'{Lx}:')
        for k, o in enumerate(off): a(f'buffer_load_dword v{1+k}, off, {WS}, {o} sc1')
        a(f's_sub_u32 {sr(sSp)}, {sr(sSp)}, 1')
        a(f's_cbranch_scc1 {Lend}')
        a('s_waitcnt vmcnt(0)')
        for k in range(len(off)):
            a(f'v_cmp_gt_u32 vcc, {cnt[k]}, v{1+k}')
            a(f's_cbranch_vccnz {Lx}_s')
        a(f's_branch {Ly}')
        a(f'{Lx}_s:')
        a(f's_sleep {rsl}')
        a(f's_branch {Lx}')
        a(f'{Ly}:')
        a('s_barrier')
    ssum(a, sr(sQo), None, [(sr(sX), 2)], 128)
    a(f's_mov_b32 {sr(sJp)}, {JSLOT}')
    a(f's_mov_b32 {sr(sInc)}, 0')
    a(f's_mov_b32 {sr(sChk)}, 1')
    Lfirst = a.lab('w_first'); Lnc = a.lab('w_nc')
    def jlog(J):
        a(f's_memrealtime {sr(jt,2)}')
        a('s_waitcnt lgkmcnt(0)')
        a(f'v_mov_b32 v4, {sr(jt)}')
        a(f'v_lshl_add_u32 v5, {J}, 8, {sr(sQo)}')
        a(f'buffer_store_dwordx2 v[4:5], off, {WS}, {sr(sLog)}')
        a(f's_add_u32 {sr(sLog)}, {sr(sLog)}, 8')
    if diag:
        a(f'v_mov_b32 v2, {sr(sJob)}')
        jlog('v2')
    a(f's_cmp_lg_u32 {sr(sJob)}, -1')
    a(f's_cbranch_scc1 {Lfirst}')
    a(f's_cmp_lg_u32 {sW}, 0')
    a(f's_cbranch_scc1 {Lnext}')
    pop()
    a(f'{Lnext}:')
    a('s_waitcnt vmcnt(0)')
    a(f'v_mov_b32 v1, {sr(sJp)}')
    a(f's_cmp_lg_u32 {sW}, 0')
    a(f's_cbranch_scc1 {Lsig}')
    a(f's_cmp_eq_u32 {sr(sChk)}, 0')
    a(f's_cbranch_scc1 {Lnc}')
    arrived(4, Lend, sr(sSp))
    a(f's_mov_b32 {sr(sChk)}, 0')
    a(f'{Lnc}:')
    a(f's_mov_b64 exec, 1')
    a(f's_cmp_eq_u32 {sr(sQo)}, 144')
    a(f's_cselect_b32 {sr(t0)}, 0, 32')
    a(f'v_add_u32 v255, {sr(t0)}, v255')
    a(f'ds_write_b32 v1, v255')
    a(f's_mov_b64 exec, -1')
    a('s_waitcnt lgkmcnt(0)')
    a(f'{Lsig}:')
    a('s_barrier')
    a(f'ds_read_b32 v2, v1')
    a(f's_xor_b32 {sr(sJp)}, {sr(sJp)}, 4')
    Lns = a.lab('w_ns'); Lnp = a.lab('w_np')
    a(f's_cmp_lg_u32 {sW}, 0')
    a(f's_cbranch_scc1 {Lnp}')
    a(f's_cmp_eq_u32 {sr(sInc)}, 0')
    a(f's_cbranch_scc1 {Lns}')
    a(f's_mov_b64 exec, 1')
    a(f'v_mov_b32 v3, {sr(sInc)}')
    a(f'buffer_atomic_add v3, off, {WS}, {sr(sSig)} sc1')
    a(f's_mov_b64 exec, -1')
    a(f'{Lns}:')
    if diag: jlog('v2')
    a(f'{Lnp}:')
    a('s_waitcnt lgkmcnt(0)')
    a(f'v_readfirstlane_b32 {sr(sJob)}, v2')
    a(f's_mov_b32 {sr(sInc)}, 0')
    Lred = a.lab('w_red'); Lsw = a.lab('w_sw'); Lgo = a.lab('w_go')
    a(f's_mov_b32 {sr(t0)}, {Q_END}')
    a(f's_cmp_eq_u32 {sr(sQo)}, 144')
    a(f's_cselect_b32 {sr(t0)}, {NRED}, {sr(t0)}')
    a(f's_cmp_ge_u32 {sr(sJob)}, {sr(t0)}')
    a(f's_cbranch_scc1 {Lsw}')
    a(f'{Lfirst}:')
    a(f's_cmp_lg_u32 {sW}, 0')
    a(f's_cbranch_scc1 {Lgo}')
    pop()
    a(f'{Lgo}:')
    a(f's_cmp_eq_u32 {sr(sQo)}, 144')
    a(f's_cbranch_scc1 {Lred}')
    Lbig = a.lab('w_big'); Lsm = a.lab('w_sm'); Lkva = a.lab('w_kva'); Lgate = a.lab('w_gate'); Lqa = a.lab('w_qa'); Latt = a.lab('w_att'); Lfn = a.lab('w_fin')
    def mk(TN, TM, dual, nbuf=2):
        s = Regs(wb, 100, 's'); v = Regs(1, 255)
        g = Gemm16(a, GemmCfg16(TN, TM, dual=dual, nbuf=nbuf), s, v, SO=c.SWS, sWv=c.sW); g.storemod = stm
        return g, s
    gB, sB = mk(256, 256, True); gS, _ = mk(256, 128, True, nbs); gF, _ = mk(128, 128, False, nbf)
    sRow = sB.get(); sTile = sB.get(); sPx = sB.get(); pT = sB.get(2)
    J = sr(sJob)
    a(f's_cmp_ge_u32 {J}, {Q_ATT}')
    a(f's_cbranch_scc1 {Latt}')
    a(f's_cmp_ge_u32 {J}, {Q_B2}')
    a(f's_cbranch_scc1 {Lbig}')
    a(f's_mul_i32 {sr(sRow)}, {J}, 43691')
    a(f's_lshr_b32 {sr(sRow)}, {sr(sRow)}, 19')
    a(f's_mul_i32 {sr(t0+1)}, {sr(sRow)}, 12')
    a(f's_sub_u32 {sr(sTile)}, {J}, {sr(t0+1)}')
    def kqv(g, inc):
        TM = g.c.TM
        Lv = a.lab('w_v'); Lj = a.lab('w_j'); Lnopx = a.lab('w_nopx')
        a(f's_load_dwordx2 {sr(g.SX,2)}, s[0:1], {A_X}')
        a(f's_mov_b32 {sr(sInc)}, {inc}')
        a(f's_lshl_b32 {sr(t0+2)}, {sr(sX)}, 3')
        a(f's_cmp_ge_u32 {sr(sTile)}, 8')
        a(f's_cbranch_scc1 {Lv}')
        a(f's_load_dwordx2 {sr(g.SW,2)}, s[0:1], {B_WQ}')
        a(f's_load_dwordx2 {sr(g.SW2,2)}, s[0:1], {B_WK}')
        a(f's_add_u32 {sr(t0+2)}, {sr(t0+2)}, {sr(sTile)}')
        a(f's_lshl_b32 {sr(t0)}, {sr(t0+2)}, 8')
        a(f's_mov_b32 {sr(t0+1)}, {sr(t0)}')
        a(f's_bitcmp1_b32 {sW}, 1')
        a(f's_mov_b32 {sr(g.sOB)}, {QX}')
        a(f's_cselect_b32 {sr(g.sOB)}, {KX-8192}, {sr(g.sOB)}')
        a(f's_cselect_b32 {sr(g.sScale)}, {SCL:#x}, 1.0')
        a(f's_branch {Lj}')
        a(f'{Lv}:')
        a(f's_load_dwordx2 {sr(g.SW,2)}, s[0:1], {B_WV}')
        a(f's_load_dwordx2 {sr(g.SW2,2)}, s[0:1], {B_WV}')
        a(f's_lshl_b32 {sr(t0)}, {sr(sTile)}, 1')
        a(f's_add_u32 {sr(t0+2)}, {sr(t0+2)}, {sr(t0)}')
        a(f's_sub_u32 {sr(t0+2)}, {sr(t0+2)}, 16')
        a(f's_lshl_b32 {sr(t0)}, {sr(t0+2)}, 8')
        a(f's_add_u32 {sr(t0+1)}, {sr(t0)}, 256')
        a(f's_mov_b32 {sr(g.sOB)}, {VX}')
        a(f's_mov_b32 {sr(g.sScale)}, 1.0')
        a(f'{Lj}:')
        ssum(a, sr(sPx), sr(t0+3), [(sr(sRow), 7), (sW, 5), (sr(t0+2), 0)])
        a(f's_lshr_b32 {sr(t0+3)}, {sr(sRow)}, 1')
        a(f's_lshl_b32 {sr(t0+3)}, {sr(t0+3)}, 7')
        a(f's_lshr_b32 {sr(sSig)}, {sr(t0+2)}, 2')
        a(f's_lshl_b32 {sr(sSig)}, {sr(sSig)}, 10')
        a(f's_add_u32 {sr(sSig)}, {sr(sSig)}, {sr(t0+3)}')
        a(f's_add_u32 {sr(sSig)}, {sr(sSig)}, {RDY}')
        ssum(a, sr(t0+2), sr(t0+3), [(sr(t0+2), 13), (sr(sRow), 20)])
        a(f's_add_u32 {sr(g.sOB)}, {sr(g.sOB)}, {sr(t0+2)}')
        a(f's_mov_b32 {sr(g.sOM)}, 1')
        a(f's_mov_b32 {sr(g.sLdw)}, 8192')
        a(f's_mov_b32 {sr(t0+3)}, {1024*8192}')
        return Lnopx
    def run(g, Lnopx=None, scale=True, xws=None):
        TM = g.c.TM
        a(f's_mov_b32 {sr(g.sLdx)}, 2048')
        a(f's_mov_b32 {sr(g.sLdo)}, 2048')
        a(f's_lshl_b32 {sr(t0+2)}, {sr(sRow)}, 18')
        a('s_waitcnt lgkmcnt(0)')
        if xws is None: srd(a, g.SX, sr(g.SX), sr(g.SX+1), TM*2048, off=sr(t0+2))
        else:
            a(f's_add_u32 {sr(t0+2)}, {sr(t0+2)}, {xws}')
            srd(a, g.SX, sr(kWs), sr(kWs+1), TM*2048, off=sr(t0+2))
        a(f's_sub_u32 {sr(t0+2)}, {sr(t0+3)}, {sr(t0)}')
        srd(a, g.SW, sr(g.SW), sr(g.SW+1), sr(t0+2), off=sr(t0))
        if g.c.dual:
            a(f's_sub_u32 {sr(t0+2)}, {sr(t0+3)}, {sr(t0+1)}')
            srd(a, g.SW2, sr(g.SW2), sr(g.SW2+1), sr(t0+2), off=sr(t0+1))
        a(f's_mov_b32 {sr(g.sOx)}, 0')
        a(f's_mov_b32 {sr(g.sOw)}, 0')
        g.setup()
        g.main(16)
        g.epilogue(scale=scale)
    Lpx = a.lab('w_px')
    kqv(gS, 1)
    run(gS)
    a(f's_cmp_ge_u32 {sr(sTile)}, 8')
    a(f's_cbranch_scc1 {Lnext}')
    a('s_waitcnt vmcnt(0)')
    a('s_barrier')
    a(f's_cmp_ge_u32 {sW}, 4')
    a(f's_cbranch_scc1 {Lnext}')
    a(f's_branch {Lpx}')
    a(f'{Lbig}:')
    a(f's_cmp_ge_u32 {J}, {Q_B4}')
    a(f's_cselect_b32 {sr(t0)}, {Q_B4-48}, {Q_B2-24}')
    a(f's_cbranch_scc1 {Lbig}1')
    a(f's_cmp_ge_u32 {J}, {Q_QA}')
    a(f's_cbranch_scc1 {Lqa}')
    a(f's_cmp_ge_u32 {J}, {Q_KVA}')
    a(f's_cbranch_scc1 {Lkva}')
    a(f'{Lbig}1:')
    a(f's_sub_u32 {sr(t0)}, {J}, {sr(t0)}')
    a(f's_mul_i32 {sr(sRow)}, {sr(t0)}, 43691')
    a(f's_lshr_b32 {sr(sRow)}, {sr(sRow)}, 19')
    a(f's_mul_i32 {sr(t0+1)}, {sr(sRow)}, 12')
    a(f's_sub_u32 {sr(sTile)}, {sr(t0)}, {sr(t0+1)}')
    a(f's_lshl_b32 {sr(sRow)}, {sr(sRow)}, 1')
    a(f'{Lbig}2:')
    kqv(gB, 2)
    a(f'{Lbig}3:')
    run(gB)
    a(f's_cmp_ge_u32 {sr(sTile)}, 8')
    a(f's_cbranch_scc1 {Lnext}')
    a('s_waitcnt vmcnt(0)')
    a('s_barrier')
    a(f'{Lpx}:')
    x = px_setup(a, Regs(1, 128))
    px_job(a, x, sr(sPx), c.SWS, pT, stm)
    a(f's_branch {Lnext}')
    a(f'{Lqa}:')
    g = gB
    a(f's_load_dwordx2 {sr(g.SX,2)}, s[0:1], {A_X}')
    a(f's_load_dwordx2 {sr(g.SW,2)}, s[0:1], {A_WQ}')
    a(f's_load_dwordx2 {sr(g.SW2,2)}, s[0:1], {A_WQ}')
    a(f's_sub_u32 {sr(t0)}, {J}, {Q_QA}')
    a(f's_lshr_b32 {sr(t0+1)}, {sr(t0)}, 2')
    ssum(a, sr(sRow), sr(t0+2), [(sr(sX), 2), (sr(t0+1), 1)])
    ssum(a, sr(sSig), None, [(sr(sRow), 6)], QAC)
    a(f's_mov_b32 {sr(sInc)}, 1')
    a(f's_and_b32 {sr(t0)}, {sr(t0)}, 3')
    a(f's_lshl_b32 {sr(t0)}, {sr(t0)}, 9')
    a(f's_add_u32 {sr(t0+1)}, {sr(t0)}, 256')
    ssum(a, sr(g.sOB), None, [(sr(sRow), 18)], QA)
    a(f's_add_u32 {sr(g.sOB)}, {sr(g.sOB)}, {sr(t0)}')
    a(f's_mov_b32 {sr(g.sScale)}, {f32bits(32**-0.5*LOG2E):#x}')
    a(f's_mov_b32 {sr(g.sOM)}, 0')
    a(f's_mov_b32 {sr(g.sLdw)}, 2048')
    a(f's_mov_b32 {sr(t0+3)}, {1024*2048}')
    a(f's_mov_b32 {sr(sTile)}, 8')
    a(f's_branch {Lbig}3')
    S0 = (wb + 3) // 4 * 4; sJ2 = S0 + 16; sCn = S0 + 17; aT = S0 + 18
    a(f'{Lkva}:')
    a(f's_mov_b32 {sr(sSig)}, {KVC}')
    a(f's_mov_b32 {sr(sInc)}, 1')
    a(f's_cmp_ge_u32 {J}, {Q_GATE}')
    a(f's_cbranch_scc1 {Lgate}')
    ssum(a, sr(sJ2), None, [(sr(sX), 1)])
    a(f's_add_u32 {sr(sJ2)}, {sr(sJ2)}, {J}')
    a(f's_sub_u32 {sr(sJ2)}, {sr(sJ2)}, {Q_KVA}')
    kva_job(a, sr(sJ2), sW, S0, t0, stm)
    a(f's_branch {Lnext}')
    a(f'{Lgate}:')
    ssum(a, sr(sJ2), None, [(sr(sX), 1)])
    a(f's_add_u32 {sr(sJ2)}, {sr(sJ2)}, {J}')
    a(f's_sub_u32 {sr(sJ2)}, {sr(sJ2)}, {Q_GATE}')
    a(f's_lshl_b32 {sr(sJ2)}, {sr(sJ2)}, 2')
    a(f'{Lgate}1:')
    gate_job(a, sr(sJ2), sW, S0, t0, stm)
    a(f's_add_u32 {sr(sJ2)}, {sr(sJ2)}, 1')
    a(f's_and_b32 {sr(t0)}, {sr(sJ2)}, 3')
    a(f's_cbranch_scc1 {Lgate}1')
    a(f's_branch {Lnext}')
    a(f'{Latt}:')
    a(f's_cmp_ge_u32 {J}, {Q_FIN}')
    a(f's_cbranch_scc1 {Lfn}')
    ssum(a, sr(sJ2), None, [(sr(sX), 5)])
    a(f's_add_u32 {sr(sJ2)}, {sr(sJ2)}, {J}')
    a(f's_sub_u32 {sr(sJ2)}, {sr(sJ2)}, {Q_ATT}')
    a(f's_lshr_b32 {sr(t0)}, {sr(sJ2)}, 3')
    ssum(a, sr(sSig), None, [(sr(t0), 7)], ATC)
    a(f's_mov_b32 {sr(sInc)}, 1')
    a(f's_lshr_b32 {sr(t0)}, {sr(sJ2)}, 4')
    ssum(a, sr(t0), None, [(sr(t0), 7)], QAC)
    a(f's_mov_b32 {sr(t0+1)}, {KVC}')
    dep([sr(t0), sr(t0+1)], [4, 16])
    attnA_job(a, sr(sJ2), sW, S0, aT, kWs, storemod=stm)
    a(f's_branch {Lnext}')
    a(f'{Lfn}:')
    g = gF
    a(f's_load_dwordx2 {sr(g.SW,2)}, s[0:1], {A_WO}')
    a(f's_sub_u32 {sr(t0)}, {J}, {Q_FIN}')
    a(f's_lshr_b32 {sr(t0+1)}, {sr(t0)}, 3')
    ssum(a, sr(sRow), sr(t0+2), [(sr(sX), 2), (sr(t0+1), 0)])
    ssum(a, sr(sSig), None, [(sr(sRow), 7)], FNC)
    a(f's_mov_b32 {sr(sInc)}, 1')
    ssum(a, sr(t0+1), None, [(sr(sRow), 7)], ATC)
    dep([sr(t0+1)], [8])
    a(f's_and_b32 {sr(t0)}, {sr(t0)}, 7')
    a(f's_lshl_b32 {sr(t0)}, {sr(t0)}, 8')
    ssum(a, sr(g.sOB), None, [(sr(sRow), 18)], OPA)
    a(f's_add_u32 {sr(g.sOB)}, {sr(g.sOB)}, {sr(t0)}')
    a(f's_mov_b32 {sr(g.sOM)}, 0')
    a(f's_mov_b32 {sr(g.sLdw)}, 2048')
    a(f's_mov_b32 {sr(t0+3)}, {1024*2048}')
    run(g, scale=False, xws=OA)
    a(f's_branch {Lnext}')
    a(f'{Lsw}:')
    a(f's_cmp_eq_u32 {sr(sQo)}, 144')
    a(f's_cbranch_scc1 {Lend}')
    a(f's_mov_b32 {sr(sQo)}, 144')
    a(f's_cmp_lg_u32 {sW}, 0')
    a(f's_cbranch_scc1 {Lnext}')
    pop()
    a(f's_branch {Lnext}')
    a(f'{Lred}:')
    SO = S0
    a(f's_load_dwordx2 {sr(SO,2)}, s[0:1], {D_OUT}')
    ssum(a, sr(sJ2), sr(t0), [(J, 3), (sW, 0)])
    x = red_setup(a, Regs(1, 255))
    a(f's_lshr_b32 {sr(t0)}, {J}, 3')
    ssum(a, sr(t0), None, [(sr(t0), 7)], FNC)
    a(f's_and_b32 {sr(t0+1)}, {sr(sJ2)}, 15')
    ssum(a, sr(t0+1), None, [(sr(t0+1), 10)], PROG)
    a(f's_lshr_b32 {sr(t0+2)}, {J}, 1')
    a(f'v_lshlrev_b32 v{x.T}, 3, v{x.L16}')
    a(f'v_and_b32 v{x.T}, 0x380, v{x.T}')
    a(f's_mov_b32 {sr(sSp)}, {SPIN}')
    a('s_waitcnt lgkmcnt(0)')
    srd(a, SO, sr(SO), sr(SO+1), 2048*2048)
    Lx = a.lab('rd_p'); Ly = a.lab('rd_g')
    a(f'{Lx}:')
    a(f'buffer_load_dword v{x.t}, v{x.T}, {WS}, {sr(t0+1)} offen sc1')
    a(f'buffer_load_dword v{x.t+1}, off, {WS}, {sr(t0)} sc1')
    a(f's_sub_u32 {sr(sSp)}, {sr(sSp)}, 1')
    a(f's_cbranch_scc1 {Lend}')
    a('s_waitcnt vmcnt(0)')
    a(f'v_cmp_ge_u32 {sr(jt,2)}, {sr(t0+2)}, v{x.t}')
    a(f'v_cmp_gt_u32 vcc, 8, v{x.t+1}')
    a(f's_or_b64 vcc, vcc, {sr(jt,2)}')
    a(f's_cbranch_vccz {Ly}')
    a(f's_sleep {rsl}')
    a(f's_branch {Lx}')
    a(f'{Ly}:')
    red_job(a, x, sr(sJ2), c.SWS, SO, aT)
    a(f's_branch {Lnext}')
    a.pad()
    return a.text() + kd(name, 256, 256), 163840

if __name__ == '__main__':
    import sys
    from build import HDR
    NAME = 'gated_mix__grouped_kv_mqa__memory_aug_recurrent_mem_tr__prompt_kernel'
    kw = dict(diag=True); kw.update(eval('dict(' + (sys.argv[2] if len(sys.argv) > 2 else '') + ')'))
    lst = kw.pop('lst', True)
    t, l = gen_k5('fused_kernel' if lst else NAME, **kw)
    if lst: o = HDR + f'; @launch kernel=fused_kernel grid=(256,1,1) block=(512,1,1) lds={l}\n'
    else: o = HDR + f'; @launch grid=(256,1,1) block=(512,1,1) lds={l}\n'
    o += '.amdgcn_target "amdgcn-amd-amdhsa--gfx950"\n.text\n' + t
    open(sys.argv[1], 'w').write(o)
```

```python
from asm import *
from layout import *
from small import srd

def attnA_job(a, sJob, sW, S0, sT, kWs, ldmod='', storemod='', st=None, late=None):
    SQ, SKV, SG, SO = S0, S0 + 4, S0 + 8, S0 + 12
    sTok, sBuf, sSrc, sCnt, sPass, sX = sT, sT + 1, sT + 2, sT + 3, sT + 4, sT + 5
    v = Regs(1, 256)
    L = v.get(); T1 = v.get(); T2 = v.get(); vK = v.get(); vV = v.get(); vD = v.get(); vQO = v.get(); vIdx = v.get(); vG = v.get(2, 2)
    ones = v.get(4, 4); Q = v.get(16, 4); O = v.get(32, 4); lac = v.get(8, 4); C = v.get(32, 4); S = v.get(64, 4)
    KF = v.get(16, 4); VF = v.get(16, 4)
    srd(a, SQ, sr(kWs), sr(kWs+1), 2048*2048, off=QA)
    srd(a, SKV, sr(kWs), sr(kWs+1), 262144, off=KVF)
    srd(a, SG, sr(kWs), sr(kWs+1), 16384, off=GT)
    srd(a, SO, sr(kWs), sr(kWs+1), 2048*2048, off=OA)
    a(f'v_and_b32 v{L}, 63, v0')
    a(f'v_lshlrev_b32 v{vD}, 4, v0')
    a(f's_lshl_b32 {sr(sTok)}, {sJob}, 3')
    a(f's_add_u32 {sr(sTok)}, {sr(sTok)}, {sW}')
    a(f's_lshl_b32 {sr(sTok)}, {sr(sTok)}, 1')
    a(f'v_and_b32 v{T1}, 31, v{L}')
    a(f'v_lshrrev_b32 v{T2}, 5, v{L}')
    a(f'v_lshlrev_b32 v{vQO}, 6, v{T1}')
    a(f'v_lshl_add_u32 v{vQO}, v{T2}, 5, v{vQO}')
    a(f's_lshl_b32 {sr(sX)}, {sr(sTok)}, 11')
    for t in range(2):
        for s in range(2):
            a(f'buffer_load_dwordx4 {vr(Q+8*t+4*s,4)}, v{vQO}, {sr(SQ,4)}, {sr(sX)} offen offset:{2048*t+16*s}{ldmod}')
    a(f's_lshl_b32 {sr(sX)}, {sr(sTok)}, 2')
    a(f'v_mov_b32 v{T1}, {sr(sX)}')
    a(f'buffer_load_dwordx2 {vr(vG,2)}, v{T1}, {sr(SG,4)}, 0 offen{ldmod}')
    a(f'v_mov_b32 v{vIdx}, 0xdddddddd')
    a(f'v_and_b32 v{T1}, 7, v{L}')
    a(f'v_mov_b32 v{T2}, 0x3f803f80')
    a(f'v_cmp_eq_u32 vcc, 0, v{T1}')
    a(f'v_cndmask_b32 v{ones}, 0, v{T2}, vcc')
    a(f'v_cndmask_b32 v{ones+1}, 0, v{T2}, vcc')
    a(f'v_cmp_eq_u32 vcc, 4, v{T1}')
    a(f'v_cndmask_b32 v{ones+2}, 0, v{T2}, vcc')
    a(f'v_cndmask_b32 v{ones+3}, 0, v{T2}, vcc')
    for i in range(32): a(f'v_mov_b32 v{C+i}, 0')
    a(f's_mov_b32 {sr(sPass)}, 0')
    Lre = a.lab('aa_re'); Ll = a.lab('aa_loop'); Ldone = a.lab('aa_done')
    a(f'{Lre}:')
    def dma():
        out = []
        for m in range(4):
            out.append((f's_add_u32 m0, {sr(sBuf)}, {m*8192}',
                        f'buffer_load_dwordx4 v{vD}, {sr(SKV,4)}, {sr(sSrc)} offen lds{ldmod}\ns_add_u32 {sr(sSrc)}, {sr(sSrc)}, 8192'))
        out[-1] = (out[-1][0], out[-1][1] + f'\ns_add_u32 {sr(sBuf)}, {sr(sBuf)}, 32768\ns_and_b32 {sr(sBuf)}, {sr(sBuf)}, 0x1ffff')
        return out
    a(f's_lshl_b32 {sr(sBuf)}, {sW}, 10')
    a(f's_mov_b32 {sr(sSrc)}, 0')
    for c in range(3):
        for d in dma(): a(d[0]); a(d[1])
    for i in range(32): a(f'v_mov_b32 v{O+i}, 0')
    for i in range(8): a(f'v_mov_b32 v{lac+i}, 0')
    for i in range(16): a(f'v_mov_b32 v{S+48+i}, 0')
    for i in range(8): a(f'v_mov_b32 v{VF+8+i}, 0')
    a(f'v_lshlrev_b32 v{vK}, 4, v{L}')
    a(f'v_lshlrev_b32 v{vV}, 4, v{L}')
    a(f'v_mov_b32 v{T1}, 131072')
    a(f'v_mov_b32 v{T2}, 0')
    a(f'ds_write_b32 v{T1}, v{T2}')
    a('s_waitcnt vmcnt(8) lgkmcnt(0)')
    a('s_barrier')
    if st: st.stamp(1)
    def rdK(kt):
        return [f'ds_read_b128 {vr(KF+8*(kt&1)+4*s,4)}, v{vK} offset:{(kt&7)*4096+s*1024}' for s in range(2)]
    def rdV(kt):
        return [f'ds_read_b128 {vr(VF+8*(kt&1)+4*s,4)}, v{vV} offset:{(kt&7)*4096+2048+s*1024}' for s in range(2)]
    def qk(i):
        kt, t = i >> 1, i & 1; D = vr(S + 16 * (i & 3), 16); K = KF + 8 * (kt & 1)
        return [f'v_mfma_f32_32x32x16_bf16 {D}, {vr(K,4)}, {vr(Q+8*t,4)}, {vr(C+16*t,16)}',
                f'v_mfma_f32_32x32x16_bf16 {D}, {vr(K+4,4)}, {vr(Q+8*t+4,4)}, {D}']
    def pv(i):
        kt, t = i >> 1, i & 1; P = S + 16 * (i & 3); V = VF + 8 * (kt & 1)
        return [f'v_smfmac_f32_32x32x32_bf16 {vr(O+16*t,16)}, {vr(V,4)}, {vr(P,8)}, v{vIdx}',
                f'v_smfmac_f32_16x16x64_bf16 {vr(lac+4*t,4)}, {vr(ones,4)}, {vr(P,8)}, v{vIdx}',
                f'v_smfmac_f32_32x32x32_bf16 {vr(O+16*t,16)}, {vr(V+4,4)}, {vr(P+8,8)}, v{vIdx}',
                f'v_smfmac_f32_16x16x64_bf16 {vr(lac+4*t,4)}, {vr(ones,4)}, {vr(P+8,8)}, v{vIdx}']
    for r in rdK(0) + rdK(1): a(r)
    a('s_waitcnt lgkmcnt(2)')
    for m in qk(0): a(m)
    a(f's_mov_b32 {sr(sCnt)}, 8')
    a('s_nop 9')
    a(f'{Ll}:')
    for i in range(16):
        kt = i >> 1
        ex = [f'v_exp_f32 v{S+16*(i&3)+r}, v{S+16*(i&3)+r}' for r in range(16)]
        mf = qk(i + 1) + pv(i - 1)
        extra = []
        if i == 13:
            a('s_waitcnt vmcnt(4)')
            a('s_barrier')
            a(f'v_add_u32 v{vK}, 32768, v{vK}')
            a(f'v_and_b32 v{vK}, 0x1ffff, v{vK}')
            extra = dma()
        if i & 1: rd = rdK((i + 1) // 2 + 1)
        else: rd = rdV(kt)
        if i & 1: a('s_waitcnt lgkmcnt(0)')
        gaps = [3, 3, 3, 2, 3, 2]
        for j, m in enumerate(mf):
            if extra: a(extra[0][0])
            a(m)
            if extra: a(extra.pop(0)[1])
            if j < 2: a(rd[j])
            for _ in range(gaps[j]): a(ex.pop(0))
        if i == 14:
            a(f'v_add_u32 v{vV}, 32768, v{vV}')
            a(f'v_and_b32 v{vV}, 0x1ffff, v{vV}')
    a(f's_sub_u32 {sr(sCnt)}, {sr(sCnt)}, 1')
    a(f's_cmp_lg_u32 {sr(sCnt)}, 0')
    a(f's_cbranch_scc1 {Ll}')
    for m in pv(15): a(m)
    if st: st.stamp(2)
    lo = (127 - 64) << 23; span = 128 << 23
    a(f'v_subrev_u32 v{T1}, {lo:#x}, v{lac}')
    a(f'v_subrev_u32 v{T2}, {lo:#x}, v{lac+4}')
    a(f'v_max_u32 v{T1}, v{T1}, v{T2}')
    a(f'v_cmp_lt_u32 vcc, {span:#x}, v{T1}')
    Lok = a.lab('aa_ok')
    a(f'v_mov_b32 v{T1}, 131072')
    a(f's_cbranch_vccz {Lok}')
    a(f'ds_write_b32 v{T1}, v{T1}')
    a(f'{Lok}:')
    a('s_waitcnt vmcnt(0) lgkmcnt(0)')
    a('s_barrier')
    a(f'ds_read_b32 v{T2}, v{T1}')
    a('s_waitcnt lgkmcnt(0)')
    a(f'v_readfirstlane_b32 {sr(sX)}, v{T2}')
    a(f's_cmp_eq_u32 {sr(sX)}, 0')
    a(f's_cbranch_scc1 {Ldone}')
    a(f's_cmp_lg_u32 {sr(sPass)}, 0')
    a(f's_cbranch_scc1 {Ldone}')
    a('s_barrier')
    a(f's_mov_b32 {sr(sPass)}, 1')
    a(f'v_lshlrev_b32 v{vK}, 4, v{L}')
    a(f'v_mov_b32 v{T1}, 0xff7fffff')
    a(f'v_mov_b32 v{T2}, 0xff7fffff')
    a(f's_mov_b32 {sr(sSrc)}, 0')
    Lm = a.lab('aa_mx')
    a(f'{Lm}:')
    a(f'buffer_load_dwordx4 {vr(KF,4)}, v{vK}, {sr(SKV,4)}, {sr(sSrc)} offen{ldmod}')
    a(f'buffer_load_dwordx4 {vr(KF+4,4)}, v{vK}, {sr(SKV,4)}, {sr(sSrc)} offen offset:1024{ldmod}')
    a('s_waitcnt vmcnt(0)')
    for t in range(2):
        D = vr(S + 16 * t, 16)
        a(f'v_mfma_f32_32x32x16_bf16 {D}, {vr(KF,4)}, {vr(Q+8*t,4)}, 0')
        a(f'v_mfma_f32_32x32x16_bf16 {D}, {vr(KF+4,4)}, {vr(Q+8*t+4,4)}, {D}')
    for t in range(2):
        for r in range(0, 16, 2):
            a(f'v_max3_f32 v{T1+t}, v{T1+t}, v{S+16*t+r}, v{S+16*t+r+1}')
    a(f's_add_u32 {sr(sSrc)}, {sr(sSrc)}, 4096')
    a(f's_cmp_lt_u32 {sr(sSrc)}, 262144')
    a(f's_cbranch_scc1 {Lm}')
    for t in range(2):
        a(f'v_mov_b32 v{S}, v{T1+t}')
        a(f'v_permlane32_swap_b32 v{S}, v{T1+t}')
        a(f'v_max_f32 v{S}, v{S}, v{T1+t}')
        for r in range(16): a(f'v_sub_f32 v{C+16*t+r}, 0, v{S}')
    a(f's_branch {Lre}')
    a(f'{Ldone}:')
    if late: late()
    a(f's_mul_i32 {sr(sX)}, {sr(sTok)}, 2048')
    for t in range(2):
        a(f'v_rcp_f32 v{T1}, v{lac+4*t}')
        a(f'v_mul_f32 v{T1}, v{T1}, v{vG+t}')
        for r in range(16): a(f'v_mul_f32 v{O+16*t+r}, v{T1}, v{O+16*t+r}')
        for r in range(8): a(f'v_cvt_pk_bf16_f32 v{O+16*t+r}, v{O+16*t+2*r}, v{O+16*t+2*r+1}')
        a(f'buffer_store_dwordx4 {vr(O+16*t,4)}, v{vQO}, {sr(SO,4)}, {sr(sX)} offen{storemod}')
        a(f'buffer_store_dwordx4 {vr(O+16*t+4,4)}, v{vQO}, {sr(SO,4)}, {sr(sX)} offen offset:16{storemod}')
        a(f's_add_u32 {sr(sX)}, {sr(sX)}, 2048')

def gen_attna(name='attna_kernel', diag=False):
    a = Asm()
    sreg = Regs(4, 100, 's')
    kWs = sreg.get(2, 2); sW = sreg.get(); sT = sreg.get(6); S0 = sreg.get(16, 4)
    st = Stamps(a, sreg, 8, diag)
    a(kstart(name))
    st.stamp(0); st.stamp(6, True)
    a('s_cmp_ge_u32 s2, 128')
    a(f's_cbranch_scc1 {name}_end')
    a(f's_load_dwordx2 {sr(kWs,2)}, s[0:1], {D_WS}')
    a(f'v_lshrrev_b32 v1, 6, v0')
    a(f'v_readfirstlane_b32 {sr(sW)}, v1')
    a('s_waitcnt lgkmcnt(0)')
    attnA_job(a, 's2', sr(sW), S0, sT, kWs, st=st if diag else None)
    st.stamp(3); st.stamp(4); st.stamp(5); st.stamp(7, True)
    st.flush(sr(kWs), sr(kWs+1), STAMP, 1)
    a(f'{name}_end:')
    a('s_endpgm')
    a.pad()
    return a.text() + kd(name, 256, 256), 131072 + 16
```

```python
from asm import *
from layout import *
from small import srd

NSTEP = 64
SPIN = 400000
P = dict(d1=3, dm=2, dq=3, vint=3, nv1=8, nox=0, bprio=2, cprio=2, dx=0, probe=None, nov=0, nokq=0, noop=0, opm=' sc1', fused=0, pf=1, pfg=128, pfa=0, pfb=13, prog=1, d0=3, optop=1, armtop=0, noflag=1, larm=2, fsl=0, nvc=4, kqtop=1, vfirst=1, fo=7, cst=0, bst=0, vl=2, cx=4, cm='', om=' nt', fix=1, np1=1, ds1=2)
SCL = f32bits(128**-0.5*LOG2E)
QI = 0; KI = 2560; KF = 8192; CO = 16384; FLAG = 24576; XR = 28672; XO = 32768; VB = 65536

class ChainCtx: pass

def chain_common(a, sreg):
    c = ChainCtx()
    c.sW = sreg.get(); c.sG = sreg.get(); c.sC = sreg.get(); c.sMode = sreg.get()
    c.SWS = sreg.get(4, 4); c.SA = sreg.get(4, 4); c.SB = sreg.get(4, 4); c.SC = sreg.get(4, 4)
    c.sS = sreg.get(); c.sSlot = sreg.get(); c.sArm = sreg.get(); c.sSpin = sreg.get()
    c.sT = sreg.get(4, 2); c.sAr = sreg.get(); c.sD = sreg.get(); c.sFb = sreg.get(); c.sMask = sreg.get(2, 2)
    c.sB1 = sreg.get(); c.sB2 = sreg.get(); c.sO1 = sreg.get(); c.sO2 = sreg.get(); c.sV = sreg.get(); c.sM0 = sreg.get()
    c.sPart = sreg.get()
    c.sRd = sreg.get(); c.sRv = sreg.get(); c.sPg = sreg.get(); c.sPf = sreg.get(); c.sPp = sreg.get(); c.sJk = sreg.get()
    c.sMS = sreg.get(); c.sO3 = sreg.get(); c.sVP = sreg.get(); c.sO4 = sreg.get(); c.sQA = sreg.get(); c.sOP = sreg.get(); c.sXb = sreg.get()
    return c

def bits(a, D, L, T, spec, base=None):
    first = True
    for mask, sh in spec:
        a(f'v_and_b32 v{T}, {mask}, v{L}')
        if sh < 0:
            a(f'v_lshrrev_b32 v{T}, {-sh}, v{T}'); sh = 0
        if first: a(f'v_lshlrev_b32 v{D}, {sh}, v{T}')
        else: a(f'v_lshl_add_u32 v{D}, v{T}, {sh}, v{D}')
        first = False
    if base is not None: a(f'v_add_u32 v{D}, {base}, v{D}')

def ssum(a, D, T, terms, const=0):
    first = True
    for r, sh in terms:
        if first: a(f's_lshl_b32 {D}, {r}, {sh}')
        else:
            a(f's_lshl_b32 {T}, {r}, {sh}'); a(f's_add_u32 {D}, {D}, {T}')
        first = False
    if const: a(f's_add_u32 {D}, {D}, {const}')

def delay(a, n):
    if n > 0: a(f's_sleep {n}')

def spin(a, c, Lend):
    a(f's_sub_u32 {sr(c.sSpin)}, {sr(c.sSpin)}, 1')
    a(f's_cbranch_scc1 {Lend}')

def make_sel(a, SEL, L, T, T2, mask=6, mul=2):
    bits(a, T2, L, T, [(1, 4)])
    a(f'v_mov_b32 v{T}, 0x3f80')
    a(f'v_lshlrev_b32 v{T2}, v{T2}, v{T}')
    a(f'v_and_b32 v{T}, {mask}, v{L}')
    for p in range(4):
        a(f'v_cmp_eq_u32 vcc, {mul*p}, v{T}')
        a(f'v_cndmask_b32 v{SEL+p}, 0, v{T2}, vcc')

PERM4 = [(1, 2), (12, 3), (2, 6), (48, -1)]

def bwave(a, c, Lend, tr=None, getpar=None, Ldone=None):
    b = sr(c.sW); T0 = c.sT
    v = Regs(1, 256)
    L8 = 0
    T = v.get(); L16 = v.get()
    vL2 = v.get(); vLW = v.get(); vLWv = v.get(); vLR = v.get(); vIdx = v.get(); vFl = v.get(); vMP = v.get()
    M1 = v.get(2, 2); PK = v.get(2, 2); vPA = v.get(); SEL = v.get(4, 4)
    AF = v.get(16, 4); ACC = v.get(24, 4); W = v.get(192, 4)
    T2 = PK; L = ACC; vMS = ACC + 1
    WS = sr(c.SWS, 4)
    sDone = c.sAr; sNew = c.sFb
    a(f's_load_dwordx2 {sr(c.SA,2)}, s[0:1], {B_WQ}')
    a(f's_load_dwordx2 {sr(c.SB,2)}, s[0:1], {B_WK}')
    a(f's_load_dwordx2 {sr(c.SC,2)}, s[0:1], {B_WV}')
    a(f'v_and_b32 v{L}, 63, v0')
    a(f'v_lshlrev_b32 v{L16}, 4, v{L}')
    a(f'v_lshlrev_b32 v{L8}, 3, v{L}')
    a(f's_lshl_b32 {sr(T0)}, {sr(c.sG)}, 4')
    a(f's_add_u32 {sr(T0)}, {sr(T0)}, {sr(c.sC)}')
    ssum(a, sr(T0+2), sr(T0+1), [(b, 21), (sr(T0), 6)])
    bits(a, vL2, L, T, [(60, 11), (3, 4)], sr(T0+2))
    a(f's_mul_i32 {sr(T0+3)}, {b}, 24576')
    bits(a, vMS, L, T, [(12, 4), (48, 5), (3, 3)], sr(T0+3))
    a('s_waitcnt lgkmcnt(0)')
    for S in (c.SA, c.SB, c.SC): srd(a, S, sr(S), sr(S+1), 1024*8192)
    a(f's_and_b32 {sr(c.sO1)}, {sr(T0)}, 1')
    a(f's_mul_i32 {sr(c.sO1)}, {sr(c.sO1)}, {P["cx"]*1024}')
    a(f's_lshl_b32 {sr(c.sO2)}, {sr(c.sO1)}, 7')
    if P['fix']:
        bits(a, vLW, L, T, [(62, 15), (1, 10)])
        ssum(a, sr(T0+1), sr(T0+2), [(b, 21), (sr(T0), 6)])
        a(f's_and_b32 {sr(T0+1)}, {sr(T0+1)}, {(3<<21)+(3<<11)}')
        a(f's_and_b32 {sr(T0+2)}, {sr(T0)}, 7')
        a(f's_lshl_b32 {sr(T0+2)}, {sr(T0+2)}, 13')
        a(f's_add_u32 {sr(T0+1)}, {sr(T0+1)}, {sr(T0+2)}')
        Lf = a.lab('b_fx')
        for ty, S in enumerate((c.SA, c.SB, c.SC)):
            a(f's_bfe_u32 {sr(T0+2)}, {sr(T0)}, {(2<<16)+3}')
            a(f's_cmp_lg_u32 {sr(T0+2)}, {ty}')
            a(f's_cbranch_scc1 {Lf}{ty}')
            a(f's_sub_u32 {sr(T0+2)}, 384, {sr(S)}')
            a(f's_and_b32 {sr(T0+2)}, {sr(T0+2)}, 1023')
            a(f's_add_u32 {sr(T0+1)}, {sr(T0+1)}, {sr(T0+2)}')
            a(f'buffer_load_dword v{vLWv}, v{vLW}, {sr(S,4)}, {sr(T0+1)} offen')
            a(f'{Lf}{ty}:')
    def wdma(rho, ty):
        S = (c.SA, c.SB, c.SC)[ty]
        for m in range(8):
            a(f's_xor_b32 {sr(T0+2)}, {sr(c.sO2)}, {(128*rho+16*m)*8192}')
            a(f's_xor_b32 {sr(T0+1)}, {sr(c.sO1)}, {ty*8192+m*1024}')
            a(f's_add_u32 m0, {sr(T0+3)}, {sr(T0+1)}')
            a(f'buffer_load_dwordx4 v{vL2}, {sr(S,4)}, {sr(T0+2)} offen{P["cm"]} lds')
    for ty in range(3): wdma(0, ty)
    for rho in range(2):
        for ty in range(3):
            a(f's_waitcnt vmcnt({16 if rho == 0 else 16 - 8*ty})')
            for t in (2*ty, 2*ty+1):
                for jj in range(2):
                    for q in range(4):
                        off = (t >> 1) * 8192 + (jj * 64 + 32 * (q >> 1) + 4 * (q & 1)) * 64 + (t & 1) * 32
                        a(f'ds_read_b64_tr_b16 {vr(W+(t*4+2*rho+jj)*8+2*q,2)}, v{vMS} offset:{off}')
                a('s_waitcnt lgkmcnt(0)')
            if rho == 0: wdma(1, ty)
    c.mark(1)
    a(f's_load_dwordx2 {sr(c.SA,2)}, s[0:1], {B_MEM0}')
    if getpar: getpar(AF)
    c.mark(2)
    ssum(a, sr(c.sB1), sr(T0+1), [(sr(c.sC), 14), (b, 11)])
    a(f's_add_u32 {sr(c.sB1)}, {sr(c.sB1)}, {sr(c.sPart)}')
    ssum(a, sr(c.sD), sr(T0+1), [(sr(c.sG), 7)])
    a(f's_add_u32 {sr(c.sD)}, {sr(c.sD)}, {sr(c.sB1)}')
    a(f's_and_b32 {sr(T0+2)}, {sr(c.sG)}, 1')
    a(f's_lshr_b32 {sr(T0+3)}, {sr(c.sG)}, 1')
    ssum(a, sr(T0+1), None, [(sr(T0+2), 10)])
    a(f's_add_u32 {sr(c.sB1)}, {sr(c.sB1)}, {sr(T0+1)}')
    ssum(a, sr(c.sB2), sr(T0+1), [(sr(T0+3), 14), (b, 12)], MEMB)
    ssum(a, sr(c.sMS), sr(T0+1), [(sr(T0+3), 14), (sr(c.sC), 10), (b, 8), (sr(T0+2), 7)], MEMB)
    bits(a, vMP, L, T, [(48, 1), (7, 2)])
    bits(a, vPA, L, T, [(32, 5), (31, 2)])
    a(f's_lshr_b32 {sr(T0+2)}, {sr(T0)}, 2')
    a(f's_and_b32 {sr(T0+3)}, {sr(T0)}, 3')
    ssum(a, sr(c.sVP), sr(T0+1), [(sr(T0+2), 13), (sr(T0+3), 9), (b, 7)], QKV)
    ssum(a, sr(c.sQA), sr(T0+1), [(sr(T0), 11), (b, 9)], QKV)
    ssum(a, sr(c.sOP), sr(T0+1), [(sr(c.sG), 22), (sr(c.sC), 12), (b, 10)], OP - 65536)
    ssum(a, sr(c.sXb), sr(T0+1), [(b, 10)], XO + 16384)
    a(f'v_lshlrev_b32 v{vL2}, 1, v{L}')
    a(f's_lshr_b32 {sr(T0+1)}, {b}, 1')
    a(f's_mul_i32 {sr(T0+1)}, {sr(T0+1)}, 1280')
    a(f's_and_b32 {sr(T0+2)}, {b}, 1')
    a(f's_lshl_b32 {sr(T0+2)}, {sr(T0+2)}, 2')
    a(f's_add_u32 {sr(T0+1)}, {sr(T0+1)}, {sr(T0+2)}')
    bits(a, vLW, L, T, [(15, 5), (15, 3), (48, -1)], sr(T0+1))
    ssum(a, sr(T0+1), sr(T0+2), [(b, 10)], KF)
    bits(a, vLWv, L, T, [(1, 2), (2, 4), (12, 1), (16, 4), (32, 2)], sr(T0+1))
    ssum(a, sr(T0+1), sr(T0+2), [(b, 8)], KF)
    bits(a, vLR, L, T, [(63, 2)], sr(T0+1))
    bits(a, vFl, L, T, [(3, 2)], FLAG)
    a(f'v_and_b32 v{T}, 2, v{L}')
    a(f'v_cmp_eq_u32 vcc, 0, v{T}')
    a(f'v_mov_b32 v{T}, 0xeeeeeeee')
    a(f'v_mov_b32 v{T2}, 0x44444444')
    a(f'v_cndmask_b32 v{vIdx}, v{T}, v{T2}, vcc')
    a(f'v_mov_b32 v{M1}, -1')
    a(f'v_mov_b32 v{M1+1}, -1')
    make_sel(a, SEL, L, T, T2, 14, 4)
    bits(a, T2, L, T, [(1, 11), (12, 10), (2, 1), (48, 1)])
    a(f's_lshl_b32 {sr(T0+1)}, {b}, 9')
    a('s_waitcnt lgkmcnt(0)')
    srd(a, c.SA, sr(c.SA), sr(c.SA+1), 16384)
    for j in range(4):
        for p in range(4):
            a(f'buffer_load_dword v{AF+4*j+p}, v{T2}, {sr(c.SA,4)}, {sr(T0+1)} offen offset:{128*j+8*p}')
    ssum(a, sr(c.sV), sr(T0+1), [(sr(c.sG), 15), (b, 13)], VX)
    ssum(a, sr(c.sM0), sr(T0+1), [(b, 13)], VB)
    def vd(i): return f'buffer_load_dwordx4 v{L16}, {WS}, {sr(c.sV)} offen offset:{1024*i} lds'
    def vdA():
        a(f's_mov_b32 m0, {sr(c.sM0)}')
        for i in range(4): a(vd(i))
        a(f's_add_u32 m0, {sr(c.sM0)}, 4096')
        a(f's_add_u32 {sr(c.sV)}, {sr(c.sV)}, 4096')
        for i in range(P['nvc'], 4): a(vd(i))
    def vdB():
        a(f's_add_u32 {sr(c.sV)}, {sr(c.sV)}, {-4096 if P["nov"] else 262144-4096}')
        a(f's_xor_b32 {sr(c.sM0)}, {sr(c.sM0)}, 32768')
    a(f's_mov_b32 {sr(c.sS)}, 0')
    a(f's_mov_b32 {sr(c.sSpin)}, {SPIN}')
    a(f's_mov_b32 {sr(c.sSlot)}, 0')
    a(f's_mov_b32 {sr(c.sArm)}, {2<<18}')
    a(f's_mov_b32 {sr(c.sO2)}, {sr(c.sB2)}')
    a(f's_mov_b32 {sr(c.sO4)}, {sr(c.sVP)}')
    for i in range(24): a(f'v_mov_b32 v{ACC+i}, 0')
    def rdywait():
        Lr = a.lab('b_rw')
        a(f'{Lr}:')
        a(f'buffer_load_dword v{T}, off, {WS}, {sr(c.sRd)} sc1')
        spin(a, c, Lend)
        a('s_waitcnt vmcnt(0)')
        a(f'v_cmp_gt_u32 vcc, 6, v{T}')
        a(f's_cbranch_vccnz {Lr}')
    if P['fused']:
        Lx = a.lab('b_r0')
        ssum(a, sr(c.sRd), None, [(sr(c.sG), 11)], RDY)
        ssum(a, sr(c.sPg), sr(T0+1), [(sr(c.sC), 10), (sr(c.sG), 7)], PROG)
        a(f's_mov_b32 {sr(c.sRv)}, 0')
        a(f's_cmp_lg_u32 {b}, 0')
        a(f's_cbranch_scc1 {Lx}')
        rdywait()
        c.mark(3)
        a(f'{Lx}:')
        a(f's_add_u32 {sr(c.sRd)}, {sr(c.sRd)}, 128')
    vPf = 252; vJk = 253
    def pref():
        if not P['pf']: return
        a(f'buffer_load_dword v{vJk}, v{vPf}, {WS}, {sr(c.sPf)} offen')
        a(f's_add_u32 {sr(c.sPf)}, {sr(c.sPf)}, {1<<18}')
    if P['pf']:
        a(f'v_lshrrev_b32 v{vJk}, 4, v{L16}')
        ssum(a, sr(T0+1), sr(T0+2), [(sr(c.sG), 15), (sr(c.sC), 11), (b, 9)])
        bits(a, vPf, vJk, T, [(3, 7), (12, 22)], sr(T0+1))
        ssum(a, sr(T0+1), sr(T0+2), [(sr(c.sG), 13), (sr(c.sC), 9), (b, 7)], PX)
        a(f'v_mov_b32 v{T}, {sr(T0+1)}')
        a(f'v_cmp_eq_u32 vcc, 12, v{vJk}')
        a(f'v_cndmask_b32 v{vPf}, v{vPf}, v{T}, vcc')
        a(f'v_mov_b32 v{T}, 0x80000000')
        a(f'v_cmp_lt_u32 vcc, 12, v{vJk}')
        a(f'v_cndmask_b32 v{vPf}, v{vPf}, v{T}, vcc')
        a(f's_mov_b32 {sr(c.sPf)}, {1<<18}')
    a('s_barrier')
    pref(); pref()
    vdA()
    for i in range(P['nvc']): a(vd(i))
    vdB(); vdA()
    a('s_waitcnt vmcnt(0)')
    a('s_barrier')
    c.mark(4)
    a(f's_buffer_load_dword {sr(c.sRv)}, {WS}, {sr(c.sRd)} glc')
    def xred():
        a(f'v_add_u32 v{T}, {sr(c.sXb)}, v{L16}')
        a(f's_lshr_b32 {sr(T0)}, {sr(c.sXb)}, 3')
        a(f's_and_b32 {sr(T0)}, {sr(T0)}, 2048')
        a(f'v_add_u32 v{PK+1}, {sr(T0)}, v{L8}')
        a(f's_xor_b32 {sr(c.sXb)}, {sr(c.sXb)}, 16384')
        for j in range(4):
            a(f'ds_read_b128 {vr(AF+4*j,4)}, v{T} offset:{4096*j}')
            a(f'ds_read_b64 {vr(ACC+8+2*j,2)}, v{PK+1} offset:{XR+512*j}')
        for j in range(4):
            a(f's_waitcnt lgkmcnt({6-2*j})')
            for d in range(4):
                a(f'v_lshlrev_b32 v{ACC+16+d}, 16, v{AF+4*j+d}')
                a(f'v_and_b32 v{AF+4*j+d}, 0xffff0000, v{AF+4*j+d}')
            op = 'v_mul_f32' if j == 0 else 'v_fmac_f32'
            for d in range(4):
                a(f'{op} v{ACC+2*d}, v{ACC+16+d}, v{ACC+8+2*j+(d>>1)}')
                a(f'{op} v{ACC+2*d+1}, v{AF+4*j+d}, v{ACC+8+2*j+(d>>1)}')
        for d in range(4): a(f'v_cvt_pk_bf16_f32 v{AF+d}, v{ACC+2*d}, v{ACC+2*d+1}')
    ent = [a.lab('b_ent0'), a.lab('b_ent1')]; Lfin = a.lab('b_fin')
    a(f's_cmp_eq_u32 {sr(c.sMode)}, 0')
    a(f's_cbranch_scc1 {ent[0]}')
    a(f's_branch {ent[1]}')
    for mode in range(2):
        sm = ' sc1' if mode else ''
        Lt = a.lab('b_top'); LpA = a.lab('b_pa'); Lf = a.lab('b_f'); Lpost = a.lab('b_post'); Lslow = a.lab('b_slow'); Lno = a.lab('b_no')
        LI = [a.lab('b_i') for _ in range(4)]
        D = AF + 8
        def ldM(j): return f'buffer_load_dwordx4 {vr(AF+4*j,4)}, v{L16}, {WS}, {sr(c.sO2)} offen offset:{1024*j} sc1'
        def arms(k=3):
            if k & 1: a(f'buffer_store_dword v{M1}, v{vPA}, {WS}, {sr(T0+2)} offen sc1')
            if k & 2:
                a(f'buffer_store_dword v{M1}, v{vMP}, {WS}, {sr(T0)} offen{sm}')
                a(f'buffer_store_dwordx2 {vr(M1,2)}, v{L8}, {WS}, {sr(T0+1)} offen{sm}')
        def opst():
            Lno = a.lab('b_no')
            a(f's_cmp_eq_u32 {sr(c.sS)}, 1')
            a(f's_cbranch_scc1 {Lno}')
            if not P['noop']: a(f'buffer_store_dwordx4 {vr(AF,4)}, v{L16}, {WS}, {sr(c.sOP)} offen{P["opm"]}')
            a(f'{Lno}:')
            a(f's_add_u32 {sr(c.sOP)}, {sr(c.sOP)}, 65536')
        Lpg = a.lab('b_pg'); Lpg2 = a.lab('b_pg2')
        a(f'{Lt}:')
        if tr: tr(0)
        delay(a, P['d0'])
        a(f's_cbranch_vccnz {Lpg}')
        a(f'{Lpg2}:')
        if P['larm'] == 0: arms(2)
        if P['vfirst']: vdA()
        if P['larm'] == 1: arms(2)
        if not P['fo'] & 4: arms(1)
        if not P['fo'] & 2: opst()
        if not P['fo'] & 1: pref()
        if not P['vfirst']: vdA()
        if P['larm'] == 2: arms(2)
        delay(a, P['d1'])
        if P['probe'] is not None: a(f's_waitcnt vmcnt({P["probe"]})'); tr(6)
        if P['bprio']: a(f's_setprio {P["bprio"]}')
        np1 = P['np1']; PB = [AF, AF + 4, AF + 12][:np1]
        def ld1(k): a(f'buffer_load_dwordx4 {vr(PB[k],4)}, v{L16}, {WS}, {sr(c.sO1)} offen sc1')
        for k in range(np1 - 1):
            ld1(k); delay(a, P['ds1'])
        a(f'{LpA}:')
        for k in range(np1):
            ld1((k - 1) % np1)
            if k == 0: spin(a, c, Lend)
            a(f's_waitcnt vmcnt({np1-1})')
            a(f'v_mfma_f32_16x16x32_bf16 {vr(D,4)}, {vr(SEL,4)}, {vr(PB[k],4)}, 0')
            for r in range(2): a(f'v_add_f32_dpp v{D+r}, v{D+r}, v{D+r} row_ror:8 row_mask:0xf bank_mask:0xf')
            a(f'v_cmp_u_f32 vcc, v{D}, v{D}')
            a(f'v_cvt_pk_bf16_f32 v{PK}, v{D}, v{D+1}')
            if k < np1 - 1: a(f's_cbranch_vccz {LpA}x')
            else: a(f's_cbranch_vccnz {LpA}')
        a(f'{LpA}x:')
        a(f'buffer_store_dword v{PK}, v{vMP}, {WS}, {sr(c.sO3)} offen{sm}')
        if tr: tr(1)
        delay(a, P['dm'])
        def sm_(t, j): return f'v_smfmac_f32_16x16x64_bf16 {vr(ACC+4*t,4)}, {vr(AF+4*j,4)}, {vr(W+(t*4+j)*8,8)}, v{vIdx}'
        def post(t):
            X = ACC + 4 * t
            o = [f'v_add_f32 v{X}, v{X}, v{X+2}', f'v_add_f32 v{X+1}, v{X+1}, v{X+3}']
            if t < 4: return o + [f'v_cvt_pk_bf16_f32 v{X+2}, v{X}, v{X+1}', f'ds_write_b32 v{vLW}, v{X+2} offset:{(t>>1)*KI+(t&1)*640}']
            return o + [f'ds_write2_b32 v{vLWv}, v{X}, v{X+1} offset0:{128*(t-4)} offset1:{128*(t-4)+16}']
        uid = a.lab('m')
        NL = lambda S, j: f'{uid}_n{S}_{j}'
        FL_ = lambda S, j: f'{uid}_f{S}_{j}'
        def nxt(S, j):
            for d in range(1, 5):
                if S >> ((j + d) & 3) & 1: return (j + d) & 3
        def chk(S, k):
            a(f's_waitcnt vmcnt({bin(S).count("1")-1})')
            if tr and P['bst'] == 1: tr(6)
            a(f'v_cmp_u_f32 vcc, v{AF+4*k}, v{AF+4*k+3}')
        emitted = set()
        def node(S, j):
            while True:
                if (S, j) in emitted:
                    a(f's_branch {NL(S,j)}'); return
                emitted.add((S, j))
                a(f'{NL(S,j)}:')
                R_ = S & ~(1 << j)
                if R_ == 0:
                    nv = 0
                    for t in range(6):
                        a(sm_(t, j))
                        if t < P['vl'] and nv < P['nvc']: a(vd(nv)); nv += 1
                        if t >= 2:
                            for x in post(t - 2): a(x)
                    if tr: tr(2)
                    for t in (4, 5):
                        for x in post(t): a(x)
                    while nv < P['nvc']: a(vd(nv)); nv += 1
                    if j != 3: a(f's_branch {Lpost}')
                    return
                for t in range(5): a(sm_(t, j))
                k = nxt(R_, j)
                chk(R_, k)
                a(sm_(5, j))
                a(f's_cbranch_vccnz {FL_(R_,k)}')
                S, j = R_, k
        def slow_nodes():
            for S in range(15, 0, -1):
                mem = [j for j in range(4) if S >> j & 1]
                for j in mem:
                    a(f'{FL_(S,j)}:')
                    a(ldM(j))
                    if j == mem[-1]: spin(a, c, Lend)
                    k = nxt(S, j)
                    chk(S, k)
                    if j != mem[-1]:
                        a(f's_cbranch_vccz {NL(S,k)}')
                    else:
                        a(f's_cbranch_vccnz {FL_(S,k)}')
                        node(S, k)
                for j in mem:
                    if (S, j) not in emitted: node(S, j)
        for j in range(4): a(ldM(j))
        chk(15, 0)
        a(f's_cbranch_vccnz {FL_(15,0)}')
        a(f'{ent[mode]}:')
        node(15, 0)
        a(f'{Lpost}:')
        a('s_waitcnt lgkmcnt(0)')
        a('s_barrier')
        if tr: tr(3)
        a(f'ds_read2st64_b32 {vr(AF,2)}, v{vLR} offset0:0 offset1:4')
        a(f'ds_read2st64_b32 {vr(AF+2,2)}, v{vLR} offset0:8 offset1:12')
        a(f's_add_u32 {sr(c.sS)}, {sr(c.sS)}, 1')
        a('s_waitcnt lgkmcnt(1)')
        a(f'v_add_f32 v{AF}, v{AF}, v{AF+1}')
        a('s_waitcnt lgkmcnt(0)')
        a(f'v_add_f32 v{AF+2}, v{AF+2}, v{AF+3}')
        a(f'v_add_f32 v{AF}, v{AF}, v{AF+2}')
        a(f'v_cvt_pk_bf16_f32 v{PK}, v{AF}, v{AF}')
        a(f'buffer_store_short v{PK}, v{vL2}, {WS}, {sr(c.sO4)} offen{sm}')
        if P['bprio']: a(f's_setprio 0')
        if tr: tr(5); tr.flush(ACC)
        delay(a, P['dx'])
        if not P['nox']: xred()
        for i in range(24): a(f'v_mov_b32 v{ACC+i}, 0')
        a(f's_add_u32 {sr(T0)}, {sr(c.sMS)}, {sr(c.sArm)}')
        a(f's_add_u32 {sr(T0+1)}, {sr(c.sQA)}, {sr(c.sArm)}')
        a(f's_add_u32 {sr(T0+2)}, {sr(c.sD)}, {sr(c.sArm)}')
        a(f's_add_u32 {sr(c.sO1)}, {sr(c.sB1)}, {sr(c.sSlot)}')
        a(f's_add_u32 {sr(c.sSlot)}, {sr(c.sSlot)}, {1<<18}')
        a(f's_and_b32 {sr(c.sSlot)}, {sr(c.sSlot)}, {3<<18}')
        a(f's_xor_b32 {sr(c.sArm)}, {sr(c.sSlot)}, {2<<18}')
        a(f's_add_u32 {sr(c.sO2)}, {sr(c.sB2)}, {sr(c.sSlot)}')
        a(f's_add_u32 {sr(c.sO3)}, {sr(c.sMS)}, {sr(c.sSlot)}')
        a(f's_add_u32 {sr(c.sO4)}, {sr(c.sVP)}, {sr(c.sSlot)}')
        vdB()
        a('s_waitcnt vmcnt(0)')
        if P['fo']:
            a(f'{Lf}:')
            a(f'ds_read_b32 v{T}, v{vFl}')
            spin(a, c, Lend)
            delay(a, P['fsl'])
            a('s_waitcnt lgkmcnt(0)')
            a(f'v_cmp_gt_u32 vcc, {sr(c.sS)}, v{T}')
            a(f's_cbranch_vccnz {Lf}')
        if tr: tr(4)
        if P['larm'] == 3: arms(2)
        if P['fo'] & 1: pref()
        if P['fo'] & 2: opst()
        if P['fo'] & 4: arms(1)
        Lck = a.lab('b_ck'); Lb2 = a.lab('b_b2')
        a(f's_mov_b64 vcc, 0')
        a(f's_cmp_eq_u32 {b}, 0')
        a(f's_cbranch_scc1 {Lck}')
        a(f'{Lb2}:')
        a(f's_cmp_eq_u32 {sr(c.sS)}, {NSTEP}')
        a('s_barrier')
        a(f's_cbranch_scc0 {Lt}')
        if not P['fo'] & 2: opst()
        a(f's_branch {Lfin}')
        Lc2 = a.lab('b_c2'); Lc3 = a.lab('b_c3')
        a(f'{Lck}:')
        a(f's_and_b32 {sr(T0+3)}, {sr(c.sS)}, 7')
        a(f's_cmp_gt_u32 {sr(c.sS)}, {NSTEP-7}')
        a(f's_cselect_b32 {sr(T0+3)}, 2, {sr(T0+3)}')
        a(f's_cmp_eq_u32 {sr(T0+3)}, 2')
        a(f's_cselect_b32 vcc_lo, 1, 0')
        a(f's_and_b32 {sr(T0+3)}, {sr(T0+3)}, 3')
        a(f's_cmp_eq_u32 {sr(T0+3)}, 1')
        a(f's_cbranch_scc1 {Lc2}')
        a(f's_cmp_eq_u32 {sr(T0+3)}, 0')
        a(f's_cbranch_scc0 {Lb2}')
        a(f's_buffer_load_dword {sr(c.sRv)}, {WS}, {sr(c.sRd)} glc')
        a(f's_branch {Lb2}')
        a(f'{Lc2}:')
        a(f's_cmp_ge_u32 {sr(c.sRv)}, 6')
        a(f's_cbranch_scc1 {Lc3}')
        rdywait()
        a(f'{Lc3}:')
        a(f's_add_u32 {sr(c.sRd)}, {sr(c.sRd)}, 128')
        a(f's_branch {Lb2}')
        a(f'{Lpg}:')
        a(f's_sub_u32 {sr(T0+3)}, {sr(c.sS)}, 2')
        a(f'v_mov_b32 v{T}, {sr(T0+3)}')
        a(f's_mov_b64 exec, 1')
        if P['prog']: a(f'buffer_store_dword v{T}, off, {WS}, {sr(c.sPg)} sc1')
        a(f's_mov_b64 exec, -1')
        a(f's_branch {Lpg2}')
        slow_nodes()
    a(f'{Lfin}:')
    a('s_barrier')
    xred()
    a(f'buffer_store_dwordx4 {vr(AF,4)}, v{L16}, {WS}, {sr(c.sOP)} offen sc1')
    a('s_waitcnt vmcnt(0)')
    if P['fused']:
        a('s_barrier')
        a(f's_cmp_lg_u32 {b}, 0')
        a(f's_cbranch_scc1 {Ldone}')
        a(f'v_mov_b32 v{T}, {NSTEP}')
        a(f's_mov_b64 exec, 1')
        a(f'buffer_store_dword v{T}, off, {WS}, {sr(c.sPg)} sc1')
        a(f's_mov_b64 exec, -1')
    a(f's_branch {Ldone or Lend}')

def cwave(a, c, Lend, tr=None, getpar=None, Ldone=None):
    T0 = c.sT; j = sr(c.sD)
    v = Regs(1, 256)
    L8 = 0
    L = v.get(); T = v.get(); T2 = v.get(); L16 = v.get()
    vK = v.get(); vVR = v.get(); vQR = v.get(); vSS = v.get(); vCW = v.get(); vCR = v.get(); vPS = v.get(); vIdx = v.get(); vFl = v.get(); vOne = v.get()
    vXW = v.get(); vXR = v.get()
    vK2 = 240; vF4 = 241; FL4 = 244
    R = v.get(2, 2); SELM = v.get(2, 2); PX_ = v.get(10, 2)
    SELA = v.get(4, 4); SELB = v.get(4, 4); PP = v.get(4, 4); KQ = v.get(8, 4)
    XL = v.get(8, 4); E = v.get(8, 4)
    VXr = v.get(32, 4); UM = v.get(16, 4); OUT = v.get(20, 4); U = v.get(40, 4); WO = v.get(64, 4)
    assert OUT == UM + 16
    UD = UM; QB = VXr; KA_ = VXr + 8; DS = VXr + 16; VMr = VXr + 24
    SL = VXr; SML = VXr + 8; X = VXr + 10
    E4 = E + 4
    sMask = c.sMask; sPX = c.sV; sSCL = c.sM0; sKQ = c.sAr
    WS = sr(c.SWS, 4)
    a(f's_load_dwordx2 {sr(c.SA,2)}, s[0:1], {B_WO}')
    a(f's_sub_u32 {j}, {sr(c.sW)}, 4')
    a(f'v_and_b32 v{L}, 63, v0')
    a(f'v_lshlrev_b32 v{L16}, 4, v{L}')
    a(f'v_lshlrev_b32 v{L8}, 3, v{L}')
    a(f's_lshl_b32 {sr(T0)}, {sr(c.sG)}, 2')
    a(f's_add_u32 {sr(T0)}, {sr(T0)}, {j}')
    ssum(a, sr(T0+1), sr(T0+2), [(sr(T0), 18), (sr(c.sC), 7)])
    bits(a, vPS, L, T, [(56, 8), (7, 4)], sr(T0+1))
    ssum(a, sr(T0+3), None, [(j, 14)], 98304)
    a('s_waitcnt lgkmcnt(0)')
    srd(a, c.SA, sr(c.SA), sr(c.SA+1), 4096*2048)
    for m in range(16):
        a(f's_mov_b32 {sr(T0+2)}, {m*8*2048}')
        a(f's_add_u32 m0, {sr(T0+3)}, {m*1024}')
        a(f'buffer_load_dwordx4 v{vPS}, {sr(c.SA,4)}, {sr(T0+2)} offen{P["om"]} lds')
    bits(a, vCR, L, T, [(12, 5), (48, 6), (3, 3)], sr(T0+3))
    ssum(a, sr(c.sB1), None, [(sr(T0), 13)], QKV)
    ssum(a, sr(sPX), None, [(sr(T0), 11)], PX)
    a(f's_mov_b32 {sr(sSCL)}, {SCL:#x}')
    a(f's_lshl_b32 {sr(T0)}, {sr(c.sG)}, 4')
    a(f's_add_u32 {sr(T0)}, {sr(T0)}, {sr(c.sC)}')
    bits(a, vK, L, T, [(1, 4), (2, 5), (4, 5), (8, 7), (48, 4)])
    ssum(a, sr(T0+1), None, [(j, 5)], KX)
    a(f's_cmp_lt_u32 {j}, 2')
    a(f's_cselect_b32 {sr(T0+1)}, {sr(T0+1)}, {QX}')
    a(f's_cselect_b64 vcc, -1, 0')
    a(f's_lshl_b32 {sr(T0+2)}, {sr(T0)}, 11')
    a(f's_add_u32 {sr(sKQ)}, {sr(T0+1)}, {sr(T0+2)}')
    a(f'v_cndmask_b32 v{vK}, v{L16}, v{vK}, vcc')
    bits(a, vSS, L, T, [(13, 4), (16, -1), (32, 5)])
    bits(a, T2, L, T, [(15, 4), (16, 6), (32, -2)])
    a(f'v_cndmask_b32 v{vSS}, v{T2}, v{vSS}, vcc')
    bits(a, T2, L, T, [(15, 3), (48, -3)])
    a(f's_and_b32 {sr(T0+2)}, {sr(T0)}, 3')
    ssum(a, sr(T0+1), None, [(j, 5)], 2048)
    a(f's_cmp_lt_u32 {j}, 2')
    a(f's_cselect_b32 {sr(T0+1)}, {sr(T0+1)}, 4096')
    a(f's_lshl_b32 {sr(T0+3)}, {sr(T0+2)}, 8')
    a(f's_add_u32 {sr(T0+1)}, {sr(T0+1)}, {sr(T0+3)}')
    ssum(a, sr(T0+3), None, [(sr(T0+2), 7)], 6144)
    a(f's_cmp_eq_u32 {j}, 2')
    a(f's_cselect_b32 {sr(T0+1)}, {sr(T0+3)}, {sr(T0+1)}')
    a(f's_cselect_b64 vcc, -1, 0')
    a(f's_lshr_b32 {sr(T0+2)}, {sr(T0)}, 2')
    ssum(a, sr(T0+2), None, [(sr(T0+2), 13)], QKV)
    a(f's_add_u32 {sr(T0+1)}, {sr(T0+1)}, {sr(T0+2)}')
    a(f'v_cndmask_b32 v{vSS}, v{vSS}, v{T2}, vcc')
    a(f'v_add_u32 v{vSS}, {sr(T0+1)}, v{vSS}')
    bits(a, vQR, L, T, [(12, 3), (12, 1), (48, 4), (48, 2), (3, 3)])
    ssum(a, sr(T0+1), None, [(j, 13)], VB)
    a(f'v_add_u32 v{vVR}, {sr(T0+1)}, v{L16}')
    ssum(a, sr(T0+1), None, [(j, 12)], XO)
    a(f'v_add_u32 v{vXW}, {sr(T0+1)}, v{L16}')
    ssum(a, sr(T0+1), None, [(j, 9)], XR)
    a(f'v_add_u32 v{vXR}, {sr(T0+1)}, v{L8}')
    ssum(a, sr(T0+1), None, [(j, 11)], CO)
    bits(a, vCW, L, T, PERM4, sr(T0+1))
    ssum(a, sr(T0+1), None, [(j, 2)], FLAG)
    a(f'v_mov_b32 v{vFl}, {sr(T0+1)}')
    a(f'v_mov_b32 v{vOne}, 0')
    a(f'v_and_b32 v{T}, 2, v{L}')
    a(f'v_cmp_ne_u32 {sr(sMask,2)}, 0, v{T}')
    a(f'v_mov_b32 v{T}, 0x4444')
    a(f'v_mov_b32 v{T2}, 0xeeee')
    a(f'v_cndmask_b32 v{vIdx}, v{T}, v{T2}, {sr(sMask,2)}')
    a(f'v_and_b32 v{PP}, 1, v{L}')
    a(f'v_cmp_ne_u32 vcc, 0, v{PP}')
    a(f'v_cndmask_b32 v{T}, v{T}, v{T2}, vcc')
    a(f'v_lshl_or_b32 v{vIdx}, v{T}, 16, v{vIdx}')
    make_sel(a, SELA, L, T, T2)
    a(f'v_and_b32 v{T}, 8, v{L}')
    a(f'v_cmp_ne_u32 vcc, 0, v{T}')
    for p in range(4):
        a(f'v_cndmask_b32 v{SELB+p}, 0, v{SELA+p}, vcc')
        a(f'v_sub_u32 v{SELA+p}, v{SELA+p}, v{SELB+p}')
    bits(a, T2, L, T, [(4, 2)])
    a(f'v_mov_b32 v{T}, 0x3f80')
    a(f'v_lshlrev_b32 v{T2}, v{T2}, v{T}')
    a(f'v_cndmask_b32 v{SELM+1}, 0, v{T2}, vcc')
    a(f'v_sub_u32 v{SELM}, v{T2}, v{SELM+1}')
    for t in range(5):
        a(f'v_mov_b32 v{U+8*t+4}, 0'); a(f'v_mov_b32 v{U+8*t+5}, 0')
    for r in (2, 3, 6, 7): a(f'v_mov_b32 v{U+32+r}, 0x3f803f80')
    for r in (0, 1): a(f'v_mov_b32 v{U+32+r}, 0x3f80')
    a('s_waitcnt vmcnt(0)')
    for t in range(4):
        for ch in range(2):
            for q in range(4):
                off = (ch * 64 + 32 * (q >> 1) + 4 * (q & 1)) * 128 + t * 32
                a(f'ds_read_b64_tr_b16 {vr(WO+(t*2+ch)*8+2*q,2)}, v{vCR} offset:{off}')
        a('s_waitcnt lgkmcnt(0)')
    if getpar: getpar(VXr)
    ssum(a, sr(T0+1), None, [(j, 9)], CO)
    a(f'v_add_u32 v{vCR}, {sr(T0+1)}, v{L8}')
    ssum(a, sr(T0+1), sr(T0+2), [(j, 11), (sr(c.sC), 14), (sr(c.sG), 7)])
    a(f's_add_u32 {sr(T0+1)}, {sr(T0+1)}, {sr(c.sPart)}')
    bits(a, vPS, L, T, [(2, 9), (32, 1), (12, 2), (1, 3), (16, -2)], sr(T0+1))
    a(f's_mov_b32 {sr(c.sS)}, 0')
    a(f's_mov_b32 {sr(c.sSpin)}, {SPIN}')
    a(f's_mov_b32 {sr(c.sSlot)}, 0')
    a('s_barrier')
    a(f'ds_write_b32 v{vFl}, v{vOne}')
    a(f'ds_write_b32 v{vFl}, v{vOne} offset:16')
    a('s_waitcnt lgkmcnt(0)')
    a('s_barrier')

    a(f'v_mov_b32 v{T}, 0x80000000')
    a(f's_cmp_eq_u32 {j}, 3')
    a(f's_cselect_b64 vcc, -1, 0')
    a(f'v_cndmask_b32 v{vK2}, v{T}, v{vK}, vcc')
    a(f's_cmp_eq_u32 {j}, 2')
    a(f's_cselect_b64 vcc, -1, 0')
    a(f'v_cndmask_b32 v{vK}, v{vK}, v{T}, vcc')
    a(f'v_mov_b32 v{vF4}, {FLAG+16}')
    def ldKQ():
        a(f'buffer_load_dwordx4 {vr(KQ,4)}, v{vK}, {WS}, {sr(sKQ)} offen')
        a(f'buffer_load_dwordx4 {vr(KQ+4,4)}, v{vK2}, {WS}, {sr(sKQ)} offen offset:1024')
        a(f's_add_u32 {sr(sKQ)}, {sr(sKQ)}, {0 if P["nokq"] else 1<<18}')
    def ldPX():
        return [f'buffer_load_dwordx4 {vr(PX_,4)}, v{L16}, {WS}, {sr(sPX)} offen',
                f'buffer_load_dwordx4 {vr(PX_+6,4)}, v{L16}, {WS}, {sr(sPX)} offen offset:1024',
                f's_add_u32 {sr(sPX)}, {sr(sPX)}, {0 if P["nokq"] else 1<<18}']
    def ldXL():
        for k in range(2): a(f'buffer_load_dwordx4 {vr(XL+4*k,4)}, v{L16}, {WS}, {sr(c.sO2)} offen offset:{1024*k} sc1')
    def rdV():
        for ks in range(4):
            for kt in range(2):
                a(f'ds_read_b128 {vr(VXr+16*kt+4*ks,4)}, v{vVR} offset:{2048*ks+1024*kt}')
    def xpv_head(Lretry, Lbad, Lgood):
        a(f'{Lretry}:')
        a(f'v_mfma_f32_16x16x32_bf16 {vr(E,4)}, {vr(SELA,4)}, {vr(XL,4)}, 0')
        a(f'v_mfma_f32_16x16x32_bf16 {vr(E,4)}, {vr(SELB,4)}, {vr(XL+4,4)}, {vr(E,4)}')
        for r in range(4): a(f'v_fma_f32 v{E+r}, v{E+r}, {sr(sSCL)}, -v{PX_+(r>>1)}')
        a(f'v_max3_f32 v{T}, v{E}, v{E+1}, v{E+2}')
        a(f'v_max_f32 v{T}, v{T}, v{E+3}')
        a(f'v_cmp_nge_f32 vcc, 0x42800000, v{T}')
        a(f's_cbranch_vccnz {Lbad}')
        a(f'{Lgood}:')
        for r in range(4): a(f'v_exp_f32 v{E+r}, v{E+r}')
        for r in range(4): a(f'v_cvt_pk_bf16_f32 v{PX_+(r&1)+4*(r>>1)}, v{E+r}, v{E+r}')
    def xpv_bad(Lretry, Lbad, Lgood):
        Lbig = a.lab('c_big')
        a(f'{Lbad}:')
        a(f'v_cmp_u_f32 vcc, v{T}, v{T}')
        a(f's_cbranch_vccz {Lbig}')
        ldXL()
        spin(a, c, Lend)
        a('s_waitcnt vmcnt(0)')
        a(f's_branch {Lretry}')
        a(f'{Lbig}:')
        for tq in range(2):
            a(f'v_max3_f32 v{T}, v{E+2*tq}, v{E+2*tq+1}, 0')
            for op in ('v_permlane16_swap_b32', 'v_permlane32_swap_b32'):
                a(f'v_mov_b32 v{T2}, v{T}')
                a(f'{op} v{T}, v{T2}')
                a(f'v_max_f32 v{T}, v{T}, v{T2}')
            a(f'v_sub_f32 v{E+2*tq}, v{E+2*tq}, v{T}')
            a(f'v_sub_f32 v{E+2*tq+1}, v{E+2*tq+1}, v{T}')
            a(f'v_exp_f32 v{T}, -v{T}')
            for r in ((2, 3) if tq == 0 else (6, 7, 8, 9)):
                a(f'v_lshlrev_b32 v{T2}, 16, v{PX_+r}')
                a(f'v_and_b32 v{PX_+r}, 0xffff0000, v{PX_+r}')
                a(f'v_mul_f32 v{T2}, v{T2}, v{T}')
                a(f'v_mul_f32 v{PX_+r}, v{PX_+r}, v{T}')
                a(f'v_cvt_pk_bf16_f32 v{PX_+r}, v{T2}, v{PX_+r}')
        a(f's_branch {Lgood}')
    def xpv_mfma(t):
        D0 = UD + 8 * t if t < 4 else OUT + 16
        D1 = UD + 8 * t + 4 if t < 4 else E4
        return [f'v_mfma_f32_16x16x32_bf16 {vr(D1,4)}, {vr(U+8*t,4)}, {vr(PX_+4,4)}, 0',
                f'v_mfma_f32_16x16x32_bf16 {vr(D0,4)}, {vr(U+8*t,4)}, {vr(PX_,4)}, 0',
                f'v_mfma_f32_16x16x32_bf16 {vr(D1,4)}, {vr(U+8*t+4,4)}, {vr(PX_+6,4)}, {vr(D1,4)}']
    def xpv_post(t):
        if t == 4:
            return [f'v_rcp_f32 v{R}, v{OUT+16}', f'v_rcp_f32 v{R+1}, v{E4}', f'ds_write_b64 v{vXR}, {vr(R,2)}']
        Y = XL + 4 * (t & 1); D = UD + 8 * t
        return [f'v_cvt_pk_bf16_f32 v{Y+i}, v{D+2*i}, v{D+2*i+1}' for i in range(4)] + [f'ds_write_b128 v{vXW}, {vr(Y,4)} offset:{1024*t}']
    def xpv_body():
        cv = []
        for t in (4, 0, 1, 2, 3):
            for i, m in enumerate(xpv_mfma(t)):
                a(m)
                if i >= 1:
                    for _ in range(3):
                        if cv: a(cv.pop(0))
            cv += xpv_post(t)
        return cv
    def ux(cv):
        a(f's_add_u32 {sr(c.sO1)}, {sr(c.sB1)}, {sr(c.sSlot)}')
        a(f's_add_u32 {sr(c.sO2)}, {sr(c.sO1)}, 4096')
        a(f's_mov_b32 {sr(c.sFb)}, 0')
        a(f'v_xor_b32 v{vVR}, 32768, v{vVR}')
        a(f'v_add_u32 v{vOne}, 1, v{vOne}')
        for t in range(4):
            for ks in range(4):
                for kt in range(2):
                    D = vr(UD + (t * 2 + kt) * 4, 4)
                    a(f'v_mfma_f32_16x16x32_bf16 {D}, {vr(VXr+16*kt+4*ks,4)}, {vr(WO+(t*2+(ks>>1))*8+(ks&1)*4,4)}, {D if ks else 0}')
                    if ks >= 1 or (t == 0 and kt == 1):
                        for _ in range(2):
                            if cv: a(cv.pop(0))
            for kt in range(2):
                D = UD + (t * 2 + kt) * 4
                cv += [f'v_cvt_pk_bf16_f32 v{U+8*t+2+4*kt}, v{D}, v{D+1}', f'v_cvt_pk_bf16_f32 v{U+8*t+3+4*kt}, v{D+2}, v{D+3}']
            cv += [f'v_mov_b32 v{UD+8*t+i}, 0' for i in range(8)]
        for i in range(32, 36): a(f'v_mov_b32 v{UM+i}, 0')
        for x in cv: a(x)

    ents = [a.lab('c_ent0'), a.lab('c_ent1')]; Lfin = a.lab('c_fin')
    ldKQ(); rdV()
    a('s_waitcnt vmcnt(0) lgkmcnt(0)')
    ux([])
    a(f's_cmp_eq_u32 {sr(c.sMode)}, 0')
    a(f's_cbranch_scc1 {ents[0]}')
    a(f's_branch {ents[1]}')
    for mode in range(2):
        sm = ' sc1' if mode else ''
        Lt = a.lab('c_top'); Lp = a.lab('c_p'); Lpz = a.lab('c_pz'); Lsm = a.lab('c_sm'); Lfb = a.lab('c_fb'); Lz = a.lab('c_z')
        L2 = a.lab('c_r2'); L3 = a.lab('c_r3'); Lj = a.lab('c_j')
        xl = [a.lab('c_xr'), a.lab('c_xb'), a.lab('c_xg')]
        a(f'{Lt}:')
        a('s_waitcnt vmcnt(1)')
        if tr: tr.flush(VXr)
        if tr and P['cst'] == 1: tr(6)
        if P['kqtop']: ldKQ()
        if tr and P['cst'] == 2: tr(6)
        rdV()
        if P['nox']:
            cv = []
        else:
            xpv_head(*xl)
            cv = xpv_body()
        a(f's_waitcnt lgkmcnt({0 if P["nox"] else 4})')
        if tr and P['cst'] == 3: tr(6)
        ux(cv)
        a(f'v_xor_b32 v{vXW}, 16384, v{vXW}')
        a(f'v_xor_b32 v{vXR}, 2048, v{vXR}')
        if tr and P['cst'] == 0: tr(6)
        a(f'{ents[mode]}:')
        a(f's_waitcnt vmcnt(0) lgkmcnt(0)')
        if P['cprio']: a(f's_setprio {P["cprio"]}')
        if tr: tr(0)
        a(f's_cmp_ge_u32 {j}, 2')
        a(f's_cbranch_scc1 {L2}')
        def rdq(R_, base):
            for u in range(2):
                for wh in range(2):
                    a(f'ds_read_b64_tr_b16 {vr(R_+4*u+2*wh,2)}, v{vQR} offset:{base+1280*u+160*wh}')
        a('s_barrier')
        rdq(QB, QI)
        a('s_waitcnt lgkmcnt(2)')
        a(f'v_mfma_f32_16x16x32_bf16 {vr(DS,4)}, {vr(KQ,4)}, {vr(QB,4)}, 0')
        a('s_waitcnt lgkmcnt(0)')
        a(f'v_mfma_f32_16x16x32_bf16 {vr(DS,4)}, {vr(KQ,4)}, {vr(QB+4,4)}, {vr(DS,4)}')
        for r in range(4): a(f'v_add_f32_dpp v{DS+r}, v{DS+r}, v{DS+r} quad_perm:[2,3,0,1] row_mask:0xf bank_mask:0xf')
        a(f'v_cvt_pk_bf16_f32 v{DS}, v{DS}, v{DS+1}')
        a(f'v_cvt_pk_bf16_f32 v{DS+1}, v{DS+2}, v{DS+3}')
        a(f'buffer_store_dwordx2 {vr(DS,2)}, v{vSS}, {WS}, {sr(c.sSlot)} offen{sm}')
        a(f's_branch {Lj}')
        a(f'{L2}:')
        a(f's_cmp_eq_u32 {j}, 3')
        a(f's_cbranch_scc1 {L3}')
        a('s_barrier')
        for u in range(2):
            for R_, base in ((QB, QI), (KA_, KI)):
                for wh in range(2):
                    a(f'ds_read_b64_tr_b16 {vr(R_+4*u+2*wh,2)}, v{vQR} offset:{base+1280*u+160*wh}')
        a('s_waitcnt lgkmcnt(4)')
        a(f'v_mfma_f32_16x16x32_bf16 {vr(DS,4)}, {vr(KA_,4)}, {vr(QB,4)}, 0')
        a('s_waitcnt lgkmcnt(2)')
        a(f'v_mfma_f32_16x16x32_bf16 {vr(DS,4)}, {vr(KA_,4)}, {vr(QB+4,4)}, {vr(DS,4)}')
        a('s_waitcnt lgkmcnt(0)')
        a(f'v_mfma_f32_16x16x32_bf16 {vr(DS,4)}, {vr(KA_+4,4)}, {vr(QB,4)}, {vr(DS,4)}')
        a(f'v_mfma_f32_16x16x32_bf16 {vr(DS,4)}, {vr(KA_+4,4)}, {vr(QB+4,4)}, {vr(DS,4)}')
        a(f'v_add_f32 v{DS}, v{DS}, v{DS+2}')
        a(f'v_add_f32 v{DS+1}, v{DS+1}, v{DS+3}')
        a(f'v_cndmask_b32 v{DS+2}, v{DS+1}, v{DS}, {sr(sMask,2)}')
        a(f'v_cndmask_b32 v{DS+3}, v{DS}, v{DS+1}, {sr(sMask,2)}')
        a(f'v_add_f32_dpp v{DS}, v{DS+2}, v{DS+3} quad_perm:[2,3,0,1] row_mask:0xf bank_mask:0xf')
        a(f'v_mul_f32 v{DS}, {sr(sSCL)}, v{DS}')
        a(f'v_cvt_pk_bf16_f32 v{DS}, v{DS}, v{DS}')
        a(f'buffer_store_short v{DS}, v{vSS}, {WS}, {sr(c.sSlot)} offen{sm}')
        a(f's_branch {Lj}')
        a(f'{L3}:')
        a('s_barrier')
        rdq(KA_, KI)
        a('s_waitcnt lgkmcnt(2)')
        for tq in range(2): a(f'v_mfma_f32_16x16x32_bf16 {vr(DS+4*tq,4)}, {vr(KA_,4)}, {vr(KQ+4*tq,4)}, 0')
        a('s_waitcnt lgkmcnt(0)')
        for tq in range(2): a(f'v_mfma_f32_16x16x32_bf16 {vr(DS+4*tq,4)}, {vr(KA_+4,4)}, {vr(KQ+4*tq,4)}, {vr(DS+4*tq,4)}')
        for tq in range(2):
            a(f'v_add_f32 v{DS+4*tq}, v{DS+4*tq}, v{DS+4*tq+2}')
            a(f'v_add_f32 v{DS+4*tq+1}, v{DS+4*tq+1}, v{DS+4*tq+3}')
            a(f'v_cvt_pk_bf16_f32 v{DS+tq}, v{DS+4*tq}, v{DS+4*tq+1}')
        a(f'buffer_store_dwordx2 {vr(DS,2)}, v{vSS}, {WS}, {sr(c.sSlot)} offen{sm}')
        a(f'{Lj}:')
        if tr: tr(1)
        delay(a, P['dq'])
        a(f'{Lp}:')
        for k in range(2): a(f'buffer_load_dwordx4 {vr(SL+4*k,4)}, v{L16}, {WS}, {sr(c.sO1)} offen offset:{2048+1024*k} sc1')
        a(f'buffer_load_dwordx2 {vr(SML,2)}, v{L8}, {WS}, {sr(c.sO2)} offen offset:2048 sc1')
        for ch in range(2):
            a(f'buffer_load_dwordx4 {vr(VMr+4*ch,4)}, v{L16}, {WS}, {sr(c.sO1)} offen offset:{1024*ch} sc1')
        spin(a, c, Lend)
        def um(t, ch): return f'v_smfmac_f32_16x16x64_bf16 {vr(UM+4*t,4)}, {vr(VMr+4*ch,4)}, {vr(WO+(t*2+ch)*8,8)}, v{vIdx} abid:1'
        def ucv(t): return [f'v_cvt_pk_bf16_f32 v{U+8*t}, v{UM+4*t}, v{UM+4*t+1}', f'v_cvt_pk_bf16_f32 v{U+8*t+1}, v{UM+4*t+2}, v{UM+4*t+3}']
        def pv(t): return f'v_smfmac_f32_16x16x64_bf16 {vr(OUT+4*t,4)}, {vr(PP,4)}, {vr(U+8*t,8)}, v{vIdx}'
        def soft():
            return [f'v_exp_f32 v{X+i}, v{E+i}' for i in range(2)] + [f'v_exp_f32 v{X+4}, v{E4}'] + \
                   [f'v_exp_f32 v{X+i}, v{E+i}' for i in range(2, 4)] + \
                   [f'v_cvt_pk_bf16_f32 v{PP}, v{X+4}, v{X+4}', f'v_cvt_pk_bf16_f32 v{PP+2}, v{X+4}, v{X+4}',
                    f'v_cvt_pk_bf16_f32 v{PP+1}, v{X}, v{X+1}', f'v_cvt_pk_bf16_f32 v{PP+3}, v{X+2}, v{X+3}',
                    f'v_permlane32_swap_b32 v{PP}, v{PP+2}']
        a('s_waitcnt vmcnt(4)')
        a(f'v_mfma_f32_16x16x32_bf16 {vr(E,4)}, {vr(SELA,4)}, {vr(SL,4)}, 0')
        a('s_waitcnt vmcnt(3)')
        a(f'v_mfma_f32_16x16x32_bf16 {vr(E,4)}, {vr(SELB,4)}, {vr(SL+4,4)}, {vr(E,4)}')
        a('s_waitcnt vmcnt(2)')
        a(f'v_mfma_f32_16x16x16_bf16 {vr(E4,4)}, {vr(SELM,2)}, {vr(SML,2)}, 0')
        a('s_waitcnt vmcnt(1)')
        a(um(0, 0))
        a('s_waitcnt vmcnt(0)')
        a(um(0, 1))
        so = soft()
        a(so.pop(0))
        a(um(1, 0))
        a(so.pop(0))
        a(um(1, 1))
        a(so.pop(0))
        a(f'v_cmp_u_f32 {sr(c.sT,2)}, v{E}, v{E4}')
        a(um(2, 0))
        a(so.pop(0))
        a(f'v_cmp_u_f32 {sr(c.sT+2,2)}, v{UM}, v{UM+1}')
        a(f'v_cmp_u_f32 vcc, v{UM+2}, v{UM+3}')
        a(um(2, 1))
        a(so.pop(0))
        a(f's_or_b64 {sr(c.sT,2)}, {sr(c.sT,2)}, {sr(c.sT+2,2)}')
        a(f's_or_b64 vcc, vcc, {sr(c.sT,2)}')
        a(f's_cbranch_vccnz {Lpz}')
        if tr: tr(2)
        a(um(3, 0))
        a(so.pop(0)); a(so.pop(0))
        a(um(3, 1))
        for x in so: a(x)
        ldXL()
        for x in ldPX(): a(x)
        if not P['kqtop']: ldKQ()
        if P['fo']: a(f'ds_write_b32 v{vFl}, v{vOne}')
        for x in ucv(0): a(x)
        a(pv(4))
        for x in ucv(1): a(x)
        a(pv(0))
        for x in ucv(2): a(x)
        a(pv(1))
        for x in ucv(3): a(x)
        a(f'{Lsm}:')
        Lr = OUT + 16
        a(pv(2))
        a(f'v_add_f32 v{Lr}, v{Lr}, v{Lr+2}'); a(f'v_add_f32 v{Lr+1}, v{Lr+1}, v{Lr+3}')
        a(pv(3))
        a(f'v_rcp_f32 v{R}, v{Lr}'); a(f'v_rcp_f32 v{R+1}, v{Lr+1}')
        lo = (127 - 64) << 23; span = 128 << 23
        for t in range(4):
            Y = OUT + 4 * t
            a(f'v_add_f32 v{Y}, v{Y}, v{Y+2}'); a(f'v_add_f32 v{Y+1}, v{Y+1}, v{Y+3}')
            a(f'v_mul_f32 v{Y}, v{Y}, v{R}'); a(f'v_mul_f32 v{Y+1}, v{Y+1}, v{R+1}')
            a(f'ds_write2st64_b32 v{vCW}, v{Y}, v{Y+1} offset0:{2*t} offset1:{2*t+1}')
        a(f'v_subrev_u32 v{Lr}, {lo:#x}, v{Lr}'); a(f'v_subrev_u32 v{Lr+1}, {lo:#x}, v{Lr+1}')
        a(f'v_max_u32 v{T}, v{Lr}, v{Lr+1}')
        a(f'v_cmp_lt_u32 vcc, {span:#x}, v{T}')
        a(f's_add_u32 {sr(c.sS)}, {sr(c.sS)}, 1')
        a(f's_cbranch_vccnz {Lfb}')
        a(f'{Lz}:')
        a('s_waitcnt lgkmcnt(0)')
        if tr: tr(3)
        a('s_barrier')
        if tr: tr(5)
        for q in range(4): a(f'ds_read_b64 {vr(SL+2*q,2)}, v{vCR} offset:{2048*q}')
        a(f's_cmp_eq_u32 {sr(c.sS)}, {NSTEP}')
        a('s_waitcnt lgkmcnt(2)')
        for r in range(2): a(f'v_add_f32 v{SL+r}, v{SL+r}, v{SL+2+r}')
        a('s_waitcnt lgkmcnt(0)')
        for r in range(2): a(f'v_add_f32 v{SL+4+r}, v{SL+4+r}, v{SL+6+r}')
        for r in range(2): a(f'v_add_f32 v{SL+r}, v{SL+r}, v{SL+4+r}')
        a(f'v_cvt_pk_bf16_f32 v{R}, v{SL}, v{SL+1}')
        a(f'buffer_store_dword v{R}, v{vPS}, {WS}, {sr(c.sSlot)} offen sc1')
        if P['cprio']: a(f's_setprio 0')
        if tr: tr(4)
        a(f's_cbranch_scc1 {Lfin}')
        a(f's_add_u32 {sr(c.sSlot)}, {sr(c.sSlot)}, {1<<18}')
        a(f's_and_b32 {sr(c.sSlot)}, {sr(c.sSlot)}, {3<<18}')
        a(f's_branch {Lt}')
        a(f'{Lpz}:')
        a('s_nop 7')
        for i in range(12): a(f'v_mov_b32 v{UM+i}, 0')
        a(f's_branch {Lp}')
        if not P['nox']: xpv_bad(*xl)
        a(f'{Lfb}:')
        a(f's_cmp_lg_u32 {sr(c.sFb)}, 0')
        a(f's_cbranch_scc1 {Lz}')
        a(f's_mov_b32 {sr(c.sFb)}, 1')
        a(f's_sub_u32 {sr(c.sS)}, {sr(c.sS)}, 1')
        a(f'v_max3_f32 v{T}, v{E}, v{E+1}, v{E+2}')
        a(f'v_max3_f32 v{T}, v{T}, v{E+3}, v{E4}')
        a(f'v_max_f32_dpp v{T}, v{T}, v{T} quad_perm:[2,3,0,1] row_mask:0xf bank_mask:0xf')
        for op in ('v_permlane16_swap_b32', 'v_permlane32_swap_b32'):
            a(f'v_mov_b32 v{T2}, v{T}')
            a(f'{op} v{T}, v{T2}')
            a(f'v_max_f32 v{T}, v{T}, v{T2}')
        for i in range(5): a(f'v_sub_f32 v{E+i}, v{E+i}, v{T}')
        for x in soft(): a(x)
        for i in range(20): a(f'v_mov_b32 v{OUT+i}, 0')
        for t in (4, 0, 1): a(pv(t))
        a('s_nop 7')
        a(f's_branch {Lsm}')
    xl = [a.lab('c_xr'), a.lab('c_xb'), a.lab('c_xg')]
    a(f'{Lfin}:')
    a('s_waitcnt vmcnt(1)')
    xpv_head(*xl)
    for x in xpv_body(): a(x)
    a('s_waitcnt lgkmcnt(0)')
    a('s_barrier')
    if P['fused']: a('s_barrier')
    a(f's_branch {Ldone or Lend}')
    xpv_bad(*xl)
```

```python
from asm import *
from gemm16 import Gemm16

class GemmCfgR:
    def __init__(self, TN=256, TM=256, dual=True, RW=4, WN=4, WT=2):
        self.TN, self.TM, self.WN, self.WT = TN, TM, WN, WT
        assert (TN == 256 and dual) or (TN == 128 and not dual)
        self.dual = dual; self.RW = RW; self.RX = RW // 2 + 1
        self.tn = TN // 16 // WN; self.tt = TM // 16 // WT
        self.wslot = 32 * TN * 2; self.xbytes = TM * 128
        self.wp = TN // 128; self.xp = TM // 64
        self.rpp = 4; self.rowb = 256; self.nwg = 1
        self.xoff = RW * self.wslot
        self.lds = self.xoff + self.RX * self.xbytes
        assert self.lds <= 163840
KILL = 0x40000000

class GemmR(Gemm16):
    def __init__(self, a, cfg, sreg, vreg, SO, sWv):
        self.a = a; self.c = c = cfg
        self.SX = sreg.get(4, 4); self.SW = sreg.get(4, 4); self.SO = SO; self.SW2 = sreg.get(4, 4)
        self.sOB = sreg.get(); self.sLdx = sreg.get(); self.sLdw = sreg.get(); self.sLdo = sreg.get(); self.sWv = sWv
        self.sOx = sreg.get(); self.sOw = sreg.get(); self.sDw = sreg.get(); self.sM0 = sreg.get(); self.sCnt = sreg.get()
        self.sScale = sreg.get(); self.sT = sreg.get()
        self.sOM = sreg.get(); self.sU1 = sreg.get(); self.sU2 = sreg.get(); self.sTP = sreg.get(); self.sT2 = sreg.get()
        self.sWp = sreg.get(); self.sWd = sreg.get(); self.sWl = sreg.get(); self.sWs = sreg.get(); self.sWx = sreg.get(); self.sWo = sreg.get()
        self.sXp = sreg.get(); self.sXd = sreg.get(); self.sXl = sreg.get(); self.sXs = sreg.get(); self.sXx = sreg.get(); self.sXo = sreg.get()
        self.vWr = vreg.get(c.tn); self.vXr = vreg.get(2); self.vWg = vreg.get(1); self.vXg = vreg.get(c.xp)
        self.vWr2 = None
        self.vO = vreg.get(1); self.vE = vreg.get(1); self.vT = vreg.get(4)
        self.fA = [vreg.get(4 * c.tn, 4) for _ in range(2)]
        self.fB = [vreg.get(4 * c.tt, 4) for _ in range(2)]
        self.acc = vreg.get(c.tn * c.tt * 4, 4)
        self.storemod = ''; self.wmod = ''; self.xmod = ''; self.bar1 = False

    def setup_g(self):
        a, c = self.a, self.c; T = self.vT; w = sr(self.sWv)
        a(f'v_and_b32 v{T}, 63, v0')
        a(f's_lshl_b32 {sr(self.sM0)}, {w}, 10')
        a(f's_lshl_b32 {sr(self.sDw)}, {sr(self.sLdw)}, 5')
        a(f'v_lshrrev_b32 v{T+1}, 4, v0')
        a(f'v_and_b32 v{T+2}, 3, v{T+1}')
        a(f'v_lshlrev_b32 v{T+2}, 1, v{T+2}')
        a(f'v_and_b32 v{T+3}, 8, v{T+1}')
        a(f'v_or_b32 v{T+2}, v{T+2}, v{T+3}')
        a(f'v_and_b32 v{T+3}, 15, v{T}')
        a(f'v_xor_b32 v{T+2}, v{T+2}, v{T+3}')
        a(f'v_lshlrev_b32 v{T+2}, 4, v{T+2}')
        a(f'v_mul_lo_u32 v{T+1}, v{T+1}, {sr(self.sLdw)}')
        a(f'v_add_u32 v{self.vWg}, v{T+1}, v{T+2}')
        a(f'v_lshrrev_b32 v{T+1}, 3, v0')
        a(f'v_lshrrev_b32 v{T+2}, 4, v0')
        a(f'v_xor_b32 v{T+2}, v{T+2}, v{T}')
        a(f'v_and_b32 v{T+2}, 7, v{T+2}')
        a(f'v_lshlrev_b32 v{T+2}, 4, v{T+2}')
        a(f'v_lshl_add_u32 v{self.vXg}, v{T+1}, 11, v{T+2}')
        for m in range(1, c.xp): a(f'v_add_u32 v{self.vXg+m}, {m*64*2048}, v{self.vXg}')

    def order(self, r):
        a = self.a
        a(f's_lshl_b32 {sr(self.sXx)}, {r}, 7')
        a(f's_mul_i32 {sr(self.sWx)}, {sr(self.sXx)}, {sr(self.sLdw)}')
        a(f's_lshr_b32 {sr(self.sWx)}, {sr(self.sWx)}, 1')
        a(f's_mov_b32 {sr(self.sOx)}, 0')
        a(f's_mov_b32 {sr(self.sOw)}, 0')
        a(f's_mov_b32 {sr(self.sXo)}, {sr(self.sXx)}')
        a(f's_mov_b32 {sr(self.sWo)}, {sr(self.sWx)}')

    def setup_l(self):
        a, c = self.a, self.c; T = self.vT; w = sr(self.sWv)
        a(f'v_lshrrev_b32 v{T+1}, 2, v{T}')
        a(f'v_and_b32 v{T+3}, 7, v{T+1}')
        a(f'v_and_b32 v{T+1}, 3, v{T+1}')
        a(f'v_lshrrev_b32 v{T+2}, 4, v{T}')
        a(f'v_lshl_add_u32 v{T+2}, v{T+2}, 3, v{T+1}')
        a(f'v_lshlrev_b32 v{T+2}, 8, v{T+2}')
        a(f's_and_b32 {sr(self.sT)}, {w}, {1 if c.dual else c.WN-1}')
        a(f's_mul_i32 {sr(self.sT)}, {sr(self.sT)}, {c.tn}')
        a(f'v_xor_b32 v{T+3}, {sr(self.sT)}, v{T+3}')
        a(f'v_lshl_add_u32 v{T+2}, v{T+3}, 5, v{T+2}')
        if c.dual:
            a(f's_and_b32 {sr(self.sT)}, {w}, 2')
            a(f's_lshl_b32 {sr(self.sT)}, {sr(self.sT)}, 12')
            a(f'v_add_u32 v{T+2}, {sr(self.sT)}, v{T+2}')
        a(f'v_and_b32 v{T+1}, 3, v{T}')
        a(f'v_lshl_add_u32 v{self.vWr}, v{T+1}, 3, v{T+2}')
        for t in range(1, c.tn): a(f'v_xor_b32 v{self.vWr+t}, {32*t}, v{self.vWr}')
        a(f's_lshr_b32 {sr(self.sT)}, {w}, {c.WN.bit_length()-1}')
        a(f's_mul_i32 {sr(self.sT)}, {sr(self.sT)}, {16*c.tt}')
        a(f'v_and_b32 v{T+1}, 15, v{T}')
        a(f'v_add_u32 v{T+3}, {sr(self.sT)}, v{T+1}')
        a(f'v_lshrrev_b32 v{T+1}, 1, v{T+1}')
        a(f'v_lshrrev_b32 v{T+2}, 4, v{T}')
        a(f'v_xor_b32 v{T+1}, v{T+1}, v{T+2}')
        a(f'v_lshlrev_b32 v{T+1}, 4, v{T+1}')
        a(f'v_lshl_add_u32 v{T+1}, v{T+3}, 7, v{T+1}')
        a(f'v_add_u32 v{self.vXr}, {c.xoff}, v{T+1}')
        a(f'v_xor_b32 v{self.vXr+1}, 64, v{self.vXr}')
        self.setup_out()
        if c.dual:
            a(f'v_and_b32 v{T+1}, 15, v{T}')
            a(f'v_lshlrev_b32 v{T+3}, 4, v{T+1}')
            a(f'v_and_b32 v{T+1}, 16, v{T}')
            a(f'v_lshl_add_u32 v{T+3}, v{T+1}, 5, v{T+3}')
            a(f'v_and_b32 v{T+1}, 32, v{T}')
            a(f'v_lshl_add_u32 v{T+3}, v{T+1}, 3, v{T+3}')
            a(f's_lshr_b32 {sr(self.sT)}, {w}, 2')
            a(f's_mul_i32 {sr(self.sT)}, {sr(self.sT)}, {c.tt//2*16384}')
            a(f's_and_b32 {sr(self.sT2)}, {w}, 3')
            a(f's_lshl_b32 {sr(self.sT2)}, {sr(self.sT2)}, 12')
            a(f's_add_u32 {sr(self.sT)}, {sr(self.sT)}, {sr(self.sT2)}')
            a(f's_add_u32 {sr(self.sT)}, {sr(self.sT)}, 32768')
            a(f'v_add_u32 v{self.vE}, {sr(self.sT)}, v{T+3}')

    def dW(self, base=None, off=0):
        c = self.c; L = []
        for m in range(c.wp):
            S = self.SW2 if m else self.SW
            L.append((f's_add_u32 m0, {sr(self.sWp if base is None else base)}, {off + m*8192}',
                      f'buffer_load_dwordx4 v{self.vWg}, {sr(S,4)}, {sr(self.sWo)} offen{self.wmod} lds'))
        L[-1] = (L[-1][0], L[-1][1] + f'\ns_add_u32 {sr(self.sOw)}, {sr(self.sOw)}, {sr(self.sDw)}\ns_xor_b32 {sr(self.sWo)}, {sr(self.sOw)}, {sr(self.sWx)}')
        return L
    def dX(self, half, base=None, off=0):
        c = self.c; L = []; h = c.xp // 2
        for m in range(half * h, half * h + h):
            L.append((f's_add_u32 m0, {sr(self.sXp if base is None else base)}, {off + m*8192}',
                      f'buffer_load_dwordx4 v{self.vXg+m}, {sr(self.SX,4)}, {sr(self.sXo)} offen{self.xmod} lds'))
        if half: L[-1] = (L[-1][0], L[-1][1] + f'\ns_add_u32 {sr(self.sOx)}, {sr(self.sOx)}, 128\ns_bitcmp1_b32 {sr(self.sOx)}, 11\ns_cselect_b32 {sr(self.sOx)}, {KILL+2048}, {sr(self.sOx)}\ns_xor_b32 {sr(self.sXo)}, {sr(self.sOx)}, {sr(self.sXx)}')
        return L

    def rds(self, sub, st):
        c = self.c
        def ra(t): return [f'ds_read_b64_tr_b16 {vr(self.fA[st]+4*t, 2)}, v{self.vWr+t}',
                           f'ds_read_b64_tr_b16 {vr(self.fA[st]+4*t+2, 2)}, v{self.vWr+t} offset:1024']
        L = ra(0)
        for u in range(c.tt): L.append(f'ds_read_b128 {vr(self.fB[st]+4*u, 4)}, v{self.vXr+sub} offset:{u*2048}')
        for t in range(1, c.tn): L += ra(t)
        return L

    def half(self, st, rd, dm, post, rgap=1, egap=2, estart=0, rstart=0, rdiv=1):
        a = self.a; mf = self.mfmas(st); rd = list(rd); dm = list(dm); post = list(post)
        for i, (m, _) in enumerate(mf):
            doe = dm and i >= estart and (i - estart) % egap == 0
            if doe: a(dm[0][0])
            a(m)
            if doe: a(dm.pop(0)[1])
            if rd:
                if i >= rstart and (i - rstart) % rdiv == 0:
                    for _ in range(rgap):
                        if rd: a(rd.pop(0))
            elif not dm:
                for _ in range(2):
                    if post: a(post.pop(0))
        for r in rd: a(r)
        for e in dm: a(e[0]); a(e[1])
        for p in post: a(p)

    def issue0(self):
        a, c = self.a, self.c
        if self.bar1:
            for i in range(c.RW // 2):
                L = self.dX(0, self.sM0, c.xoff + i * c.xbytes) + self.dX(1, self.sM0, c.xoff + i * c.xbytes) + \
                    self.dW(self.sM0, 2 * i * c.wslot) + self.dW(self.sM0, (2 * i + 1) * c.wslot)
                for d in L: a(d[0]); a(d[1])
            return
        for d in self.dX(0, self.sM0, c.xoff): a(d[0]); a(d[1])
        for i in range(c.RW):
            L = self.dW(self.sM0, i * c.wslot) + self.dX(1 - (i & 1), self.sM0, c.xoff + (i + 1) // 2 * c.xbytes)
            for d in L: a(d[0]); a(d[1])

    def main(self, alt=None, prio=0, **kw):
        a, c = self.a, self.c
        n = c.wp + c.xp // 2; m = c.RW // 2
        for i in range(c.tn * c.tt * 4): a(f'v_mov_b32 v{self.acc+i}, 0')
        a(f's_mov_b32 {sr(self.sWp)}, {sr(self.sM0)}')
        a(f's_mov_b32 {sr(self.sWd)}, {c.wslot}')
        a(f's_mov_b32 {sr(self.sWs)}, {c.wslot}')
        a(f's_add_u32 {sr(self.sWl)}, {sr(self.sM0)}, {(c.RW-1)*c.wslot}')
        a(f's_add_u32 {sr(self.sXl)}, {sr(self.sM0)}, {c.xoff+(c.RX-1)*c.xbytes}')
        a(f's_mov_b32 {sr(self.sXp)}, {sr(self.sXl)}')
        a(f's_mov_b32 {sr(self.sXd)}, {-(c.RX-1)*c.xbytes}')
        a(f's_mov_b32 {sr(self.sXs)}, {c.xbytes}')
        a(f's_mov_b32 {sr(self.sCnt)}, 16')
        a(f's_waitcnt vmcnt({(m-1)*2*n if self.bar1 else (c.RW-1)*n})')
        a('s_barrier')
        for r in self.rds(0, 0): a(r)
        for t in range(c.tn): a(f'v_add_u32 v{self.vWr+t}, {sr(self.sWd)}, v{self.vWr+t}')
        wadv = [f's_add_u32 {sr(self.sWp)}, {sr(self.sWp)}, {sr(self.sWd)}',
                f's_cmp_eq_u32 {sr(self.sWp)}, {sr(self.sWl)}\ns_cselect_b32 {sr(self.sWd)}, {-(c.RW-1)*c.wslot}, {sr(self.sWs)}'] + \
               [f'v_add_u32 v{self.vWr+t}, {sr(self.sWd)}, v{self.vWr+t}' for t in range(c.tn)]
        xadv = [f's_add_u32 {sr(self.sXp)}, {sr(self.sXp)}, {sr(self.sXd)}',
                f's_cmp_eq_u32 {sr(self.sXp)}, {sr(self.sXl)}\ns_cselect_b32 {sr(self.sXd)}, {-(c.RX-1)*c.xbytes}, {sr(self.sXs)}',
                f'v_add_u32 v{self.vXr}, {sr(self.sXd)}, v{self.vXr}']
        Le = a.lab('ge'); La = a.lab('ga')
        if alt is not None:
            a(f's_cmp_ge_u32 {sr(self.sWv)}, 4')
            a(f's_cbranch_scc1 {La}')
        for gi, k in enumerate([kw] if alt is None else [kw, alt]):
            kA = k.get('A', k); kB = k.get('B', k)
            L = a.lab('gk')
            if gi:
                a(f'{La}:')
                if prio: a(f's_setprio {prio}')
            a(f'{L}:')
            if self.bar1: a('s_waitcnt lgkmcnt(0)')
            else:
                a(f's_waitcnt vmcnt({(c.RW-2)*n}) lgkmcnt(0)')
                a('s_barrier')
            self.half(0, self.rds(1, 1), self.dX(0) + self.dX(1) if self.bar1 else self.dW() + self.dX(1), wadv + xadv, **kA)
            a(f's_waitcnt vmcnt({(m-2)*2*n+c.xp if self.bar1 else (c.RW-2)*n}) lgkmcnt(0)')
            a('s_barrier')
            self.half(1, self.rds(0, 0), self.dW(off=-c.wslot) + self.dW() if self.bar1 else self.dW() + self.dX(0),
                      wadv + [f'v_xor_b32 v{self.vXr+1}, 64, v{self.vXr}', f's_sub_u32 {sr(self.sCnt)}, {sr(self.sCnt)}, 1'], **kB)
            a(f's_cmp_lg_u32 {sr(self.sCnt)}, 0')
            a(f's_cbranch_scc1 {L}')
            if alt is not None and gi == 0: a(f's_branch {Le}')
            if gi and prio: a('s_setprio 0')
        a(f'{Le}:')
        a('s_waitcnt vmcnt(0) lgkmcnt(0)')
        a('s_barrier')

    def epilogue(self, scale=True, xch=False):
        a, c = self.a, self.c
        a(f's_mov_b32 {sr(self.sT)}, {sr(self.sOB)}')
        for u in range(c.tt):
            for t in range(0, c.tn, 2):
                b = self.accr(t, u)
                if scale:
                    for r in range(8): a(f'v_mul_f32 v{b+r}, {sr(self.sScale)}, v{b+r}')
                for r in range(4): a(f'v_cvt_pk_bf16_f32 v{b+r}, v{b+2*r}, v{b+2*r+1}')
            for t in range(0, c.tn, 2):
                b = self.accr(t, u)
                a(f'v_permlane16_swap_b32 v{b}, v{b+2}')
                a(f'v_permlane16_swap_b32 v{b+1}, v{b+3}')
            if u & 1: a(f's_add_u32 {sr(self.sT2)}, {sr(self.sT)}, {sr(self.sU1)}')
            else: a(f's_mov_b32 {sr(self.sT2)}, {sr(self.sT)}')
            if xch:
                Lx = a.lab('ex')
                a(f's_cbranch_vccz {Lx}')
                for t in range(0, c.tn, 2):
                    a(f'ds_write_b128 v{self.vE}, {vr(self.accr(t,u),4)} offset:{(u>>1)*16384+(u&1)*1024+t*1024}')
                a(f'{Lx}:')
            for t in range(0, c.tn, 2):
                b = self.accr(t, u)
                a(f'buffer_store_dwordx4 {vr(b,4)}, v{self.vO}, {sr(self.SO,4)}, {sr(self.sT2)} offen{self.storemod}')
                if t + 2 < c.tn: a(f's_add_u32 {sr(self.sT2)}, {sr(self.sT2)}, {sr(self.sTP)}')
            if u & 1: a(f's_add_u32 {sr(self.sT)}, {sr(self.sT)}, {sr(self.sU2)}')
```

```python
from asm import *
from layout import *
from small import srd
from gemm16 import *

def px_setup(a, v):
    class X: pass
    x = X()
    x.L16 = v.get(); x.T = v.get(); x.T2 = v.get()
    x.C = v.get(4, 4); x.Q = v.get(32, 4); x.K = v.get(32, 4); x.S = v.get(12, 4); x.O = v.get(8, 4)
    T, T2 = x.T, x.T2
    a(f'v_and_b32 v{T}, 63, v0')
    a(f'v_lshlrev_b32 v{x.L16}, 4, v{T}')
    a(f'v_lshrrev_b32 v{T2}, 2, v{T}')
    a(f'v_and_b32 v{T2}, 12, v{T2}')
    a(f'v_and_b32 v{T}, 15, v{T}')
    a(f'v_sub_u32 v{T}, v{T}, v{T2}')
    a(f'v_mov_b32 v{T2}, {f32bits(-1e30):#x}')
    for r in range(4):
        a(f'v_cmp_le_i32 vcc, {r}, v{T}')
        a(f'v_cndmask_b32 v{x.C+r}, v{T2}, 0, vcc')
    return x

def px_job(a, x, sIdx, SWS, sT, stm='', lds=None):
    WS = sr(SWS, 4); T, T2 = x.T, x.T2
    s0, s1 = sr(sT), sr(sT + 1)
    if lds:
        a(f's_lshl_b32 {s0}, {lds}, 14')
        a(f's_add_u32 {s0}, {s0}, 32768')
        a(f'v_add_u32 v{T}, {s0}, v{x.L16}')
        for ks in range(4):
            if ks == 3: a('s_waitcnt lgkmcnt(8)')
            for t in range(2):
                a(f'ds_read_b128 {vr(x.K+16*t+4*ks,4)}, v{T} offset:{8192+2048*ks+1024*t}')
                a(f'ds_read_b128 {vr(x.Q+16*t+4*ks,4)}, v{T} offset:{2048*ks+1024*t}')
    for ksh in range(0 if lds else 2):
        a(f's_lshl_b32 {s0}, {sIdx}, 13')
        a(f's_add_u32 {s1}, {s0}, {KX+4096*ksh}')
        a(f's_add_u32 {s0}, {s0}, {QX+4096*ksh}')
        for kl in range(2):
            ks = 2 * ksh + kl
            for t in range(2):
                a(f'buffer_load_dwordx4 {vr(x.K+16*t+4*ks,4)}, v{x.L16}, {WS}, {s1} offen offset:{2048*kl+1024*t}')
                a(f'buffer_load_dwordx4 {vr(x.Q+16*t+4*ks,4)}, v{x.L16}, {WS}, {s0} offen offset:{2048*kl+1024*t}')
    a(f's_lshr_b32 {s0}, {sIdx}, 5')
    a(f's_lshl_b32 {s0}, {s0}, 18')
    a(f's_and_b32 {s1}, {sIdx}, 31')
    a(f's_lshl_b32 {s1}, {s1}, 11')
    a(f's_add_u32 {s0}, {s0}, {s1}')
    a(f's_add_u32 {s0}, {s0}, {PX}')
    for ks in range(4):
        a(f's_waitcnt {"lgkmcnt" if lds else "vmcnt"}({12-4*ks})')
        for i, (tq, kt) in enumerate(((0, 0), (1, 0), (1, 1))):
            D = vr(x.S + 4 * i, 4)
            Cc = vr(x.C, 4) if tq == kt else '0'
            a(f'v_mfma_f32_16x16x32_bf16 {D}, {vr(x.K+16*kt+4*ks,4)}, {vr(x.Q+16*tq+4*ks,4)}, {D if ks else Cc}')
    S = x.S; m0, m1 = x.O, x.O + 1
    a(f'v_max3_f32 v{m0}, v{S}, v{S+1}, v{S+2}')
    a(f'v_max3_f32 v{m1}, v{S+4}, v{S+5}, v{S+6}')
    a(f'v_max_f32 v{m0}, v{m0}, v{S+3}')
    a(f'v_max3_f32 v{m1}, v{m1}, v{S+7}, v{S+8}')
    a(f'v_max3_f32 v{m1}, v{m1}, v{S+9}, v{S+10}')
    a(f'v_max_f32 v{m1}, v{m1}, v{S+11}')
    for op in ('v_permlane16_swap_b32', 'v_permlane32_swap_b32'):
        a(f'v_mov_b32 v{T}, v{m0}'); a(f'v_mov_b32 v{T2}, v{m1}')
        a(f'{op} v{T}, v{m0}'); a(f'{op} v{T2}, v{m1}')
        a(f'v_max_f32 v{m0}, v{m0}, v{T}'); a(f'v_max_f32 v{m1}, v{m1}, v{T2}')
    for i in range(12): a(f'v_sub_f32 v{S+i}, v{S+i}, v{m0 if i < 4 else m1}')
    for i in range(12): a(f'v_exp_f32 v{S+i}, v{S+i}')
    for i in range(6): a(f'v_cvt_pk_bf16_f32 v{x.O+2+i}, v{S+2*i}, v{S+2*i+1}')
    a(f'buffer_store_dwordx4 {vr(x.O,4)}, v{x.L16}, {WS}, {s0} offen{stm}')
    a(f'buffer_store_dwordx4 {vr(x.O+4,4)}, v{x.L16}, {WS}, {s0} offen offset:1024{stm}')

def gen_px(name='px_kernel'):
    a = Asm()
    sreg = Regs(4, 100, 's')
    kWs = sreg.get(2, 2); sW = sreg.get(); sT = sreg.get(2); SWS = sreg.get(4, 4); sI = sreg.get()
    a(kstart(name))
    a('s_cmp_ge_u32 s2, 256')
    a(f's_cbranch_scc1 {name}_end')
    a(f's_load_dwordx2 {sr(kWs,2)}, s[0:1], {D_WS}')
    a(f'v_lshrrev_b32 v1, 6, v0')
    a(f'v_readfirstlane_b32 {sr(sW)}, v1')
    a(f's_lshl_b32 {sr(sI)}, s2, 3')
    a(f's_add_u32 {sr(sI)}, {sr(sI)}, {sr(sW)}')
    v = Regs(1, 128)
    x = px_setup(a, v)
    a('s_waitcnt lgkmcnt(0)')
    srd(a, SWS, sr(kWs), sr(kWs+1), WS_BYTES)
    px_job(a, x, sr(sI), SWS, sT)
    a(f'{name}_end:')
    a('s_endpgm')
    a.pad()
    return a.text() + kd(name, 128, 128), 0

def red_setup(a, v):
    class X: pass
    x = X()
    x.L16 = v.get(); x.T = v.get(); x.vA = v.get(); x.vO = v.get(); x.vG = v.get(); x.G = v.get(2, 2)
    x.A = v.get(16, 4); x.P = v.get(128, 4); x.acc = v.get(32, 4); x.t = v.get(4)
    T = x.T
    a(f'v_and_b32 v{T}, 63, v0')
    a(f'v_lshlrev_b32 v{x.L16}, 4, v{T}')
    a(f'v_and_b32 v{x.vG}, 15, v{T}')
    a(f'v_lshlrev_b32 v{x.vO}, 11, v{x.vG}')
    a(f'v_lshlrev_b32 v{x.vG}, 2, v{x.vG}')
    a(f'v_lshrrev_b32 v{x.vA}, 4, v{T}')
    a(f'v_lshl_add_u32 v{x.vA}, v{x.vA}, 3, v{x.vO}')
    a(f'v_and_b32 v{x.G}, 16, v{T}')
    a(f'v_lshl_add_u32 v{x.vO}, v{x.G}, 1, v{x.vO}')
    a(f'v_lshrrev_b32 v{x.G}, 5, v{T}')
    a(f'v_lshl_add_u32 v{x.vO}, v{x.G}, 4, v{x.vO}')
    return x

def red_job(a, x, sIdx, SWS, SO, sT, ldm='', stm=''):
    WS = sr(SWS, 4); s0, s1, s2 = sr(sT), sr(sT + 1), sr(sT + 2)
    a(f's_lshr_b32 {s0}, {sIdx}, 4')
    a(f's_lshl_b32 {s1}, {s0}, 7')
    a(f's_add_u32 {s1}, {s1}, {GT+8192}')
    for tq in range(2): a(f'buffer_load_dword v{x.G+tq}, v{x.vG}, {WS}, {s1} offen offset:{64*tq}{ldm}')
    a(f's_lshl_b32 {s1}, {sIdx}, 12')
    a(f's_add_u32 {s1}, {s1}, {OP}')
    for g in range(8):
        for b in range(4): a(f'buffer_load_dwordx4 {vr(x.P+16*g+4*b,4)}, v{x.L16}, {WS}, {s1} offen offset:{1024*b}{ldm}')
        if g < 7: a(f's_add_u32 {s1}, {s1}, {1<<22}')
    a(f's_lshl_b32 {s0}, {s0}, 16')
    a(f's_and_b32 {s1}, {sIdx}, 15')
    a(f's_lshl_b32 {s1}, {s1}, 7')
    a(f's_add_u32 {s0}, {s0}, {s1}')
    a(f's_add_u32 {s1}, {s0}, {OPA}')
    a(f's_add_u32 {s2}, {s0}, {OPA+32768}')
    for tq in range(2):
        for b in range(4): a(f'buffer_load_dwordx2 {vr(x.A+4*b+2*tq,2)}, v{x.vA}, {WS}, {s2 if tq else s1} offen offset:{32*b}{ldm}')
    a(f's_add_u32 {s1}, {s0}, 32768')
    for g in range(8):
        a(f's_waitcnt vmcnt({8+28-4*g})')
        for i in range(16):
            p = x.P + 16 * g + i
            if g == 0:
                a(f'v_lshlrev_b32 v{x.acc+2*i}, 16, v{p}')
                a(f'v_and_b32 v{x.acc+2*i+1}, 0xffff0000, v{p}')
            else:
                a(f'v_lshlrev_b32 v{x.t+(i&1)}, 16, v{p}')
                a(f'v_and_b32 v{p}, 0xffff0000, v{p}')
                a(f'v_add_f32 v{x.acc+2*i}, v{x.acc+2*i}, v{x.t+(i&1)}')
                a(f'v_add_f32 v{x.acc+2*i+1}, v{x.acc+2*i+1}, v{p}')
    a('s_waitcnt vmcnt(0)')
    for i in range(16):
        p = x.A + i; G = x.G + ((i >> 1) & 1)
        a(f'v_lshlrev_b32 v{x.t+(i&1)}, 16, v{p}')
        a(f'v_and_b32 v{p}, 0xffff0000, v{p}')
        a(f'v_fma_f32 v{x.acc+2*i}, v{x.acc+2*i}, v{G}, v{x.t+(i&1)}')
        a(f'v_fma_f32 v{x.acc+2*i+1}, v{x.acc+2*i+1}, v{G}, v{p}')
    O = x.P
    for b in range(4):
        for d in range(4):
            i = 4 * b + d
            a(f'v_cvt_pk_bf16_f32 v{O+8*(d>>1)+4*(b>>1)+2*(b&1)+(d&1)}, v{x.acc+2*i}, v{x.acc+2*i+1}')
    for q in range(4):
        a(f'v_permlane16_swap_b32 v{O+4*q}, v{O+4*q+2}')
        a(f'v_permlane16_swap_b32 v{O+4*q+1}, v{O+4*q+3}')
    for q in range(4):
        a(f'buffer_store_dwordx4 {vr(O+4*q,4)}, v{x.vO}, {sr(SO,4)}, {s1 if q>>1 else s0} offen offset:{64*(q&1)}{stm}')

def gen_red(name='red_kernel'):
    a = Asm()
    sreg = Regs(4, 100, 's')
    kWs = sreg.get(2, 2); sW = sreg.get(); sT = sreg.get(3); SWS = sreg.get(4, 4); SO = sreg.get(4, 4); sI = sreg.get()
    a(kstart(name))
    a('s_cmp_ge_u32 s2, 256')
    a(f's_cbranch_scc1 {name}_end')
    a(f's_load_dwordx2 {sr(kWs,2)}, s[0:1], {D_WS}')
    a(f's_load_dwordx2 {sr(SO,2)}, s[0:1], {D_OUT}')
    a(f'v_lshrrev_b32 v1, 6, v0')
    a(f'v_readfirstlane_b32 {sr(sW)}, v1')
    a(f's_lshl_b32 {sr(sI)}, s2, 2')
    a(f's_add_u32 {sr(sI)}, {sr(sI)}, {sr(sW)}')
    v = Regs(1, 256)
    x = red_setup(a, v)
    a('s_waitcnt lgkmcnt(0)')
    srd(a, SWS, sr(kWs), sr(kWs+1), WS_BYTES)
    srd(a, SO, sr(SO), sr(SO+1), 2048*2048)
    red_job(a, x, sr(sI), SWS, SO, sT)
    a(f'{name}_end:')
    a('s_endpgm')
    a.pad()
    return a.text() + kd(name, 256, 256), 0

def gen_fina(name='fina_kernel', TN=128, TM=128):
    a = Asm()
    sreg = Regs(4, 100, 's'); vreg = Regs(1, 256, 'v')
    kWo = sreg.get(2, 2); kWs = sreg.get(2, 2)
    t0 = sreg.get(); t1 = sreg.get(); t2 = sreg.get()
    g = Gemm16(a, GemmCfg16(TN, TM), sreg, vreg)
    nn = 1024 // TN; nm = 2048 // TM
    a(kstart(name))
    a(f's_cmp_ge_u32 s2, {nn*nm}')
    a(f's_cbranch_scc1 {name}_end')
    a(f's_load_dwordx2 {sr(kWo,2)}, s[0:1], {A_WO}')
    a(f's_load_dwordx2 {sr(kWs,2)}, s[0:1], {D_WS}')
    a(f'v_lshrrev_b32 v1, 6, v0')
    a(f'v_readfirstlane_b32 {sr(g.sWv)}, v1')
    a(f's_lshr_b32 {sr(t0)}, s2, 3')
    a(f's_and_b32 {sr(t1)}, {sr(t0)}, {nn-1}')
    a(f's_lshr_b32 {sr(t0)}, {sr(t0)}, {nn.bit_length()-1}')
    a(f's_lshl_b32 {sr(t0)}, {sr(t0)}, 3')
    a(f's_and_b32 {sr(t2)}, s2, 7')
    a(f's_add_u32 {sr(t2)}, {sr(t2)}, {sr(t0)}')
    a(f's_mov_b32 {sr(g.sLdw)}, 2048')
    a(f's_mov_b32 {sr(g.sLdo)}, 2048')
    a(f's_mov_b32 {sr(g.sLdx)}, 2048')
    a(f's_mov_b32 {sr(g.sOM)}, 0')
    a(f's_mul_i32 {sr(t1)}, {sr(t1)}, {TN*2}')
    a('s_waitcnt lgkmcnt(0)')
    a(f's_mul_i32 {sr(t2)}, {sr(t2)}, {TM*2048}')
    a(f's_add_u32 {sr(t0)}, {sr(t2)}, {OA}')
    srd(a, g.SX, sr(kWs), sr(kWs+1), TM*2048, off=sr(t0))
    a(f's_sub_u32 {sr(t0)}, {1024*2048}, {sr(t1)}')
    srd(a, g.SW, sr(kWo), sr(kWo+1), sr(t0), off=sr(t1))
    a(f's_add_u32 {sr(t0)}, {sr(t2)}, {sr(t1)}')
    a(f's_add_u32 {sr(t0)}, {sr(t0)}, {OPA}')
    a(f's_sub_u32 {sr(t1)}, {TM*2048}, {sr(t1)}')
    srd(a, g.SO, sr(kWs), sr(kWs+1), sr(t1), off=sr(t0))
    a(f's_mov_b32 {sr(g.sOx)}, 0')
    a(f's_mov_b32 {sr(g.sOw)}, 0')
    g.setup()
    g.main(16)
    g.epilogue(scale=False)
    a(f'{name}_end:')
    a('s_endpgm')
    a.pad()
    return a.text() + kd(name, 256, 256), g.c.lds, nn*nm
```

```python
from asm import *
from layout import *
from small import *
from chain3 import *
from attna import attnA_job
from gemm16 import *
from gemmr import *
from xjobs import *
from k2 import Trace, Trace2

JSLOT = 0
Q_B2 = 48; Q_KVA = 72; Q_GATE = 74; Q_QA = 76; Q_B4 = 84; Q_ATT = 132; Q_FIN = 164; Q_END = 196
NRED = 128

def gen_k5(name, diag=False, trace=False, force_slow=False, par=None, cal=(0,1), calr=1, calc=10, flip=0, rotx=0, stm=' sc1', join=True, rsl=8, rws=6, rwf=8, rot=2, xpf=1, gp=None, xw=0, xc=0, **pp):
    import chain3; chain3.P.update(fused=1); chain3.P.update(pp)
    a = Asm()
    sreg = Regs(4, 100, 's')
    kWs = sreg.get(2, 2); sX = sreg.get(); sJob = sreg.get(); SD = sreg.get(4, 4)
    rt0 = sreg.get(2, 2); ct0 = sreg.get(2, 2); sJp = sreg.get(); sLog = sreg.get(); sMk = sreg.get(2, 2)
    base = sreg.p
    c = chain_common(a, sreg)
    assert c.sW == base
    wT = sreg.get(6); wS = sreg.get(16, 4); rt1 = sreg.get(2, 2); ct1 = wT + (wT & 1)
    tr = (Trace2(a, sreg, c, wS) if trace == 2 else Trace(a, sreg, 6)) if trace else None
    Lend = f'{name}_end'; Lfin = f'{name}_fin'; Ldone = f'{name}_done'; Lwork = f'{name}_worker'
    WS = sr(c.SWS, 4); sW = sr(c.sW)
    a(kstart(name))
    a('s_cmp_ge_u32 s2, 256')
    a(f's_cbranch_scc1 {Lend}')
    if rotx:
        a(f's_add_u32 s3, s2, {rotx}'); a('s_and_b32 s3, s3, 7'); a('s_and_b32 s2, s2, 0xf8'); a('s_or_b32 s2, s2, s3')
    if diag: a(f's_memrealtime {sr(rt0,2)}'); a(f's_memtime {sr(ct0,2)}')
    a(f's_load_dwordx2 {sr(kWs,2)}, s[0:1], {D_WS}')
    a(f's_load_dwordx2 {sr(SD,2)}, s[0:1], {D_DBG}')
    a(f'v_lshrrev_b32 v1, 6, v0')
    a(f'v_readfirstlane_b32 {sW}, v1')
    a(f's_and_b32 {sr(sX)}, s2, 3')
    a(f's_lshr_b32 {sr(sJob)}, s2, 3')
    if diag:
        a(f's_and_b32 {sr(sLog)}, s2, 7')
        ssum(a, sr(sLog), sr(c.sT), [(sr(sLog), 15), (sr(sJob), 10)], STAMP + 0x400000)
    a('s_waitcnt lgkmcnt(0)')
    srd(a, c.SWS, sr(kWs), sr(kWs+1), WS_BYTES)
    srd(a, SD, sr(SD), sr(SD+1), 256)
    a('s_bitcmp0_b32 s2, 2' if flip else 's_bitcmp1_b32 s2, 2')
    if xw:
        a(f's_cbranch_scc0 {Lwork}_x')
        for i in range(xw): a('s_sleep 127')
        a(f's_branch {Lwork}')
        a(f'{Lwork}_x:')
    a(f's_cbranch_scc1 {Lwork}')
    ssum(a, sr(c.sT+3), None, [(sr(sX), 5)])
    a(f's_add_u32 {sr(c.sT+3)}, {sr(c.sT+3)}, {sr(sJob)}')
    a(f's_lshr_b32 {sr(c.sG)}, {sr(c.sT+3)}, 4')
    a(f's_and_b32 {sr(c.sC)}, {sr(c.sT+3)}, 15')
    a(f's_getreg_b32 {sr(c.sMode)}, hwreg(HW_REG_XCC_ID)')
    a(f's_and_b32 {sr(c.sMode)}, {sr(c.sMode)}, 7')
    a(f's_mul_i32 {sr(c.sT)}, {sr(c.sMode)}, {sr(c.sMode)}')
    ssum(a, sr(c.sMode), sr(c.sT), [(sr(c.sMode), 12), (sr(c.sT), 20)])
    a(f'v_lshlrev_b32 v1, 4, v0')
    for i in range(4): a(f'v_mov_b32 v{4+i}, -1')
    a(f'v_mov_b32 v8, 0')
    a(f's_sub_u32 {sr(c.sPart)}, 0, {sr(kWs)}')
    a(f's_and_b32 {sr(c.sPart)}, {sr(c.sPart)}, 0x1fffff')
    a(f's_add_u32 {sr(c.sPart)}, {sr(c.sPart)}, {PARTA}')
    ssum(a, sr(c.sT), None, [(sr(c.sT+3), 14)], COMM)
    a(f'buffer_store_dwordx4 v[4:7], v1, {WS}, {sr(c.sT)} offen sc1')
    a(f's_add_u32 {sr(c.sT)}, {sr(c.sT)}, 8192')
    a(f'buffer_store_dwordx4 v[4:7], v1, {WS}, {sr(c.sT)} offen sc1')
    ssum(a, sr(c.sT+1), None, [(sr(c.sT+3), 13)])
    a(f's_add_u32 {sr(c.sT+1)}, {sr(c.sT+1)}, {sr(c.sPart)}')
    a(f'buffer_store_dwordx4 v[4:7], v1, {WS}, {sr(c.sT+1)} offen sc1')
    ssum(a, sr(c.sT+2), None, [(sr(c.sT+3), 9)], FL)
    a(f'v_and_b32 v3, 0x1fc, v0')
    a(f'buffer_store_dword v8, v3, {WS}, {sr(c.sT+2)} offen sc1')
    def pst(i):
        if diag: a(f's_memrealtime {sr(wS+2*i,2)}')
    def mark(code, w=0):
        if not diag: return
        Lm = a.lab('mk')
        a(f's_cmp_lg_u32 {sW}, {w}')
        a(f's_cbranch_scc1 {Lm}')
        a(f's_memrealtime {sr(sMk,2)}')
        a('s_waitcnt lgkmcnt(0)')
        a(f'v_mov_b32 v253, {sr(sMk)}')
        a(f'v_mov_b32 v254, {code*256+1}')
        a(f'buffer_store_dword v253, off, {WS}, {sr(sLog)}')
        a(f'buffer_store_dword v254, off, {WS}, {sr(sLog)} offset:4')
        a(f's_memtime {sr(sMk,2)}')
        a('s_waitcnt lgkmcnt(0)')
        a(f'v_mov_b32 v253, {sr(sMk)}')
        a(f'v_mov_b32 v254, {code*256+2}')
        a(f'buffer_store_dword v253, off, {WS}, {sr(sLog)} offset:8')
        a(f'buffer_store_dword v254, off, {WS}, {sr(sLog)} offset:12')
        a(f's_add_u32 {sr(sLog)}, {sr(sLog)}, 16')
        a(f'{Lm}:')
    c.mark = mark
    Lr = a.lab('role')
    def arrived(V, Lfail, sSp):
        Lg = a.lab('gp')
        a(f's_mov_b32 {sSp}, {SPIN}')
        a(f'{Lg}:')
        a(f'buffer_load_dwordx4 {vr(V,4)}, off, {sr(SD,4)}, 0 sc1')
        a(f's_sub_u32 {sSp}, {sSp}, 1')
        a(f's_cbranch_scc1 {Lfail}')
        a('s_waitcnt vmcnt(0)')
        a(f'v_and_b32 v{V+4}, v{V}, v{V+1}')
        a(f'v_and_b32 v{V+5}, v{V+2}, v{V+3}')
        a(f'v_and_b32 v{V+4}, v{V+4}, v{V+5}')
        a(f'v_and_b32 v{V+4}, 32, v{V+4}')
        a(f'v_cmp_eq_u32 vcc, 0, v{V+4}')
        a(f's_cbranch_vccnz {Lg}')
    def getpar(V):
        arrived(V, Lfin, sr(c.sSpin))
        for i in range(4): a(f'v_bfe_u32 v{V+4+i}, v{V+i}, 6, 6')
        a(f'v_add3_u32 v{V+4}, v{V+4}, v{V+5}, v{V+6}')
        a(f'v_add_u32 v{V+4}, v{V+4}, v{V+7}')
        a(f'v_readfirstlane_b32 {sr(c.sS)}, v{V+4}')
        if diag: a(f's_lshl_b32 {sr(sJob)}, {sr(c.sS)}, 16')
        a(f's_cmp_gt_u32 {sr(c.sS)}, 64')
        if par is None: a(f's_cselect_b32 {sr(c.sS)}, 8192, 0')
        elif par == 'inv': a(f's_cselect_b32 {sr(c.sS)}, 0, 8192')
        else: a(f's_mov_b32 {sr(c.sS)}, {par*8192}')
        a(f's_add_u32 {sr(c.sPart)}, {sr(c.sPart)}, {sr(c.sS)}')
        for i in (1, 2, 3):
            a(f's_cmp_eq_u32 {sr(sX)}, {i}')
            a(f's_cselect_b64 vcc, -1, 0')
            a(f'v_cndmask_b32 v{V}, v{V}, v{V+i}, vcc')
        a(f'v_readfirstlane_b32 {sr(c.sS)}, v{V}')
        a(f's_and_b32 {sr(c.sS)}, {sr(c.sS)}, 0xfffff000')
        a(f's_lshl_b32 {sr(c.sMode)}, {sr(c.sMode)}, 5')
        if force_slow: a(f's_cmp_eq_u32 0, 1')
        else: a(f's_cmp_eq_u32 {sr(c.sS)}, {sr(c.sMode)}')
        a(f's_cselect_b32 {sr(c.sMode)}, 0, 1')
    a(f's_cmp_lg_u32 {sW}, 0')
    a(f's_cbranch_scc1 {Lr}')
    cT = c.sB1; assert c.sO2 == cT + 3
    a(f's_lshr_b32 {sr(cT)}, {sr(c.sT+3)}, 5')
    a(f's_and_b32 {sr(cT+1)}, {sr(c.sT+3)}, 31')
    ssum(a, sr(cT), sr(cT+1), [(sr(cT), 14), (sr(cT+1), 8)], 0x100000)
    a(f's_add_u32 {sr(cT)}, {sr(cT)}, {sr(c.sPart)}')
    a(f's_add_u32 {sr(cT+1)}, {sr(cT)}, 8192')
    a(f'v_lshlrev_b32 v2, 2, v0')
    for k in range(2): a(f'buffer_store_dword v4, v2, {WS}, {sr(cT+k)} offen sc1')
    a(f's_mov_b32 {sr(cT+2)}, 0')
    a(f's_mov_b32 {sr(c.sSpin)}, 100000')
    a('s_waitcnt vmcnt(0)')
    pst(0)
    for k in (cal if calr == 0 else ()):
        Lc = a.lab('cal')
        a(f'buffer_store_dword v4, v2, {WS}, {sr(cT+k)} offen sc1')
        a(f'{Lc}:')
        a(f's_getreg_b32 {sr(cT+3)}, hwreg(HW_REG_IB_STS, 0, 4)')
        a(f's_add_u32 {sr(cT+2)}, {sr(cT+2)}, {-1 if k else 1}')
        a(f's_sub_u32 {sr(c.sSpin)}, {sr(c.sSpin)}, 1')
        a(f's_cselect_b32 {sr(cT+3)}, 0, {sr(cT+3)}')
        a(f's_cmp_lg_u32 {sr(cT+3)}, 0')
        a(f's_cbranch_scc1 {Lc}')
    for r in range(calr):
        for k in (0, 1):
            Lc = a.lab('cal')
            a(f'buffer_store_dword v4, v2, {WS}, {sr(cT+k)} offen sc1')
            a(f'buffer_store_dword v4, v2, {WS}, {sr(cT+1-k)} offen sc1')
            a(f's_mov_b32 {sr(c.sSpin)}, {calc}')
            a('s_waitcnt vmcnt(1)')
            a(f'{Lc}:')
            a(f's_getreg_b32 {sr(cT+3)}, hwreg(HW_REG_IB_STS, 0, 4)')
            a(f's_cmp_eq_u32 {sr(cT+3)}, 0')
            a(f's_cbranch_scc1 {Lc}x')
            a(f's_sub_u32 {sr(c.sSpin)}, {sr(c.sSpin)}, 1')
            a(f's_cbranch_scc0 {Lc}')
            a(f'{Lc}x:')
            a('s_waitcnt vmcnt(0)')
            a(f'{"s_sub_u32" if k else "s_add_u32"} {sr(cT+2)}, {sr(cT+2)}, {sr(c.sSpin)}')
    a(f's_cmp_gt_i32 {sr(cT+2)}, 0')
    a(f's_cselect_b32 {sr(cT+2)}, 65, 1')
    a(f's_add_u32 {sr(cT+2)}, {sr(cT+2)}, {sr(c.sMode)}')
    a(f's_lshl_b32 {sr(cT+3)}, {sr(sX)}, 2')
    a(f'v_mov_b32 v6, {sr(cT+2)}')
    pst(1)
    a('s_barrier')
    a(f's_mov_b64 exec, 1')
    a(f'buffer_atomic_add v6, off, {sr(SD,4)}, {sr(cT+3)} sc1')
    a(f's_mov_b64 exec, -1')
    if diag:
        a('s_waitcnt lgkmcnt(0)')
        ssum(a, sr(c.sT+1), None, [(sr(c.sT+3), 5)], STAMP + 0x500000)
        a(f'v_mov_b32 v4, {sr(rt0)}')
        for i in range(2): a(f'v_mov_b32 v{5+i}, {sr(wS+2*i)}')
        a(f'v_mov_b32 v7, {sr(c.sMode)}')
        a(f'buffer_store_dwordx4 v[4:7], off, {WS}, {sr(c.sT+1)}')
    a(f's_branch {Lr}2')
    a(f'{Lr}:')
    a('s_waitcnt vmcnt(0)')
    a('s_barrier')
    a(f'{Lr}2:')
    for i in range(xc): a('s_sleep 127')
    if tr: tr.init()
    a(f's_cmp_ge_u32 {sW}, 4')
    a(f's_cbranch_scc1 {name}_c')
    bwave(a, c, Lfin, tr, getpar, Ldone)
    a(f'{name}_c:')
    cwave(a, c, Lfin, tr, getpar, Ldone)
    def chain_diag():
        a(f's_memrealtime {sr(rt1,2)}')
        a(f's_memtime {sr(ct1,2)}')
        a('s_waitcnt vmcnt(0) lgkmcnt(0)')
        a(f's_sub_u32 {sr(ct1)}, {sr(ct1)}, {sr(ct0)}')
        a(f's_lshl_b32 {sr(ct1)}, {sr(ct1)}, 1')
        a(f's_add_u32 {sr(c.sMode)}, {sr(c.sMode)}, {sr(ct1)}')
        ssum(a, sr(c.sT), sr(c.sT+1), [(sr(c.sG), 13), (sr(c.sC), 9), (sW, 6)], STAMP)
        vals = [sr(rt0), sr(rt1), sr(c.sSpin), sr(c.sS), sr(c.sMode), sr(sJob)] + ([sr(tr.acc+i) for i in range(6)] if trace == 1 else [])
        a(f'v_mov_b32 v1, {sr(c.sT)}')
        for i, x in enumerate(vals):
            a(f'v_mov_b32 v2, {x}')
            a(f'buffer_store_dword v2, v1, {WS}, 0 offen offset:{4*i}')
    a(f'{Lfin}:')
    if diag: chain_diag()
    a(f'{Lend}:')
    a('s_endpgm')
    a(f'{Ldone}:')
    if diag: chain_diag()
    if not join: a('s_endpgm')
    a(f'v_mbcnt_lo_u32_b32 v0, -1, 0')
    a(f'v_mbcnt_hi_u32_b32 v0, -1, v0')
    a(f's_lshl_b32 {sr(c.sT)}, {sW}, 6')
    a(f'v_add_u32 v0, {sr(c.sT)}, v0')
    a(f's_mov_b32 {sr(sJob)}, -1')
    a(f'{Lwork}:')
    wr = Regs(c.SWS + 4, 100, 's')
    sQo = wr.get(); sSig = wr.get(); sInc = wr.get(); sSp = wr.get(); t0 = wr.get(4, 2); jt = wr.get(2, 2); sChk = wr.get()
    wb = wr.p
    Lloop = a.lab('w_loop'); Lnext = a.lab('w_next'); Lsig = a.lab('w_sig')
    def pop():
        Lp = a.lab('w_pop')
        a(f's_cmp_lg_u32 {sW}, 0')
        a(f's_cbranch_scc1 {Lp}')
        a(f's_mov_b64 exec, 1')
        a(f'v_mov_b32 v255, 1')
        a(f'buffer_atomic_add v255, off, {sr(SD,4)}, {sr(sQo)} sc0 sc1')
        a(f's_mov_b64 exec, -1')
        a(f'{Lp}:')
    def dep(off, cnt, allw=False):
        Lx = a.lab('dp'); Ly = a.lab('dpx')
        a(f's_cmp_lg_u32 {sW}, 0')
        a(f's_cbranch_scc1 {Ly}')
        a(f's_mov_b32 {sr(sSp)}, {SPIN}')
        a(f'{Lx}:')
        for k, o in enumerate(off): a(f'buffer_load_dword v{1+k}, off, {WS}, {o} sc1')
        a(f's_sub_u32 {sr(sSp)}, {sr(sSp)}, 1')
        a(f's_cbranch_scc1 {Lend}')
        a('s_waitcnt vmcnt(0)')
        for k in range(len(off)):
            a(f'v_cmp_gt_u32 vcc, {cnt[k]}, v{1+k}')
            a(f's_cbranch_vccnz {Lx}_s')
        a(f's_branch {Ly}')
        a(f'{Lx}_s:')
        a(f's_sleep {rsl}')
        a(f's_branch {Lx}')
        a(f'{Ly}:')
        a('s_barrier')
    ssum(a, sr(sQo), None, [(sr(sX), 2)], 128)
    ssum(a, sr(sJp), None, [(sW, 10)], JSLOT)
    a(f's_mov_b32 {sr(sInc)}, 0')
    a(f's_mov_b32 {sr(sChk)}, 1')
    Lfirst = a.lab('w_first'); Lnc = a.lab('w_nc')
    def jlog(J):
        a(f's_memrealtime {sr(jt,2)}')
        a('s_waitcnt lgkmcnt(0)')
        a(f'v_mov_b32 v4, {sr(jt)}')
        a(f'v_lshl_add_u32 v5, {J}, 8, {sr(sQo)}')
        a(f'buffer_store_dwordx2 v[4:5], off, {WS}, {sr(sLog)}')
        a(f's_add_u32 {sr(sLog)}, {sr(sLog)}, 8')
    if diag:
        a(f'v_mov_b32 v2, {sr(sJob)}')
        a(f's_cmp_lg_u32 {sW}, 0')
        a(f's_cbranch_scc1 {Lwork}_nl')
        jlog('v2')
        a(f'{Lwork}_nl:')
    a(f's_cmp_lg_u32 {sr(sJob)}, -1')
    a(f's_cbranch_scc1 {Lfirst}0')
    pop()
    a(f'{Lnext}:')
    a('s_waitcnt vmcnt(0)')
    a(f'v_mov_b32 v1, {sr(sJp)}')
    a(f's_cmp_lg_u32 {sW}, 0')
    a(f's_cbranch_scc1 {Lsig}')
    a(f's_cmp_eq_u32 {sr(sChk)}, 0')
    a(f's_cbranch_scc1 {Lnc}')
    arrived(4, Lend, sr(sSp))
    a(f's_mov_b32 {sr(sChk)}, 0')
    a(f'{Lnc}:')
    a(f'v_readfirstlane_b32 {sr(t0+1)}, v255')
    a(f's_cmp_eq_u32 {sr(sQo)}, 144')
    a(f's_cselect_b32 {sr(t0)}, 0, 32')
    a(f's_add_u32 {sr(t0)}, {sr(t0)}, {sr(t0+1)}')
    a(f'v_mov_b32 v2, {sr(t0)}')
    a(f'v_and_b32 v3, 7, v0')
    a(f'v_lshl_add_u32 v3, v3, 10, v1')
    a(f'ds_write_b32 v3, v2')
    a('s_waitcnt lgkmcnt(0)')
    a(f'{Lsig}:')
    a('s_barrier')
    a(f'ds_read_b32 v2, v1')
    a(f's_xor_b32 {sr(sJp)}, {sr(sJp)}, 4')
    Lns = a.lab('w_ns'); Lnp = a.lab('w_np')
    a(f's_cmp_lg_u32 {sW}, 0')
    a(f's_cbranch_scc1 {Lnp}')
    a(f's_cmp_eq_u32 {sr(sInc)}, 0')
    a(f's_cbranch_scc1 {Lns}')
    a(f'v_lshlrev_b32 v4, 7, v0')
    a(f'v_mov_b32 v3, 1')
    a(f's_mov_b32 exec_lo, {sr(sInc)}')
    a(f's_mov_b32 exec_hi, 0')
    a(f'buffer_atomic_add v3, v4, {WS}, {sr(sSig)} offen sc1')
    a(f's_mov_b64 exec, -1')
    a(f'{Lns}:')
    if diag: jlog('v2')
    a(f'{Lnp}:')
    a('s_waitcnt lgkmcnt(0)')
    a(f'v_readfirstlane_b32 {sr(sJob)}, v2')
    a(f's_mov_b32 {sr(sInc)}, 0')
    Lred = a.lab('w_red'); Lsw = a.lab('w_sw'); Lgo = a.lab('w_go')
    a(f's_mov_b32 {sr(t0)}, {Q_END}')
    a(f's_cmp_eq_u32 {sr(sQo)}, 144')
    a(f's_cselect_b32 {sr(t0)}, {NRED}, {sr(t0)}')
    a(f's_cmp_ge_u32 {sr(sJob)}, {sr(t0)}')
    a(f's_cbranch_scc1 {Lsw}')
    a(f'{Lfirst}:')
    a(f's_cmp_eq_u32 {sr(sQo)}, 144')
    a(f's_cbranch_scc1 {Lred}')
    Lbig = a.lab('w_big'); Lsm = a.lab('w_sm'); Lkva = a.lab('w_kva'); Lgate = a.lab('w_gate'); Lqa = a.lab('w_qa'); Latt = a.lab('w_att'); Lfn = a.lab('w_fin')
    def mk(TN, TM, dual, RW, **mp):
        s = Regs(wb, 100, 's'); v = Regs(1, 252)
        g = GemmR(a, GemmCfgR(TN, TM, dual=dual, RW=RW), s, v, SO=c.SWS, sWv=c.sW); g.storemod = stm; g.bar1 = mp.pop('bar1', 0); g.mp = mp
        return g, s
    gp = gp or {}
    gB, sB = mk(256, 256, True, 4, **gp.get('B', dict(bar1=1,egap=4))); gS, _ = mk(256, 128, True, rws, **gp.get('S', dict(bar1=1,rgap=1,egap=4))); gF, _ = mk(128, 128, False, rwf, **gp.get('F', dict(bar1=1,rgap=1)))
    sRow = sB.get(); sTile = sB.get(); sPx = sB.get(); pT = sB.get(2)
    J = sr(sJob)
    a(f's_cmp_ge_u32 {J}, {Q_ATT}')
    a(f's_cbranch_scc1 {Latt}')
    a(f's_cmp_ge_u32 {J}, {Q_B2}')
    a(f's_cbranch_scc1 {Lbig}')
    a(f's_mul_i32 {sr(sRow)}, {J}, 43691')
    a(f's_lshr_b32 {sr(sRow)}, {sr(sRow)}, 19')
    a(f's_mul_i32 {sr(t0+1)}, {sr(sRow)}, 12')
    a(f's_sub_u32 {sr(sTile)}, {J}, {sr(t0+1)}')
    def kqv(g, inc):
        TM = g.c.TM
        Lv = a.lab('w_v'); Lj = a.lab('w_j'); Lnopx = a.lab('w_nopx')
        a(f's_load_dwordx2 {sr(g.SX,2)}, s[0:1], {A_X}')
        a(f's_mov_b32 {sr(sInc)}, {inc}')
        a(f's_lshl_b32 {sr(t0+2)}, {sr(sX)}, 3')
        a(f's_cmp_ge_u32 {sr(sTile)}, 8')
        a(f's_cbranch_scc1 {Lv}')
        a(f's_load_dwordx2 {sr(g.SW,2)}, s[0:1], {B_WQ}')
        a(f's_load_dwordx2 {sr(g.SW2,2)}, s[0:1], {B_WK}')
        a(f's_add_u32 {sr(t0+2)}, {sr(t0+2)}, {sr(sTile)}')
        a(f's_lshl_b32 {sr(t0)}, {sr(t0+2)}, 8')
        a(f's_mov_b32 {sr(t0+1)}, {sr(t0)}')
        a(f's_bitcmp1_b32 {sW}, 1')
        a(f's_mov_b32 {sr(g.sOB)}, {QX}')
        a(f's_cselect_b32 {sr(g.sOB)}, {KX-8192}, {sr(g.sOB)}')
        a(f's_cselect_b32 {sr(g.sScale)}, {SCL:#x}, 1.0')
        a(f's_branch {Lj}')
        a(f'{Lv}:')
        a(f's_load_dwordx2 {sr(g.SW,2)}, s[0:1], {B_WV}')
        a(f's_load_dwordx2 {sr(g.SW2,2)}, s[0:1], {B_WV}')
        a(f's_lshl_b32 {sr(t0)}, {sr(sTile)}, 1')
        a(f's_add_u32 {sr(t0+2)}, {sr(t0+2)}, {sr(t0)}')
        a(f's_sub_u32 {sr(t0+2)}, {sr(t0+2)}, 16')
        a(f's_lshl_b32 {sr(t0)}, {sr(t0+2)}, 8')
        a(f's_add_u32 {sr(t0+1)}, {sr(t0)}, 256')
        a(f's_mov_b32 {sr(g.sOB)}, {VX}')
        a(f's_mov_b32 {sr(g.sScale)}, 1.0')
        a(f'{Lj}:')
        ssum(a, sr(sPx), sr(t0+3), [(sr(sRow), 7), (sW, 5), (sr(t0+2), 0)])
        a(f's_lshl_b32 {sr(t0+3)}, {sr(sRow)}, 7')
        a(f's_lshr_b32 {sr(sSig)}, {sr(t0+2)}, 2')
        a(f's_lshl_b32 {sr(sSig)}, {sr(sSig)}, 11')
        a(f's_add_u32 {sr(sSig)}, {sr(sSig)}, {sr(t0+3)}')
        a(f's_add_u32 {sr(sSig)}, {sr(sSig)}, {RDY}')
        ssum(a, sr(t0+2), sr(t0+3), [(sr(t0+2), 13), (sr(sRow), 20)])
        a(f's_add_u32 {sr(g.sOB)}, {sr(g.sOB)}, {sr(t0+2)}')
        a(f's_mov_b32 {sr(g.sOM)}, 1')
        a(f's_mov_b32 {sr(g.sLdw)}, 8192')
        a(f's_mov_b32 {sr(t0+3)}, {1024*8192}')
        return Lnopx
    def run(g, Lnopx=None, scale=True, xws=None):
        TM = g.c.TM
        a(f's_mov_b32 {sr(g.sLdo)}, 2048')
        g.setup_g()
        a(f's_lshl_b32 {sr(t0+2)}, {sr(sRow)}, 18')
        a('s_waitcnt lgkmcnt(0)')
        if xws is None: srd(a, g.SX, sr(g.SX), sr(g.SX+1), TM*2048, off=sr(t0+2))
        else:
            a(f's_add_u32 {sr(t0+2)}, {sr(t0+2)}, {xws}')
            srd(a, g.SX, sr(kWs), sr(kWs+1), TM*2048, off=sr(t0+2))
        a(f's_sub_u32 {sr(t0+2)}, {sr(t0+3)}, {sr(t0)}')
        srd(a, g.SW, sr(g.SW), sr(g.SW+1), sr(t0+2), off=sr(t0))
        if g.c.dual:
            a(f's_sub_u32 {sr(t0+2)}, {sr(t0+3)}, {sr(t0+1)}')
            srd(a, g.SW2, sr(g.SW2), sr(g.SW2+1), sr(t0+2), off=sr(t0+1))
        a(f's_bfe_u32 {sr(t0)}, {sr(sRow)}, {(rot<<16) + (0 if TM == 128 else 1)}')
        g.order(sr(t0))
        mark(9)
        g.issue0()
        g.setup_l()
        g.main(**g.mp)
        pop()
        mark(10)
        if g.c.dual:
            a(f's_cmp_lt_u32 {sr(sTile)}, 8')
            a(f's_cselect_b64 vcc, -1, 0')
        g.epilogue(scale=scale, xch=g.c.dual)
        mark(11)
    Lpx = a.lab('w_px')
    kqv(gS, 1)
    run(gS)
    a(f's_cmp_ge_u32 {sr(sTile)}, 8')
    a(f's_cbranch_scc1 {Lnext}')
    a('s_waitcnt lgkmcnt(0)')
    a('s_barrier')
    a(f's_cmp_ge_u32 {sW}, 4')
    a(f's_cbranch_scc1 {Lnext}')
    a(f's_branch {Lpx}')
    a(f'{Lbig}:')
    a(f's_cmp_ge_u32 {J}, {Q_B4}')
    a(f's_cselect_b32 {sr(t0)}, {Q_B4-48}, {Q_B2-24}')
    a(f's_cbranch_scc1 {Lbig}1')
    a(f's_cmp_ge_u32 {J}, {Q_QA}')
    a(f's_cbranch_scc1 {Lqa}')
    a(f's_cmp_ge_u32 {J}, {Q_KVA}')
    a(f's_cbranch_scc1 {Lkva}')
    a(f'{Lbig}1:')
    a(f's_sub_u32 {sr(t0)}, {J}, {sr(t0)}')
    a(f's_mul_i32 {sr(sRow)}, {sr(t0)}, 43691')
    a(f's_lshr_b32 {sr(sRow)}, {sr(sRow)}, 19')
    a(f's_mul_i32 {sr(t0+1)}, {sr(sRow)}, 12')
    a(f's_sub_u32 {sr(sTile)}, {sr(t0)}, {sr(t0+1)}')
    a(f's_lshl_b32 {sr(sRow)}, {sr(sRow)}, 1')
    a(f'{Lbig}2:')
    kqv(gB, 3)
    a(f'{Lbig}3:')
    run(gB)
    a(f's_cmp_ge_u32 {sr(sTile)}, 8')
    a(f's_cbranch_scc1 {Lnext}')
    a('s_waitcnt lgkmcnt(0)')
    a('s_barrier')
    a(f'{Lpx}:')
    x = px_setup(a, Regs(1, 116))
    px_job(a, x, sr(sPx), c.SWS, pT, stm, lds=sW)
    a(f's_branch {Lnext}')
    a(f'{Lqa}:')
    g = gB
    a(f's_load_dwordx2 {sr(g.SX,2)}, s[0:1], {A_X}')
    a(f's_load_dwordx2 {sr(g.SW,2)}, s[0:1], {A_WQ}')
    a(f's_load_dwordx2 {sr(g.SW2,2)}, s[0:1], {A_WQ}')
    a(f's_sub_u32 {sr(t0)}, {J}, {Q_QA}')
    a(f's_lshr_b32 {sr(t0+1)}, {sr(t0)}, 2')
    ssum(a, sr(sRow), sr(t0+2), [(sr(sX), 2), (sr(t0+1), 1)])
    ssum(a, sr(sSig), None, [(sr(sRow), 6)], QAC)
    a(f's_mov_b32 {sr(sInc)}, 1')
    a(f's_and_b32 {sr(t0)}, {sr(t0)}, 3')
    a(f's_lshl_b32 {sr(t0)}, {sr(t0)}, 9')
    a(f's_add_u32 {sr(t0+1)}, {sr(t0)}, 256')
    ssum(a, sr(g.sOB), None, [(sr(sRow), 18)], QA)
    a(f's_add_u32 {sr(g.sOB)}, {sr(g.sOB)}, {sr(t0)}')
    a(f's_mov_b32 {sr(g.sScale)}, {f32bits(32**-0.5*LOG2E):#x}')
    a(f's_mov_b32 {sr(g.sOM)}, 0')
    a(f's_mov_b32 {sr(g.sLdw)}, 2048')
    a(f's_mov_b32 {sr(t0+3)}, {1024*2048}')
    a(f's_mov_b32 {sr(sTile)}, 8')
    a(f's_branch {Lbig}3')
    S0 = (wb + 3) // 4 * 4; sJ2 = S0 + 16; sCn = S0 + 17; aT = S0 + 18
    a(f'{Lkva}:')
    a(f's_mov_b32 {sr(sSig)}, {KVC}')
    a(f's_mov_b32 {sr(sInc)}, 1')
    a(f's_cmp_ge_u32 {J}, {Q_GATE}')
    a(f's_cbranch_scc1 {Lgate}')
    ssum(a, sr(sJ2), None, [(sr(sX), 1)])
    a(f's_add_u32 {sr(sJ2)}, {sr(sJ2)}, {J}')
    a(f's_sub_u32 {sr(sJ2)}, {sr(sJ2)}, {Q_KVA}')
    kva_job(a, sr(sJ2), sW, S0, t0, stm, pop)
    a(f's_branch {Lnext}')
    a(f'{Lgate}:')
    ssum(a, sr(sJ2), None, [(sr(sX), 1)])
    a(f's_add_u32 {sr(sJ2)}, {sr(sJ2)}, {J}')
    a(f's_sub_u32 {sr(sJ2)}, {sr(sJ2)}, {Q_GATE}')
    a(f's_lshl_b32 {sr(sJ2)}, {sr(sJ2)}, 2')
    a(f'{Lgate}1:')
    gate_job(a, sr(sJ2), sW, S0, t0, stm)
    a(f's_add_u32 {sr(sJ2)}, {sr(sJ2)}, 1')
    a(f's_and_b32 {sr(t0)}, {sr(sJ2)}, 3')
    a(f's_cbranch_scc1 {Lgate}1')
    pop()
    a(f's_branch {Lnext}')
    a(f'{Latt}:')
    a(f's_cmp_ge_u32 {J}, {Q_FIN}')
    a(f's_cbranch_scc1 {Lfn}')
    ssum(a, sr(sJ2), None, [(sr(sX), 5)])
    a(f's_add_u32 {sr(sJ2)}, {sr(sJ2)}, {J}')
    a(f's_sub_u32 {sr(sJ2)}, {sr(sJ2)}, {Q_ATT}')
    a(f's_lshr_b32 {sr(t0)}, {sr(sJ2)}, 3')
    ssum(a, sr(sSig), None, [(sr(t0), 7)], ATC)
    a(f's_mov_b32 {sr(sInc)}, 1')
    a(f's_lshr_b32 {sr(t0)}, {sr(sJ2)}, 4')
    ssum(a, sr(t0), None, [(sr(t0), 7)], QAC)
    a(f's_mov_b32 {sr(t0+1)}, {KVC}')
    dep([sr(t0), sr(t0+1)], [4, 16])
    attnA_job(a, sr(sJ2), sW, S0, aT, kWs, storemod=stm, late=pop)
    a(f's_branch {Lnext}')
    a(f'{Lfn}:')
    g = gF
    a(f's_load_dwordx2 {sr(g.SW,2)}, s[0:1], {A_WO}')
    a(f's_sub_u32 {sr(t0)}, {J}, {Q_FIN}')
    a(f's_lshr_b32 {sr(t0+1)}, {sr(t0)}, 3')
    ssum(a, sr(sRow), sr(t0+2), [(sr(sX), 2), (sr(t0+1), 0)])
    ssum(a, sr(sSig), None, [(sr(sRow), 7)], FNC)
    a(f's_mov_b32 {sr(sInc)}, 1')
    ssum(a, sr(t0+1), None, [(sr(sRow), 7)], ATC)
    dep([sr(t0+1)], [8])
    a(f's_and_b32 {sr(t0)}, {sr(t0)}, 7')
    a(f's_lshl_b32 {sr(t0)}, {sr(t0)}, 8')
    ssum(a, sr(g.sOB), None, [(sr(sRow), 18)], OPA)
    a(f's_add_u32 {sr(g.sOB)}, {sr(g.sOB)}, {sr(t0)}')
    a(f's_mov_b32 {sr(g.sOM)}, 0')
    a(f's_mov_b32 {sr(g.sLdw)}, 2048')
    a(f's_mov_b32 {sr(t0+3)}, {1024*2048}')
    run(g, scale=False, xws=OA)
    a(f's_branch {Lnext}')
    a(f'{Lfirst}0:')
    if xpf:
        a(f's_cmp_ge_u32 {sW}, 3')
        a(f's_cbranch_scc1 {Lfirst}')
        a(f's_load_dwordx2 {sr(S0,2)}, s[0:1], {A_X}')
        a(f'v_and_b32 v1, 63, v0')
        a(f'v_lshlrev_b32 v1, 7, v1')
        ssum(a, sr(t0), sr(t0+1), [(sW, 18), (J, 13)])
        a('s_waitcnt lgkmcnt(0)')
        srd(a, S0, sr(S0), sr(S0+1), 2048*2048)
        a(f'buffer_load_dword v252, v1, {sr(S0,4)}, {sr(t0)} offen')
    a(f's_branch {Lfirst}')
    a(f'{Lsw}:')
    a(f's_cmp_eq_u32 {sr(sQo)}, 144')
    a(f's_cbranch_scc1 {Lend}')
    a(f's_mov_b32 {sr(sQo)}, 144')
    pop()
    a(f's_branch {Lnext}')
    a(f'{Lred}:')
    SO = S0
    a(f's_load_dwordx2 {sr(SO,2)}, s[0:1], {D_OUT}')
    ssum(a, sr(sJ2), sr(t0), [(J, 3), (sW, 0)])
    x = red_setup(a, Regs(1, 255))
    a(f's_lshr_b32 {sr(t0)}, {J}, 3')
    ssum(a, sr(t0), None, [(sr(t0), 7)], FNC)
    a(f's_and_b32 {sr(t0+1)}, {sr(sJ2)}, 15')
    ssum(a, sr(t0+1), None, [(sr(t0+1), 10)], PROG)
    a(f's_lshr_b32 {sr(t0+2)}, {J}, 1')
    a(f'v_lshlrev_b32 v{x.T}, 3, v{x.L16}')
    a(f'v_and_b32 v{x.T}, 0x380, v{x.T}')
    a(f's_mov_b32 {sr(sSp)}, {SPIN}')
    a('s_waitcnt lgkmcnt(0)')
    srd(a, SO, sr(SO), sr(SO+1), 2048*2048)
    Lx = a.lab('rd_p'); Ly = a.lab('rd_g')
    a(f'{Lx}:')
    a(f'buffer_load_dword v{x.t}, v{x.T}, {WS}, {sr(t0+1)} offen sc1')
    a(f'buffer_load_dword v{x.t+1}, off, {WS}, {sr(t0)} sc1')
    a(f's_sub_u32 {sr(sSp)}, {sr(sSp)}, 1')
    a(f's_cbranch_scc1 {Lend}')
    a('s_waitcnt vmcnt(0)')
    a(f'v_cmp_ge_u32 {sr(jt,2)}, {sr(t0+2)}, v{x.t}')
    a(f'v_cmp_gt_u32 vcc, 8, v{x.t+1}')
    a(f's_or_b64 vcc, vcc, {sr(jt,2)}')
    a(f's_cbranch_vccz {Ly}')
    a(f's_sleep {rsl}')
    a(f's_branch {Lx}')
    a(f'{Ly}:')
    pop()
    red_job(a, x, sr(sJ2), c.SWS, SO, aT)
    a(f's_branch {Lnext}')
    a.pad()
    return a.text() + kd(name, 256, 256), 163840

if __name__ == '__main__':
    import sys
    from build import HDR
    NAME = 'gated_mix__grouped_kv_mqa__memory_aug_recurrent_mem_tr__prompt_kernel'
    kw = dict(diag=True); kw.update(eval('dict(' + (sys.argv[2] if len(sys.argv) > 2 else '') + ')'))
    lst = kw.pop('lst', True)
    t, l = gen_k5('fused_kernel' if lst else NAME, **kw)
    if lst: o = HDR + f'; @launch kernel=fused_kernel grid=(256,1,1) block=(512,1,1) lds={l}\n'
    else: o = HDR + f'; @launch grid=(256,1,1) block=(512,1,1) lds={l}\n'
    o += '.amdgcn_target "amdgcn-amd-amdhsa--gfx950"\n.text\n' + t
    open(sys.argv[1], 'w').write(o)
```

```python
from asm import *
from layout import *
from small import srd

NSTEP = 64
SPIN = 400000
P = dict(d1=3, dm=2, dq=1, vint=3, nv1=8, nox=0, bprio=2, cprio=2, dx=0, probe=None, nov=0, nokq=0, noop=0, opm=' sc1', fused=0, pf=1, pfg=128, pfa=0, pfb=13, prog=1, d0=3, optop=1, armtop=0, noflag=1, larm=2, fsl=0, nvc=4, kqtop=1, vfirst=1, fo=7, cst=0, bst=0, vl=2, cx=4, cm='', om=' nt', fix=1, np1=1, ds1=2, nq=1, dq2=3, smp=0, ap=0, an=10, dsp=2, vf=1, amin=0, asl=2, a1=0, ve=1, opn=0, ef=3, f2=0, tail=1, tmk=0, tdl=8, warm=1, tom=' sc1')
SCL = f32bits(128**-0.5*LOG2E)
QI = 0; KI = 2560; KF = 8192; CO = 16384; FLAG = 24576; XR = 28672; XO = 32768; VB = 65536

class ChainCtx: pass

def chain_common(a, sreg):
    c = ChainCtx()
    c.sW = sreg.get(); c.sG = sreg.get(); c.sC = sreg.get(); c.sMode = sreg.get()
    c.SWS = sreg.get(4, 4); c.SA = sreg.get(4, 4); c.SB = sreg.get(4, 4); c.SC = sreg.get(4, 4)
    c.sS = sreg.get(); c.sSlot = sreg.get(); c.sArm = sreg.get(); c.sSpin = sreg.get()
    c.sT = sreg.get(4, 2); c.sAr = sreg.get(); c.sD = sreg.get(); c.sFb = sreg.get(); c.sMask = sreg.get(2, 2)
    c.sB1 = sreg.get(); c.sB2 = sreg.get(); c.sO1 = sreg.get(); c.sO2 = sreg.get(); c.sV = sreg.get(); c.sM0 = sreg.get()
    c.sPart = sreg.get()
    c.sRd = sreg.get(); c.sRv = sreg.get(); c.sPg = sreg.get(); c.sPf = sreg.get(); c.sPp = sreg.get(); c.sJk = sreg.get()
    c.sMS = sreg.get(); c.sO3 = sreg.get(); c.sVP = sreg.get(); c.sO4 = sreg.get(); c.sQA = sreg.get(); c.sOP = sreg.get(); c.sXb = sreg.get()
    return c

def bits(a, D, L, T, spec, base=None):
    first = True
    for mask, sh in spec:
        a(f'v_and_b32 v{T}, {mask}, v{L}')
        if sh < 0:
            a(f'v_lshrrev_b32 v{T}, {-sh}, v{T}'); sh = 0
        if first: a(f'v_lshlrev_b32 v{D}, {sh}, v{T}')
        else: a(f'v_lshl_add_u32 v{D}, v{T}, {sh}, v{D}')
        first = False
    if base is not None: a(f'v_add_u32 v{D}, {base}, v{D}')

def ssum(a, D, T, terms, const=0):
    first = True
    for r, sh in terms:
        if first: a(f's_lshl_b32 {D}, {r}, {sh}')
        else:
            a(f's_lshl_b32 {T}, {r}, {sh}'); a(f's_add_u32 {D}, {D}, {T}')
        first = False
    if const: a(f's_add_u32 {D}, {D}, {const}')

def delay(a, n):
    if n > 0: a(f's_sleep {n}')

def spin(a, c, Lend):
    a(f's_sub_u32 {sr(c.sSpin)}, {sr(c.sSpin)}, 1')
    a(f's_cbranch_scc1 {Lend}')

def make_sel(a, SEL, L, T, T2, mask=6, mul=2):
    bits(a, T2, L, T, [(1, 4)])
    a(f'v_mov_b32 v{T}, 0x3f80')
    a(f'v_lshlrev_b32 v{T2}, v{T2}, v{T}')
    a(f'v_and_b32 v{T}, {mask}, v{L}')
    for p in range(4):
        a(f'v_cmp_eq_u32 vcc, {mul*p}, v{T}')
        a(f'v_cndmask_b32 v{SEL+p}, 0, v{T2}, vcc')

PERM4 = [(1, 2), (12, 3), (2, 6), (48, -1)]

def bwave(a, c, Lend, tr=None, getpar=None, Ldone=None):
    b = sr(c.sW); T0 = c.sT
    v = Regs(1, 256)
    L8 = 0
    T = v.get(); L16 = v.get()
    vL2 = v.get(); vLW = v.get(); vLWv = v.get(); vLR = v.get(); vIdx = v.get(); vFl = v.get(); vMP = v.get()
    M1 = v.get(2, 2); PK = v.get(2, 2); vPA = v.get(); SEL = v.get(4, 4)
    AF = v.get(16, 4); ACC = v.get(24, 4); W = v.get(192, 4)
    T2 = PK; L = ACC; vMS = ACC + 1
    WS = sr(c.SWS, 4)
    sDone = c.sAr; sNew = c.sFb
    a(f's_load_dwordx2 {sr(c.SA,2)}, s[0:1], {B_WQ}')
    a(f's_load_dwordx2 {sr(c.SB,2)}, s[0:1], {B_WK}')
    a(f's_load_dwordx2 {sr(c.SC,2)}, s[0:1], {B_WV}')
    a(f'v_and_b32 v{L}, 63, v0')
    a(f'v_lshlrev_b32 v{L16}, 4, v{L}')
    a(f'v_lshlrev_b32 v{L8}, 3, v{L}')
    a(f's_lshl_b32 {sr(T0)}, {sr(c.sG)}, 4')
    a(f's_add_u32 {sr(T0)}, {sr(T0)}, {sr(c.sC)}')
    ssum(a, sr(T0+2), sr(T0+1), [(b, 21), (sr(T0), 6)])
    bits(a, vL2, L, T, [(60, 11), (3, 4)], sr(T0+2))
    a(f's_mul_i32 {sr(T0+3)}, {b}, 24576')
    bits(a, vMS, L, T, [(12, 4), (48, 5), (3, 3)], sr(T0+3))
    a('s_waitcnt lgkmcnt(0)')
    for S in (c.SA, c.SB, c.SC): srd(a, S, sr(S), sr(S+1), 1024*8192)
    a(f's_and_b32 {sr(c.sO1)}, {sr(T0)}, 1')
    a(f's_mul_i32 {sr(c.sO1)}, {sr(c.sO1)}, {P["cx"]*1024}')
    a(f's_lshl_b32 {sr(c.sO2)}, {sr(c.sO1)}, 7')
    if P['fix']:
        bits(a, vLW, L, T, [(62, 15), (1, 10)])
        ssum(a, sr(T0+1), sr(T0+2), [(b, 21), (sr(T0), 6)])
        a(f's_and_b32 {sr(T0+1)}, {sr(T0+1)}, {(3<<21)+(3<<11)}')
        a(f's_and_b32 {sr(T0+2)}, {sr(T0)}, 7')
        a(f's_lshl_b32 {sr(T0+2)}, {sr(T0+2)}, 13')
        a(f's_add_u32 {sr(T0+1)}, {sr(T0+1)}, {sr(T0+2)}')
        Lf = a.lab('b_fx')
        for ty, S in enumerate((c.SA, c.SB, c.SC)):
            a(f's_bfe_u32 {sr(T0+2)}, {sr(T0)}, {(2<<16)+3}')
            a(f's_cmp_lg_u32 {sr(T0+2)}, {ty}')
            a(f's_cbranch_scc1 {Lf}{ty}')
            a(f's_sub_u32 {sr(T0+2)}, 384, {sr(S)}')
            a(f's_and_b32 {sr(T0+2)}, {sr(T0+2)}, 1023')
            a(f's_add_u32 {sr(T0+1)}, {sr(T0+1)}, {sr(T0+2)}')
            a(f'buffer_load_dword v{vLWv}, v{vLW}, {sr(S,4)}, {sr(T0+1)} offen')
            a(f'{Lf}{ty}:')
    def wdma(rho, ty):
        S = (c.SA, c.SB, c.SC)[ty]
        for m in range(8):
            a(f's_xor_b32 {sr(T0+2)}, {sr(c.sO2)}, {(128*rho+16*m)*8192}')
            a(f's_xor_b32 {sr(T0+1)}, {sr(c.sO1)}, {ty*8192+m*1024}')
            a(f's_add_u32 m0, {sr(T0+3)}, {sr(T0+1)}')
            a(f'buffer_load_dwordx4 v{vL2}, {sr(S,4)}, {sr(T0+2)} offen{P["cm"]} lds')
    for ty in range(3): wdma(0, ty)
    for rho in range(2):
        for ty in range(3):
            a(f's_waitcnt vmcnt({16 if rho == 0 else 16 - 8*ty})')
            for t in (2*ty, 2*ty+1):
                for jj in range(2):
                    for q in range(4):
                        off = (t >> 1) * 8192 + (jj * 64 + 32 * (q >> 1) + 4 * (q & 1)) * 64 + (t & 1) * 32
                        a(f'ds_read_b64_tr_b16 {vr(W+(t*4+2*rho+jj)*8+2*q,2)}, v{vMS} offset:{off}')
                a('s_waitcnt lgkmcnt(0)')
            if rho == 0: wdma(1, ty)
    c.mark(1)
    a(f's_load_dwordx2 {sr(c.SA,2)}, s[0:1], {B_MEM0}')
    if P['tail']: a(f's_load_dwordx2 {sr(c.SB,2)}, s[0:1], {D_OUT}')
    if getpar: getpar(AF)
    c.mark(2)
    ssum(a, sr(c.sB1), sr(T0+1), [(sr(c.sC), 14), (b, 11)])
    a(f's_add_u32 {sr(c.sB1)}, {sr(c.sB1)}, {sr(c.sPart)}')
    ssum(a, sr(c.sD), sr(T0+1), [(sr(c.sG), 7)])
    a(f's_add_u32 {sr(c.sD)}, {sr(c.sD)}, {sr(c.sB1)}')
    a(f's_and_b32 {sr(T0+2)}, {sr(c.sG)}, 1')
    a(f's_lshr_b32 {sr(T0+3)}, {sr(c.sG)}, 1')
    ssum(a, sr(T0+1), None, [(sr(T0+2), 10)])
    a(f's_add_u32 {sr(c.sB1)}, {sr(c.sB1)}, {sr(T0+1)}')
    ssum(a, sr(c.sB2), sr(T0+1), [(sr(T0+3), 14), (b, 12)], MEMB)
    ssum(a, sr(c.sMS), sr(T0+1), [(sr(T0+3), 14), (sr(c.sC), 10), (b, 8), (sr(T0+2), 7)], MEMB)
    bits(a, vMP, L, T, [(48, 1), (7, 2)])
    bits(a, vPA, L, T, [(32, 5), (31, 2)])
    a(f's_lshr_b32 {sr(T0+2)}, {sr(T0)}, 2')
    a(f's_and_b32 {sr(T0+3)}, {sr(T0)}, 3')
    ssum(a, sr(c.sVP), sr(T0+1), [(sr(T0+2), 13), (sr(T0+3), 9), (b, 7)], QKV)
    ssum(a, sr(c.sQA), sr(T0+1), [(sr(T0), 11), (b, 9)], QKV)
    if P['opn']:
        a(f's_lshr_b32 {sr(T0+2)}, {sr(c.sC)}, 1')
        a(f's_and_b32 {sr(T0+3)}, {sr(c.sC)}, 1')
        ssum(a, sr(c.sOP), sr(T0+1), [(sr(c.sG), 23), (sr(T0+2), 14), (sr(T0+3), 12), (b, 10)], 0x9000000 - 131072)
        a(f's_lshr_b32 {sr(T0+1)}, {sr(c.sPart)}, 8')
        a(f's_xor_b32 {sr(T0+1)}, {sr(T0+1)}, {sr(c.sPart)}')
        a(f's_and_b32 {sr(T0+1)}, {sr(T0+1)}, 8192')
        if P['opn'] == 2: a(f's_xor_b32 {sr(T0+1)}, {sr(T0+1)}, 8192')
        a(f's_add_u32 {sr(c.sOP)}, {sr(c.sOP)}, {sr(T0+1)}')
    else: ssum(a, sr(c.sOP), sr(T0+1), [(sr(c.sG), 22), (sr(c.sC), 12), (b, 10)], OP - 65536 + (1 << 30 if P['ap'] else 0))
    ssum(a, sr(c.sXb), sr(T0+1), [(b, 10)], XO + 16384)
    a(f'v_lshlrev_b32 v{vL2}, 1, v{L}')
    a(f's_lshr_b32 {sr(T0+1)}, {b}, 1')
    a(f's_mul_i32 {sr(T0+1)}, {sr(T0+1)}, 1280')
    a(f's_and_b32 {sr(T0+2)}, {b}, 1')
    a(f's_lshl_b32 {sr(T0+2)}, {sr(T0+2)}, 2')
    a(f's_add_u32 {sr(T0+1)}, {sr(T0+1)}, {sr(T0+2)}')
    bits(a, vLW, L, T, [(15, 5), (15, 3), (48, -1)], sr(T0+1))
    ssum(a, sr(T0+1), sr(T0+2), [(b, 10)], KF)
    bits(a, vLWv, L, T, [(1, 2), (2, 4), (12, 1), (16, 4), (32, 2)], sr(T0+1))
    ssum(a, sr(T0+1), sr(T0+2), [(b, 8)], KF)
    bits(a, vLR, L, T, [(63, 2)], sr(T0+1))
    bits(a, vFl, L, T, [(3, 2)], FLAG)
    a(f'v_and_b32 v{T}, 2, v{L}')
    a(f'v_cmp_eq_u32 vcc, 0, v{T}')
    a(f'v_mov_b32 v{T}, 0xeeeeeeee')
    a(f'v_mov_b32 v{T2}, 0x44444444')
    a(f'v_cndmask_b32 v{vIdx}, v{T}, v{T2}, vcc')
    a(f'v_mov_b32 v{M1}, -1')
    a(f'v_mov_b32 v{M1+1}, -1')
    make_sel(a, SEL, L, T, T2, 14, 4)
    bits(a, T2, L, T, [(1, 11), (12, 10), (2, 1), (48, 1)])
    a(f's_lshl_b32 {sr(T0+1)}, {b}, 9')
    a('s_waitcnt lgkmcnt(0)')
    srd(a, c.SA, sr(c.SA), sr(c.SA+1), 16384)
    for j in range(4):
        for p in range(4):
            a(f'buffer_load_dword v{AF+4*j+p}, v{T2}, {sr(c.SA,4)}, {sr(T0+1)} offen offset:{128*j+8*p}')
    ssum(a, sr(c.sV), sr(T0+1), [(sr(c.sG), 15), (b, 13)], VX)
    ssum(a, sr(c.sM0), sr(T0+1), [(b, 13)], VB)
    def vd(i): return f'buffer_load_dwordx4 v{L16}, {WS}, {sr(c.sV)} offen offset:{1024*i} lds'
    def vdA():
        a(f's_mov_b32 m0, {sr(c.sM0)}')
        for i in range(4): a(vd(i))
        a(f's_add_u32 m0, {sr(c.sM0)}, 4096')
        a(f's_add_u32 {sr(c.sV)}, {sr(c.sV)}, 4096')
        for i in range(P['nvc'], 4): a(vd(i))
    def vdB():
        a(f's_add_u32 {sr(c.sV)}, {sr(c.sV)}, {-4096 if P["nov"] else 262144-4096}')
        a(f's_xor_b32 {sr(c.sM0)}, {sr(c.sM0)}, 32768')
    a(f's_mov_b32 {sr(c.sS)}, 0')
    a(f's_mov_b32 {sr(c.sSpin)}, {SPIN}')
    a(f's_mov_b32 {sr(c.sSlot)}, 0')
    a(f's_mov_b32 {sr(c.sArm)}, {2<<18}')
    a(f's_mov_b32 {sr(c.sO2)}, {sr(c.sB2)}')
    a(f's_mov_b32 {sr(c.sO4)}, {sr(c.sVP)}')
    for i in range(24): a(f'v_mov_b32 v{ACC+i}, 0')
    if P['tail']:
        srd(a, c.SB, sr(c.SB), sr(c.SB+1), 2048*2048)
        ssum(a, sr(c.sPp), None, [(sr(c.sC), 7)], FNC2)
        a(f's_mov_b32 {sr(c.sJk)}, 0')
        if P['warm']:
            a(f's_mov_b32 {sr(T0+1)}, {40<<16}')
            a(f's_buffer_load_dword {sr(c.SC)}, {sr(c.SB,4)}, {sr(T0+1)}')
            for k, o in enumerate((OPA + (40<<16), GT)):
                a(f's_mov_b32 {sr(T0+1)}, {o}')
                a(f's_buffer_load_dword {sr(c.SC)}, {WS}, {sr(T0+1)}')
            ssum(a, sr(T0+1), None, [(b, 23)], OP + (40<<16))
            a(f's_buffer_load_dword {sr(c.SC)}, {WS}, {sr(T0+1)}')
            a(f's_add_u32 {sr(T0+1)}, {sr(T0+1)}, {1<<22}')
            a(f's_buffer_load_dword {sr(c.SC)}, {WS}, {sr(T0+1)}')
        a(f's_add_u32 {sr(T0+1)}, {sr(c.sOP)}, {61<<16}')
        a(f's_bitset0_b32 {sr(T0+1)}, 30')
        for k in range(4):
            for h in range(2): a(f'buffer_store_dwordx2 {vr(M1,2)}, v{L8}, {WS}, {sr(T0+1)} offen offset:{512*h} sc1')
            if k < 3: a(f's_add_u32 {sr(T0+1)}, {sr(T0+1)}, 65536')
    def rdywait():
        Lr = a.lab('b_rw')
        a(f'{Lr}:')
        a(f'buffer_load_dword v{T}, off, {WS}, {sr(c.sRd)} sc1')
        spin(a, c, Lend)
        a('s_waitcnt vmcnt(0)')
        a(f'v_cmp_gt_u32 vcc, 6, v{T}')
        a(f's_cbranch_vccnz {Lr}')
    if P['fused']:
        Lx = a.lab('b_r0')
        ssum(a, sr(c.sRd), None, [(sr(c.sG), 11)], RDY)
        ssum(a, sr(c.sPg), sr(T0+1), [(sr(c.sC), 10), (sr(c.sG), 7)], PROG)
        a(f's_mov_b32 {sr(c.sRv)}, 0')
        a(f's_cmp_lg_u32 {b}, 0')
        a(f's_cbranch_scc1 {Lx}')
        rdywait()
        c.mark(3)
        a(f'{Lx}:')
        a(f's_add_u32 {sr(c.sRd)}, {sr(c.sRd)}, 128')
    vPf = 252; vJk = 253
    def pref():
        if not P['pf']: return
        a(f'buffer_load_dword v{vJk}, v{vPf}, {WS}, {sr(c.sPf)} offen')
        a(f's_add_u32 {sr(c.sPf)}, {sr(c.sPf)}, {1<<18}')
    if P['pf']:
        a(f'v_lshrrev_b32 v{vJk}, 4, v{L16}')
        ssum(a, sr(T0+1), sr(T0+2), [(sr(c.sG), 15), (sr(c.sC), 11), (b, 9)])
        bits(a, vPf, vJk, T, [(3, 7), (12, 22)], sr(T0+1))
        ssum(a, sr(T0+1), sr(T0+2), [(sr(c.sG), 13), (sr(c.sC), 9), (b, 7)], PX)
        a(f'v_mov_b32 v{T}, {sr(T0+1)}')
        a(f'v_cmp_eq_u32 vcc, 12, v{vJk}')
        a(f'v_cndmask_b32 v{vPf}, v{vPf}, v{T}, vcc')
        a(f'v_mov_b32 v{T}, 0x80000000')
        a(f'v_cmp_lt_u32 vcc, 12, v{vJk}')
        a(f'v_cndmask_b32 v{vPf}, v{vPf}, v{T}, vcc')
        a(f's_mov_b32 {sr(c.sPf)}, {1<<18}')
    a('s_barrier')
    pref(); pref()
    vdA()
    for i in range(P['nvc']): a(vd(i))
    vdB(); vdA()
    a('s_waitcnt vmcnt(0)')
    a('s_barrier')
    c.mark(4)
    a(f's_buffer_load_dword {sr(c.sRv)}, {WS}, {sr(c.sRd)} glc')
    def xred():
        a(f'v_add_u32 v{T}, {sr(c.sXb)}, v{L16}')
        a(f's_lshr_b32 {sr(T0)}, {sr(c.sXb)}, 3')
        a(f's_and_b32 {sr(T0)}, {sr(T0)}, 2048')
        a(f'v_add_u32 v{PK+1}, {sr(T0)}, v{L8}')
        a(f's_xor_b32 {sr(c.sXb)}, {sr(c.sXb)}, 16384')
        for j in range(4):
            a(f'ds_read_b128 {vr(AF+4*j,4)}, v{T} offset:{4096*j}')
            a(f'ds_read_b64 {vr(ACC+8+2*j,2)}, v{PK+1} offset:{XR+512*j}')
        for j in range(4):
            a(f's_waitcnt lgkmcnt({6-2*j})')
            for d in range(4):
                a(f'v_lshlrev_b32 v{ACC+16+d}, 16, v{AF+4*j+d}')
                a(f'v_and_b32 v{AF+4*j+d}, 0xffff0000, v{AF+4*j+d}')
            op = 'v_mul_f32' if j == 0 else 'v_fmac_f32'
            for d in range(4):
                a(f'{op} v{ACC+2*d}, v{ACC+16+d}, v{ACC+8+2*j+(d>>1)}')
                a(f'{op} v{ACC+2*d+1}, v{AF+4*j+d}, v{ACC+8+2*j+(d>>1)}')
        for d in range(4): a(f'v_cvt_pk_bf16_f32 v{AF+d}, v{ACC+2*d}, v{ACC+2*d+1}')
    ent = [a.lab('b_ent0'), a.lab('b_ent1')]; Lfin = a.lab('b_fin')
    a(f's_cmp_eq_u32 {sr(c.sMode)}, 0')
    a(f's_cbranch_scc1 {ent[0]}')
    a(f's_branch {ent[1]}')
    for mode in range(2):
        sm = ' sc1' if mode else ''
        Lt = a.lab('b_top'); LpA = a.lab('b_pa'); Lf = a.lab('b_f'); Lpost = a.lab('b_post'); Lslow = a.lab('b_slow'); Lno = a.lab('b_no')
        LI = [a.lab('b_i') for _ in range(4)]
        D = AF + 8
        def ldM(j): return f'buffer_load_dwordx4 {vr(AF+4*j,4)}, v{L16}, {WS}, {sr(c.sO2)} offen offset:{1024*j} sc1'
        def arms(k=3):
            if k & 1: a(f'buffer_store_dword v{M1}, v{vPA}, {WS}, {sr(T0+2)} offen sc1')
            if k & 2:
                a(f'buffer_store_dword v{M1}, v{vMP}, {WS}, {sr(T0)} offen{sm}')
                a(f'buffer_store_dwordx2 {vr(M1,2)}, v{L8}, {WS}, {sr(T0+1)} offen{sm}')
        def opst():
            Lno = a.lab('b_no')
            a(f's_cmp_eq_u32 {sr(c.sS)}, 1')
            a(f's_cbranch_scc1 {Lno}')
            if P['opn']:
                a(f's_lshr_b32 {sr(T0+3)}, {sr(c.sOP)}, 8')
                a(f's_and_b32 {sr(T0+3)}, {sr(T0+3)}, 8192')
                a(f's_xor_b32 {sr(T0+3)}, {sr(T0+3)}, {sr(c.sOP)}')
            if not P['noop']: a(f'buffer_store_dwordx4 {vr(AF,4)}, v{L16}, {WS}, {sr(T0+3 if P["opn"] else c.sOP)} offen{P["opm"]}')
            a(f'{Lno}:')
            a(f's_add_u32 {sr(c.sOP)}, {sr(c.sOP)}, {131072 if P["opn"] else 65536}')
        Lpg = a.lab('b_pg'); Lpg2 = a.lab('b_pg2')
        if P['ap']:
            PB1 = AF + 4; Ld = a.lab('b_dl')
            a(f'{Lt}:')
            if tr: tr(0)
            if not P['vf']: vdA()
            a(f's_max_i32 {sr(c.sJk)}, {sr(c.sJk)}, {P["amin"]}')
            a(f'{Ld}:')
            a(f's_sub_u32 {sr(c.sJk)}, {sr(c.sJk)}, 1')
            a(f's_cbranch_scc1 {Ld}x')
            delay(a, P['asl'])
            a(f's_branch {Ld}')
            a(f'{Ld}x:')
            if P['bprio']: a(f's_setprio {P["bprio"]}')
            a(f'buffer_load_dwordx4 {vr(PB1,4)}, v{L16}, {WS}, {sr(c.sO1)} offen sc1')
            if tr: tr(6)
            delay(a, P['dsp'])
            pref()
            arms(1)
            if not P['noop']: a(f'buffer_store_dwordx4 {vr(AF,4)}, v{L16}, {WS}, {sr(c.sOP)} offen{P["opm"]}')
            a(f's_add_u32 {sr(c.sOP)}, {sr(c.sOP)}, 65536')
            a(f's_bitset0_b32 {sr(c.sOP)}, 30')
            a(f's_cbranch_vccnz {Lpg}')
            a(f's_waitcnt vmcnt({1 + P["pf"] + 1 - P["noop"]})')
            a(f's_branch {LpA}c')
            a(f'{LpA}:')
            a(f'buffer_load_dwordx4 {vr(PB1,4)}, v{L16}, {WS}, {sr(c.sO1)} offen sc1')
            spin(a, c, Lend)
            a(f's_waitcnt vmcnt(0)')
            a(f'{LpA}c:')
            a(f'v_mfma_f32_16x16x32_bf16 {vr(D,4)}, {vr(SEL,4)}, {vr(PB1,4)}, 0')
            for r in range(2): a(f'v_add_f32_dpp v{D+r}, v{D+r}, v{D+r} row_ror:8 row_mask:0xf bank_mask:0xf')
            a(f'v_cmp_u_f32 vcc, v{D}, v{D}')
            a(f'v_cvt_pk_bf16_f32 v{PK}, v{D}, v{D+1}')
            a(f's_cbranch_vccnz {LpA}')
        else:
            a(f'{Lt}:')
            if tr: tr(0)
            if P['tail']:
                a(f's_cmp_lg_u32 {sr(c.sS)}, {NSTEP-1}')
                a(f's_cbranch_scc1 {Lt}n')
                a(f's_buffer_load_dword {sr(c.sJk)}, {WS}, {sr(c.sPp)} glc')
                a(f'{Lt}n:')
            delay(a, P['d0'])
            a(f's_cbranch_vccnz {Lpg}')
            a(f'{Lpg2}:')
            if P['larm'] == 0: arms(2)
            if P['vfirst']: vdA()
            if P['larm'] == 1: arms(2)
            if not P['fo'] & 4: arms(1)
            if not P['fo'] & 2: opst()
            if not P['fo'] & 1: pref()
            if not P['vfirst']: vdA()
            if P['larm'] == 2: arms(2)
            delay(a, P['d1'])
            if P['probe'] is not None: a(f's_waitcnt vmcnt({P["probe"]})'); tr(6)
            if P['bprio']: a(f's_setprio {P["bprio"]}')
            np1 = P['np1']; PB = [AF, AF + 4, AF + 12][:np1]
            def ld1(k): a(f'buffer_load_dwordx4 {vr(PB[k],4)}, v{L16}, {WS}, {sr(c.sO1)} offen sc1')
            for k in range(np1 - 1):
                ld1(k); delay(a, P['ds1'])
            a(f'{LpA}:')
            for k in range(np1):
                ld1((k - 1) % np1)
                if k == 0: spin(a, c, Lend)
                a(f's_waitcnt vmcnt({np1-1})')
                a(f'v_mfma_f32_16x16x32_bf16 {vr(D,4)}, {vr(SEL,4)}, {vr(PB[k],4)}, 0')
                for r in range(2): a(f'v_add_f32_dpp v{D+r}, v{D+r}, v{D+r} row_ror:8 row_mask:0xf bank_mask:0xf')
                a(f'v_cmp_u_f32 vcc, v{D}, v{D}')
                a(f'v_cvt_pk_bf16_f32 v{PK}, v{D}, v{D+1}')
                if k < np1 - 1: a(f's_cbranch_vccz {LpA}x')
                else: a(f's_cbranch_vccnz {LpA}')
        a(f'{LpA}x:')
        a(f'buffer_store_dword v{PK}, v{vMP}, {WS}, {sr(c.sO3)} offen{sm}')
        if tr: tr(1)
        delay(a, P['dm'])
        def sm_(t, j): return f'v_smfmac_f32_16x16x64_bf16 {vr(ACC+4*t,4)}, {vr(AF+4*j,4)}, {vr(W+(t*4+j)*8,8)}, v{vIdx}'
        def post(t):
            X = ACC + 4 * t
            o = [f'v_add_f32 v{X}, v{X}, v{X+2}', f'v_add_f32 v{X+1}, v{X+1}, v{X+3}']
            if t < 4: return o + [f'v_cvt_pk_bf16_f32 v{X+2}, v{X}, v{X+1}', f'ds_write_b32 v{vLW}, v{X+2} offset:{(t>>1)*KI+(t&1)*640}']
            return o + [f'ds_write2_b32 v{vLWv}, v{X}, v{X+1} offset0:{128*(t-4)} offset1:{128*(t-4)+16}']
        uid = a.lab('m')
        NL = lambda S, j: f'{uid}_n{S}_{j}'
        FL_ = lambda S, j: f'{uid}_f{S}_{j}'
        def nxt(S, j):
            for d in range(1, 5):
                if S >> ((j + d) & 3) & 1: return (j + d) & 3
        def chk(S, k):
            a(f's_waitcnt vmcnt({bin(S).count("1")-1})')
            if tr and P['bst'] == 1: tr(6)
            a(f'v_cmp_u_f32 vcc, v{AF+4*k}, v{AF+4*k+3}')
        emitted = set()
        def node(S, j):
            while True:
                if (S, j) in emitted:
                    a(f's_branch {NL(S,j)}'); return
                emitted.add((S, j))
                a(f'{NL(S,j)}:')
                R_ = S & ~(1 << j)
                if R_ == 0:
                    nv = 0
                    for t in range(6):
                        a(sm_(t, j))
                        if t < P['vl'] and nv < P['nvc']: a(vd(nv)); nv += 1
                        if t >= 2:
                            for x in post(t - 2): a(x)
                    if tr: tr(2)
                    for t in (4, 5):
                        for x in post(t): a(x)
                    while nv < P['nvc']: a(vd(nv)); nv += 1
                    if j != 3: a(f's_branch {Lpost}')
                    return
                for t in range(5): a(sm_(t, j))
                k = nxt(R_, j)
                chk(R_, k)
                a(sm_(5, j))
                a(f's_cbranch_vccnz {FL_(R_,k)}')
                S, j = R_, k
        def slow_nodes():
            for S in range(15, 0, -1):
                mem = [j for j in range(4) if S >> j & 1]
                for j in mem:
                    a(f'{FL_(S,j)}:')
                    a(ldM(j))
                    if j == mem[-1]: spin(a, c, Lend)
                    k = nxt(S, j)
                    chk(S, k)
                    if j != mem[-1]:
                        a(f's_cbranch_vccz {NL(S,k)}')
                    else:
                        a(f's_cbranch_vccnz {FL_(S,k)}')
                        node(S, k)
                for j in mem:
                    if (S, j) not in emitted: node(S, j)
        for j in range(4): a(ldM(j))
        chk(15, 0)
        a(f's_cbranch_vccnz {FL_(15,0)}')
        a(f'{ent[mode]}:')
        node(15, 0)
        a(f'{Lpost}:')
        a('s_waitcnt lgkmcnt(0)')
        a('s_barrier')
        if tr: tr(3)
        a(f'ds_read2st64_b32 {vr(AF,2)}, v{vLR} offset0:0 offset1:4')
        a(f'ds_read2st64_b32 {vr(AF+2,2)}, v{vLR} offset0:8 offset1:12')
        a(f's_add_u32 {sr(c.sS)}, {sr(c.sS)}, 1')
        a('s_waitcnt lgkmcnt(1)')
        a(f'v_add_f32 v{AF}, v{AF}, v{AF+1}')
        a('s_waitcnt lgkmcnt(0)')
        a(f'v_add_f32 v{AF+2}, v{AF+2}, v{AF+3}')
        a(f'v_add_f32 v{AF}, v{AF}, v{AF+2}')
        a(f'v_cvt_pk_bf16_f32 v{PK}, v{AF}, v{AF}')
        a(f'buffer_store_short v{PK}, v{vL2}, {WS}, {sr(c.sO4)} offen{sm}')
        if P['bprio']: a(f's_setprio 0')
        if tr: tr(5); tr.flush(ACC)
        delay(a, P['dx'])
        if not P['nox']: xred()
        for i in range(24): a(f'v_mov_b32 v{ACC+i}, 0')
        a(f's_add_u32 {sr(T0)}, {sr(c.sMS)}, {sr(c.sArm)}')
        a(f's_add_u32 {sr(T0+1)}, {sr(c.sQA)}, {sr(c.sArm)}')
        a(f's_add_u32 {sr(T0+2)}, {sr(c.sD)}, {sr(c.sArm)}')
        a(f's_add_u32 {sr(c.sO1)}, {sr(c.sB1)}, {sr(c.sSlot)}')
        a(f's_add_u32 {sr(c.sSlot)}, {sr(c.sSlot)}, {1<<18}')
        a(f's_and_b32 {sr(c.sSlot)}, {sr(c.sSlot)}, {3<<18}')
        a(f's_xor_b32 {sr(c.sArm)}, {sr(c.sSlot)}, {2<<18}')
        a(f's_add_u32 {sr(c.sO2)}, {sr(c.sB2)}, {sr(c.sSlot)}')
        a(f's_add_u32 {sr(c.sO3)}, {sr(c.sMS)}, {sr(c.sSlot)}')
        a(f's_add_u32 {sr(c.sO4)}, {sr(c.sVP)}, {sr(c.sSlot)}')
        vdB()
        if P['a1']: arms(1)
        a('s_waitcnt vmcnt(0)')
        if P['ap']: a(f's_mov_b32 {sr(c.sJk)}, {P["an"]}')
        if P['f2']:
            a(f'ds_read_b32 v{T}, v{vFl}')
            a(f's_nop 7'); a(f's_nop 7')
            a(f'{Lf}:')
            a(f'ds_read_b32 v{PK}, v{vFl}')
            a('s_waitcnt lgkmcnt(1)')
            a(f'v_cmp_gt_u32 vcc, {sr(c.sS)}, v{T}')
            a(f's_cbranch_vccz {Lf}x')
            a(f'ds_read_b32 v{T}, v{vFl}')
            spin(a, c, Lend)
            a('s_waitcnt lgkmcnt(1)')
            a(f'v_cmp_gt_u32 vcc, {sr(c.sS)}, v{PK}')
            a(f's_cbranch_vccnz {Lf}')
            a(f'{Lf}x:')
        elif P['fo']:
            a(f'{Lf}:')
            a(f'ds_read_b32 v{T}, v{vFl}')
            spin(a, c, Lend)
            delay(a, P['fsl'])
            if P['ap']: a(f's_sub_u32 {sr(c.sJk)}, {sr(c.sJk)}, 1')
            a('s_waitcnt lgkmcnt(0)')
            a(f'v_cmp_gt_u32 vcc, {sr(c.sS)}, v{T}')
            a(f's_cbranch_vccnz {Lf}')
        if tr: tr(4)
        if P['ap']:
            if P['vf']: vdA()
            arms(2)
        else:
            if P['larm'] == 3: arms(2)
            if P['fo'] & 1: pref()
            if P['fo'] & 2: opst()
            if P['fo'] & 4 and not P['a1']: arms(1)
        Lck = a.lab('b_ck'); Lb2 = a.lab('b_b2')
        a(f's_mov_b64 vcc, 0')
        a(f's_cmp_eq_u32 {b}, 0')
        a(f's_cbranch_scc1 {Lck}')
        a(f'{Lb2}:')
        a(f's_cmp_eq_u32 {sr(c.sS)}, {NSTEP}')
        a('s_barrier')
        a(f's_cbranch_scc0 {Lt}')
        if P['ap'] or not P['fo'] & 2: opst()
        a(f's_branch {Lfin}')
        Lc2 = a.lab('b_c2'); Lc3 = a.lab('b_c3')
        a(f'{Lck}:')
        a(f's_and_b32 {sr(T0+3)}, {sr(c.sS)}, 7')
        a(f's_cmp_gt_u32 {sr(c.sS)}, {NSTEP-7}')
        a(f's_cselect_b32 {sr(T0+3)}, 2, {sr(T0+3)}')
        a(f's_cmp_eq_u32 {sr(T0+3)}, 2')
        a(f's_cselect_b32 vcc_lo, 1, 0')
        a(f's_and_b32 {sr(T0+3)}, {sr(T0+3)}, 3')
        a(f's_cmp_eq_u32 {sr(T0+3)}, 1')
        a(f's_cbranch_scc1 {Lc2}')
        a(f's_cmp_eq_u32 {sr(T0+3)}, 0')
        a(f's_cbranch_scc0 {Lb2}')
        a(f's_buffer_load_dword {sr(c.sRv)}, {WS}, {sr(c.sRd)} glc')
        a(f's_branch {Lb2}')
        a(f'{Lc2}:')
        a(f's_cmp_ge_u32 {sr(c.sRv)}, 6')
        a(f's_cbranch_scc1 {Lc3}')
        rdywait()
        a(f'{Lc3}:')
        a(f's_add_u32 {sr(c.sRd)}, {sr(c.sRd)}, 128')
        a(f's_branch {Lb2}')
        a(f'{Lpg}:')
        a(f's_sub_u32 {sr(T0+3)}, {sr(c.sS)}, 2')
        a(f'v_mov_b32 v{T}, {sr(T0+3)}')
        a(f's_mov_b64 exec, 1')
        if P['prog']: a(f'buffer_store_dword v{T}, off, {WS}, {sr(c.sPg)} sc1')
        a(f's_mov_b64 exec, -1')
        if P['ap']:
            a(f's_waitcnt vmcnt({2 + P["pf"] + 1 - P["noop"]})')
            a(f's_branch {LpA}c')
        else: a(f's_branch {Lpg2}')
        slow_nodes()
    a(f'{Lfin}:')
    if P['tail']:
        Pp = W; A_ = W + 32; G_ = W + 36; F_ = W + 38; vA = W + 39; vG = W + 40; acc = W + 44; t_ = W + 52
        sSeg = c.sB1; sPo = c.sB2; sOo = c.sO1; sFo = c.sO2; sGo = c.sO3; sq = c.sO4
        Lw = a.lab('t_w'); Lr = a.lab('t_r'); Lc = a.lab('t_c')
        if P['tmk'] == 1: c.mark(5, 0)
        a(f's_and_b32 {sr(T0)}, {sr(c.sG)}, 1')
        a(f's_lshr_b32 {sr(sq)}, {sr(c.sG)}, 1')
        ssum(a, sr(sSeg), sr(T0+1), [(b, 1), (sr(T0), 0)], 60)
        a(f's_cmp_ge_u32 {b}, 2')
        a(f's_cbranch_scc1 {Lw}b')
        ssum(a, sr(sPo), sr(T0+1), [(sr(sSeg), 16), (sr(c.sC), 12), (sr(sq), 10)], OP)
        ssum(a, sr(sOo), sr(T0+1), [(sr(sSeg), 16), (sr(c.sC), 7), (sr(sq), 5)])
        ssum(a, sr(sGo), None, [(sr(sSeg), 7)], GT + 8192)
        a(f'v_lshrrev_b32 v{t_}, 4, v{L16}')
        bits(a, vA, t_, t_ + 1, [(15, 11), (48, -1)])
        bits(a, vG, t_, t_ + 1, [(15, 2)])
        def ldP():
            a(f's_mov_b32 {sr(T0+1)}, {sr(sPo)}')
            for g in range(8):
                a(f'buffer_load_dwordx4 {vr(Pp+4*g,4)}, v{L16}, {WS}, {sr(T0+1)} offen sc1')
                if g < 7: a(f's_add_u32 {sr(T0+1)}, {sr(T0+1)}, {1<<22}')
        a(f's_cmp_ge_u32 {sr(c.sJk)}, 8')
        a(f's_cbranch_scc0 {Lw}')
        a(f'{Lw}x:')
        a(f's_add_u32 {sr(T0+1)}, {sr(sOo)}, {OPA}')
        a(f's_add_u32 {sr(T0+2)}, {sr(sOo)}, {OPA+32768}')
        for tq in range(2):
            a(f'buffer_load_dword v{G_+tq}, v{vG}, {WS}, {sr(sGo)} offen offset:{64*tq}')
            a(f'buffer_load_dwordx2 {vr(A_+2*tq,2)}, v{vA}, {WS}, {sr(T0+1+tq)} offen')
        a(f's_cmp_eq_u32 {sr(sSeg)}, 63')
        a(f's_cbranch_scc1 {Lw}b')
        ldP()
        a(f'{Lw}b:')
        if P['tmk'] == 2: c.mark(6, 0)
        a('s_barrier')
        if P['tmk'] == 3: c.mark(7, 0)
        xred()
        a(f'buffer_store_dwordx4 {vr(AF,4)}, v{L16}, {WS}, {sr(c.sOP)} offen sc1')
        if P['tmk'] == 4: c.mark(8, 0)
        a(f's_cmp_gt_u32 {sr(sSeg)}, 63')
        a(f's_cbranch_scc1 {Ldone}')
        a('s_waitcnt vmcnt(1)')
        a(f's_cmp_eq_u32 {sr(sSeg)}, 63')
        a(f's_cbranch_scc0 {Lc}')
        delay(a, P['tdl'])
        a(f's_branch {Lr}')
        a(f'{Lw}:')
        a(f'buffer_load_dword v{F_}, off, {WS}, {sr(c.sPp)} sc1')
        spin(a, c, Lend)
        a('s_waitcnt vmcnt(0)')
        a(f'v_cmp_gt_u32 vcc, 8, v{F_}')
        a(f's_cbranch_vccz {Lw}x')
        a(f's_sleep 8')
        a(f's_branch {Lw}')
        a(f'{Lr}:')
        ldP()
        spin(a, c, Lend)
        a(f'{Lc}:')
        for g in range(8):
            a(f's_waitcnt vmcnt({7-g})')
            for i in range(4):
                p_ = Pp + 4 * g + i
                if g == 0:
                    a(f'v_lshlrev_b32 v{acc+2*i}, 16, v{p_}')
                    a(f'v_and_b32 v{acc+2*i+1}, 0xffff0000, v{p_}')
                else:
                    a(f'v_lshlrev_b32 v{t_+(i&1)}, 16, v{p_}')
                    a(f'v_and_b32 v{p_}, 0xffff0000, v{p_}')
                    a(f'v_add_f32 v{acc+2*i}, v{acc+2*i}, v{t_+(i&1)}')
                    a(f'v_add_f32 v{acc+2*i+1}, v{acc+2*i+1}, v{p_}')
        a(f'v_cmp_u_f32 vcc, v{acc}, v{acc+2}')
        a(f'v_cmp_u_f32 {sr(T0+2,2)}, v{acc+4}, v{acc+6}')
        a(f's_or_b64 vcc, vcc, {sr(T0+2,2)}')
        a(f's_cbranch_scc1 {Lr}')
        for i in range(4):
            p_ = A_ + i; G = G_ + (i >> 1)
            a(f'v_lshlrev_b32 v{t_+(i&1)}, 16, v{p_}')
            a(f'v_and_b32 v{p_}, 0xffff0000, v{p_}')
            a(f'v_fma_f32 v{acc+2*i}, v{acc+2*i}, v{G}, v{t_+(i&1)}')
            a(f'v_fma_f32 v{acc+2*i+1}, v{acc+2*i+1}, v{G}, v{p_}')
        for i in range(4): a(f'v_cvt_pk_bf16_f32 v{A_+i}, v{acc+2*i}, v{acc+2*i+1}')
        a(f's_add_u32 {sr(T0+1)}, {sr(sOo)}, 32768')
        a(f'buffer_store_dwordx2 {vr(A_,2)}, v{vA}, {sr(c.SB,4)}, {sr(sOo)} offen{P["tom"]}')
        a(f'buffer_store_dwordx2 {vr(A_+2,2)}, v{vA}, {sr(c.SB,4)}, {sr(T0+1)} offen{P["tom"]}')
        a(f's_branch {Ldone}')
        return
    a('s_barrier')
    xred()
    a(f'buffer_store_dwordx4 {vr(AF,4)}, v{L16}, {WS}, {sr(c.sOP)} offen sc1')
    a('s_waitcnt vmcnt(0)')
    if P['fused']:
        a('s_barrier')
        a(f's_cmp_lg_u32 {b}, 0')
        a(f's_cbranch_scc1 {Ldone}')
        a(f'v_mov_b32 v{T}, {NSTEP}')
        a(f's_mov_b64 exec, 1')
        a(f'buffer_store_dword v{T}, off, {WS}, {sr(c.sPg)} sc1')
        a(f's_mov_b64 exec, -1')
    a(f's_branch {Ldone or Lend}')

def cwave(a, c, Lend, tr=None, getpar=None, Ldone=None):
    T0 = c.sT; j = sr(c.sD)
    v = Regs(1, 256)
    L8 = 0
    L = v.get(); T = v.get(); T2 = v.get(); L16 = v.get()
    vK = v.get(); vVR = v.get(); vQR = v.get(); vSS = v.get(); vCW = v.get(); vCR = v.get(); vPS = v.get(); vIdx = v.get(); vFl = v.get(); vOne = v.get()
    vXW = v.get(); vXR = v.get()
    vK2 = 240; vF4 = 241; FL4 = 244
    R = v.get(2, 2); SELM = v.get(2, 2); PX_ = v.get(10, 2)
    SELA = v.get(4, 4); SELB = v.get(4, 4); PP = v.get(4, 4); KQ = v.get(8, 4)
    XL = v.get(8, 4); E = v.get(8, 4)
    VXr = v.get(32, 4); UM = v.get(16, 4); OUT = v.get(20, 4); U = v.get(40, 4); WO = v.get(64, 4)
    assert OUT == UM + 16
    UD = UM; QB = VXr; KA_ = VXr + 8; DS = VXr + 16; VMr = VXr + 24
    SL = VXr; SML = VXr + 8; X = VXr + 10
    E4 = E + 4
    sMask = c.sMask; sPX = c.sV; sSCL = c.sM0; sKQ = c.sAr
    WS = sr(c.SWS, 4)
    a(f's_load_dwordx2 {sr(c.SA,2)}, s[0:1], {B_WO}')
    a(f's_sub_u32 {j}, {sr(c.sW)}, 4')
    a(f'v_and_b32 v{L}, 63, v0')
    a(f'v_lshlrev_b32 v{L16}, 4, v{L}')
    a(f'v_lshlrev_b32 v{L8}, 3, v{L}')
    a(f's_lshl_b32 {sr(T0)}, {sr(c.sG)}, 2')
    a(f's_add_u32 {sr(T0)}, {sr(T0)}, {j}')
    ssum(a, sr(T0+1), sr(T0+2), [(sr(T0), 18), (sr(c.sC), 7)])
    bits(a, vPS, L, T, [(56, 8), (7, 4)], sr(T0+1))
    ssum(a, sr(T0+3), None, [(j, 14)], 98304)
    a('s_waitcnt lgkmcnt(0)')
    srd(a, c.SA, sr(c.SA), sr(c.SA+1), 4096*2048)
    for m in range(16):
        a(f's_mov_b32 {sr(T0+2)}, {m*8*2048}')
        a(f's_add_u32 m0, {sr(T0+3)}, {m*1024}')
        a(f'buffer_load_dwordx4 v{vPS}, {sr(c.SA,4)}, {sr(T0+2)} offen{P["om"]} lds')
    bits(a, vCR, L, T, [(12, 5), (48, 6), (3, 3)], sr(T0+3))
    ssum(a, sr(c.sB1), None, [(sr(T0), 13)], QKV)
    ssum(a, sr(sPX), None, [(sr(T0), 11)], PX)
    a(f's_mov_b32 {sr(sSCL)}, {SCL:#x}')
    a(f's_lshl_b32 {sr(T0)}, {sr(c.sG)}, 4')
    a(f's_add_u32 {sr(T0)}, {sr(T0)}, {sr(c.sC)}')
    bits(a, vK, L, T, [(1, 4), (2, 5), (4, 5), (8, 7), (48, 4)])
    ssum(a, sr(T0+1), None, [(j, 5)], KX)
    a(f's_cmp_lt_u32 {j}, 2')
    a(f's_cselect_b32 {sr(T0+1)}, {sr(T0+1)}, {QX}')
    a(f's_cselect_b64 vcc, -1, 0')
    a(f's_lshl_b32 {sr(T0+2)}, {sr(T0)}, 11')
    a(f's_add_u32 {sr(sKQ)}, {sr(T0+1)}, {sr(T0+2)}')
    a(f'v_cndmask_b32 v{vK}, v{L16}, v{vK}, vcc')
    bits(a, vSS, L, T, [(13, 4), (16, -1), (32, 5)])
    bits(a, T2, L, T, [(15, 4), (16, 6), (32, -2)])
    a(f'v_cndmask_b32 v{vSS}, v{T2}, v{vSS}, vcc')
    bits(a, T2, L, T, [(15, 3), (48, -3)])
    a(f's_and_b32 {sr(T0+2)}, {sr(T0)}, 3')
    ssum(a, sr(T0+1), None, [(j, 5)], 2048)
    a(f's_cmp_lt_u32 {j}, 2')
    a(f's_cselect_b32 {sr(T0+1)}, {sr(T0+1)}, 4096')
    a(f's_lshl_b32 {sr(T0+3)}, {sr(T0+2)}, 8')
    a(f's_add_u32 {sr(T0+1)}, {sr(T0+1)}, {sr(T0+3)}')
    ssum(a, sr(T0+3), None, [(sr(T0+2), 7)], 6144)
    a(f's_cmp_eq_u32 {j}, 2')
    a(f's_cselect_b32 {sr(T0+1)}, {sr(T0+3)}, {sr(T0+1)}')
    a(f's_cselect_b64 vcc, -1, 0')
    a(f's_lshr_b32 {sr(T0+2)}, {sr(T0)}, 2')
    ssum(a, sr(T0+2), None, [(sr(T0+2), 13)], QKV)
    a(f's_add_u32 {sr(T0+1)}, {sr(T0+1)}, {sr(T0+2)}')
    a(f'v_cndmask_b32 v{vSS}, v{vSS}, v{T2}, vcc')
    a(f'v_add_u32 v{vSS}, {sr(T0+1)}, v{vSS}')
    bits(a, vQR, L, T, [(12, 3), (12, 1), (48, 4), (48, 2), (3, 3)])
    ssum(a, sr(T0+1), None, [(j, 13)], VB)
    a(f'v_add_u32 v{vVR}, {sr(T0+1)}, v{L16}')
    ssum(a, sr(T0+1), None, [(j, 12)], XO)
    a(f'v_add_u32 v{vXW}, {sr(T0+1)}, v{L16}')
    ssum(a, sr(T0+1), None, [(j, 9)], XR)
    a(f'v_add_u32 v{vXR}, {sr(T0+1)}, v{L8}')
    ssum(a, sr(T0+1), None, [(j, 11)], CO)
    bits(a, vCW, L, T, PERM4, sr(T0+1))
    ssum(a, sr(T0+1), None, [(j, 2)], FLAG)
    a(f'v_mov_b32 v{vFl}, {sr(T0+1)}')
    a(f'v_mov_b32 v{vOne}, 0')
    a(f'v_and_b32 v{T}, 2, v{L}')
    a(f'v_cmp_ne_u32 {sr(sMask,2)}, 0, v{T}')
    a(f'v_mov_b32 v{T}, 0x4444')
    a(f'v_mov_b32 v{T2}, 0xeeee')
    a(f'v_cndmask_b32 v{vIdx}, v{T}, v{T2}, {sr(sMask,2)}')
    a(f'v_and_b32 v{PP}, 1, v{L}')
    a(f'v_cmp_ne_u32 vcc, 0, v{PP}')
    a(f'v_cndmask_b32 v{T}, v{T}, v{T2}, vcc')
    a(f'v_lshl_or_b32 v{vIdx}, v{T}, 16, v{vIdx}')
    make_sel(a, SELA, L, T, T2)
    a(f'v_and_b32 v{T}, 8, v{L}')
    a(f'v_cmp_ne_u32 vcc, 0, v{T}')
    for p in range(4):
        a(f'v_cndmask_b32 v{SELB+p}, 0, v{SELA+p}, vcc')
        a(f'v_sub_u32 v{SELA+p}, v{SELA+p}, v{SELB+p}')
    bits(a, T2, L, T, [(4, 2)])
    a(f'v_mov_b32 v{T}, 0x3f80')
    a(f'v_lshlrev_b32 v{T2}, v{T2}, v{T}')
    a(f'v_cndmask_b32 v{SELM+1}, 0, v{T2}, vcc')
    a(f'v_sub_u32 v{SELM}, v{T2}, v{SELM+1}')
    for t in range(5):
        a(f'v_mov_b32 v{U+8*t+4}, 0'); a(f'v_mov_b32 v{U+8*t+5}, 0')
    for r in (2, 3, 6, 7): a(f'v_mov_b32 v{U+32+r}, 0x3f803f80')
    for r in (0, 1): a(f'v_mov_b32 v{U+32+r}, 0x3f80')
    a('s_waitcnt vmcnt(0)')
    for t in range(4):
        for ch in range(2):
            for q in range(4):
                off = (ch * 64 + 32 * (q >> 1) + 4 * (q & 1)) * 128 + t * 32
                a(f'ds_read_b64_tr_b16 {vr(WO+(t*2+ch)*8+2*q,2)}, v{vCR} offset:{off}')
        a('s_waitcnt lgkmcnt(0)')
    if getpar: getpar(VXr)
    ssum(a, sr(T0+1), None, [(j, 9)], CO)
    a(f'v_add_u32 v{vCR}, {sr(T0+1)}, v{L8}')
    ssum(a, sr(T0+1), sr(T0+2), [(j, 11), (sr(c.sC), 14), (sr(c.sG), 7)])
    a(f's_add_u32 {sr(T0+1)}, {sr(T0+1)}, {sr(c.sPart)}')
    bits(a, vPS, L, T, [(2, 9), (32, 1), (12, 2), (1, 3), (16, -2)], sr(T0+1))
    a(f's_mov_b32 {sr(c.sS)}, 0')
    a(f's_mov_b32 {sr(c.sSpin)}, {SPIN}')
    a(f's_mov_b32 {sr(c.sSlot)}, 0')
    a('s_barrier')
    a(f'ds_write_b32 v{vFl}, v{vOne}')
    a(f'ds_write_b32 v{vFl}, v{vOne} offset:16')
    a('s_waitcnt lgkmcnt(0)')
    a('s_barrier')

    a(f'v_mov_b32 v{T}, 0x80000000')
    a(f's_cmp_eq_u32 {j}, 3')
    a(f's_cselect_b64 vcc, -1, 0')
    a(f'v_cndmask_b32 v{vK2}, v{T}, v{vK}, vcc')
    a(f's_cmp_eq_u32 {j}, 2')
    a(f's_cselect_b64 vcc, -1, 0')
    a(f'v_cndmask_b32 v{vK}, v{vK}, v{T}, vcc')
    a(f'v_mov_b32 v{vF4}, {FLAG+16}')
    def ldKQ():
        a(f'buffer_load_dwordx4 {vr(KQ,4)}, v{vK}, {WS}, {sr(sKQ)} offen')
        a(f'buffer_load_dwordx4 {vr(KQ+4,4)}, v{vK2}, {WS}, {sr(sKQ)} offen offset:1024')
        a(f's_add_u32 {sr(sKQ)}, {sr(sKQ)}, {0 if P["nokq"] else 1<<18}')
    def ldPX():
        return [f'buffer_load_dwordx4 {vr(PX_,4)}, v{L16}, {WS}, {sr(sPX)} offen',
                f'buffer_load_dwordx4 {vr(PX_+6,4)}, v{L16}, {WS}, {sr(sPX)} offen offset:1024',
                f's_add_u32 {sr(sPX)}, {sr(sPX)}, {0 if P["nokq"] else 1<<18}']
    def ldXL():
        for k in range(2): a(f'buffer_load_dwordx4 {vr(XL+4*k,4)}, v{L16}, {WS}, {sr(c.sO2)} offen offset:{1024*k} sc1')
    def rdV():
        for ks in range(4):
            for kt in range(2):
                a(f'ds_read_b128 {vr(VXr+16*kt+4*ks,4)}, v{vVR} offset:{2048*ks+1024*kt}')
    def xpv_head(Lretry, Lbad, Lgood):
        a(f'{Lretry}:')
        a(f'v_mfma_f32_16x16x32_bf16 {vr(E,4)}, {vr(SELA,4)}, {vr(XL,4)}, 0')
        a(f'v_mfma_f32_16x16x32_bf16 {vr(E,4)}, {vr(SELB,4)}, {vr(XL+4,4)}, {vr(E,4)}')
        for r in range(4): a(f'v_fma_f32 v{E+r}, v{E+r}, {sr(sSCL)}, -v{PX_+(r>>1)}')
        a(f'v_max3_f32 v{T}, v{E}, v{E+1}, v{E+2}')
        a(f'v_max_f32 v{T}, v{T}, v{E+3}')
        a(f'v_cmp_nge_f32 vcc, 0x42800000, v{T}')
        a(f's_cbranch_vccnz {Lbad}')
        a(f'{Lgood}:')
        for r in range(4): a(f'v_exp_f32 v{E+r}, v{E+r}')
        for r in range(4): a(f'v_cvt_pk_bf16_f32 v{PX_+(r&1)+4*(r>>1)}, v{E+r}, v{E+r}')
    def xpv_bad(Lretry, Lbad, Lgood):
        Lbig = a.lab('c_big')
        a(f'{Lbad}:')
        a(f'v_cmp_u_f32 vcc, v{T}, v{T}')
        a(f's_cbranch_vccz {Lbig}')
        ldXL()
        spin(a, c, Lend)
        a('s_waitcnt vmcnt(0)')
        a(f's_branch {Lretry}')
        a(f'{Lbig}:')
        for tq in range(2):
            a(f'v_max3_f32 v{T}, v{E+2*tq}, v{E+2*tq+1}, 0')
            for op in ('v_permlane16_swap_b32', 'v_permlane32_swap_b32'):
                a(f'v_mov_b32 v{T2}, v{T}')
                a(f'{op} v{T}, v{T2}')
                a(f'v_max_f32 v{T}, v{T}, v{T2}')
            a(f'v_sub_f32 v{E+2*tq}, v{E+2*tq}, v{T}')
            a(f'v_sub_f32 v{E+2*tq+1}, v{E+2*tq+1}, v{T}')
            a(f'v_exp_f32 v{T}, -v{T}')
            for r in ((2, 3) if tq == 0 else (6, 7, 8, 9)):
                a(f'v_lshlrev_b32 v{T2}, 16, v{PX_+r}')
                a(f'v_and_b32 v{PX_+r}, 0xffff0000, v{PX_+r}')
                a(f'v_mul_f32 v{T2}, v{T2}, v{T}')
                a(f'v_mul_f32 v{PX_+r}, v{PX_+r}, v{T}')
                a(f'v_cvt_pk_bf16_f32 v{PX_+r}, v{T2}, v{PX_+r}')
        a(f's_branch {Lgood}')
    def xpv_mfma(t):
        D0 = UD + 8 * t if t < 4 else OUT + 16
        D1 = UD + 8 * t + 4 if t < 4 else E4
        return [f'v_mfma_f32_16x16x32_bf16 {vr(D1,4)}, {vr(U+8*t,4)}, {vr(PX_+4,4)}, 0',
                f'v_mfma_f32_16x16x32_bf16 {vr(D0,4)}, {vr(U+8*t,4)}, {vr(PX_,4)}, 0',
                f'v_mfma_f32_16x16x32_bf16 {vr(D1,4)}, {vr(U+8*t+4,4)}, {vr(PX_+6,4)}, {vr(D1,4)}']
    def xpv_post(t):
        if t == 4:
            return [f'v_rcp_f32 v{R}, v{OUT+16}', f'v_rcp_f32 v{R+1}, v{E4}', f'ds_write_b64 v{vXR}, {vr(R,2)}']
        Y = XL + 4 * (t & 1); D = UD + 8 * t
        return [f'v_cvt_pk_bf16_f32 v{Y+i}, v{D+2*i}, v{D+2*i+1}' for i in range(4)] + [f'ds_write_b128 v{vXW}, {vr(Y,4)} offset:{1024*t}']
    def xpv_body():
        cv = []
        for t in (4, 0, 1, 2, 3):
            for i, m in enumerate(xpv_mfma(t)):
                a(m)
                if i >= 1:
                    for _ in range(3):
                        if cv: a(cv.pop(0))
            cv += xpv_post(t)
        return cv
    def ux(cv):
        a(f's_add_u32 {sr(c.sO1)}, {sr(c.sB1)}, {sr(c.sSlot)}')
        a(f's_add_u32 {sr(c.sO2)}, {sr(c.sO1)}, 4096')
        a(f's_mov_b32 {sr(c.sFb)}, 0')
        a(f'v_xor_b32 v{vVR}, 32768, v{vVR}')
        a(f'v_add_u32 v{vOne}, 1, v{vOne}')
        for t in range(4):
            for ks in range(4):
                for kt in range(2):
                    D = vr(UD + (t * 2 + kt) * 4, 4)
                    a(f'v_mfma_f32_16x16x32_bf16 {D}, {vr(VXr+16*kt+4*ks,4)}, {vr(WO+(t*2+(ks>>1))*8+(ks&1)*4,4)}, {D if ks else 0}')
                    if ks >= 1 or (t == 0 and kt == 1):
                        for _ in range(2):
                            if cv: a(cv.pop(0))
            for kt in range(2):
                D = UD + (t * 2 + kt) * 4
                cv += [f'v_cvt_pk_bf16_f32 v{U+8*t+2+4*kt}, v{D}, v{D+1}', f'v_cvt_pk_bf16_f32 v{U+8*t+3+4*kt}, v{D+2}, v{D+3}']
            cv += [f'v_mov_b32 v{UD+8*t+i}, 0' for i in range(8)]
        for i in range(32, 36): a(f'v_mov_b32 v{UM+i}, 0')
        for x in cv: a(x)

    ents = [a.lab('c_ent0'), a.lab('c_ent1')]; Lfin = a.lab('c_fin')
    ldKQ(); rdV()
    a('s_waitcnt vmcnt(0) lgkmcnt(0)')
    ux([])
    a(f's_cmp_eq_u32 {sr(c.sMode)}, 0')
    a(f's_cbranch_scc1 {ents[0]}')
    a(f's_branch {ents[1]}')
    for mode in range(2):
        sm = ' sc1' if mode else ''
        Lt = a.lab('c_top'); Lp = a.lab('c_p'); Lpz = a.lab('c_pz'); Lsm = a.lab('c_sm'); Lfb = a.lab('c_fb'); Lz = a.lab('c_z')
        L2 = a.lab('c_r2'); L3 = a.lab('c_r3'); Lj = a.lab('c_j')
        xl = [a.lab('c_xr'), a.lab('c_xb'), a.lab('c_xg')]
        a(f'{Lt}:')
        a('s_waitcnt vmcnt(1)')
        if tr: tr.flush(VXr)
        if tr and P['cst'] == 1: tr(6)
        if P['kqtop']: ldKQ()
        if tr and P['cst'] == 2: tr(6)
        rdV()
        if P['nox']:
            cv = []
        else:
            xpv_head(*xl)
            cv = xpv_body()
        a(f's_waitcnt lgkmcnt({0 if P["nox"] else 4})')
        if tr and P['cst'] == 3: tr(6)
        ux(cv)
        a(f'v_xor_b32 v{vXW}, 16384, v{vXW}')
        a(f'v_xor_b32 v{vXR}, 2048, v{vXR}')
        if tr and P['cst'] == 0: tr(6)
        a(f'{ents[mode]}:')
        a(f's_waitcnt vmcnt(0) lgkmcnt(0)')
        if P['cprio']: a(f's_setprio {P["cprio"]}')
        if tr: tr(0)
        a(f's_cmp_ge_u32 {j}, 2')
        a(f's_cbranch_scc1 {L2}')
        def rdq(R_, base):
            for u in range(2):
                for wh in range(2):
                    a(f'ds_read_b64_tr_b16 {vr(R_+4*u+2*wh,2)}, v{vQR} offset:{base+1280*u+160*wh}')
        a('s_barrier')
        rdq(QB, QI)
        a('s_waitcnt lgkmcnt(2)')
        a(f'v_mfma_f32_16x16x32_bf16 {vr(DS,4)}, {vr(KQ,4)}, {vr(QB,4)}, 0')
        a('s_waitcnt lgkmcnt(0)')
        a(f'v_mfma_f32_16x16x32_bf16 {vr(DS,4)}, {vr(KQ,4)}, {vr(QB+4,4)}, {vr(DS,4)}')
        for r in range(4): a(f'v_add_f32_dpp v{DS+r}, v{DS+r}, v{DS+r} quad_perm:[2,3,0,1] row_mask:0xf bank_mask:0xf')
        a(f'v_cvt_pk_bf16_f32 v{DS}, v{DS}, v{DS+1}')
        a(f'v_cvt_pk_bf16_f32 v{DS+1}, v{DS+2}, v{DS+3}')
        a(f'buffer_store_dwordx2 {vr(DS,2)}, v{vSS}, {WS}, {sr(c.sSlot)} offen{sm}')
        a(f's_branch {Lj}')
        a(f'{L2}:')
        a(f's_cmp_eq_u32 {j}, 3')
        a(f's_cbranch_scc1 {L3}')
        a('s_barrier')
        for u in range(2):
            for R_, base in ((QB, QI), (KA_, KI)):
                for wh in range(2):
                    a(f'ds_read_b64_tr_b16 {vr(R_+4*u+2*wh,2)}, v{vQR} offset:{base+1280*u+160*wh}')
        a('s_waitcnt lgkmcnt(4)')
        a(f'v_mfma_f32_16x16x32_bf16 {vr(DS,4)}, {vr(KA_,4)}, {vr(QB,4)}, 0')
        a('s_waitcnt lgkmcnt(2)')
        a(f'v_mfma_f32_16x16x32_bf16 {vr(DS,4)}, {vr(KA_,4)}, {vr(QB+4,4)}, {vr(DS,4)}')
        a('s_waitcnt lgkmcnt(0)')
        a(f'v_mfma_f32_16x16x32_bf16 {vr(DS,4)}, {vr(KA_+4,4)}, {vr(QB,4)}, {vr(DS,4)}')
        a(f'v_mfma_f32_16x16x32_bf16 {vr(DS,4)}, {vr(KA_+4,4)}, {vr(QB+4,4)}, {vr(DS,4)}')
        a(f'v_add_f32 v{DS}, v{DS}, v{DS+2}')
        a(f'v_add_f32 v{DS+1}, v{DS+1}, v{DS+3}')
        a(f'v_cndmask_b32 v{DS+2}, v{DS+1}, v{DS}, {sr(sMask,2)}')
        a(f'v_cndmask_b32 v{DS+3}, v{DS}, v{DS+1}, {sr(sMask,2)}')
        a(f'v_add_f32_dpp v{DS}, v{DS+2}, v{DS+3} quad_perm:[2,3,0,1] row_mask:0xf bank_mask:0xf')
        a(f'v_mul_f32 v{DS}, {sr(sSCL)}, v{DS}')
        a(f'v_cvt_pk_bf16_f32 v{DS}, v{DS}, v{DS}')
        a(f'buffer_store_short v{DS}, v{vSS}, {WS}, {sr(c.sSlot)} offen{sm}')
        a(f's_branch {Lj}')
        a(f'{L3}:')
        a('s_barrier')
        rdq(KA_, KI)
        a('s_waitcnt lgkmcnt(2)')
        for tq in range(2): a(f'v_mfma_f32_16x16x32_bf16 {vr(DS+4*tq,4)}, {vr(KA_,4)}, {vr(KQ+4*tq,4)}, 0')
        a('s_waitcnt lgkmcnt(0)')
        for tq in range(2): a(f'v_mfma_f32_16x16x32_bf16 {vr(DS+4*tq,4)}, {vr(KA_+4,4)}, {vr(KQ+4*tq,4)}, {vr(DS+4*tq,4)}')
        for tq in range(2):
            a(f'v_add_f32 v{DS+4*tq}, v{DS+4*tq}, v{DS+4*tq+2}')
            a(f'v_add_f32 v{DS+4*tq+1}, v{DS+4*tq+1}, v{DS+4*tq+3}')
            a(f'v_cvt_pk_bf16_f32 v{DS+tq}, v{DS+4*tq}, v{DS+4*tq+1}')
        a(f'buffer_store_dwordx2 {vr(DS,2)}, v{vSS}, {WS}, {sr(c.sSlot)} offen{sm}')
        a(f'{Lj}:')
        if tr: tr(1)
        delay(a, P['dq'])
        def um(t, ch): return f'v_smfmac_f32_16x16x64_bf16 {vr(UM+4*t,4)}, {vr(VMr+4*ch,4)}, {vr(WO+(t*2+ch)*8,8)}, v{vIdx} abid:1'
        def ucv(t): return [f'v_cvt_pk_bf16_f32 v{U+8*t}, v{UM+4*t}, v{UM+4*t+1}', f'v_cvt_pk_bf16_f32 v{U+8*t+1}, v{UM+4*t+2}, v{UM+4*t+3}']
        def pv(t): return f'v_smfmac_f32_16x16x64_bf16 {vr(OUT+4*t,4)}, {vr(PP,4)}, {vr(U+8*t,8)}, v{vIdx}'
        def soft():
            return [f'v_exp_f32 v{X+i}, v{E+i}' for i in range(2)] + [f'v_exp_f32 v{X+4}, v{E4}'] + \
                   [f'v_exp_f32 v{X+i}, v{E+i}' for i in range(2, 4)] + \
                   [f'v_cvt_pk_bf16_f32 v{PP}, v{X+4}, v{X+4}', f'v_cvt_pk_bf16_f32 v{PP+2}, v{X+4}, v{X+4}',
                    f'v_cvt_pk_bf16_f32 v{PP+1}, v{X}, v{X+1}', f'v_cvt_pk_bf16_f32 v{PP+3}, v{X+2}, v{X+3}',
                    f'v_permlane32_swap_b32 v{PP}, v{PP+2}']
        def ldS():
            for k in range(2): a(f'buffer_load_dwordx4 {vr(SL+4*k,4)}, v{L16}, {WS}, {sr(c.sO1)} offen offset:{2048+1024*k} sc1')
            a(f'buffer_load_dwordx2 {vr(SML,2)}, v{L8}, {WS}, {sr(c.sO2)} offen offset:2048 sc1')
        def ldVm():
            for ch in range(2):
                a(f'buffer_load_dwordx4 {vr(VMr+4*ch,4)}, v{L16}, {WS}, {sr(c.sO1)} offen offset:{1024*ch} sc1')
        def emf(n):
            a(f's_waitcnt vmcnt({n+2})')
            a(f'v_mfma_f32_16x16x32_bf16 {vr(E,4)}, {vr(SELA,4)}, {vr(SL,4)}, 0')
            a(f's_waitcnt vmcnt({n+1})')
            a(f'v_mfma_f32_16x16x32_bf16 {vr(E,4)}, {vr(SELB,4)}, {vr(SL+4,4)}, {vr(E,4)}')
            a(f's_waitcnt vmcnt({n})')
            a(f'v_mfma_f32_16x16x16_bf16 {vr(E4,4)}, {vr(SELM,2)}, {vr(SML,2)}, 0')
        def bgl():
            ldXL()
            for x in ldPX(): a(x)
            if not P['kqtop']: ldKQ()
            if P['fo'] and not P['ef']: a(f'ds_write_b32 v{vFl}, v{vOne}')
        nq = P['nq']; Lq = a.lab('c_q')
        a(f'{Lp}:')
        if P['ve']:
            ldVm()
            delay(a, P['dq2'])
            ldS()
            a(f'{Lq}w:')
            spin(a, c, Lend)
            if P['ve'] == 2:
                a(f's_waitcnt vmcnt(3)')
                a(f'v_cmp_u_f32 vcc, v{VMr}, v{VMr+4}')
                a(f's_cbranch_vccnz {Lq}v')
                a(um(0, 0))
            else:
                a(f's_waitcnt vmcnt(4)')
                a(um(0, 0))
                a(f's_waitcnt vmcnt(3)')
            for t in range(4):
                for ch in range(2):
                    if t or ch: a(um(t, ch))
            a(f'v_cmp_u_f32 {sr(c.sT,2)}, v{UM}, v{UM+1}')
            a(f'v_cmp_u_f32 vcc, v{UM+2}, v{UM+3}')
            for x in ucv(0): a(x)
            a(f's_or_b64 vcc, vcc, {sr(c.sT,2)}')
            a(f's_cbranch_scc1 {Lpz}')
            for x in ucv(1): a(x)
            a(f'{Lq}l:')
            emf(0)
            for x in ucv(2) + ucv(3): a(x)
            so = soft()
            a(so.pop(0)); a(so.pop(0))
            a(f'v_cmp_u_f32 vcc, v{E}, v{E4}')
            a(so.pop(0))
            if P['ef'] < 2: a(so.pop(0)); a(so.pop(0))
            a(f's_cbranch_vccnz {Lq}r')
            if P['ef']: a(f'ds_write_b32 v{vFl}, v{vOne}')
            if P['ef'] == 3: bgl()
            if tr: tr(2)
            for x in so: a(x)
            a(pv(4))
            a(pv(0))
            if P['ef'] != 3: bgl()
            a(pv(1))
        elif nq == 1:
            ldS(); ldVm()
            spin(a, c, Lend)
            emf(2)
            a('s_waitcnt vmcnt(1)')
            a(um(0, 0))
            a('s_waitcnt vmcnt(0)')
            a(um(0, 1))
            so = soft()
            a(so.pop(0))
            a(um(1, 0))
            a(so.pop(0))
            a(um(1, 1))
            a(so.pop(0))
            a(f'v_cmp_u_f32 {sr(c.sT,2)}, v{E}, v{E4}')
            a(um(2, 0))
            a(so.pop(0))
            a(f'v_cmp_u_f32 {sr(c.sT+2,2)}, v{UM}, v{UM+1}')
            a(f'v_cmp_u_f32 vcc, v{UM+2}, v{UM+3}')
            a(um(2, 1))
            a(so.pop(0))
            a(f's_or_b64 {sr(c.sT,2)}, {sr(c.sT,2)}, {sr(c.sT+2,2)}')
            a(f's_or_b64 vcc, vcc, {sr(c.sT,2)}')
            a(f's_cbranch_vccnz {Lpz}')
            if tr: tr(2)
            a(um(3, 0))
            a(so.pop(0)); a(so.pop(0))
            a(um(3, 1))
            for x in so: a(x)
            bgl()
            for x in ucv(0): a(x)
            a(pv(4))
            for x in ucv(1): a(x)
            a(pv(0))
            for x in ucv(2): a(x)
            a(pv(1))
            for x in ucv(3): a(x)
        else:
            n = 3 * (nq - 1)
            ldVm(); ldS()
            spin(a, c, Lend)
            for k in range(1, nq):
                delay(a, P['dq2']); ldS()
            a(f's_waitcnt vmcnt({n+4})')
            a(um(0, 0))
            a(f's_waitcnt vmcnt({n+3})')
            a(um(0, 1))
            emf(n)
            a(um(1, 0))
            a(um(1, 1))
            so = soft()
            a(f'v_cmp_u_f32 {sr(c.sT,2)}, v{UM}, v{UM+1}')
            a(f'v_cmp_u_f32 {sr(c.sT+2,2)}, v{UM+2}, v{UM+3}')
            a(so.pop(0))
            a(um(2, 0))
            a(so.pop(0))
            a(f'v_cmp_u_f32 vcc, v{E}, v{E4}')
            a(um(2, 1))
            a(so.pop(0))
            a(f's_or_b64 {sr(c.sT,2)}, {sr(c.sT,2)}, {sr(c.sT+2,2)}')
            a(f's_cbranch_scc1 {Lpz}')
            a(um(3, 0))
            a(so.pop(0))
            a(um(3, 1))
            a(f's_cbranch_vccnz {Lq}')
            if tr: tr(2)
            for x in so: a(x)
            for x in ucv(0): a(x)
            a(pv(4))
            bgl()
            for x in ucv(1): a(x)
            a(pv(0))
            for x in ucv(2): a(x)
            a(pv(1))
            for x in ucv(3): a(x)
        a(f'{Lsm}:')
        Lr = OUT + 16
        a(pv(2))
        a(f'v_add_f32 v{Lr}, v{Lr}, v{Lr+2}'); a(f'v_add_f32 v{Lr+1}, v{Lr+1}, v{Lr+3}')
        a(pv(3))
        a(f'v_rcp_f32 v{R}, v{Lr}'); a(f'v_rcp_f32 v{R+1}, v{Lr+1}')
        lo = (127 - 64) << 23; span = 128 << 23
        for t in range(4):
            Y = OUT + 4 * t
            a(f'v_add_f32 v{Y}, v{Y}, v{Y+2}'); a(f'v_add_f32 v{Y+1}, v{Y+1}, v{Y+3}')
            a(f'v_mul_f32 v{Y}, v{Y}, v{R}'); a(f'v_mul_f32 v{Y+1}, v{Y+1}, v{R+1}')
            a(f'ds_write2st64_b32 v{vCW}, v{Y}, v{Y+1} offset0:{2*t} offset1:{2*t+1}')
        a(f'v_subrev_u32 v{Lr}, {lo:#x}, v{Lr}'); a(f'v_subrev_u32 v{Lr+1}, {lo:#x}, v{Lr+1}')
        a(f'v_max_u32 v{T}, v{Lr}, v{Lr+1}')
        a(f'v_cmp_lt_u32 vcc, {span:#x}, v{T}')
        a(f's_add_u32 {sr(c.sS)}, {sr(c.sS)}, 1')
        a(f's_cbranch_vccnz {Lfb}')
        a(f'{Lz}:')
        a('s_waitcnt lgkmcnt(0)')
        if tr: tr(3)
        a('s_barrier')
        if tr: tr(5)
        for q in range(4): a(f'ds_read_b64 {vr(DS+2*q,2)}, v{vCR} offset:{2048*q}')
        a(f's_cmp_eq_u32 {sr(c.sS)}, {NSTEP}')
        a('s_waitcnt lgkmcnt(2)')
        for r in range(2): a(f'v_add_f32 v{DS+r}, v{DS+r}, v{DS+2+r}')
        a('s_waitcnt lgkmcnt(0)')
        for r in range(2): a(f'v_add_f32 v{DS+4+r}, v{DS+4+r}, v{DS+6+r}')
        for r in range(2): a(f'v_add_f32 v{DS+r}, v{DS+r}, v{DS+4+r}')
        a(f'v_cvt_pk_bf16_f32 v{R}, v{DS}, v{DS+1}')
        a(f'buffer_store_dword v{R}, v{vPS}, {WS}, {sr(c.sSlot)} offen sc1')
        if P['cprio']: a(f's_setprio 0')
        if tr: tr(4)
        a(f's_cbranch_scc1 {Lfin}')
        a(f's_add_u32 {sr(c.sSlot)}, {sr(c.sSlot)}, {1<<18}')
        a(f's_and_b32 {sr(c.sSlot)}, {sr(c.sSlot)}, {3<<18}')
        a(f's_branch {Lt}')
        a(f'{Lpz}:')
        if P['ve']:
            if P['ve'] == 1: ldVm()
            a('s_nop 7')
            for i in range(16): a(f'v_mov_b32 v{UM+i}, 0')
            if P['ve'] == 2:
                a(f'{Lq}v:')
                ldVm()
            a('s_waitcnt vmcnt(2)')
            ldS()
            a(f's_branch {Lq}w')
            a(f'{Lq}r:')
            ldS()
            spin(a, c, Lend)
            a(f's_branch {Lq}l')
        else:
            a('s_nop 7')
            for i in range(12): a(f'v_mov_b32 v{UM+i}, 0')
            a(f's_branch {Lp}')
        if nq > 1 and not P['ve']:
            a(f'{Lq}:')
            ldS()
            for t in range(4):
                for x in ucv(t): a(x)
            a(f'{Lq}l:')
            emf(n)
            so = soft()
            a(so.pop(0)); a(so.pop(0))
            a(f'v_cmp_u_f32 vcc, v{E}, v{E4}')
            a(so.pop(0)); a(so.pop(0)); a(so.pop(0))
            a(f's_cbranch_vccnz {Lq}r')
            if tr: tr(2)
            for x in so: a(x)
            a(pv(4))
            a(pv(0))
            bgl()
            a(pv(1))
            a(f's_branch {Lsm}')
            a(f'{Lq}r:')
            ldS()
            spin(a, c, Lend)
            a(f's_branch {Lq}l')
        if not P['nox']: xpv_bad(*xl)
        a(f'{Lfb}:')
        a(f's_cmp_lg_u32 {sr(c.sFb)}, 0')
        a(f's_cbranch_scc1 {Lz}')
        a(f's_mov_b32 {sr(c.sFb)}, 1')
        a(f's_sub_u32 {sr(c.sS)}, {sr(c.sS)}, 1')
        a(f'v_max3_f32 v{T}, v{E}, v{E+1}, v{E+2}')
        a(f'v_max3_f32 v{T}, v{T}, v{E+3}, v{E4}')
        a(f'v_max_f32_dpp v{T}, v{T}, v{T} quad_perm:[2,3,0,1] row_mask:0xf bank_mask:0xf')
        for op in ('v_permlane16_swap_b32', 'v_permlane32_swap_b32'):
            a(f'v_mov_b32 v{T2}, v{T}')
            a(f'{op} v{T}, v{T2}')
            a(f'v_max_f32 v{T}, v{T}, v{T2}')
        for i in range(5): a(f'v_sub_f32 v{E+i}, v{E+i}, v{T}')
        for x in soft(): a(x)
        for i in range(20): a(f'v_mov_b32 v{OUT+i}, 0')
        for t in (4, 0, 1): a(pv(t))
        a('s_nop 7')
        a(f's_branch {Lsm}')
    xl = [a.lab('c_xr'), a.lab('c_xb'), a.lab('c_xg')]
    a(f'{Lfin}:')
    a('s_waitcnt vmcnt(1)')
    xpv_head(*xl)
    for x in xpv_body(): a(x)
    a('s_waitcnt lgkmcnt(0)')
    a('s_barrier')
    if P['fused'] and not P['tail']: a('s_barrier')
    a(f's_branch {Ldone or Lend}')
    xpv_bad(*xl)
```

```python
from asm import *
from layout import *
from small import *
from chain3 import *
from attna import attnA_job
from gemm16 import *
from gemmr import *
from xjobs import *
from k2 import Trace, Trace2

JSLOT = 0
Q_B2 = 48; Q_KVA = 72; Q_GATE = 74; Q_QA = 76; Q_B4 = 84; Q_ATT = 132; Q_FIN = 164; Q_END = 196
NRED = 128

def gen_k5(name, diag=False, trace=False, force_slow=False, par=None, cal=(0,1), calr=1, calc=10, flip=0, rom='', rotx=0, stm=' sc1', join=True, rsl=8, rws=6, rwf=8, rot=2, xpf=1, gp=None, xw=0, xc=0, **pp):
    import chain3; chain3.P.update(fused=1); chain3.P.update(pp)
    tail = chain3.P['tail']; NRED = 144 if tail else 128
    if tail: join = False
    a = Asm()
    sreg = Regs(4, 100, 's')
    kWs = sreg.get(2, 2); sX = sreg.get(); sJob = sreg.get(); SD = sreg.get(4, 4)
    rt0 = sreg.get(2, 2); ct0 = sreg.get(2, 2); sJp = sreg.get(); sLog = sreg.get(); sMk = sreg.get(2, 2)
    base = sreg.p
    c = chain_common(a, sreg)
    assert c.sW == base
    wT = sreg.get(6); wS = sreg.get(16, 4); rt1 = sreg.get(2, 2); ct1 = wT + (wT & 1)
    tr = (Trace2(a, sreg, c, wS) if trace == 2 else Trace(a, sreg, 6)) if trace else None
    Lend = f'{name}_end'; Lfin = f'{name}_fin'; Ldone = f'{name}_done'; Lwork = f'{name}_worker'
    WS = sr(c.SWS, 4); sW = sr(c.sW)
    a(kstart(name))
    a('s_cmp_ge_u32 s2, 256')
    a(f's_cbranch_scc1 {Lend}')
    if rotx:
        a(f's_add_u32 s3, s2, {rotx}'); a('s_and_b32 s3, s3, 7'); a('s_and_b32 s2, s2, 0xf8'); a('s_or_b32 s2, s2, s3')
    if diag: a(f's_memrealtime {sr(rt0,2)}'); a(f's_memtime {sr(ct0,2)}')
    a(f's_load_dwordx2 {sr(kWs,2)}, s[0:1], {D_WS}')
    a(f's_load_dwordx2 {sr(SD,2)}, s[0:1], {D_DBG}')
    a(f'v_lshrrev_b32 v1, 6, v0')
    a(f'v_readfirstlane_b32 {sW}, v1')
    a(f's_and_b32 {sr(sX)}, s2, 3')
    a(f's_lshr_b32 {sr(sJob)}, s2, 3')
    if diag:
        a(f's_and_b32 {sr(sLog)}, s2, 7')
        ssum(a, sr(sLog), sr(c.sT), [(sr(sLog), 15), (sr(sJob), 10)], STAMP + 0x400000)
    a('s_waitcnt lgkmcnt(0)')
    srd(a, c.SWS, sr(kWs), sr(kWs+1), WS_BYTES)
    srd(a, SD, sr(SD), sr(SD+1), 256)
    a('s_bitcmp0_b32 s2, 2' if flip else 's_bitcmp1_b32 s2, 2')
    if xw:
        a(f's_cbranch_scc0 {Lwork}_x')
        for i in range(xw): a('s_sleep 127')
        a(f's_branch {Lwork}')
        a(f'{Lwork}_x:')
    a(f's_cbranch_scc1 {Lwork}')
    ssum(a, sr(c.sT+3), None, [(sr(sX), 5)])
    a(f's_add_u32 {sr(c.sT+3)}, {sr(c.sT+3)}, {sr(sJob)}')
    a(f's_lshr_b32 {sr(c.sG)}, {sr(c.sT+3)}, 4')
    a(f's_and_b32 {sr(c.sC)}, {sr(c.sT+3)}, 15')
    a(f's_getreg_b32 {sr(c.sMode)}, hwreg(HW_REG_XCC_ID)')
    a(f's_and_b32 {sr(c.sMode)}, {sr(c.sMode)}, 7')
    a(f's_mul_i32 {sr(c.sT)}, {sr(c.sMode)}, {sr(c.sMode)}')
    ssum(a, sr(c.sMode), sr(c.sT), [(sr(c.sMode), 12), (sr(c.sT), 20)])
    a(f'v_lshlrev_b32 v1, 4, v0')
    for i in range(4): a(f'v_mov_b32 v{4+i}, -1')
    a(f'v_mov_b32 v8, 0')
    a(f's_sub_u32 {sr(c.sPart)}, 0, {sr(kWs)}')
    a(f's_and_b32 {sr(c.sPart)}, {sr(c.sPart)}, 0x1fffff')
    a(f's_add_u32 {sr(c.sPart)}, {sr(c.sPart)}, {PARTA}')
    ssum(a, sr(c.sT), None, [(sr(c.sT+3), 14)], COMM)
    a(f'buffer_store_dwordx4 v[4:7], v1, {WS}, {sr(c.sT)} offen sc1')
    a(f's_add_u32 {sr(c.sT)}, {sr(c.sT)}, 8192')
    a(f'buffer_store_dwordx4 v[4:7], v1, {WS}, {sr(c.sT)} offen sc1')
    ssum(a, sr(c.sT+1), None, [(sr(c.sT+3), 13)])
    a(f's_add_u32 {sr(c.sT+1)}, {sr(c.sT+1)}, {sr(c.sPart)}')
    a(f'buffer_store_dwordx4 v[4:7], v1, {WS}, {sr(c.sT+1)} offen sc1')
    ssum(a, sr(c.sT+2), None, [(sr(c.sT+3), 9)], FL)
    a(f'v_and_b32 v3, 0x1fc, v0')
    a(f'buffer_store_dword v8, v3, {WS}, {sr(c.sT+2)} offen sc1')
    def pst(i):
        if diag: a(f's_memrealtime {sr(wS+2*i,2)}')
    def mark(code, w=0):
        if not diag: return
        Lm = a.lab('mk')
        a(f's_cmp_lg_u32 {sW}, {w}')
        a(f's_cbranch_scc1 {Lm}')
        a(f's_memrealtime {sr(sMk,2)}')
        a('s_waitcnt lgkmcnt(0)')
        a(f'v_mov_b32 v253, {sr(sMk)}')
        a(f'v_mov_b32 v254, {code*256+1}')
        a(f'buffer_store_dword v253, off, {WS}, {sr(sLog)}')
        a(f'buffer_store_dword v254, off, {WS}, {sr(sLog)} offset:4')
        a(f's_memtime {sr(sMk,2)}')
        a('s_waitcnt lgkmcnt(0)')
        a(f'v_mov_b32 v253, {sr(sMk)}')
        a(f'v_mov_b32 v254, {code*256+2}')
        a(f'buffer_store_dword v253, off, {WS}, {sr(sLog)} offset:8')
        a(f'buffer_store_dword v254, off, {WS}, {sr(sLog)} offset:12')
        a(f's_add_u32 {sr(sLog)}, {sr(sLog)}, 16')
        a(f'{Lm}:')
    c.mark = mark
    Lr = a.lab('role')
    def arrived(V, Lfail, sSp):
        Lg = a.lab('gp')
        a(f's_mov_b32 {sSp}, {SPIN}')
        a(f'{Lg}:')
        a(f'buffer_load_dwordx4 {vr(V,4)}, off, {sr(SD,4)}, 0 sc1')
        a(f's_sub_u32 {sSp}, {sSp}, 1')
        a(f's_cbranch_scc1 {Lfail}')
        a('s_waitcnt vmcnt(0)')
        a(f'v_and_b32 v{V+4}, v{V}, v{V+1}')
        a(f'v_and_b32 v{V+5}, v{V+2}, v{V+3}')
        a(f'v_and_b32 v{V+4}, v{V+4}, v{V+5}')
        a(f'v_and_b32 v{V+4}, 32, v{V+4}')
        a(f'v_cmp_eq_u32 vcc, 0, v{V+4}')
        a(f's_cbranch_vccnz {Lg}')
    def getpar(V):
        arrived(V, Lfin, sr(c.sSpin))
        for i in range(4): a(f'v_bfe_u32 v{V+4+i}, v{V+i}, 6, 6')
        a(f'v_add3_u32 v{V+4}, v{V+4}, v{V+5}, v{V+6}')
        a(f'v_add_u32 v{V+4}, v{V+4}, v{V+7}')
        a(f'v_readfirstlane_b32 {sr(c.sS)}, v{V+4}')
        if diag: a(f's_lshl_b32 {sr(sJob)}, {sr(c.sS)}, 16')
        a(f's_cmp_gt_u32 {sr(c.sS)}, 64')
        if par is None: a(f's_cselect_b32 {sr(c.sS)}, 8192, 0')
        elif par == 'inv': a(f's_cselect_b32 {sr(c.sS)}, 0, 8192')
        else: a(f's_mov_b32 {sr(c.sS)}, {par*8192}')
        a(f's_add_u32 {sr(c.sPart)}, {sr(c.sPart)}, {sr(c.sS)}')
        for i in (1, 2, 3):
            a(f's_cmp_eq_u32 {sr(sX)}, {i}')
            a(f's_cselect_b64 vcc, -1, 0')
            a(f'v_cndmask_b32 v{V}, v{V}, v{V+i}, vcc')
        a(f'v_readfirstlane_b32 {sr(c.sS)}, v{V}')
        a(f's_and_b32 {sr(c.sS)}, {sr(c.sS)}, 0xfffff000')
        a(f's_lshl_b32 {sr(c.sMode)}, {sr(c.sMode)}, 5')
        if force_slow: a(f's_cmp_eq_u32 0, 1')
        else: a(f's_cmp_eq_u32 {sr(c.sS)}, {sr(c.sMode)}')
        a(f's_cselect_b32 {sr(c.sMode)}, 0, 1')
    a(f's_cmp_lg_u32 {sW}, 0')
    a(f's_cbranch_scc1 {Lr}')
    cT = c.sB1; assert c.sO2 == cT + 3
    a(f's_lshr_b32 {sr(cT)}, {sr(c.sT+3)}, 5')
    a(f's_and_b32 {sr(cT+1)}, {sr(c.sT+3)}, 31')
    ssum(a, sr(cT), sr(cT+1), [(sr(cT), 14), (sr(cT+1), 8)], 0x100000)
    a(f's_add_u32 {sr(cT)}, {sr(cT)}, {sr(c.sPart)}')
    a(f's_add_u32 {sr(cT+1)}, {sr(cT)}, 8192')
    a(f'v_lshlrev_b32 v2, 2, v0')
    for k in range(2): a(f'buffer_store_dword v4, v2, {WS}, {sr(cT+k)} offen sc1')
    a(f's_mov_b32 {sr(cT+2)}, 0')
    a(f's_mov_b32 {sr(c.sSpin)}, 100000')
    a('s_waitcnt vmcnt(0)')
    pst(0)
    for k in (cal if calr == 0 else ()):
        Lc = a.lab('cal')
        a(f'buffer_store_dword v4, v2, {WS}, {sr(cT+k)} offen sc1')
        a(f'{Lc}:')
        a(f's_getreg_b32 {sr(cT+3)}, hwreg(HW_REG_IB_STS, 0, 4)')
        a(f's_add_u32 {sr(cT+2)}, {sr(cT+2)}, {-1 if k else 1}')
        a(f's_sub_u32 {sr(c.sSpin)}, {sr(c.sSpin)}, 1')
        a(f's_cselect_b32 {sr(cT+3)}, 0, {sr(cT+3)}')
        a(f's_cmp_lg_u32 {sr(cT+3)}, 0')
        a(f's_cbranch_scc1 {Lc}')
    for r in range(calr):
        for k in (0, 1):
            Lc = a.lab('cal')
            a(f'buffer_store_dword v4, v2, {WS}, {sr(cT+k)} offen sc1')
            a(f'buffer_store_dword v4, v2, {WS}, {sr(cT+1-k)} offen sc1')
            a(f's_mov_b32 {sr(c.sSpin)}, {calc}')
            a('s_waitcnt vmcnt(1)')
            a(f'{Lc}:')
            a(f's_getreg_b32 {sr(cT+3)}, hwreg(HW_REG_IB_STS, 0, 4)')
            a(f's_cmp_eq_u32 {sr(cT+3)}, 0')
            a(f's_cbranch_scc1 {Lc}x')
            a(f's_sub_u32 {sr(c.sSpin)}, {sr(c.sSpin)}, 1')
            a(f's_cbranch_scc0 {Lc}')
            a(f'{Lc}x:')
            a('s_waitcnt vmcnt(0)')
            a(f'{"s_sub_u32" if k else "s_add_u32"} {sr(cT+2)}, {sr(cT+2)}, {sr(c.sSpin)}')
    a(f's_cmp_gt_i32 {sr(cT+2)}, 0')
    a(f's_cselect_b32 {sr(cT+2)}, 65, 1')
    a(f's_add_u32 {sr(cT+2)}, {sr(cT+2)}, {sr(c.sMode)}')
    a(f's_lshl_b32 {sr(cT+3)}, {sr(sX)}, 2')
    a(f'v_mov_b32 v6, {sr(cT+2)}')
    pst(1)
    a('s_barrier')
    a(f's_mov_b64 exec, 1')
    a(f'buffer_atomic_add v6, off, {sr(SD,4)}, {sr(cT+3)} sc1')
    a(f's_mov_b64 exec, -1')
    if diag:
        a('s_waitcnt lgkmcnt(0)')
        ssum(a, sr(c.sT+1), None, [(sr(c.sT+3), 5)], STAMP + 0x500000)
        a(f'v_mov_b32 v4, {sr(rt0)}')
        for i in range(2): a(f'v_mov_b32 v{5+i}, {sr(wS+2*i)}')
        a(f'v_mov_b32 v7, {sr(c.sMode)}')
        a(f'buffer_store_dwordx4 v[4:7], off, {WS}, {sr(c.sT+1)}')
    a(f's_branch {Lr}2')
    a(f'{Lr}:')
    a('s_waitcnt vmcnt(0)')
    a('s_barrier')
    a(f'{Lr}2:')
    for i in range(xc): a('s_sleep 127')
    if tr: tr.init()
    a(f's_cmp_ge_u32 {sW}, 4')
    a(f's_cbranch_scc1 {name}_c')
    bwave(a, c, Lfin, tr, getpar, Ldone)
    a(f'{name}_c:')
    cwave(a, c, Lfin, tr, getpar, Ldone)
    def chain_diag():
        a(f's_memrealtime {sr(rt1,2)}')
        a(f's_memtime {sr(ct1,2)}')
        a('s_waitcnt vmcnt(0) lgkmcnt(0)')
        a(f's_sub_u32 {sr(ct1)}, {sr(ct1)}, {sr(ct0)}')
        a(f's_lshl_b32 {sr(ct1)}, {sr(ct1)}, 1')
        a(f's_add_u32 {sr(c.sMode)}, {sr(c.sMode)}, {sr(ct1)}')
        ssum(a, sr(c.sT), sr(c.sT+1), [(sr(c.sG), 13), (sr(c.sC), 9), (sW, 6)], STAMP)
        vals = [sr(rt0), sr(rt1), sr(c.sSpin), sr(c.sS), sr(c.sMode), sr(sJob)] + ([sr(tr.acc+i) for i in range(6)] if trace == 1 else [])
        a(f'v_mov_b32 v1, {sr(c.sT)}')
        for i, x in enumerate(vals):
            a(f'v_mov_b32 v2, {x}')
            a(f'buffer_store_dword v2, v1, {WS}, 0 offen offset:{4*i}')
    a(f'{Lfin}:')
    if diag: chain_diag()
    a(f'{Lend}:')
    a('s_endpgm')
    a(f'{Ldone}:')
    if diag: chain_diag()
    if not join: a('s_endpgm')
    a(f'v_mbcnt_lo_u32_b32 v0, -1, 0')
    a(f'v_mbcnt_hi_u32_b32 v0, -1, v0')
    a(f's_lshl_b32 {sr(c.sT)}, {sW}, 6')
    a(f'v_add_u32 v0, {sr(c.sT)}, v0')
    a(f's_mov_b32 {sr(sJob)}, -1')
    a(f'{Lwork}:')
    wr = Regs(c.SWS + 4, 100, 's')
    sQo = wr.get(); sSig = wr.get(); sInc = wr.get(); sSp = wr.get(); t0 = wr.get(4, 2); jt = wr.get(2, 2); sChk = wr.get()
    wb = wr.p
    Lloop = a.lab('w_loop'); Lnext = a.lab('w_next'); Lsig = a.lab('w_sig')
    def pop():
        Lp = a.lab('w_pop')
        a(f's_cmp_lg_u32 {sW}, 0')
        a(f's_cbranch_scc1 {Lp}')
        a(f's_mov_b64 exec, 1')
        a(f'v_mov_b32 v255, 1')
        a(f'buffer_atomic_add v255, off, {sr(SD,4)}, {sr(sQo)} sc0 sc1')
        a(f's_mov_b64 exec, -1')
        a(f'{Lp}:')
    def dep(off, cnt, allw=False):
        Lx = a.lab('dp'); Ly = a.lab('dpx')
        a(f's_cmp_lg_u32 {sW}, 0')
        a(f's_cbranch_scc1 {Ly}')
        a(f's_mov_b32 {sr(sSp)}, {SPIN}')
        a(f'{Lx}:')
        for k, o in enumerate(off): a(f'buffer_load_dword v{1+k}, off, {WS}, {o} sc1')
        a(f's_sub_u32 {sr(sSp)}, {sr(sSp)}, 1')
        a(f's_cbranch_scc1 {Lend}')
        a('s_waitcnt vmcnt(0)')
        for k in range(len(off)):
            a(f'v_cmp_gt_u32 vcc, {cnt[k]}, v{1+k}')
            a(f's_cbranch_vccnz {Lx}_s')
        a(f's_branch {Ly}')
        a(f'{Lx}_s:')
        a(f's_sleep {rsl}')
        a(f's_branch {Lx}')
        a(f'{Ly}:')
        a('s_barrier')
    ssum(a, sr(sQo), None, [(sr(sX), 2)], 128)
    ssum(a, sr(sJp), None, [(sW, 10)], JSLOT)
    a(f's_mov_b32 {sr(sInc)}, 0')
    a(f's_mov_b32 {sr(sChk)}, 1')
    Lfirst = a.lab('w_first'); Lnc = a.lab('w_nc')
    def jlog(J):
        a(f's_memrealtime {sr(jt,2)}')
        a('s_waitcnt lgkmcnt(0)')
        a(f'v_mov_b32 v4, {sr(jt)}')
        a(f'v_lshl_add_u32 v5, {J}, 8, {sr(sQo)}')
        a(f'buffer_store_dwordx2 v[4:5], off, {WS}, {sr(sLog)}')
        a(f's_add_u32 {sr(sLog)}, {sr(sLog)}, 8')
    if diag:
        a(f'v_mov_b32 v2, {sr(sJob)}')
        a(f's_cmp_lg_u32 {sW}, 0')
        a(f's_cbranch_scc1 {Lwork}_nl')
        jlog('v2')
        a(f'{Lwork}_nl:')
    a(f's_cmp_lg_u32 {sr(sJob)}, -1')
    a(f's_cbranch_scc1 {Lfirst}0')
    pop()
    a(f'{Lnext}:')
    a('s_waitcnt vmcnt(0)')
    a(f'v_mov_b32 v1, {sr(sJp)}')
    a(f's_cmp_lg_u32 {sW}, 0')
    a(f's_cbranch_scc1 {Lsig}')
    a(f's_cmp_eq_u32 {sr(sChk)}, 0')
    a(f's_cbranch_scc1 {Lnc}')
    arrived(4, Lend, sr(sSp))
    a(f's_mov_b32 {sr(sChk)}, 0')
    a(f'{Lnc}:')
    a(f'v_readfirstlane_b32 {sr(t0+1)}, v255')
    a(f's_cmp_eq_u32 {sr(sQo)}, 144')
    a(f's_cselect_b32 {sr(t0)}, 0, 32')
    a(f's_add_u32 {sr(t0)}, {sr(t0)}, {sr(t0+1)}')
    a(f'v_mov_b32 v2, {sr(t0)}')
    a(f'v_and_b32 v3, 7, v0')
    a(f'v_lshl_add_u32 v3, v3, 10, v1')
    a(f'ds_write_b32 v3, v2')
    a('s_waitcnt lgkmcnt(0)')
    a(f'{Lsig}:')
    a('s_barrier')
    a(f'ds_read_b32 v2, v1')
    a(f's_xor_b32 {sr(sJp)}, {sr(sJp)}, 4')
    Lns = a.lab('w_ns'); Lnp = a.lab('w_np')
    a(f's_cmp_lg_u32 {sW}, 0')
    a(f's_cbranch_scc1 {Lnp}')
    a(f's_cmp_eq_u32 {sr(sInc)}, 0')
    a(f's_cbranch_scc1 {Lns}')
    a(f'v_lshlrev_b32 v4, 7, v0')
    a(f'v_mov_b32 v3, 1')
    a(f's_mov_b32 exec_lo, {sr(sInc)}')
    a(f's_mov_b32 exec_hi, 0')
    a(f'buffer_atomic_add v3, v4, {WS}, {sr(sSig)} offen sc1')
    a(f's_mov_b64 exec, -1')
    a(f'{Lns}:')
    if diag: jlog('v2')
    a(f'{Lnp}:')
    a('s_waitcnt lgkmcnt(0)')
    a(f'v_readfirstlane_b32 {sr(sJob)}, v2')
    a(f's_mov_b32 {sr(sInc)}, 0')
    Lred = a.lab('w_red'); Lsw = a.lab('w_sw'); Lgo = a.lab('w_go')
    a(f's_mov_b32 {sr(t0)}, {Q_END}')
    a(f's_cmp_eq_u32 {sr(sQo)}, 144')
    a(f's_cselect_b32 {sr(t0)}, {NRED}, {sr(t0)}')
    a(f's_cmp_ge_u32 {sr(sJob)}, {sr(t0)}')
    a(f's_cbranch_scc1 {Lsw}')
    a(f'{Lfirst}:')
    a(f's_cmp_eq_u32 {sr(sQo)}, 144')
    a(f's_cbranch_scc1 {Lred}')
    Lbig = a.lab('w_big'); Lsm = a.lab('w_sm'); Lkva = a.lab('w_kva'); Lgate = a.lab('w_gate'); Lqa = a.lab('w_qa'); Latt = a.lab('w_att'); Lfn = a.lab('w_fin')
    def mk(TN, TM, dual, RW, **mp):
        s = Regs(wb, 100, 's'); v = Regs(1, 252)
        g = GemmR(a, GemmCfgR(TN, TM, dual=dual, RW=RW), s, v, SO=c.SWS, sWv=c.sW); g.storemod = stm; g.bar1 = mp.pop('bar1', 0); g.mp = mp
        return g, s
    gp = gp or {}
    gB, sB = mk(256, 256, True, 4, **gp.get('B', dict(bar1=1,egap=4))); gS, _ = mk(256, 128, True, rws, **gp.get('S', dict(bar1=1,rgap=1,egap=4))); gF, _ = mk(128, 128, False, rwf, **gp.get('F', dict(bar1=1,rgap=1)))
    sRow = sB.get(); sTile = sB.get(); sPx = sB.get(); pT = sB.get(2)
    J = sr(sJob)
    a(f's_cmp_ge_u32 {J}, {Q_ATT}')
    a(f's_cbranch_scc1 {Latt}')
    a(f's_cmp_ge_u32 {J}, {Q_B2}')
    a(f's_cbranch_scc1 {Lbig}')
    a(f's_mul_i32 {sr(sRow)}, {J}, 43691')
    a(f's_lshr_b32 {sr(sRow)}, {sr(sRow)}, 19')
    a(f's_mul_i32 {sr(t0+1)}, {sr(sRow)}, 12')
    a(f's_sub_u32 {sr(sTile)}, {J}, {sr(t0+1)}')
    def kqv(g, inc):
        TM = g.c.TM
        Lv = a.lab('w_v'); Lj = a.lab('w_j'); Lnopx = a.lab('w_nopx')
        a(f's_load_dwordx2 {sr(g.SX,2)}, s[0:1], {A_X}')
        a(f's_mov_b32 {sr(sInc)}, {inc}')
        a(f's_lshl_b32 {sr(t0+2)}, {sr(sX)}, 3')
        a(f's_cmp_ge_u32 {sr(sTile)}, 8')
        a(f's_cbranch_scc1 {Lv}')
        a(f's_load_dwordx2 {sr(g.SW,2)}, s[0:1], {B_WQ}')
        a(f's_load_dwordx2 {sr(g.SW2,2)}, s[0:1], {B_WK}')
        a(f's_add_u32 {sr(t0+2)}, {sr(t0+2)}, {sr(sTile)}')
        a(f's_lshl_b32 {sr(t0)}, {sr(t0+2)}, 8')
        a(f's_mov_b32 {sr(t0+1)}, {sr(t0)}')
        a(f's_bitcmp1_b32 {sW}, 1')
        a(f's_mov_b32 {sr(g.sOB)}, {QX}')
        a(f's_cselect_b32 {sr(g.sOB)}, {KX-8192}, {sr(g.sOB)}')
        a(f's_cselect_b32 {sr(g.sScale)}, {SCL:#x}, 1.0')
        a(f's_branch {Lj}')
        a(f'{Lv}:')
        a(f's_load_dwordx2 {sr(g.SW,2)}, s[0:1], {B_WV}')
        a(f's_load_dwordx2 {sr(g.SW2,2)}, s[0:1], {B_WV}')
        a(f's_lshl_b32 {sr(t0)}, {sr(sTile)}, 1')
        a(f's_add_u32 {sr(t0+2)}, {sr(t0+2)}, {sr(t0)}')
        a(f's_sub_u32 {sr(t0+2)}, {sr(t0+2)}, 16')
        a(f's_lshl_b32 {sr(t0)}, {sr(t0+2)}, 8')
        a(f's_add_u32 {sr(t0+1)}, {sr(t0)}, 256')
        a(f's_mov_b32 {sr(g.sOB)}, {VX}')
        a(f's_mov_b32 {sr(g.sScale)}, 1.0')
        a(f'{Lj}:')
        ssum(a, sr(sPx), sr(t0+3), [(sr(sRow), 7), (sW, 5), (sr(t0+2), 0)])
        a(f's_lshl_b32 {sr(t0+3)}, {sr(sRow)}, 7')
        a(f's_lshr_b32 {sr(sSig)}, {sr(t0+2)}, 2')
        a(f's_lshl_b32 {sr(sSig)}, {sr(sSig)}, 11')
        a(f's_add_u32 {sr(sSig)}, {sr(sSig)}, {sr(t0+3)}')
        a(f's_add_u32 {sr(sSig)}, {sr(sSig)}, {RDY}')
        ssum(a, sr(t0+2), sr(t0+3), [(sr(t0+2), 13), (sr(sRow), 20)])
        a(f's_add_u32 {sr(g.sOB)}, {sr(g.sOB)}, {sr(t0+2)}')
        a(f's_mov_b32 {sr(g.sOM)}, 1')
        a(f's_mov_b32 {sr(g.sLdw)}, 8192')
        a(f's_mov_b32 {sr(t0+3)}, {1024*8192}')
        return Lnopx
    def run(g, Lnopx=None, scale=True, xws=None):
        TM = g.c.TM
        a(f's_mov_b32 {sr(g.sLdo)}, 2048')
        g.setup_g()
        a(f's_lshl_b32 {sr(t0+2)}, {sr(sRow)}, 18')
        a('s_waitcnt lgkmcnt(0)')
        if xws is None: srd(a, g.SX, sr(g.SX), sr(g.SX+1), TM*2048, off=sr(t0+2))
        else:
            a(f's_add_u32 {sr(t0+2)}, {sr(t0+2)}, {xws}')
            srd(a, g.SX, sr(kWs), sr(kWs+1), TM*2048, off=sr(t0+2))
        a(f's_sub_u32 {sr(t0+2)}, {sr(t0+3)}, {sr(t0)}')
        srd(a, g.SW, sr(g.SW), sr(g.SW+1), sr(t0+2), off=sr(t0))
        if g.c.dual:
            a(f's_sub_u32 {sr(t0+2)}, {sr(t0+3)}, {sr(t0+1)}')
            srd(a, g.SW2, sr(g.SW2), sr(g.SW2+1), sr(t0+2), off=sr(t0+1))
        a(f's_bfe_u32 {sr(t0)}, {sr(sRow)}, {(rot<<16) + (0 if TM == 128 else 1)}')
        g.order(sr(t0))
        mark(9)
        g.issue0()
        g.setup_l()
        g.main(**g.mp)
        pop()
        mark(10)
        if g.c.dual:
            a(f's_cmp_lt_u32 {sr(sTile)}, 8')
            a(f's_cselect_b64 vcc, -1, 0')
        g.epilogue(scale=scale, xch=g.c.dual)
        mark(11)
    Lpx = a.lab('w_px')
    kqv(gS, 1)
    run(gS)
    a(f's_cmp_ge_u32 {sr(sTile)}, 8')
    a(f's_cbranch_scc1 {Lnext}')
    a('s_waitcnt lgkmcnt(0)')
    a('s_barrier')
    a(f's_cmp_ge_u32 {sW}, 4')
    a(f's_cbranch_scc1 {Lnext}')
    a(f's_branch {Lpx}')
    a(f'{Lbig}:')
    a(f's_cmp_ge_u32 {J}, {Q_B4}')
    a(f's_cselect_b32 {sr(t0)}, {Q_B4-48}, {Q_B2-24}')
    a(f's_cbranch_scc1 {Lbig}1')
    a(f's_cmp_ge_u32 {J}, {Q_QA}')
    a(f's_cbranch_scc1 {Lqa}')
    a(f's_cmp_ge_u32 {J}, {Q_KVA}')
    a(f's_cbranch_scc1 {Lkva}')
    a(f'{Lbig}1:')
    a(f's_sub_u32 {sr(t0)}, {J}, {sr(t0)}')
    a(f's_mul_i32 {sr(sRow)}, {sr(t0)}, 43691')
    a(f's_lshr_b32 {sr(sRow)}, {sr(sRow)}, 19')
    a(f's_mul_i32 {sr(t0+1)}, {sr(sRow)}, 12')
    a(f's_sub_u32 {sr(sTile)}, {sr(t0)}, {sr(t0+1)}')
    a(f's_lshl_b32 {sr(sRow)}, {sr(sRow)}, 1')
    a(f'{Lbig}2:')
    kqv(gB, 3)
    a(f'{Lbig}3:')
    run(gB)
    a(f's_cmp_ge_u32 {sr(sTile)}, 8')
    a(f's_cbranch_scc1 {Lnext}')
    a('s_waitcnt lgkmcnt(0)')
    a('s_barrier')
    a(f'{Lpx}:')
    x = px_setup(a, Regs(1, 116))
    px_job(a, x, sr(sPx), c.SWS, pT, stm, lds=sW)
    a(f's_branch {Lnext}')
    a(f'{Lqa}:')
    g = gB
    a(f's_load_dwordx2 {sr(g.SX,2)}, s[0:1], {A_X}')
    a(f's_load_dwordx2 {sr(g.SW,2)}, s[0:1], {A_WQ}')
    a(f's_load_dwordx2 {sr(g.SW2,2)}, s[0:1], {A_WQ}')
    a(f's_sub_u32 {sr(t0)}, {J}, {Q_QA}')
    a(f's_lshr_b32 {sr(t0+1)}, {sr(t0)}, 2')
    ssum(a, sr(sRow), sr(t0+2), [(sr(sX), 2), (sr(t0+1), 1)])
    ssum(a, sr(sSig), None, [(sr(sRow), 6)], QAC)
    a(f's_mov_b32 {sr(sInc)}, 1')
    a(f's_and_b32 {sr(t0)}, {sr(t0)}, 3')
    a(f's_lshl_b32 {sr(t0)}, {sr(t0)}, 9')
    a(f's_add_u32 {sr(t0+1)}, {sr(t0)}, 256')
    ssum(a, sr(g.sOB), None, [(sr(sRow), 18)], QA)
    a(f's_add_u32 {sr(g.sOB)}, {sr(g.sOB)}, {sr(t0)}')
    a(f's_mov_b32 {sr(g.sScale)}, {f32bits(32**-0.5*LOG2E):#x}')
    a(f's_mov_b32 {sr(g.sOM)}, 0')
    a(f's_mov_b32 {sr(g.sLdw)}, 2048')
    a(f's_mov_b32 {sr(t0+3)}, {1024*2048}')
    a(f's_mov_b32 {sr(sTile)}, 8')
    a(f's_branch {Lbig}3')
    S0 = (wb + 3) // 4 * 4; sJ2 = S0 + 16; sCn = S0 + 17; aT = S0 + 18
    a(f'{Lkva}:')
    a(f's_mov_b32 {sr(sSig)}, {KVC}')
    a(f's_mov_b32 {sr(sInc)}, 1')
    a(f's_cmp_ge_u32 {J}, {Q_GATE}')
    a(f's_cbranch_scc1 {Lgate}')
    ssum(a, sr(sJ2), None, [(sr(sX), 1)])
    a(f's_add_u32 {sr(sJ2)}, {sr(sJ2)}, {J}')
    a(f's_sub_u32 {sr(sJ2)}, {sr(sJ2)}, {Q_KVA}')
    kva_job(a, sr(sJ2), sW, S0, t0, stm, pop)
    a(f's_branch {Lnext}')
    a(f'{Lgate}:')
    ssum(a, sr(sJ2), None, [(sr(sX), 1)])
    a(f's_add_u32 {sr(sJ2)}, {sr(sJ2)}, {J}')
    a(f's_sub_u32 {sr(sJ2)}, {sr(sJ2)}, {Q_GATE}')
    a(f's_lshl_b32 {sr(sJ2)}, {sr(sJ2)}, 2')
    a(f'{Lgate}1:')
    gate_job(a, sr(sJ2), sW, S0, t0, stm)
    a(f's_add_u32 {sr(sJ2)}, {sr(sJ2)}, 1')
    a(f's_and_b32 {sr(t0)}, {sr(sJ2)}, 3')
    a(f's_cbranch_scc1 {Lgate}1')
    pop()
    a(f's_branch {Lnext}')
    a(f'{Latt}:')
    a(f's_cmp_ge_u32 {J}, {Q_FIN}')
    a(f's_cbranch_scc1 {Lfn}')
    ssum(a, sr(sJ2), None, [(sr(sX), 5)])
    a(f's_add_u32 {sr(sJ2)}, {sr(sJ2)}, {J}')
    a(f's_sub_u32 {sr(sJ2)}, {sr(sJ2)}, {Q_ATT}')
    a(f's_lshr_b32 {sr(t0)}, {sr(sJ2)}, 3')
    ssum(a, sr(sSig), None, [(sr(t0), 7)], ATC)
    a(f's_mov_b32 {sr(sInc)}, 1')
    a(f's_lshr_b32 {sr(t0)}, {sr(sJ2)}, 4')
    ssum(a, sr(t0), None, [(sr(t0), 7)], QAC)
    a(f's_mov_b32 {sr(t0+1)}, {KVC}')
    dep([sr(t0), sr(t0+1)], [4, 16])
    attnA_job(a, sr(sJ2), sW, S0, aT, kWs, storemod=stm, late=pop)
    a(f's_branch {Lnext}')
    a(f'{Lfn}:')
    g = gF
    a(f's_load_dwordx2 {sr(g.SW,2)}, s[0:1], {A_WO}')
    a(f's_sub_u32 {sr(t0)}, {J}, {Q_FIN}')
    a(f's_lshr_b32 {sr(t0+1)}, {sr(t0)}, 3')
    ssum(a, sr(sRow), sr(t0+2), [(sr(sX), 2), (sr(t0+1), 0)])
    ssum(a, sr(sSig), None, [(sr(sRow), 7)], FNC)
    a(f's_mov_b32 {sr(sInc)}, 1')
    if tail:
        a(f's_cmp_eq_u32 {sr(sRow)}, 15')
        a(f's_cselect_b32 {sr(sSig)}, {FNC2}, {sr(sSig)}')
        a(f's_cselect_b32 {sr(sInc)}, 0xffff, {sr(sInc)}')
    ssum(a, sr(t0+1), None, [(sr(sRow), 7)], ATC)
    dep([sr(t0+1)], [8])
    a(f's_and_b32 {sr(t0)}, {sr(t0)}, 7')
    a(f's_lshl_b32 {sr(t0)}, {sr(t0)}, 8')
    ssum(a, sr(g.sOB), None, [(sr(sRow), 18)], OPA)
    a(f's_add_u32 {sr(g.sOB)}, {sr(g.sOB)}, {sr(t0)}')
    a(f's_mov_b32 {sr(g.sOM)}, 0')
    a(f's_mov_b32 {sr(g.sLdw)}, 2048')
    a(f's_mov_b32 {sr(t0+3)}, {1024*2048}')
    run(g, scale=False, xws=OA)
    a(f's_branch {Lnext}')
    a(f'{Lfirst}0:')
    if xpf:
        a(f's_cmp_ge_u32 {sW}, 3')
        a(f's_cbranch_scc1 {Lfirst}')
        a(f's_load_dwordx2 {sr(S0,2)}, s[0:1], {A_X}')
        a(f'v_and_b32 v1, 63, v0')
        a(f'v_lshlrev_b32 v1, 7, v1')
        ssum(a, sr(t0), sr(t0+1), [(sW, 18), (J, 13)])
        a('s_waitcnt lgkmcnt(0)')
        srd(a, S0, sr(S0), sr(S0+1), 2048*2048)
        a(f'buffer_load_dword v252, v1, {sr(S0,4)}, {sr(t0)} offen')
    a(f's_branch {Lfirst}')
    a(f'{Lsw}:')
    a(f's_cmp_eq_u32 {sr(sQo)}, 144')
    a(f's_cbranch_scc1 {Lend}')
    a(f's_mov_b32 {sr(sQo)}, 144')
    pop()
    a(f's_branch {Lnext}')
    a(f'{Lred}:')
    SO = S0
    a(f's_load_dwordx2 {sr(SO,2)}, s[0:1], {D_OUT}')
    ssum(a, sr(sJ2), sr(t0), [(J, 3), (sW, 0)])
    if tail:
        a(f's_cmp_lt_u32 {J}, 112')
        a(f's_cbranch_scc1 {Lred}1')
        ssum(a, sr(sJ2), sr(t0), [(J, 1), (sW, 0)], 896 - 224)
        a(f's_cmp_ge_u32 {sW}, 2')
        a(f's_cbranch_scc1 {Lnext}')
        a(f'{Lred}1:')
    x = red_setup(a, Regs(1, 255))
    a(f's_lshr_b32 {sr(t0)}, {sr(sJ2)}, 6')
    ssum(a, sr(t0), None, [(sr(t0), 7)], FNC)
    a(f's_and_b32 {sr(t0+1)}, {sr(sJ2)}, 15')
    ssum(a, sr(t0+1), None, [(sr(t0+1), 10)], PROG)
    a(f's_lshr_b32 {sr(t0+2)}, {sr(sJ2)}, 4')
    a(f'v_lshlrev_b32 v{x.T}, 3, v{x.L16}')
    a(f'v_and_b32 v{x.T}, 0x380, v{x.T}')
    a(f's_mov_b32 {sr(sSp)}, {SPIN}')
    a('s_waitcnt lgkmcnt(0)')
    srd(a, SO, sr(SO), sr(SO+1), 2048*2048)
    Lx = a.lab('rd_p'); Ly = a.lab('rd_g')
    a(f'{Lx}:')
    a(f'buffer_load_dword v{x.t}, v{x.T}, {WS}, {sr(t0+1)} offen sc1')
    a(f'buffer_load_dword v{x.t+1}, off, {WS}, {sr(t0)} sc1')
    a(f's_sub_u32 {sr(sSp)}, {sr(sSp)}, 1')
    a(f's_cbranch_scc1 {Lend}')
    a('s_waitcnt vmcnt(0)')
    a(f'v_cmp_ge_u32 {sr(jt,2)}, {sr(t0+2)}, v{x.t}')
    a(f'v_cmp_gt_u32 vcc, 8, v{x.t+1}')
    a(f's_or_b64 vcc, vcc, {sr(jt,2)}')
    a(f's_cbranch_vccz {Ly}')
    a(f's_sleep {rsl}')
    a(f's_branch {Lx}')
    a(f'{Ly}:')
    pop()
    red_job(a, x, sr(sJ2), c.SWS, SO, aT, stm=rom)
    a(f's_branch {Lnext}')
    a.pad()
    return a.text() + kd(name, 256, 256), 163840

if __name__ == '__main__':
    import sys
    from build import HDR
    NAME = 'gated_mix__grouped_kv_mqa__memory_aug_recurrent_mem_tr__prompt_kernel'
    kw = dict(diag=True); kw.update(eval('dict(' + (sys.argv[2] if len(sys.argv) > 2 else '') + ')'))
    lst = kw.pop('lst', True)
    t, l = gen_k5('fused_kernel' if lst else NAME, **kw)
    if lst: o = HDR + f'; @launch kernel=fused_kernel grid=(256,1,1) block=(512,1,1) lds={l}\n'
    else: o = HDR + f'; @launch grid=(256,1,1) block=(512,1,1) lds={l}\n'
    o += '.amdgcn_target "amdgcn-amd-amdhsa--gfx950"\n.text\n' + t
    open(sys.argv[1], 'w').write(o)
```

```python
from asm import *
from layout import *
from small import srd

def attnA_job(a, sJob, sW, S0, sT, kWs, ldmod='', storemod='', st=None, late=None, half=False):
    SQ, SKV, SG, SO = S0, S0 + 4, S0 + 8, S0 + 12
    sTok, sBuf, sSrc, sCnt, sPass, sX = sT, sT + 1, sT + 2, sT + 3, sT + 4, sT + 5
    v = Regs(1, 256)
    L = v.get(); T1 = v.get(); T2 = v.get(); vK = v.get(); vV = v.get(); vD = v.get(); vQO = v.get(); vIdx = v.get(); vG = v.get(2, 2)
    ones = v.get(4, 4); Q = v.get(16, 4); O = v.get(32, 4); lac = v.get(8, 4); C = v.get(32, 4); S = v.get(64, 4)
    KF = v.get(16, 4); VF = v.get(16, 4)
    srd(a, SQ, sr(kWs), sr(kWs+1), 2048*2048, off=QA)
    srd(a, SKV, sr(kWs), sr(kWs+1), 262144, off=KVF)
    srd(a, SG, sr(kWs), sr(kWs+1), 16384, off=GT)
    srd(a, SO, sr(kWs), sr(kWs+1), 2048*2048, off=OA)
    a(f'v_and_b32 v{L}, 63, v0')
    a(f'v_lshlrev_b32 v{vD}, 4, v0')
    if half:
        a(f's_and_b32 {sr(sX)}, {sW}, 3')
        a(f's_lshl_b32 {sr(sTok)}, {sJob}, 2')
        a(f's_add_u32 {sr(sTok)}, {sr(sTok)}, {sr(sX)}')
        a(f's_lshl_b32 {sr(sTok)}, {sr(sTok)}, 1')
        a(f's_lshr_b32 {sr(sX)}, {sW}, 2')
        a(f's_add_u32 {sr(sTok)}, {sr(sTok)}, {sr(sX)}')
    else:
        a(f's_lshl_b32 {sr(sTok)}, {sJob}, 3')
        a(f's_add_u32 {sr(sTok)}, {sr(sTok)}, {sW}')
        a(f's_lshl_b32 {sr(sTok)}, {sr(sTok)}, 1')
    a(f'v_and_b32 v{T1}, 31, v{L}')
    a(f'v_lshrrev_b32 v{T2}, 5, v{L}')
    a(f'v_lshlrev_b32 v{vQO}, 6, v{T1}')
    a(f'v_lshl_add_u32 v{vQO}, v{T2}, 5, v{vQO}')
    a(f's_lshl_b32 {sr(sX)}, {sr(sTok)}, 11')
    for t in range(2):
        if half and t: a(f's_xor_b32 {sr(sX)}, {sr(sX)}, 2048')
        for s in range(2):
            a(f'buffer_load_dwordx4 {vr(Q+8*t+4*s,4)}, v{vQO}, {sr(SQ,4)}, {sr(sX)} offen offset:{(0 if half else 2048*t)+16*s}{ldmod}')
    a(f's_lshl_b32 {sr(sX)}, {sr(sTok)}, 2')
    a(f'v_mov_b32 v{T1}, {sr(sX)}')
    if half: a(f'buffer_load_dword v{vG}, v{T1}, {sr(SG,4)}, 0 offen{ldmod}')
    else: a(f'buffer_load_dwordx2 {vr(vG,2)}, v{T1}, {sr(SG,4)}, 0 offen{ldmod}')
    a(f'v_mov_b32 v{vIdx}, 0xdddddddd')
    a(f'v_and_b32 v{T1}, 7, v{L}')
    a(f'v_mov_b32 v{T2}, 0x3f803f80')
    a(f'v_cmp_eq_u32 vcc, 0, v{T1}')
    a(f'v_cndmask_b32 v{ones}, 0, v{T2}, vcc')
    a(f'v_cndmask_b32 v{ones+1}, 0, v{T2}, vcc')
    a(f'v_cmp_eq_u32 vcc, 4, v{T1}')
    a(f'v_cndmask_b32 v{ones+2}, 0, v{T2}, vcc')
    a(f'v_cndmask_b32 v{ones+3}, 0, v{T2}, vcc')
    for i in range(32): a(f'v_mov_b32 v{C+i}, 0')
    a(f's_mov_b32 {sr(sPass)}, 0')
    Lre = a.lab('aa_re'); Ll = a.lab('aa_loop'); Ldone = a.lab('aa_done')
    a(f'{Lre}:')
    def dma():
        out = []
        for m in range(4):
            out.append((f's_add_u32 m0, {sr(sBuf)}, {m*8192}',
                        f'buffer_load_dwordx4 v{vD}, {sr(SKV,4)}, {sr(sSrc)} offen lds{ldmod}\ns_add_u32 {sr(sSrc)}, {sr(sSrc)}, 8192'))
        out[-1] = (out[-1][0], out[-1][1] + f'\ns_add_u32 {sr(sBuf)}, {sr(sBuf)}, 32768\ns_and_b32 {sr(sBuf)}, {sr(sBuf)}, 0x1ffff')
        return out
    a(f's_lshl_b32 {sr(sBuf)}, {sW}, 10')
    a(f's_mov_b32 {sr(sSrc)}, 0')
    for c in range(3):
        for d in dma(): a(d[0]); a(d[1])
    for i in range(32): a(f'v_mov_b32 v{O+i}, 0')
    for i in range(8): a(f'v_mov_b32 v{lac+i}, 0')
    for i in range(16): a(f'v_mov_b32 v{S+48+i}, 0')
    for i in range(8): a(f'v_mov_b32 v{VF+8+i}, 0')
    if half:
        a(f's_lshr_b32 {sr(sX)}, {sW}, 2')
        a(f's_lshl_b32 {sr(sX)}, {sr(sX)}, 12')
        a(f'v_lshl_add_u32 v{vK}, v{L}, 4, {sr(sX)}')
        a(f'v_mov_b32 v{vV}, v{vK}')
    else:
        a(f'v_lshlrev_b32 v{vK}, 4, v{L}')
        a(f'v_lshlrev_b32 v{vV}, 4, v{L}')
    ko = (lambda kt: (kt & 3) * 8192) if half else (lambda kt: (kt & 7) * 4096)
    per = 8 if half else 16
    a(f'v_mov_b32 v{T1}, 131072')
    a(f'v_mov_b32 v{T2}, 0')
    a(f'ds_write_b32 v{T1}, v{T2}')
    a('s_waitcnt vmcnt(8) lgkmcnt(0)')
    a('s_barrier')
    if st: st.stamp(1)
    def rdK(kt):
        return [f'ds_read_b128 {vr(KF+8*(kt&1)+4*s,4)}, v{vK} offset:{ko(kt)+s*1024}' for s in range(2)]
    def rdV(kt):
        return [f'ds_read_b128 {vr(VF+8*(kt&1)+4*s,4)}, v{vV} offset:{ko(kt)+2048+s*1024}' for s in range(2)]
    def qk(i):
        kt, t = i >> 1, i & 1; D = vr(S + 16 * (i & 3), 16); K = KF + 8 * (kt & 1)
        return [f'v_mfma_f32_32x32x16_bf16 {D}, {vr(K,4)}, {vr(Q+8*t,4)}, {vr(C+16*t,16)}',
                f'v_mfma_f32_32x32x16_bf16 {D}, {vr(K+4,4)}, {vr(Q+8*t+4,4)}, {D}']
    def pv(i):
        kt, t = i >> 1, i & 1; P = S + 16 * (i & 3); V = VF + 8 * (kt & 1)
        return [f'v_smfmac_f32_32x32x32_bf16 {vr(O+16*t,16)}, {vr(V,4)}, {vr(P,8)}, v{vIdx}',
                f'v_smfmac_f32_16x16x64_bf16 {vr(lac+4*t,4)}, {vr(ones,4)}, {vr(P,8)}, v{vIdx}',
                f'v_smfmac_f32_32x32x32_bf16 {vr(O+16*t,16)}, {vr(V+4,4)}, {vr(P+8,8)}, v{vIdx}',
                f'v_smfmac_f32_16x16x64_bf16 {vr(lac+4*t,4)}, {vr(ones,4)}, {vr(P+8,8)}, v{vIdx}']
    for r in rdK(0) + rdK(1): a(r)
    a('s_waitcnt lgkmcnt(2)')
    for m in qk(0): a(m)
    a(f's_mov_b32 {sr(sCnt)}, {per // 2}')
    a('s_nop 9')
    a(f'{Ll}:')
    for i in range(16):
        kt = i >> 1
        ex = [f'v_exp_f32 v{S+16*(i&3)+r}, v{S+16*(i&3)+r}' for r in range(16)]
        mf = qk(i + 1) + pv(i - 1)
        extra = []
        if i % per == per - 3:
            a('s_waitcnt vmcnt(4)')
            a('s_barrier')
            a(f'v_add_u32 v{vK}, 32768, v{vK}')
            a(f'v_and_b32 v{vK}, 0x1ffff, v{vK}')
            extra = dma()
        if i & 1: rd = rdK((i + 1) // 2 + 1)
        else: rd = rdV(kt)
        if i & 1: a('s_waitcnt lgkmcnt(0)')
        gaps = [3, 3, 3, 2, 3, 2]
        for j, m in enumerate(mf):
            if extra: a(extra[0][0])
            a(m)
            if extra: a(extra.pop(0)[1])
            if j < 2: a(rd[j])
            for _ in range(gaps[j]): a(ex.pop(0))
        if i % per == per - 2:
            a(f'v_add_u32 v{vV}, 32768, v{vV}')
            a(f'v_and_b32 v{vV}, 0x1ffff, v{vV}')
    a(f's_sub_u32 {sr(sCnt)}, {sr(sCnt)}, 1')
    a(f's_cmp_lg_u32 {sr(sCnt)}, 0')
    a(f's_cbranch_scc1 {Ll}')
    for m in pv(15): a(m)
    if st: st.stamp(2)
    lo = (127 - 64) << 23; span = 128 << 23
    if half:
        a(f's_lshl_b32 {sr(sX)}, {sW}, 13')
        a(f'v_lshl_add_u32 v{T1}, v{L}, 4, {sr(sX)}')
        a(f'v_xor_b32 v{T2}, 32768, v{T1}')
        a('s_waitcnt vmcnt(0) lgkmcnt(0)')
        a('s_barrier')
        for q in range(4): a(f'ds_write_b128 v{T1}, {vr(O+16+4*q,4)} offset:{1024*q}')
        a(f'ds_write_b32 v{T1}, v{lac+4} offset:4096')
        a('s_waitcnt lgkmcnt(0)')
        a('s_barrier')
        for q in range(4): a(f'ds_read_b128 {vr(O+16+4*q,4)}, v{T2} offset:{1024*q}')
        a(f'ds_read_b32 v{lac+4}, v{T2} offset:4096')
        a('s_waitcnt lgkmcnt(0)')
        for r in range(16): a(f'v_add_f32 v{O+r}, v{O+r}, v{O+16+r}')
        a(f'v_add_f32 v{lac}, v{lac}, v{lac+4}')
        a(f'v_subrev_u32 v{T1}, {lo:#x}, v{lac}')
    else:
        a(f'v_subrev_u32 v{T1}, {lo:#x}, v{lac}')
        a(f'v_subrev_u32 v{T2}, {lo:#x}, v{lac+4}')
        a(f'v_max_u32 v{T1}, v{T1}, v{T2}')
    a(f'v_cmp_lt_u32 vcc, {span:#x}, v{T1}')
    Lok = a.lab('aa_ok')
    a(f'v_mov_b32 v{T1}, 131072')
    a(f's_cbranch_vccz {Lok}')
    a(f'ds_write_b32 v{T1}, v{T1}')
    a(f'{Lok}:')
    a('s_waitcnt vmcnt(0) lgkmcnt(0)')
    a('s_barrier')
    a(f'ds_read_b32 v{T2}, v{T1}')
    a('s_waitcnt lgkmcnt(0)')
    a(f'v_readfirstlane_b32 {sr(sX)}, v{T2}')
    a(f's_cmp_eq_u32 {sr(sX)}, 0')
    a(f's_cbranch_scc1 {Ldone}')
    a(f's_cmp_lg_u32 {sr(sPass)}, 0')
    a(f's_cbranch_scc1 {Ldone}')
    a('s_barrier')
    a(f's_mov_b32 {sr(sPass)}, 1')
    a(f'v_lshlrev_b32 v{vK}, 4, v{L}')
    a(f'v_mov_b32 v{T1}, 0xff7fffff')
    a(f'v_mov_b32 v{T2}, 0xff7fffff')
    a(f's_mov_b32 {sr(sSrc)}, 0')
    Lm = a.lab('aa_mx')
    a(f'{Lm}:')
    a(f'buffer_load_dwordx4 {vr(KF,4)}, v{vK}, {sr(SKV,4)}, {sr(sSrc)} offen{ldmod}')
    a(f'buffer_load_dwordx4 {vr(KF+4,4)}, v{vK}, {sr(SKV,4)}, {sr(sSrc)} offen offset:1024{ldmod}')
    a('s_waitcnt vmcnt(0)')
    for t in range(2):
        D = vr(S + 16 * t, 16)
        a(f'v_mfma_f32_32x32x16_bf16 {D}, {vr(KF,4)}, {vr(Q+8*t,4)}, 0')
        a(f'v_mfma_f32_32x32x16_bf16 {D}, {vr(KF+4,4)}, {vr(Q+8*t+4,4)}, {D}')
    for t in range(2):
        for r in range(0, 16, 2):
            a(f'v_max3_f32 v{T1+t}, v{T1+t}, v{S+16*t+r}, v{S+16*t+r+1}')
    a(f's_add_u32 {sr(sSrc)}, {sr(sSrc)}, 4096')
    a(f's_cmp_lt_u32 {sr(sSrc)}, 262144')
    a(f's_cbranch_scc1 {Lm}')
    for t in range(2):
        a(f'v_mov_b32 v{S}, v{T1+t}')
        a(f'v_permlane32_swap_b32 v{S}, v{T1+t}')
        a(f'v_max_f32 v{S}, v{S}, v{T1+t}')
        for r in range(16): a(f'v_sub_f32 v{C+16*t+r}, 0, v{S}')
    a(f's_branch {Lre}')
    a(f'{Ldone}:')
    if late: late()
    a(f's_mul_i32 {sr(sX)}, {sr(sTok)}, 2048')
    for t in range(1 if half else 2):
        a(f'v_rcp_f32 v{T1}, v{lac+4*t}')
        a(f'v_mul_f32 v{T1}, v{T1}, v{vG+t}')
        for r in range(16): a(f'v_mul_f32 v{O+16*t+r}, v{T1}, v{O+16*t+r}')
        for r in range(8): a(f'v_cvt_pk_bf16_f32 v{O+16*t+r}, v{O+16*t+2*r}, v{O+16*t+2*r+1}')
        a(f'buffer_store_dwordx4 {vr(O+16*t,4)}, v{vQO}, {sr(SO,4)}, {sr(sX)} offen{storemod}')
        a(f'buffer_store_dwordx4 {vr(O+16*t+4,4)}, v{vQO}, {sr(SO,4)}, {sr(sX)} offen offset:16{storemod}')
        a(f's_add_u32 {sr(sX)}, {sr(sX)}, 2048')

def gen_attna(name='attna_kernel', diag=False):
    a = Asm()
    sreg = Regs(4, 100, 's')
    kWs = sreg.get(2, 2); sW = sreg.get(); sT = sreg.get(6); S0 = sreg.get(16, 4)
    st = Stamps(a, sreg, 8, diag)
    a(kstart(name))
    st.stamp(0); st.stamp(6, True)
    a('s_cmp_ge_u32 s2, 128')
    a(f's_cbranch_scc1 {name}_end')
    a(f's_load_dwordx2 {sr(kWs,2)}, s[0:1], {D_WS}')
    a(f'v_lshrrev_b32 v1, 6, v0')
    a(f'v_readfirstlane_b32 {sr(sW)}, v1')
    a('s_waitcnt lgkmcnt(0)')
    attnA_job(a, 's2', sr(sW), S0, sT, kWs, st=st if diag else None)
    st.stamp(3); st.stamp(4); st.stamp(5); st.stamp(7, True)
    st.flush(sr(kWs), sr(kWs+1), STAMP, 1)
    a(f'{name}_end:')
    a('s_endpgm')
    a.pad()
    return a.text() + kd(name, 256, 256), 131072 + 16
```

```python
from asm import *
from layout import *
from small import srd

NSTEP = 64
SPIN = 400000
P = dict(d1=7, dm=3, dq=2, vint=3, nv1=8, nox=0, bprio=2, cprio=2, dx=0, probe=None, nov=0, nokq=0, noop=0, opm=' sc1', fused=0, pf=1, pfg=128, pfa=0, pfb=13, prog=1, d0=3, optop=1, armtop=0, noflag=1, larm=2, fsl=0, nvc=4, kqtop=1, vfirst=1, fo=7, cst=0, bst=0, vl=2, cx=4, cm='', om=' nt', fix=5, np1=1, ds1=2, nq=1, dq2=2, smp=0, ap=0, an=10, dsp=2, vf=1, amin=0, asl=2, a1=0, ve=1, opn=0, ef=3, f2=0, tail=1, tmk=0, tdl=8, warm=1, tom=' sc1', soft=2, cord=(0,1,2,3), wob=3, odd=0, fr=0, pa=1, wop=1, cu=1, nm=24, wpf=0, wpm='', cordo=(0,1,2,3), tord=(0,1,2), mfirst=0, fxl=0, mk1=0, rs0=10, pk=124, sm2=0, r3d=0, dqr=(0,0,0), fp=4, fpv=(0,1), fpp=1, fpe=2, qf=0, qn=4, qa=0, qd=0, at=0, va=0, sp=0, mp=0, ed=2, npl=0, nfo=1, loc=0, nop2=0, spf=0, pfst=2, dv=2, pfa2=0, opw=0, arw=0, pfw=0, nf=0, na=4, lb=0, lw=0, vb=0, xe=0, dxe=1, p2=0, dmr=2)
SCL = f32bits(128**-0.5*LOG2E)
QI = 0; KI = 2560; KF = 8192; CO = 16384; FLAG = 24576; XR = 28672; XO = 32768; VB = 65536; PARW = 0

class ChainCtx: pass

def chain_common(a, sreg):
    c = ChainCtx()
    c.sW = sreg.get(); c.sG = sreg.get(); c.sC = sreg.get(); c.sMode = sreg.get()
    c.SWS = sreg.get(4, 4); c.SA = sreg.get(4, 4); c.SB = sreg.get(4, 4); c.SC = sreg.get(4, 4)
    c.sS = sreg.get(); c.sSlot = sreg.get(); c.sArm = sreg.get(); c.sSpin = sreg.get()
    c.sT = sreg.get(4, 2); c.sAr = sreg.get(); c.sD = sreg.get(); c.sFb = sreg.get(); c.sMask = sreg.get(2, 2)
    c.sB1 = sreg.get(); c.sB2 = sreg.get(); c.sO1 = sreg.get(); c.sO2 = sreg.get(); c.sV = sreg.get(); c.sM0 = sreg.get()
    c.sPart = sreg.get()
    c.sRd = sreg.get(); c.sRv = sreg.get(); c.sPg = sreg.get(); c.sPf = sreg.get(); c.sPp = sreg.get(); c.sJk = sreg.get(); c.sLim = c.sFb
    c.sMS = sreg.get(); c.sO3 = sreg.get(); c.sVP = sreg.get(); c.sO4 = sreg.get(); c.sQA = sreg.get(); c.sOP = sreg.get(); c.sXb = sreg.get(); c.sLo = c.sPart
    return c

def bits(a, D, L, T, spec, base=None):
    first = True
    for mask, sh in spec:
        a(f'v_and_b32 v{T}, {mask}, v{L}')
        if sh < 0:
            a(f'v_lshrrev_b32 v{T}, {-sh}, v{T}'); sh = 0
        if first: a(f'v_lshlrev_b32 v{D}, {sh}, v{T}')
        else: a(f'v_lshl_add_u32 v{D}, v{T}, {sh}, v{D}')
        first = False
    if base is not None: a(f'v_add_u32 v{D}, {base}, v{D}')

def ssum(a, D, T, terms, const=0):
    first = True
    for r, sh in terms:
        if first: a(f's_lshl_b32 {D}, {r}, {sh}')
        else:
            a(f's_lshl_b32 {T}, {r}, {sh}'); a(f's_add_u32 {D}, {D}, {T}')
        first = False
    if const: a(f's_add_u32 {D}, {D}, {const}')

def delay(a, n):
    k = int(n); f = round((n - k) * 16)
    if k > 0: a(f's_sleep {k}')
    if f > 0: a(f's_nop {f-1}')

def spin(a, c, Lend):
    a(f's_sub_u32 {sr(c.sSpin)}, {sr(c.sSpin)}, 1')
    a(f's_cbranch_scc1 {Lend}')

def make_sel(a, SEL, L, T, T2, mask=6, mul=2):
    bits(a, T2, L, T, [(1, 4)])
    a(f'v_mov_b32 v{T}, 0x3f80')
    a(f'v_lshlrev_b32 v{T2}, v{T2}, v{T}')
    a(f'v_and_b32 v{T}, {mask}, v{L}')
    for p in range(4):
        a(f'v_cmp_eq_u32 vcc, {mul*p}, v{T}')
        a(f'v_cndmask_b32 v{SEL+p}, 0, v{T2}, vcc')

PERM4 = [(1, 2), (12, 3), (2, 6), (48, -1)]

def bwave(a, c, Lend, tr=None, getpar=None, Ldone=None):
    b = sr(c.sW); T0 = c.sT
    v = Regs(1, 256)
    L8 = 0
    T = v.get(); L16 = v.get()
    vL2 = v.get(); vLW = v.get(); vLWv = v.get(); vLR = v.get(); vIdx = v.get(); vFl = v.get(); vMP = v.get()
    M1 = v.get(2, 2); PK = v.get(2, 2); vPA = v.get(); SEL = v.get(4, 4)
    AF = v.get(16, 4); ACC = v.get(24, 4); W = v.get(192, 4)
    T2 = PK; L = ACC; vMS = ACC + 1; vDs = ACC + 2
    WS = sr(c.SWS, 4)
    sLb = c.sArm; sGc = c.sSlot
    a(f'v_and_b32 v{L}, 63, v0')
    a(f's_lshl_b32 {sr(T0)}, {sr(c.sG)}, 4')
    a(f's_add_u32 {sr(T0)}, {sr(T0)}, {sr(c.sC)}')
    ssum(a, sr(T0+2), sr(T0+1), [(b, 21), (sr(T0), 6)])
    bits(a, vDs, L, T, [(60, 11), (3, 4)], sr(T0+2))
    a(f's_mul_i32 {sr(sLb)}, {b}, 24576')
    a(f's_mov_b32 {sr(sGc)}, {sr(T0)}')
    for S in (c.SA, c.SB, c.SC): srd(a, S, sr(S), sr(S+1), 1024*8192)
    vF = ACC + 4
    def early():
        Lf = a.lab('b_fx')
        if P['fix']:
            bits(a, vF, L, T, [(62, 15), (1, 10)])
            ssum(a, sr(T0+1), sr(T0+2), [(b, 21), (sr(T0), 6)])
            a(f's_and_b32 {sr(T0+1)}, {sr(T0+1)}, {(3<<21)+(3<<11)}')
            a(f's_and_b32 {sr(T0+2)}, {sr(T0)}, 7')
            a(f's_lshl_b32 {sr(T0+2)}, {sr(T0+2)}, 13')
            a(f's_add_u32 {sr(T0+1)}, {sr(T0+1)}, {sr(T0+2)}')
            a(f's_bfe_u32 {sr(T0+3)}, {sr(T0)}, {(2<<16)+3}')
            a(f's_mov_b32 {sr(c.sO1)}, 384')
            a(f's_mov_b32 {sr(c.sO3)}, 1023')
            if P['fxl']:
                a(f'v_mov_b32 v{T}, 0x80000000')
                a(f'v_cmp_gt_u32 vcc, {P["fxl"]}, v{L}')
                a(f'v_cndmask_b32 v{vF}, v{vF}, v{T}, vcc')
            if P['fix'] & 4:
                a(f's_cmp_lg_u32 {sr(T0+3)}, 3')
                a(f's_cbranch_scc1 {Lf}n')
                a(f'v_lshlrev_b32 v{vF}, 18, v{L}')
                a(f's_lshr_b32 {sr(T0+1)}, {sr(T0)}, 5')
                a(f's_lshl_b32 {sr(T0+1)}, {sr(T0+1)}, 16')
                a(f's_add_u32 {sr(T0+1)}, {sr(T0+1)}, {sr(T0+2)}')
                a(f's_mov_b32 {sr(T0+3)}, {b}')
                a(f's_mov_b32 {sr(c.sO1)}, 8064')
                a(f's_mov_b32 {sr(c.sO3)}, 8191')
                a(f'{Lf}n:')
        if P['nb0'] > 1:
            a(f's_and_b32 {sr(c.sAr)}, {sr(c.sC)}, {P["nb0"]}')
            a(f's_cmp_lg_u32 {sr(c.sAr)}, 6')
            a(f's_cbranch_scc1 {Lf}b')
        if P['nb0'] != 1: a('s_barrier')
        a(f'{Lf}b:')
        if P['fix']:
            for ty, S in enumerate((c.SA, c.SB, c.SC)):
                a(f's_cmp_lg_u32 {sr(T0+3)}, {ty}')
                a(f's_cbranch_scc1 {Lf}{ty}')
                a(f's_sub_u32 {sr(T0+2)}, {sr(c.sO1)}, {sr(S)}')
                a(f's_and_b32 {sr(T0+2)}, {sr(T0+2)}, {sr(c.sO3)}')
                a(f's_add_u32 {sr(T0+1)}, {sr(T0+1)}, {sr(T0+2)}')
                a(f'buffer_load_dword v{ACC+3}, v{vF}, {sr(S,4)}, {sr(T0+1)} offen')
                a(f'{Lf}{ty}:')
    def wdma(n, od=0):
        j = P['cordo' if od else 'cord'][n]
        for i in range(12):
            i = (i + od * P['odd']) % 12; ty, m = P['tord'][i >> 2], i & 3
            if P['mfirst']: ty, m = P['tord'][i % 3], i // 3
            a(f's_add_u32 m0, {sr(sLb)}, {(n&1)*12288+ty*4096+m*1024}')
            a(f's_mov_b32 {sr(T0+2)}, {(64*j+16*m)*8192}')
            a(f'buffer_load_dwordx4 v{vDs}, {sr((c.SA, c.SB, c.SC)[ty],4)}, {sr(T0+2)} offen{P["cm"]} lds')
        if n == P['wob']: a('s_barrier')
    if P['ed']:
        early()
        for n in range(P['ed'] - 1): wdma(n)
    srd(a, c.SM, sr(c.SM), sr(c.SM+1), 16384)
    a(f'v_lshlrev_b32 v{L16}, 4, v{L}')
    a(f'v_lshlrev_b32 v{L8}, 3, v{L}')
    bits(a, vMS, L, T, [(12, 4), (48, 5), (3, 3)], sr(sLb))
    ssum(a, sr(c.sB1), sr(T0+1), [(sr(c.sC), 17 if P['npl'] else 14), (b, 11)])
    ssum(a, sr(c.sD), sr(T0+1), [(sr(c.sG), 7)])
    a(f's_add_u32 {sr(c.sD)}, {sr(c.sD)}, {sr(c.sB1)}')
    a(f's_and_b32 {sr(T0+2)}, {sr(c.sG)}, 1')
    a(f's_lshr_b32 {sr(T0+3)}, {sr(c.sG)}, 1')
    ssum(a, sr(T0+1), None, [(sr(T0+2), 10)])
    a(f's_add_u32 {sr(c.sB1)}, {sr(c.sB1)}, {sr(T0+1)}')
    ssum(a, sr(c.sB2), sr(T0+1), [(sr(T0+3), 14), (b, 12)], MEMB)
    ssum(a, sr(c.sMS), sr(T0+1), [(sr(T0+3), 14), (sr(c.sC), 10), (b, 8), (sr(T0+2), 7)], MEMB)
    bits(a, vMP, L, T, [(48, 1), (7, 2)])
    bits(a, vPA, L, T, [(32, 9), (16, 6), (15, 3)] if P['npl'] else [(32, 5), (31, 2)])
    def armp(so): return f'buffer_store_dwordx2 {vr(M1,2)}, v{vPA}, {WS}, {so} offen sc1' if P['npl'] else f'buffer_store_dword v{M1}, v{vPA}, {WS}, {so} offen sc1'
    a(f's_lshr_b32 {sr(T0+2)}, {sr(T0)}, 2')
    a(f's_and_b32 {sr(T0+3)}, {sr(T0)}, 3')
    ssum(a, sr(c.sVP), sr(T0+1), [(sr(T0+2), 13), (sr(T0+3), 9), (b, 7)], QKV)
    ssum(a, sr(c.sQA), sr(T0+1), [(sr(T0), 11), (b, 9)], QKV)
    ssum(a, sr(c.sOP), sr(T0+1), [(sr(c.sG), 22), (sr(c.sC), 12), (b, 10)], OP - 65536)
    ssum(a, sr(c.sXb), sr(T0+1), [(b, 10)], XO + 16384)
    a(f'v_lshlrev_b32 v{vL2}, 1, v{L}')
    a(f's_lshr_b32 {sr(T0+1)}, {b}, 1')
    a(f's_mul_i32 {sr(T0+1)}, {sr(T0+1)}, 1280')
    a(f's_and_b32 {sr(T0+2)}, {b}, 1')
    a(f's_lshl_b32 {sr(T0+2)}, {sr(T0+2)}, 2')
    a(f's_add_u32 {sr(T0+1)}, {sr(T0+1)}, {sr(T0+2)}')
    BS = 4096 if P['at'] == 2 else 2048
    if P['at'] == 2: bits(a, vLW, L, T, [(15, 2), (48, 4), (48, 2)], BS)
    elif P['at']: bits(a, vLW, L, T, [(15, 5), (15, 3), (48, -2)], 2048)
    else: bits(a, vLW, L, T, [(15, 5), (15, 3), (48, -1)], sr(T0+1))
    ssum(a, sr(T0+1), sr(T0+2), [(b, 10)], KF)
    if P['va'] == 2:
        bits(a, vLWv, L, T, [(1, 2), (2, 4), (12, 1), (16, 3), (32, 1)], BS + 2560)
        ssum(a, sr(T0+1), sr(T0+2), [(b, 8)], BS + 2560)
        bits(a, vLR, L, T, [(63, 2)], sr(T0+1))
    elif P['va']:
        bits(a, vLWv, L, T, [(63, 2)], 2048 + 1280)
        a(f's_and_b32 {sr(T0+1)}, {b}, 1')
        a(f's_and_b32 {sr(T0+2)}, {b}, 2')
        ssum(a, sr(T0+1), sr(T0+3), [(sr(T0+1), 1), (sr(T0+2), 7)], 2048 + 1280)
        bits(a, vLR, L, T, [(32, 1), (16, 3), (8, 0), (6, 3), (1, 2)], sr(T0+1))
    else:
        bits(a, vLWv, L, T, [(1, 2), (2, 4), (12, 1)] + ([(16, 3), (32, 1)] if P['at'] else [(16, 4), (32, 2)]), sr(T0+1))
        ssum(a, sr(T0+1), sr(T0+2), [(b, 8)], KF)
        bits(a, vLR, L, T, [(63, 2)], sr(T0+1))
    bits(a, vFl, L, T, [(3, 2)], FLAG)
    a(f's_mov_b32 {sr(T0+1)}, {FLAG+32}')
    a(f'v_writelane_b32 v{vFl}, {sr(T0+1)}, 63')
    a(f'v_and_b32 v{T}, 2, v{L}')
    a(f'v_cmp_eq_u32 vcc, 0, v{T}')
    a(f'v_mov_b32 v{T}, 0xeeeeeeee')
    a(f'v_mov_b32 v{T2}, 0x44444444')
    a(f'v_cndmask_b32 v{vIdx}, v{T}, v{T2}, vcc')
    a(f'v_mov_b32 v{M1}, -1')
    a(f'v_mov_b32 v{M1+1}, -1')
    vZ = 255
    if P['at']:
        ssum(a, sr(T0+1), None, [(b, 8 + P['at'])], BS)
        a(f'v_add_u32 v{vZ}, {sr(T0+1)}, v{L16 if P["at"] == 2 else L8}')
    else: a(f'v_mov_b32 v255, {SCL:#x}')
    def zero():
        if not P['at']: return
        a(f'ds_write_b128 v{vZ}, {vr(ACC,4)}' if P['at'] == 2 else f'ds_write_b64 v{vZ}, {vr(ACC,2)}')
        a(f'v_xor_b32 v{vZ}, {BS}, v{vZ}')
    make_sel(a, SEL, L, T, T2, 14, 4)
    ssum(a, sr(c.sV), sr(T0+1), [(sr(c.sG), 15), (b, 13)], VX)
    ssum(a, sr(c.sM0), sr(T0+1), [(b, 13)], VB)
    def vd(i): return f'buffer_load_dwordx4 v{L16}, {WS}, {sr(c.sV)} offen offset:{1024*i} lds'
    def vdA(lo=0, hi=8):
        if lo == 0: a(f's_mov_b32 m0, {sr(c.sM0)}')
        for i in range(lo, min(hi, 4)): a(vd(i))
        if lo < 4 <= hi:
            a(f's_add_u32 m0, {sr(c.sM0)}, 4096')
            a(f's_add_u32 {sr(c.sV)}, {sr(c.sV)}, 4096')
        for i in range(P['nvc'], 4):
            if lo <= 4 + i - P['nvc'] < hi: a(vd(i))
    def vdB():
        a(f's_add_u32 {sr(c.sV)}, {sr(c.sV)}, {-4096 if P["nov"] else 262144-4096}')
        a(f's_xor_b32 {sr(c.sM0)}, {sr(c.sM0)}, 32768')
    a(f's_mov_b32 {sr(c.sS)}, 0')
    a(f's_mov_b32 {sr(c.sSpin)}, {SPIN}')
    a(f's_mov_b32 {sr(c.sO2)}, {sr(c.sB2)}')
    a(f's_mov_b32 {sr(c.sO4)}, {sr(c.sVP)}')
    ssum(a, sr(c.sRd), None, [(sr(c.sG), 11)], RDY)
    ssum(a, sr(c.sPg), sr(T0+1), [(sr(c.sC), 10), (sr(c.sG), 7)], PROG)
    a(f's_mov_b32 {sr(c.sRv)}, {-1 if P["fr"] else 0}')
    vPf = 252; vJk = 253
    def pref():
        if not P['pf']: return
        a(f'buffer_load_dword v{vJk}, v{vPf}, {WS}, {sr(c.sPf)} offen')
        a(f's_add_u32 {sr(c.sPf)}, {sr(c.sPf)}, {1<<18}')
    if P['pf']:
        ssum(a, sr(T0+1), sr(T0+2), [(sr(c.sG), 15), (sr(c.sC), 11), (b, 9)])
        bits(a, vPf, L, T, [(3, 7), (12, 22)], sr(T0+1))
        ssum(a, sr(T0+1), sr(T0+2), [(sr(c.sG), 13), (sr(c.sC), 9), (b, 7)], PX)
        a(f'v_mov_b32 v{T}, {sr(T0+1)}')
        a(f'v_cmp_eq_u32 vcc, 12, v{L}')
        a(f'v_cndmask_b32 v{vPf}, v{vPf}, v{T}, vcc')
        a(f'v_mov_b32 v{T}, 0x80000000')
        a(f'v_cmp_lt_u32 vcc, 12, v{L}')
        a(f'v_cndmask_b32 v{vPf}, v{vPf}, v{T}, vcc')
        a(f's_mov_b32 {sr(c.sPf)}, {1<<18}')
        a(f's_mov_b32 {sr(c.sLim)}, {4<<18}')
    vF = ACC + 4; vM0 = ACC + 5; vQ = ACC + 6
    bits(a, vM0, L, T, [(1, 11), (12, 10), (2, 1), (48, 1)])
    if not P['ed']: early()
    a(f's_add_u32 {sr(T0+2)}, {sr(c.sD)}, {sr(c.sPart)}')
    for k in (1, 2, 3, 0):
        a(f's_add_u32 {sr(T0)}, {sr(c.sMS)}, {k<<18}')
        a(f'buffer_store_dword v{M1}, v{vMP}, {WS}, {sr(T0)} offen sc1')
        if k == 0: break
        a(f's_add_u32 {sr(T0+1)}, {sr(c.sQA)}, {k<<18}')
        a(f'buffer_store_dwordx2 {vr(M1,2)}, v{L8}, {WS}, {sr(T0+1)} offen sc1')
        a(f's_add_u32 {sr(T0+2)}, {sr(T0+2)}, {1<<(15 if P["npl"] else 18)}')
        a(f's_add_u32 {sr(T0+3)}, {sr(T0+2)}, 8192')
        for q in range(2): a(armp(sr(T0+2+q)))
    Lo = a.lab('b_wo'); assert P['wob'] >= 2
    two = P['cord'] != P['cordo'] or P['odd']
    if two:
        a(f's_bitcmp1_b32 {sr(sGc)}, 0')
        a(f's_cbranch_scc1 {Lo}')
    for od in range(2 if two else 1):
        cord = P['cordo' if od else 'cord']
        for n in range(max(P['ed'] - 1, 0), 2): wdma(n, od)
        a(f's_lshl_b32 {sr(T0+1)}, {b}, 9')
        for j in range(4):
            for p in range(4):
                a(f'buffer_load_dword v{AF+4*j+p}, v{vM0}, {sr(c.SM,4)}, {sr(T0+1)} offen offset:{128*j+8*p}')
        for n in range(4):
            j = cord[n]
            a(f's_waitcnt vmcnt({(28 + 13*(P["ed"] > 1), 12, 12, 0)[n]})')
            for t in range(6):
                for q in range(4):
                    off = (n & 1) * 12288 + (t >> 1) * 4096 + (32 * (q >> 1) + 4 * (q & 1)) * 64 + (t & 1) * 32
                    a(f'ds_read_b64_tr_b16 {vr(W+(t*4+j)*8+2*q,2)}, v{vMS} offset:{off}')
                if t == 2: a('s_waitcnt lgkmcnt(0)')
            a('s_waitcnt lgkmcnt(0)')
            if n < 2: wdma(n + 2, od)
        if two and od == 0:
            a(f's_branch {Lo}x')
            a(f'{Lo}:')
    a(f'{Lo}x:')
    if P['mk1'] & 1: c.mark(1)
    a(f's_cmp_lg_u32 {b}, 1')
    a(f's_cbranch_scc1 {Lo}y')
    if P['pa']:
        bits(a, vQ, L, T, [(15, 7), (48, 14)])
        a(f's_sub_u32 {sr(T0)}, {sr(c.sQA)}, 512')
        a(f'buffer_load_dword v{vJk}, v{vQ}, {WS}, {sr(T0)} offen sc1')
        bits(a, vQ, L, T, [(3, 8), (48, 14)])
        a(f's_sub_u32 {sr(T0)}, {sr(c.sMS)}, 256')
        a(f'buffer_load_dword v{vJk}, v{vQ}, {WS}, {sr(T0)} offen sc1')
    if P['wop']:
        a(f's_add_u32 {sr(T0)}, {sr(c.sOP)}, 65536')
        a(f'buffer_load_dword v{vJk}, off, {WS}, {sr(T0)}')
    a(f'{Lo}y:')
    sPe = c.sAr; sAct = c.sMask
    if P['soft'] >= 2: a(f's_bitset1_b32 {sr(c.sOP)}, 30')
    if P['tail']: a(f's_load_dwordx2 {sr(c.SB,2)}, s[0:1], {D_OUT}')
    a(f's_mov_b32 {sr(c.sSlot)}, 0')
    a(f's_mov_b32 {sr(c.sArm)}, {2<<18}')
    for i in range(24): a(f'v_mov_b32 v{ACC+i}, 0')
    if P['tail']:
        a('s_waitcnt lgkmcnt(0)')
        srd(a, c.SB, sr(c.SB), sr(c.SB+1), 2048*2048)
        ssum(a, sr(c.sPp), None, [(sr(c.sC), 7)], FNC2)
        a(f's_mov_b32 {sr(c.sJk)}, 0')
    def rdywait():
        Lr = a.lab('b_rw')
        a(f'{Lr}:')
        a(f'buffer_load_dword v{T}, off, {WS}, {sr(c.sRd)} sc1')
        spin(a, c, Lend)
        a('s_waitcnt vmcnt(0)')
        a(f'v_cmp_gt_u32 vcc, 12, v{T}')
        a(f's_cbranch_vccnz {Lr}')
    a(f'v_mov_b32 v{T}, {PARW}')
    Lx = a.lab('b_gp')
    a(f's_cmp_lg_u32 {b}, 0')
    a(f's_cbranch_scc1 {Lx}')
    c.getpar(PK)
    a(f'ds_write_b32 v{T}, v{PK}')
    a(f'{Lx}r:')
    delay(a, P['rs0'])
    a(f's_buffer_load_dword {sr(T0)}, {WS}, {sr(c.sRd)} glc')
    spin(a, c, Lend)
    a('s_waitcnt lgkmcnt(0)')
    a(f's_cmp_lt_u32 {sr(T0)}, 12')
    a(f's_cbranch_scc1 {Lx}r')
    a(f's_mov_b32 {sr(c.sSpin)}, {SPIN}')
    a(f'{Lx}:')
    a(f's_add_u32 {sr(c.sRd)}, {sr(c.sRd)}, 128')
    a('s_barrier')
    c.mark(3)
    a(f'ds_read_b32 v{T}, v{T}')
    def varm():
        for k in (0, 8): a(f'ds_write2st64_b32 v{vLR}, v{M1}, v{M1} offset0:{k} offset1:{k+4}')
    if P['qf']: varm()
    zero()
    vdA()
    for i in range(P['nvc']): a(vd(i))
    vdB()
    pref(); pref()
    a('s_waitcnt lgkmcnt(0)')
    c.usepar(T)
    a(f's_add_u32 {sr(c.sB1)}, {sr(c.sB1)}, {sr(c.sPart)}')
    a(f's_add_u32 {sr(c.sD)}, {sr(c.sD)}, {sr(c.sPart)}')
    if P['npl']: a(f's_add_u32 {sr(c.sB1)}, {sr(c.sB1)}, {sr(c.sT+1)}')
    vPP = L16
    if P['loc']:
        vPP = 15; assert vPA == 14 and SEL == 16 and not P['npl']
        a(f's_sub_u32 {sr(c.sB1)}, {sr(c.sB1)}, {sr(c.sT)}')
        a(f's_lshl_b32 {sr(c.sT+1)}, {sr(c.sT)}, 1')
        a(f's_sub_u32 {sr(c.sLo)}, 8192, {sr(c.sT+1)}')
        a(f's_xor_b32 {sr(c.sT+1)}, {sr(c.sT)}, 8192')
        a(f's_cmp_eq_u32 {sr(c.sMode)}, 0')
        a(f's_cselect_b32 {sr(c.sT+1)}, {sr(c.sT+1)}, {sr(c.sT)}')
        a(f's_lshr_b32 {sr(c.sT+2)}, {sr(c.sG)}, 1')
        a(f'v_lshrrev_b32 v{T}, 8, v{L16}')
        a(f'v_cmp_eq_u32 vcc, {sr(c.sT+2)}, v{T}')
        a(f'v_add_u32 v{T}, {sr(c.sT)}, v{L16}')
        a(f'v_add_u32 v{vPP}, {sr(c.sT+1)}, v{L16}')
        a(f'v_cndmask_b32 v{vPP}, v{T}, v{vPP}, vcc')
    a(f's_waitcnt vmcnt({2*P["pf"]})')
    a('s_barrier')
    vdA()
    c.mark(4)
    Lx = a.lab('b_r1')
    if P['soft'] == 3:
        a(f's_mov_b32 {sr(sPe)}, {3<<18}')
        a(f's_mov_b32 {sr(c.sPf)}, {4<<18}')
        a(f's_mov_b32 {sr(sAct)}, 0')
    else:
        a(f's_cmp_lg_u32 {b}, 0')
        a(f's_cbranch_scc1 {Lx}')
        if P['fr']: a(f's_mov_b32 {sr(c.sRv)}, 0')
        else: a(f's_buffer_load_dword {sr(c.sRv)}, {WS}, {sr(c.sRd)} glc')
        a(f'{Lx}:')
    def xred():
        a(f'v_add_u32 v{T}, {sr(c.sXb)}, v{L16}')
        a(f's_lshr_b32 {sr(T0)}, {sr(c.sXb)}, 3')
        a(f's_and_b32 {sr(T0)}, {sr(T0)}, 2048')
        a(f'v_add_u32 v{PK+1}, {sr(T0)}, v{L8}')
        a(f's_xor_b32 {sr(c.sXb)}, {sr(c.sXb)}, 16384')
        for j in range(4):
            a(f'ds_read_b128 {vr(AF+4*j,4)}, v{T} offset:{4096*j}')
            a(f'ds_read_b64 {vr(ACC+8+2*j,2)}, v{PK+1} offset:{XR+512*j}')
        for j in range(4):
            a(f's_waitcnt lgkmcnt({6-2*j})')
            for d in range(4):
                a(f'v_lshlrev_b32 v{ACC+16+d}, 16, v{AF+4*j+d}')
                a(f'v_and_b32 v{AF+4*j+d}, 0xffff0000, v{AF+4*j+d}')
            op = 'v_mul_f32' if j == 0 else 'v_fmac_f32'
            for d in range(4):
                a(f'{op} v{ACC+2*d}, v{ACC+16+d}, v{ACC+8+2*j+(d>>1)}')
                a(f'{op} v{ACC+2*d+1}, v{AF+4*j+d}, v{ACC+8+2*j+(d>>1)}')
        for d in range(4): a(f'v_cvt_pk_bf16_f32 v{AF+d}, v{ACC+2*d}, v{ACC+2*d+1}')
    ent = [a.lab('b_ent0'), a.lab('b_ent1')]; Lfin = a.lab('b_fin')
    a(f's_cmp_eq_u32 {sr(c.sMode)}, 0')
    a(f's_cbranch_scc1 {ent[0]}')
    a(f's_branch {ent[1]}')
    for mode in range(2):
        sm = ' sc1' if mode else ''
        Lt = a.lab('b_top'); LpA = a.lab('b_pa'); Lf = a.lab('b_f'); Lpost = a.lab('b_post'); Lslow = a.lab('b_slow'); Lno = a.lab('b_no')
        LI = [a.lab('b_i') for _ in range(4)]
        D = AF + 8
        def ldM(j): return f'buffer_load_dwordx4 {vr(AF+4*j,4)}, v{L16}, {WS}, {sr(c.sO2)} offen offset:{1024*j} sc1'
        def arms(k=3):
            if k & 1: a(armp(sr(T0+2)))
            if k & 1 and P['loc'] and not mode:
                a(f's_add_u32 {sr(T0+2)}, {sr(T0+2)}, {sr(c.sLo)}')
                a(f'buffer_store_dword v{M1}, v{vPA}, {WS}, {sr(T0+2)} offen')
            if k & 2:
                a(f'buffer_store_dword v{M1}, v{vMP}, {WS}, {sr(T0)} offen{sm}')
                a(f'buffer_store_dwordx2 {vr(M1,2)}, v{L8}, {WS}, {sr(T0+1)} offen{sm}')
        def opst():
            Lno = a.lab('b_no')
            a(f's_cmp_eq_u32 {sr(c.sS)}, 1')
            a(f's_cbranch_scc1 {Lno}')
            if P['opn']:
                a(f's_lshr_b32 {sr(T0+3)}, {sr(c.sOP)}, 8')
                a(f's_and_b32 {sr(T0+3)}, {sr(T0+3)}, 8192')
                a(f's_xor_b32 {sr(T0+3)}, {sr(T0+3)}, {sr(c.sOP)}')
            if not P['noop']: a(f'buffer_store_dwordx4 {vr(AF,4)}, v{L16}, {WS}, {sr(T0+3 if P["opn"] else c.sOP)} offen{P["opm"]}')
            a(f'{Lno}:')
            a(f's_add_u32 {sr(c.sOP)}, {sr(c.sOP)}, {131072 if P["opn"] else 65536}')
        def spref():
            Ls = a.lab('b_sp')
            a(f'v_readlane_b32 {sr(T0+3)}, v{vPf}, 0')
            a(f'v_readlane_b32 {sr(c.SC+1)}, v{vPf}, 12')
            a(f's_bitcmp1_b32 {sr(sPe)}, 30')
            a(f's_cbranch_scc1 {Ls}')
            a(f's_add_u32 {sr(T0+3)}, {sr(T0+3)}, {sr(sPe)}')
            a(f's_add_u32 {sr(c.SC+1)}, {sr(c.SC+1)}, {sr(sPe)}')
            for ty in range(3):
                for i in range(4): a(f's_buffer_load_dword {sr(c.SC)}, {WS}, {sr(T0+3)} offset:{128*i}')
                if ty < 2: a(f's_add_u32 {sr(T0+3)}, {sr(T0+3)}, {1<<24}')
            a(f's_buffer_load_dword {sr(c.SC)}, {WS}, {sr(c.SC+1)}')
            a(f'{Ls}:')
        def bg(w):
            n = 0
            if P['pfw'] == w and not P['spf']: a(f'buffer_load_dword v{vJk}, v{vPf}, {WS}, {sr(sPe)} offen'); n += 1
            if P['opw'] == w:
                a(f'buffer_store_dwordx4 {vr(AF,4)}, v{L16}, {WS}, {sr(c.sOP)} offen{P["opm"]}'); n += 1
                if w >= 2:
                    a(f's_add_u32 {sr(c.sOP)}, {sr(c.sOP)}, 65536')
                    a(f's_bitset0_b32 {sr(c.sOP)}, 30')
            if P['arw'] == w and not P['a1']: arms(1); n += 1 + P['loc']
            return n
        Lpg = a.lab('b_pg'); Lpg2 = a.lab('b_pg2')
        def slots():
            a(f's_add_u32 {sr(T0)}, {sr(c.sMS)}, {sr(c.sArm)}')
            a(f's_add_u32 {sr(T0+1)}, {sr(c.sQA)}, {sr(c.sArm)}')
            if P['npl']:
                assert P['soft'] != 3
                a(f's_lshr_b32 {sr(T0+2)}, {sr(c.sArm)}, 3')
                a(f's_lshr_b32 {sr(c.sO1)}, {sr(c.sSlot)}, 3')
                a(f's_add_u32 {sr(T0+2)}, {sr(c.sD)}, {sr(T0+2)}')
                a(f's_add_u32 {sr(c.sO1)}, {sr(c.sB1)}, {sr(c.sO1)}')
            else:
                if P['soft'] != 3: a(f's_add_u32 {sr(T0+2)}, {sr(c.sD)}, {sr(c.sArm)}')
                a(f's_add_u32 {sr(c.sO1)}, {sr(c.sB1)}, {sr(c.sSlot)}')
            a(f's_add_u32 {sr(c.sSlot)}, {sr(c.sSlot)}, {1<<18}')
            a(f's_and_b32 {sr(c.sSlot)}, {sr(c.sSlot)}, {3<<18}')
            a(f's_xor_b32 {sr(c.sArm)}, {sr(c.sSlot)}, {2<<18}')
            a(f's_add_u32 {sr(c.sO2)}, {sr(c.sB2)}, {sr(c.sSlot)}')
            a(f's_add_u32 {sr(c.sO3)}, {sr(c.sMS)}, {sr(c.sSlot)}')
            a(f's_add_u32 {sr(c.sO4)}, {sr(c.sVP)}, {sr(c.sSlot)}')
            vdB()
        if P['ap']:
            PB1 = AF + 4; Ld = a.lab('b_dl')
            a(f'{Lt}:')
            if tr: tr(0)
            if not P['vf']: vdA()
            a(f's_max_i32 {sr(c.sJk)}, {sr(c.sJk)}, {P["amin"]}')
            a(f'{Ld}:')
            a(f's_sub_u32 {sr(c.sJk)}, {sr(c.sJk)}, 1')
            a(f's_cbranch_scc1 {Ld}x')
            delay(a, P['asl'])
            a(f's_branch {Ld}')
            a(f'{Ld}x:')
            if P['bprio']: a(f's_setprio {P["bprio"]}')
            a(f'buffer_load_dwordx4 {vr(PB1,4)}, v{L16}, {WS}, {sr(c.sO1)} offen sc1')
            if tr: tr(6)
            delay(a, P['dsp'])
            pref()
            arms(1)
            if not P['noop']: a(f'buffer_store_dwordx4 {vr(AF,4)}, v{L16}, {WS}, {sr(c.sOP)} offen{P["opm"]}')
            a(f's_add_u32 {sr(c.sOP)}, {sr(c.sOP)}, 65536')
            a(f's_bitset0_b32 {sr(c.sOP)}, 30')
            a(f's_cbranch_vccnz {Lpg}')
            a(f's_waitcnt vmcnt({1 + P["pf"] + 1 - P["noop"]})')
            a(f's_branch {LpA}c')
            a(f'{LpA}:')
            a(f'buffer_load_dwordx4 {vr(PB1,4)}, v{L16}, {WS}, {sr(c.sO1)} offen sc1')
            spin(a, c, Lend)
            a(f's_waitcnt vmcnt(0)')
            a(f'{LpA}c:')
            a(f'v_mfma_f32_16x16x32_bf16 {vr(D,4)}, {vr(SEL,4)}, {vr(PB1,4)}, 0')
            for r in range(2): a(f'v_add_f32_dpp v{D+r}, v{D+r}, v{D+r} row_ror:8 row_mask:0xf bank_mask:0xf')
            a(f'v_cmp_u_f32 vcc, v{D}, v{D}')
            a(f'v_cvt_pk_bf16_f32 v{PK}, v{D}, v{D+1}')
            a(f's_cbranch_vccnz {LpA}')
        else:
            a(f'{Lt}:')
            if tr: tr(0)
            if P['soft'] == 3:
                a(f'ds_read_b32 v254, v{vFl}')
                slots()
                for i in range(P['nm']): a(f'v_mov_b32 v{ACC+i}, 0')
                delay(a, P['d0'])
                vdA(); arms(2)
                for i in range(P['nm'], 24): a(f'v_mov_b32 v{ACC+i}, 0')
                ssum(a, sr(T0+3), None, [(sr(c.sS), 18)], (1 + P['cu']) << 18)
                a(f's_max_u32 {sr(c.sPf)}, {sr(c.sPf)}, {sr(T0+3)}')
                a(f's_add_u32 {sr(T0+3)}, {sr(T0+3)}, {(3-P["cu"])<<18}')
                a('s_waitcnt lgkmcnt(0)')
                a(f'v_readlane_b32 {sr(c.sLim)}, v254, 63')
                a(f's_cmp_lt_u32 {sr(c.sPf)}, {sr(c.sLim)}')
                a(f's_cselect_b32 {sr(sPe)}, {sr(c.sPf)}, {1<<30}')
                a(f's_cselect_b32 {sr(sAct)}, {1<<18}, 0')
                a(f's_add_u32 {sr(c.sPf)}, {sr(c.sPf)}, {sr(sAct)}')
                a(f's_min_u32 {sr(sAct)}, {sr(T0+3)}, {sr(c.sLim)}')
                a(f's_cmp_lt_u32 {sr(c.sPf)}, {sr(sAct)}')
                a(f's_cselect_b32 {sr(sAct)}, 2, 0')
            if P['tail']:
                a(f's_cmp_lg_u32 {sr(c.sS)}, {NSTEP-1}')
                a(f's_cbranch_scc1 {Lt}n')
                a(f's_buffer_load_dword {sr(c.sJk)}, {WS}, {sr(c.sPp)} glc')
                a(f'{Lt}n:')
            if P['soft'] == 3:
                a(f's_cmp_eq_u32 {b}, 0')
                a(f's_cbranch_scc1 {Lpg}')
                a(f'{Lpg2}:')
            else:
                if P['spf'] == 2: spref()
                delay(a, P['d0'])
                a(f's_cbranch_vccnz {Lpg}')
                a(f'{Lpg2}:')
                if P['pfst']:
                    assert P['np1'] == 1
                    if P['pfa2']: arms(2)
                    bg(3)
                    if P['nf'] and not P['vb']: vdA(0, P['nf'])
                    delay(a, P['d1'])
                    if P['bprio']: a(f's_setprio {P["bprio"]}')
                    if P['p2']:
                        a(f'buffer_load_dwordx4 {vr(AF+12,4)}, v{vPP}, {WS}, {sr(c.sO1)} offen sc1')
                        delay(a, P['p2'])
                    a(f'buffer_load_dwordx4 {vr(AF+4,4)}, v{vPP}, {WS}, {sr(c.sO1)} offen sc1')
                    delay(a, P['dv'])
                    nb = bg(2) - P['nf']
                    if P['na'] < 4 or P['lb']:
                        assert not P['nf']
                        a(f's_mov_b32 m0, {sr(c.sM0)}')
                        for i in range(P['na']): a(vd(i))
                        a(f's_add_u32 m0, {sr(c.sM0)}, 4096')
                        a(f's_add_u32 {sr(c.sV)}, {sr(c.sV)}, 4096')
                        if not P['lb']: vdA(4)
                        nb -= 4 - P['na'] + P['lb'] * (4 - P['nvc'])
                    else: vdA(P['nf'])
                    if not P['pfa2']: arms(2)
                    nb += bg(4)
                    nb += 8 - P["nvc"] + (0 if P["pfa2"] else 2)
                    if P['p2']:
                        a(f's_waitcnt vmcnt({nb+1})')
                        a(f'v_mfma_f32_16x16x32_bf16 {vr(D,4)}, {vr(SEL,4)}, {vr(AF+12,4)}, 0')
                        for r in range(2): a(f'v_add_f32_dpp v{D+r}, v{D+r}, v{D+r} row_ror:8 row_mask:0xf bank_mask:0xf')
                        a(f'v_cmp_u_f32 vcc, v{D}, v{D}')
                        a(f'v_cvt_pk_bf16_f32 v{PK}, v{D}, v{D+1}')
                        a(f's_cbranch_vccz {LpA}x')
                    a(f's_waitcnt vmcnt({nb})')
                    if P['pfst'] == 1: a(f's_branch {LpA}c')
            def chk1():
                a(f'v_mfma_f32_16x16x32_bf16 {vr(D,4)}, {vr(SEL,4)}, {vr(AF+4,4)}, 0')
                for r in range(2): a(f'v_add_f32_dpp v{D+r}, v{D+r}, v{D+r} row_ror:8 row_mask:0xf bank_mask:0xf')
                a(f'v_cmp_u_f32 vcc, v{D}, v{D}')
                a(f'v_cvt_pk_bf16_f32 v{PK}, v{D}, v{D+1}')
                a(f's_cbranch_vccnz {LpA}')
            if P['pfst'] == 2: chk1()
            else:
              if P['soft'] != 3:
                if P['larm'] == 0: arms(2)
                if P['vfirst']: vdA()
                if P['larm'] == 1: arms(2)
                if not P['fo'] & 4: arms(1)
                if not P['fo'] & 2: opst()
                if not P['fo'] & 1: pref()
                if not P['vfirst']: vdA()
                if P['larm'] == 2: arms(2)
                if P['spf'] == 3: spref()
              delay(a, P['d1'])
              if P['probe'] is not None: a(f's_waitcnt vmcnt({P["probe"]})'); tr(6)
              if P['bprio']: a(f's_setprio {P["bprio"]}')
              np1 = P['np1']; PB = [AF + 4] if P['pfst'] else [AF, AF + 4, AF + 12][:np1]
              def ld1(k): a(f'buffer_load_dwordx4 {vr(PB[k],4)}, v{vPP}, {WS}, {sr(c.sO1)} offen sc1')
              for k in range(np1 - 1):
                  ld1(k); delay(a, P['ds1'])
              a(f'{LpA}:')
              for k in range(np1):
                  ld1((k - 1) % np1)
                  if k == 0: spin(a, c, Lend)
                  a(f's_waitcnt vmcnt({np1-1})')
                  if P['pfst']: a(f'{LpA}c:')
                  a(f'v_mfma_f32_16x16x32_bf16 {vr(D,4)}, {vr(SEL,4)}, {vr(PB[k],4)}, 0')
                  for r in range(2): a(f'v_add_f32_dpp v{D+r}, v{D+r}, v{D+r} row_ror:8 row_mask:0xf bank_mask:0xf')
                  if P['sp'] & 1:
                      a(f'v_cvt_pk_bf16_f32 v{PK}, v{D}, v{D+1}')
                      a(f'buffer_store_dword v{PK}, v{vMP}, {WS}, {sr(c.sO3)} offen{sm}')
                      a(f'v_cmp_u_f32 vcc, v{D}, v{D}')
                  else:
                      a(f'v_cmp_u_f32 vcc, v{D}, v{D}')
                      a(f'v_cvt_pk_bf16_f32 v{PK}, v{D}, v{D+1}')
                  if k < np1 - 1: a(f's_cbranch_vccz {LpA}x')
                  else: a(f's_cbranch_vccnz {LpA}')
        a(f'{LpA}x:')
        if not P['sp'] & 1: a(f'buffer_store_dword v{PK}, v{vMP}, {WS}, {sr(c.sO3)} offen{sm}')
        a(f'{LpA}y:')
        if tr: tr(1)
        delay(a, P['dm'])
        a(f'{LpA}z:')
        def sm_(t, j): return f'v_smfmac_f32_16x16x64_bf16 {vr(ACC+4*t,4)}, {vr(AF+4*j,4)}, {vr(W+(t*4+j)*8,8)}, v{vIdx}'
        def post(t):
            X = ACC + 4 * t
            o = [f'v_add_f32 v{X}, v{X}, v{X+2}', f'v_add_f32 v{X+1}, v{X+1}, v{X+3}']
            if P['pk'] & (1 if t < 4 else 2): o = [f'v_pk_add_f32 {vr(X,2)}, {vr(X,2)}, {vr(X+2,2)}']
            if P['sm2'] == 1 and t in (2, 3):
                if P['pk'] & 1: o += [f'v_pk_mul_f32 {vr(X,2)}, {vr(X,2)}, v[254:255] op_sel:[0,1] op_sel_hi:[1,1]']
                else: o += [f'v_mul_f32 v{X+i}, {SCL:#x}, v{X+i}' for i in range(2)]
            if t < 4 and P['at'] == 2: return o + [f'ds_add_f32 v{vLW}, v{X+i} offset:{(t>>1)*1280+(t&1)*64+160*i}' for i in range(2)]
            if t >= 4 and P['va'] == 2: return o + [f'ds_add_f32 v{vLWv}, v{X+i} offset:{512*(t-4)+256*i}' for i in range(2)]
            if t < 4 and P['at']: return o + [f'v_cvt_pk_bf16_f32 v{X+2}, v{X}, v{X+1}', f'ds_pk_add_bf16 v{vLW}, v{X+2} offset:{(t>>1)*16+(t&1)*640}']
            if t < 4: return o + [f'v_cvt_pk_bf16_f32 v{X+2}, v{X}, v{X+1}', f'ds_write_b32 v{vLW}, v{X+2} offset:{(t>>1)*KI+(t&1)*640}']
            if P['va']: return o + [f'v_cvt_pk_bf16_f32 v{X+2}, v{X}, v{X+1}', f'ds_pk_add_bf16 v{vLWv}, v{X+2} offset:{256*(t-4)}']
            return o + [f'ds_write2_b32 v{vLWv}, v{X}, v{X+1} offset0:{128*(t-4)} offset1:{128*(t-4)+(64 if P["at"] else 16)}']
        uid = a.lab('m')
        NL = lambda S, j: f'{uid}_n{S}_{j}'
        FL_ = lambda S, j: f'{uid}_f{S}_{j}'
        def nxt(S, j):
            for d in range(1, 5):
                if S >> ((j + d) & 3) & 1: return (j + d) & 3
        def chk(S, k):
            a(f's_waitcnt vmcnt({bin(S).count("1")-1})')
            if tr and P['bst'] == 1: tr(6)
            a(f'v_cmp_u_f32 vcc, v{AF+4*k}, v{AF+4*k+3}')
        emitted = set()
        def node(S, j):
            while True:
                if (S, j) in emitted:
                    a(f's_branch {NL(S,j)}'); return
                emitted.add((S, j))
                a(f'{NL(S,j)}:')
                R_ = S & ~(1 << j)
                if R_ == 0:
                    nv = 0
                    for t in range(6):
                        a(sm_(t, j))
                        if t < P['vl'] and nv < P['nvc']: a(vd(nv)); nv += 1
                        if t >= 2:
                            for x in post(t - 2): a(x)
                    if tr: tr(2)
                    if P['qf']: assert nv == len(P['fpv'])
                    else:
                        for t in (4, 5):
                            for x in post(t): a(x)
                        while nv < P['nvc']: a(vd(nv)); nv += 1
                    if j != 3 or P['fp']: a(f's_branch {Lpost}')
                    return
                for t in range(5): a(sm_(t, j))
                k = nxt(R_, j)
                chk(R_, k)
                a(sm_(5, j))
                a(f's_cbranch_vccnz {FL_(R_,k)}')
                S, j = R_, k
        def slow_nodes():
            for S in range(15, 0, -1):
                mem = [j for j in range(4) if S >> j & 1]
                for j in mem:
                    a(f'{FL_(S,j)}:')
                    a(ldM(j))
                    if j == mem[-1]: spin(a, c, Lend)
                    k = nxt(S, j)
                    chk(S, k)
                    if j != mem[-1]:
                        a(f's_cbranch_vccz {NL(S,k)}')
                    else:
                        a(f's_cbranch_vccnz {FL_(S,k)}')
                        node(S, k)
                for j in mem:
                    if (S, j) not in emitted: node(S, j)
        SP = lambda F, j: f'{uid}_s{F}_{j}'
        FP = lambda F, j: f'{uid}_p{F}_{j}'
        nb = P['fp']
        def vrest(F):
            L_ = [sm_(t, j) for j in range(4) if not F >> j & 1 for t in range(nb, 6)]
            k = nxt(F, 3)
            if P['mp'] and F == 1 << k:
                pos = P['mp'] - nb * (3 - k)
                for i, x in enumerate(L_):
                    if i == pos: a(ldM(k))
                    a(x)
                if pos >= len(L_):
                    delay(a, (pos - len(L_)) / 4)
                    a(ldM(k))
                a(f'{uid}_d{k}:')
                chk(3, k)
                a(f's_cbranch_vccz {NL(F,k)}')
                a(ldM(k))
                spin(a, c, Lend)
                a(f's_branch {uid}_d{k}')
                return
            for x in L_: a(x)
            chk(F, k)
            a(f's_cbranch_vccnz {FL_(F,k)}')
            a(f's_branch {NL(F,k)}')
        def spass(F, j):
            for j in range(j, 3):
                a(f'{SP(F,j)}:')
                for t in range(nb - 1):
                    a(sm_(t, j))
                    if P['sp'] & 2 and j == 0:
                        if t == 0: a(f'v_cmp_u_f32 vcc, v{AF}, v{AF+3}')
                        if t == 1: a(f's_cbranch_vccnz {FP(0,0)}')
                chk(F | (15 >> (j + 1) << (j + 1)), j + 1)
                a(sm_(nb - 1, j))
                a(f's_cbranch_vccnz {FP(F,j+1)}')
            a(f'{SP(F,3)}:')
            if F:
                for t in range(nb): a(sm_(t, 3))
                vrest(F)
                return
            L_ = [(t, 3) for t in range(nb)]
            if nb == 3: L_ = [(0, 3), (3, 0), (1, 3), (3, 1), (2, 3), (3, 2), (4, 0), (3, 3), (5, 0)] + [(t, j) for j in range(1, 4) for t in (4, 5)]
            elif nb == 1: L_ = [(1, 0), (0, 3), (1, 1), (2, 0), (1, 2), (3, 0), (1, 3)] + [(t, j) for j in range(1, 4) for t in (2, 3)] + [(t, j) for j in range(4) for t in (4, 5)]
            else: L_ += [(t + u, j) for t in range(nb, 6, 2) for j in range(4) for u in range(2)]
            po = []; nv = 0
            for i, (t, j) in enumerate(L_):
                a(sm_(t, j))
                if len(L_) - 12 + P['fpv'][nv % len(P['fpv'])] == i and nv < len(P['fpv']): a(vd(nv)); nv += 1
                if i >= 3 + P['fpp'] and L_[i - 3 - P['fpp']][1] == 3: po += post(L_[i - 3 - P['fpp']][0])
                for _ in range(P['qn'] if P['qf'] else 3):
                    if po: a(po.pop(0))
            assert not po
            if tr: tr(2)
            if P['qf']: return
            for _ in range(P['fpe']):
                if nv < P['nvc']: a(vd(nv)); nv += 1
            for t in (4, 5):
                for x in post(t): a(x)
            while nv < P['nvc']: a(vd(nv)); nv += 1
        def fpass():
            for j in range(4):
                for F in range(1 << j):
                    a(f'{FP(F,j)}:')
                    a(ldM(j))
                    if P['sp'] & 2 and j == 0:
                        a('s_nop 5')
                        for i in range(8): a(f'v_mov_b32 v{ACC+i}, 0')
                    F2 = F | 1 << j
                    if j == 3:
                        spin(a, c, Lend)
                        vrest(F2)
                    else:
                        chk(F2 | (15 >> (j + 1) << (j + 1)), j + 1)
                        a(f's_cbranch_vccnz {FP(F2,j+1)}')
                        spass(F2, j + 1)
        for j in range(4): a(ldM(j))
        if P['sp'] & 2: a('s_waitcnt vmcnt(3)')
        else:
            chk(15, 0)
            a(f's_cbranch_vccnz {FP(0,0) if P["fp"] else FL_(15,0)}')
        a(f'{ent[mode]}:')
        if P['fp']: spass(0, 0)
        else: node(15, 0)
        a(f'{Lpost}:')
        a('s_waitcnt lgkmcnt(0)')
        if tr and P['cst'] == 9: tr(6)
        a('s_barrier')
        if tr: tr(3)
        if P['qf']:
            for t in (4, 5):
                for x in post(t): a(x)
            for i in range(len(P['fpv']), P['nvc'] - P['qa']): a(vd(i))
            a(f's_add_u32 {sr(c.sS)}, {sr(c.sS)}, 1')
            delay(a, P['qd'])
            a(f'{Lpost}r:')
        if P['va']:
            a(f'ds_read_{"b32" if P["va"] == 2 else "u16"} v{PK}, v{vLR}')
            a(f's_add_u32 {sr(c.sS)}, {sr(c.sS)}, 1')
            a('s_waitcnt lgkmcnt(0)')
            if P['va'] == 2: a(f'v_cvt_pk_bf16_f32 v{PK}, v{PK}, v{PK}')
        else:
            VT = ACC if P['mp'] else AF
            a(f'ds_read2st64_b32 {vr(VT,2)}, v{vLR} offset0:0 offset1:4')
            a(f'ds_read2st64_b32 {vr(VT+2,2)}, v{vLR} offset0:8 offset1:12')
            if P['qf']: spin(a, c, Lend)
            else: a(f's_add_u32 {sr(c.sS)}, {sr(c.sS)}, 1')
            a('s_waitcnt lgkmcnt(1)')
            a(f'v_add_f32 v{VT}, v{VT}, v{VT+1}')
            a('s_waitcnt lgkmcnt(0)')
            a(f'v_add_f32 v{VT+2}, v{VT+2}, v{VT+3}')
            a(f'v_add_f32 v{VT}, v{VT}, v{VT+2}')
            if P['qf']: a(f'v_cmp_u_f32 vcc, v{VT}, v{VT}')
            a(f'v_cvt_pk_bf16_f32 v{PK}, v{VT}, v{VT}')
            if P['qf']: a(f's_cbranch_vccnz {Lpost}r')
        a(f'buffer_store_short v{PK}, v{vL2}, {WS}, {sr(c.sO4)} offen{sm}')
        if P['qf']:
            for i in range(P['nvc'] - P['qa'], P['nvc']): a(vd(i))
        if P['bprio']: a(f's_setprio 0')
        if P['mp']: a(f's_waitcnt vmcnt({P["nvc"]+1})')
        if P['qf']: varm()
        if tr: tr(5); tr.flush(ACC)
        delay(a, P['dx'])
        def late():
            if P['lb']: vdA(4)
            if P['na'] < 4:
                a(f's_mov_b32 m0, {sr(c.sM0)}')
                a(f's_sub_u32 {sr(T0+3)}, {sr(c.sV)}, 4096')
                for i in range(P['na'], 4): a(vd(i).replace(sr(c.sV), sr(T0+3)))
        if P['lw'] == 1: late()
        if P['soft'] == 2: a(f'ds_read_b32 v254, v{vFl}')
        if not P['nox']: xred()
        if P['lw'] == 0: late()
        if P['soft'] != 3:
            for i in range(24): a(f'v_mov_b32 v{ACC+i}, 0')
            zero()
            if P['at']: a(f'v_xor_b32 v{vLW}, {BS}, v{vLW}')
            if P['va']:
                a(f'v_xor_b32 v{vLWv}, {BS}, v{vLWv}')
                a(f'v_xor_b32 v{vLR}, {BS}, v{vLR}')
            slots()
        if P['a1']: arms(1)
        Lck = a.lab('b_ck'); Lb2 = a.lab('b_b2')
        if P['soft'] == 3:
            a(f's_add_u32 {sr(T0+2)}, {sr(c.sD)}, {sr(c.sArm)}')
            a(f's_bitcmp1_b32 {sr(sAct)}, 2')
            a(f's_cbranch_scc1 {Lck}')
            a(f'{Lck}x:')
        if P['soft'] == 2:
            a(f'v_readlane_b32 {sr(c.sLim)}, v254, 63')
            ssum(a, sr(T0+3), None, [(sr(c.sS), 18)], P['cu'] << 18)
            a(f's_max_u32 {sr(c.sPf)}, {sr(c.sPf)}, {sr(T0+3)}')
            a(f's_cmp_lt_u32 {sr(c.sPf)}, {sr(c.sLim)}')
            a(f's_cselect_b32 {sr(sPe)}, {sr(c.sPf)}, {1<<30}')
            a(f's_cselect_b32 {sr(sAct)}, {1<<18}, 0')
            a(f's_add_u32 {sr(c.sPf)}, {sr(c.sPf)}, {sr(sAct)}')
            a(f's_add_u32 {sr(T0+3)}, {sr(T0+3)}, {(3-P["cu"])<<18}')
            a(f's_min_u32 {sr(sAct)}, {sr(T0+3)}, {sr(c.sLim)}')
            a(f's_cmp_lt_u32 {sr(c.sPf)}, {sr(sAct)}')
            a(f's_cselect_b32 {sr(sAct)}, 2, 0')
            a(f's_cmp_eq_u32 {b}, 0')
            a(f's_cbranch_scc1 {Lck}')
            a(f'{Lck}x:')
        if P['fr']:
            a(f's_cmp_lt_u32 {sr(c.sRv)}, 12')
            a(f's_cbranch_scc1 {Lf}r')
            a(f'{Lf}s:')
        a('s_waitcnt vmcnt(0)')
        bg(1)
        if P['ap']: a(f's_mov_b32 {sr(c.sJk)}, {P["an"]}')
        if P['f2']:
            a(f'ds_read_b32 v{T}, v{vFl}')
            a(f's_nop 7'); a(f's_nop 7')
            a(f'{Lf}:')
            a(f'ds_read_b32 v{PK}, v{vFl}')
            a('s_waitcnt lgkmcnt(1)')
            a(f'v_cmp_gt_u32 vcc, {sr(c.sS)}, v{T}')
            a(f's_cbranch_vccz {Lf}x')
            a(f'ds_read_b32 v{T}, v{vFl}')
            spin(a, c, Lend)
            a('s_waitcnt lgkmcnt(1)')
            a(f'v_cmp_gt_u32 vcc, {sr(c.sS)}, v{PK}')
            a(f's_cbranch_vccnz {Lf}')
            a(f'{Lf}x:')
        elif P['fo']:
            a(f'{Lf}:')
            a(f'ds_read_b32 v{T}, v{vFl}')
            spin(a, c, Lend)
            delay(a, P['fsl'])
            if P['ap']: a(f's_sub_u32 {sr(c.sJk)}, {sr(c.sJk)}, 1')
            a('s_waitcnt lgkmcnt(0)')
            a(f'v_cmp_gt_u32 vcc, {sr(c.sS)}, v{T}')
            a(f's_cbranch_vccnz {Lf}')
        if tr: tr(4)
        if P['ap']:
            if P['vf']: vdA()
            arms(2)
        elif P['soft'] >= 2:
            bg(0)
            if P['spf'] == 1: spref()
        else:
            if P['larm'] == 3: arms(2)
            if P['fo'] & 1:
                if P['soft']:
                    a(f'v_readlane_b32 {sr(c.sLim)}, v{T}, 63')
                    if P['cu']:
                        ssum(a, sr(T0+3), None, [(sr(c.sS), 18)], P['cu'] << 18)
                        a(f's_max_u32 {sr(c.sPf)}, {sr(c.sPf)}, {sr(T0+3)}')
                    a(f's_cmp_lt_u32 {sr(c.sPf)}, {sr(c.sLim)}')
                    a(f's_cbranch_scc0 {Lf}p')
                pref()
                a(f'{Lf}p:')
            if P['fo'] & 2: opst()
            if P['fo'] & 4 and not P['a1']: arms(1)
        def adv():
            a(f's_mov_b32 {sr(c.sRv)}, 0')
            a(f's_add_u32 {sr(c.sRd)}, {sr(c.sRd)}, 128')
            a(f's_add_u32 {sr(T0+3)}, {sr(c.sLim)}, {4<<18}')
            a(f's_cmp_eq_u32 {sr(T0+3)}, {NSTEP<<18}')
            a(f's_cselect_b32 {sr(T0+3)}, {128<<18}, {sr(T0+3)}')
            a(f'v_mov_b32 v{T}, {FLAG+32}')
            a(f'v_mov_b32 v{PK}, {sr(T0+3)}')
            a(f'ds_write_b32 v{T}, v{PK}')
        if P['soft'] == 3:
            Lac = a.lab('b_ac')
            a(f's_cmp_lg_u32 {sr(sAct)}, 0')
            a(f's_cbranch_scc1 {Lac}')
            a(f'{Lb2}:')
            a('s_barrier')
            a(f's_add_u32 {sr(c.sOP)}, {sr(c.sOP)}, 65536')
            a(f's_bitset0_b32 {sr(c.sOP)}, 30')
            a(f's_cmp_eq_u32 {sr(c.sS)}, {NSTEP}')
            a(f's_cbranch_scc0 {Lt}')
            a(f's_branch {Lfin}')
            a(f'{Lac}:')
            a(f's_bitcmp0_b32 {sr(sAct)}, 1')
            a(f's_cbranch_scc1 {Lac}2')
            pref()
            a(f'{Lac}2:')
            a(f's_bitcmp0_b32 {sr(sAct)}, 3')
            a(f's_cbranch_scc1 {Lb2}')
            rdywait()
            adv()
            a('s_waitcnt lgkmcnt(0)')
            a(f's_branch {Lb2}')
            a(f'{Lck}:')
            a(f's_bitset0_b32 {sr(sAct)}, 2')
            a(f's_cmp_lt_u32 {sr(c.sRv)}, 12')
            a(f's_cbranch_scc1 {Lck}x')
            a(f's_bitset0_b32 {sr(sAct)}, 3')
            adv()
            a(f's_branch {Lck}x')
        elif P['soft'] == 2:
            Lc2 = a.lab('b_c2'); Lc3 = a.lab('b_c3'); Lac = a.lab('b_ac')
            a(f's_cmp_lg_u32 {sr(sAct)}, 0')
            a(f's_cbranch_scc1 {Lac}')
            a(f'{Lb2}:')
            if P['vb']:
                a(f's_cmp_eq_u32 {sr(c.sS)}, {NSTEP}')
                a(f's_cbranch_scc1 {Lb2}v')
                vdA(0, P['nf'])
                a(f'{Lb2}v:')
            a('s_barrier')
            if P['opw'] < 2:
                a(f's_add_u32 {sr(c.sOP)}, {sr(c.sOP)}, 65536')
                a(f's_bitset0_b32 {sr(c.sOP)}, 30')
            a(f's_cmp_eq_u32 {sr(c.sS)}, {NSTEP}')
            a(f's_cbranch_scc0 {Lt}')
            a(f's_branch {Lfin}')
            a(f'{Lac}:')
            a(f's_and_b32 vcc_lo, {sr(sAct)}, 1')
            a(f's_bitcmp0_b32 {sr(sAct)}, 2')
            a(f's_cbranch_scc1 {Lac}1')
            a(f's_buffer_load_dword {sr(c.sRv)}, {WS}, {sr(c.sRd)} glc')
            a(f'{Lac}1:')
            a(f's_bitcmp0_b32 {sr(sAct)}, 1')
            a(f's_cbranch_scc1 {Lac}2')
            pref()
            a(f'{Lac}2:')
            a(f's_bitcmp0_b32 {sr(sAct)}, 3')
            a(f's_cbranch_scc1 {Lb2}')
            rdywait()
            adv()
            a(f's_and_b32 vcc_lo, {sr(sAct)}, 1')
            a('s_waitcnt lgkmcnt(0)')
            a(f's_branch {Lb2}')
            a(f'{Lck}:')
            a(f's_add_u32 {sr(T0+3)}, {sr(T0+3)}, {1<<18}')
            a(f's_cmp_ge_u32 {sr(T0+3)}, {sr(c.sLim)}')
            a(f's_cbranch_scc1 {Lck}1')
            a(f'{Lck}2:')
            a(f's_and_b32 {sr(T0+3)}, {sr(c.sS)}, 7')
            a(f's_cmp_gt_u32 {sr(c.sS)}, {NSTEP-7}')
            a(f's_cselect_b32 {sr(T0+3)}, 2, {sr(T0+3)}')
            a(f's_cmp_eq_u32 {sr(T0+3)}, 2')
            a(f's_addc_u32 {sr(sAct)}, {sr(sAct)}, 0')
            a(f's_branch {Lck}x')
            a(f'{Lck}1:')
            a(f's_cmp_ge_u32 {sr(c.sRv)}, 12')
            a(f's_cbranch_scc1 {Lc3}')
            a(f's_sub_u32 {sr(T0+3)}, {sr(T0+3)}, {3<<18}')
            a(f's_cmp_ge_u32 {sr(T0+3)}, {sr(c.sLim)}')
            a(f's_cbranch_scc1 {Lc2}')
            a(f's_bitset1_b32 {sr(sAct)}, 2')
            a(f's_branch {Lck}2')
            a(f'{Lc2}:')
            a(f's_bitset1_b32 {sr(sAct)}, 3')
            a(f's_branch {Lck}2')
            a(f'{Lc3}:')
            adv()
            a(f's_branch {Lck}2')
        elif P['soft']:
            Lc2 = a.lab('b_c2'); Lc3 = a.lab('b_c3')
            ssum(a, sr(T0+3), None, [(sr(c.sS), 18)], 3 << 18)
            a(f's_min_u32 vcc_lo, {sr(T0+3)}, {sr(c.sLim)}')
            a(f's_cmp_lt_u32 {sr(c.sPf)}, vcc_lo')
            a(f's_cbranch_scc1 {Lc3}l')
            a(f'{Lc3}x:')
            a(f's_mov_b64 vcc, 0')
            a(f's_cmp_eq_u32 {b}, 0')
            a(f's_cbranch_scc1 {Lck}')
            a(f'{Lb2}:')
            a(f's_cmp_eq_u32 {sr(c.sS)}, {NSTEP}')
            a('s_barrier')
            a(f's_cbranch_scc0 {Lt}')
            a(f's_branch {Lfin}')
            a(f'{Lc3}l:')
            pref()
            a(f's_cmp_lt_u32 {sr(c.sPf)}, vcc_lo')
            a(f's_cbranch_scc1 {Lc3}l')
            a(f's_branch {Lc3}x')
            a(f'{Lck}:')
            a(f's_add_u32 {sr(T0+3)}, {sr(T0+3)}, {1<<18}')
            a(f's_cmp_ge_u32 {sr(T0+3)}, {sr(c.sLim)}')
            a(f's_cbranch_scc1 {Lck}1')
            a(f'{Lck}2:')
            a(f's_and_b32 {sr(T0+3)}, {sr(c.sS)}, 7')
            a(f's_cmp_gt_u32 {sr(c.sS)}, {NSTEP-7}')
            a(f's_cselect_b32 {sr(T0+3)}, 2, {sr(T0+3)}')
            a(f's_cmp_eq_u32 {sr(T0+3)}, 2')
            a(f's_cselect_b64 vcc, 1, 0')
            a(f's_branch {Lb2}')
            a(f'{Lck}1:')
            a(f's_cmp_ge_i32 {sr(c.sRv)}, 12')
            a(f's_cbranch_scc1 {Lc3}')
            a(f's_sub_u32 {sr(T0+3)}, {sr(T0+3)}, {3<<18}')
            a(f's_cmp_ge_u32 {sr(T0+3)}, {sr(c.sLim)}')
            a(f's_cbranch_scc1 {Lc2}')
            if P['fr']: a(f's_mov_b32 {sr(c.sRv)}, 0')
            else: a(f's_buffer_load_dword {sr(c.sRv)}, {WS}, {sr(c.sRd)} glc')
            a(f's_branch {Lck}2')
            if P['fr']:
                a(f'{Lf}r:')
                a(f's_buffer_load_dword {sr(c.sRv)}, {WS}, {sr(c.sRd)} glc')
                a(f's_branch {Lf}s')
            a(f'{Lc2}:')
            rdywait()
            a(f'{Lc3}:')
            a(f's_mov_b32 {sr(c.sRv)}, {-1 if P["fr"] else 0}')
            a(f's_add_u32 {sr(c.sRd)}, {sr(c.sRd)}, 128')
            a(f's_add_u32 {sr(c.sLim)}, {sr(c.sLim)}, {4<<18}')
            a(f's_cmp_eq_u32 {sr(c.sLim)}, {NSTEP<<18}')
            a(f's_cselect_b32 {sr(c.sLim)}, {128<<18}, {sr(c.sLim)}')
            a(f'v_mov_b32 v{T}, {FLAG+32}')
            a(f'v_mov_b32 v{PK}, {sr(c.sLim)}')
            a(f'ds_write_b32 v{T}, v{PK}')
            a('s_waitcnt lgkmcnt(0)')
            a(f's_branch {Lck}2')
        else:
            a(f's_mov_b64 vcc, 0')
            a(f's_cmp_eq_u32 {b}, 0')
            a(f's_cbranch_scc1 {Lck}')
            a(f'{Lb2}:')
            a(f's_cmp_eq_u32 {sr(c.sS)}, {NSTEP}')
            a('s_barrier')
            a(f's_cbranch_scc0 {Lt}')
            if P['ap'] or not P['fo'] & 2: opst()
            a(f's_branch {Lfin}')
            Lc2 = a.lab('b_c2'); Lc3 = a.lab('b_c3')
            a(f'{Lck}:')
            a(f's_and_b32 {sr(T0+3)}, {sr(c.sS)}, 7')
            a(f's_cmp_gt_u32 {sr(c.sS)}, {NSTEP-7}')
            a(f's_cselect_b32 {sr(T0+3)}, 2, {sr(T0+3)}')
            a(f's_cmp_eq_u32 {sr(T0+3)}, 2')
            a(f's_cselect_b32 vcc_lo, 1, 0')
            a(f's_and_b32 {sr(T0+3)}, {sr(T0+3)}, 3')
            a(f's_cmp_eq_u32 {sr(T0+3)}, 1')
            a(f's_cbranch_scc1 {Lc2}')
            a(f's_cmp_eq_u32 {sr(T0+3)}, 0')
            a(f's_cbranch_scc0 {Lb2}')
            a(f's_buffer_load_dword {sr(c.sRv)}, {WS}, {sr(c.sRd)} glc')
            a(f's_branch {Lb2}')
            a(f'{Lc2}:')
            a(f's_cmp_ge_u32 {sr(c.sRv)}, 12')
            a(f's_cbranch_scc1 {Lc3}')
            rdywait()
            a(f'{Lc3}:')
            a(f's_add_u32 {sr(c.sRd)}, {sr(c.sRd)}, 128')
            a(f's_branch {Lb2}')
        a(f'{Lpg}:')
        if P['soft'] == 3:
            a(f's_cmp_lt_u32 {sr(T0+3)}, {sr(c.sLim)}')
            a(f's_cbranch_scc1 {Lpg}a')
            a(f's_buffer_load_dword {sr(c.sRv)}, {WS}, {sr(c.sRd)} glc')
            a(f's_sub_u32 {sr(T0+3)}, {sr(T0+3)}, {2<<18}')
            a(f's_cmp_ge_u32 {sr(T0+3)}, {sr(c.sLim)}')
            a(f's_cselect_b32 {sr(T0+3)}, 12, 4')
            a(f's_or_b32 {sr(sAct)}, {sr(sAct)}, {sr(T0+3)}')
            a(f'{Lpg}a:')
            a(f's_and_b32 {sr(T0+3)}, {sr(c.sS)}, 7')
            a(f's_cmp_gt_u32 {sr(c.sS)}, {NSTEP-7}')
            a(f's_cselect_b32 {sr(T0+3)}, 2, {sr(T0+3)}')
            a(f's_cmp_eq_u32 {sr(T0+3)}, 2')
            a(f's_cbranch_scc0 {Lpg2}')
        a(f's_sub_u32 {sr(T0+3)}, {sr(c.sS)}, 2')
        a(f'v_mov_b32 v{T}, {sr(T0+3)}')
        a(f's_mov_b64 exec, 1')
        if P['prog']: a(f'buffer_store_dword v{T}, off, {WS}, {sr(c.sPg)} sc1')
        a(f's_mov_b64 exec, -1')
        if P['ap']:
            a(f's_waitcnt vmcnt({2 + P["pf"] + 1 - P["noop"]})')
            a(f's_branch {LpA}c')
        else: a(f's_branch {Lpg2}')
        if P['pfst'] == 2:
            a(f'{LpA}:')
            a(f'buffer_load_dwordx4 {vr(AF+4,4)}, v{vPP}, {WS}, {sr(c.sO1)} offen sc1')
            spin(a, c, Lend)
            a('s_waitcnt vmcnt(0)')
            chk1()
            a(f'buffer_store_dword v{PK}, v{vMP}, {WS}, {sr(c.sO3)} offen{sm}')
            delay(a, P['dmr'])
            a(f's_branch {LpA}{"y" if tr else "z"}')
        if P['fp']: fpass()
        slow_nodes()
    a(f'{Lfin}:')
    if P['opw'] >= 2:
        a(f'buffer_store_dwordx4 {vr(AF,4)}, v{L16}, {WS}, {sr(c.sOP)} offen{P["opm"]}')
        a(f's_add_u32 {sr(c.sOP)}, {sr(c.sOP)}, 65536')
    if P['tail']:
        Pp = W; A_ = W + 32; G_ = W + 36; F_ = W + 38; vA = W + 39; vG = W + 40; acc = W + 44; t_ = W + 52
        sSeg = c.sB1; sPo = c.sB2; sOo = c.sO1; sFo = c.sO2; sGo = c.sO3; sq = c.sO4
        Lw = a.lab('t_w'); Lr = a.lab('t_r'); Lc = a.lab('t_c')
        if P['tmk'] == 1: c.mark(5, 0)
        a(f's_and_b32 {sr(T0)}, {sr(c.sG)}, 1')
        a(f's_lshr_b32 {sr(sq)}, {sr(c.sG)}, 1')
        ssum(a, sr(sSeg), sr(T0+1), [(b, 1), (sr(T0), 0)], 60)
        a(f's_cmp_ge_u32 {b}, 2')
        a(f's_cbranch_scc1 {Lw}b')
        ssum(a, sr(sPo), sr(T0+1), [(sr(sSeg), 16), (sr(c.sC), 12), (sr(sq), 10)], OP)
        ssum(a, sr(sOo), sr(T0+1), [(sr(sSeg), 16), (sr(c.sC), 7), (sr(sq), 5)])
        ssum(a, sr(sGo), None, [(sr(sSeg), 7)], GT + 8192)
        a(f'v_lshrrev_b32 v{t_}, 4, v{L16}')
        bits(a, vA, t_, t_ + 1, [(15, 11), (48, -1)])
        bits(a, vG, t_, t_ + 1, [(15, 2)])
        def ldP():
            a(f's_mov_b32 {sr(T0+1)}, {sr(sPo)}')
            for g in range(8):
                a(f'buffer_load_dwordx4 {vr(Pp+4*g,4)}, v{L16}, {WS}, {sr(T0+1)} offen sc1')
                if g < 7: a(f's_add_u32 {sr(T0+1)}, {sr(T0+1)}, {1<<22}')
        a(f's_cmp_ge_u32 {sr(c.sJk)}, 8')
        a(f's_cbranch_scc0 {Lw}')
        a(f'{Lw}x:')
        a(f's_add_u32 {sr(T0+1)}, {sr(sOo)}, {OPA}')
        a(f's_add_u32 {sr(T0+2)}, {sr(sOo)}, {OPA+32768}')
        for tq in range(2):
            a(f'buffer_load_dword v{G_+tq}, v{vG}, {WS}, {sr(sGo)} offen offset:{64*tq}')
            a(f'buffer_load_dwordx2 {vr(A_+2*tq,2)}, v{vA}, {WS}, {sr(T0+1+tq)} offen')
        a(f's_cmp_eq_u32 {sr(sSeg)}, 63')
        a(f's_cbranch_scc1 {Lw}b')
        ldP()
        a(f'{Lw}b:')
        if P['tmk'] == 2: c.mark(6, 0)
        a('s_barrier')
        if P['tmk'] == 3: c.mark(7, 0)
        xred()
        a(f'buffer_store_dwordx4 {vr(AF,4)}, v{L16}, {WS}, {sr(c.sOP)} offen sc1')
        if P['tmk'] == 4: c.mark(8, 0)
        a(f's_cmp_gt_u32 {sr(sSeg)}, 63')
        a(f's_cbranch_scc1 {Ldone}')
        a('s_waitcnt vmcnt(1)')
        a(f's_cmp_eq_u32 {sr(sSeg)}, 63')
        a(f's_cbranch_scc0 {Lc}')
        delay(a, P['tdl'])
        a(f's_branch {Lr}')
        a(f'{Lw}:')
        a(f'buffer_load_dword v{F_}, off, {WS}, {sr(c.sPp)} sc1')
        spin(a, c, Lend)
        a('s_waitcnt vmcnt(0)')
        a(f'v_cmp_gt_u32 vcc, 8, v{F_}')
        a(f's_cbranch_vccz {Lw}x')
        a(f's_sleep 8')
        a(f's_branch {Lw}')
        a(f'{Lr}:')
        ldP()
        spin(a, c, Lend)
        a(f'{Lc}:')
        for g in range(8):
            a(f's_waitcnt vmcnt({7-g})')
            for i in range(4):
                p_ = Pp + 4 * g + i
                if g == 0:
                    a(f'v_lshlrev_b32 v{acc+2*i}, 16, v{p_}')
                    a(f'v_and_b32 v{acc+2*i+1}, 0xffff0000, v{p_}')
                else:
                    a(f'v_lshlrev_b32 v{t_+(i&1)}, 16, v{p_}')
                    a(f'v_and_b32 v{p_}, 0xffff0000, v{p_}')
                    a(f'v_add_f32 v{acc+2*i}, v{acc+2*i}, v{t_+(i&1)}')
                    a(f'v_add_f32 v{acc+2*i+1}, v{acc+2*i+1}, v{p_}')
        a(f'v_cmp_u_f32 vcc, v{acc}, v{acc+2}')
        a(f'v_cmp_u_f32 {sr(T0+2,2)}, v{acc+4}, v{acc+6}')
        a(f's_or_b64 vcc, vcc, {sr(T0+2,2)}')
        a(f's_cbranch_scc1 {Lr}')
        for i in range(4):
            p_ = A_ + i; G = G_ + (i >> 1)
            a(f'v_lshlrev_b32 v{t_+(i&1)}, 16, v{p_}')
            a(f'v_and_b32 v{p_}, 0xffff0000, v{p_}')
            a(f'v_fma_f32 v{acc+2*i}, v{acc+2*i}, v{G}, v{t_+(i&1)}')
            a(f'v_fma_f32 v{acc+2*i+1}, v{acc+2*i+1}, v{G}, v{p_}')
        for i in range(4): a(f'v_cvt_pk_bf16_f32 v{A_+i}, v{acc+2*i}, v{acc+2*i+1}')
        a(f's_add_u32 {sr(T0+1)}, {sr(sOo)}, 32768')
        a(f'buffer_store_dwordx2 {vr(A_,2)}, v{vA}, {sr(c.SB,4)}, {sr(sOo)} offen{P["tom"]}')
        a(f'buffer_store_dwordx2 {vr(A_+2,2)}, v{vA}, {sr(c.SB,4)}, {sr(T0+1)} offen{P["tom"]}')
        a(f's_branch {Ldone}')
        return
    a('s_barrier')
    xred()
    a(f'buffer_store_dwordx4 {vr(AF,4)}, v{L16}, {WS}, {sr(c.sOP)} offen sc1')
    a('s_waitcnt vmcnt(0)')
    if P['fused']:
        a('s_barrier')
        a(f's_cmp_lg_u32 {b}, 0')
        a(f's_cbranch_scc1 {Ldone}')
        a(f'v_mov_b32 v{T}, {NSTEP}')
        a(f's_mov_b64 exec, 1')
        a(f'buffer_store_dword v{T}, off, {WS}, {sr(c.sPg)} sc1')
        a(f's_mov_b64 exec, -1')
    a(f's_branch {Ldone or Lend}')

def cwave(a, c, Lend, tr=None, getpar=None, Ldone=None):
    T0 = c.sT; j = sr(c.sD)
    v = Regs(1, 256)
    L8 = 0
    L = v.get(); T = v.get(); T2 = v.get(); L16 = v.get()
    vK = v.get(); vVR = v.get(); vQR = v.get(); vSS = v.get(); vCW = v.get(); vCR = v.get(); vPS = v.get(); vIdx = v.get(); vFl = v.get(); vOne = v.get()
    vXW = v.get(); vXR = v.get()
    vK2 = 240; vF4 = 241; FL4 = 244
    R = v.get(2, 2); SELM = v.get(2, 2); PX_ = v.get(10, 2)
    if P['sm2']: SELM = 248
    SELA = v.get(4, 4); SELB = v.get(4, 4); PP = v.get(4, 4); KQ = v.get(8, 4)
    XL = v.get(8, 4); E = v.get(8, 4)
    VXr = v.get(32, 4); UM = v.get(16, 4); OUT = v.get(20, 4); U = v.get(40, 4); WO = v.get(64, 4)
    assert OUT == UM + 16
    UD = UM; QB = VXr; KA_ = VXr + 8; DS = VXr + 16; VMr = VXr + 24
    SL = VXr; SML = VXr + 8; X = VXr + 12
    E4 = E + 4
    sMask = c.sMask; sPX = c.sV; sSCL = c.sM0; sKQ = c.sAr
    WS = sr(c.SWS, 4)
    a(f's_load_dwordx2 {sr(c.SA,2)}, s[0:1], {D_OUT}')
    a(f's_sub_u32 {j}, {sr(c.sW)}, 4')
    a(f'v_and_b32 v{L}, 63, v0')
    a(f'v_lshlrev_b32 v{L16}, 4, v{L}')
    a(f'v_lshlrev_b32 v{L8}, 3, v{L}')
    a(f's_lshl_b32 {sr(T0)}, {sr(c.sG)}, 2')
    a(f's_add_u32 {sr(T0)}, {sr(T0)}, {j}')
    ssum(a, sr(T0+1), sr(T0+2), [(sr(T0), 18), (sr(c.sC), 7)])
    bits(a, vPS, L, T, [(56, 8), (7, 4)], sr(T0+1))
    sLb = c.sO3
    ssum(a, sr(sLb), None, [(j, 14)], 98304)
    srd(a, c.SO, sr(c.SO), sr(c.SO+1), 4096*2048)
    def wpf():
        ssum(a, sr(T0+1), sr(T0+2), [(sr(c.sG), 20), (sr(c.sC), 16), (j, 14)])
        a(f'v_lshlrev_b32 v{vK2}, 7, v{L}')
        a(f'buffer_load_dword v250, v{vK2}, {sr(c.SO,4)}, {sr(T0+1)} offen{P["wpm"]}')
        a(f's_add_u32 {sr(T0+1)}, {sr(T0+1)}, 8192')
        a(f'buffer_load_dword v250, v{vK2}, {sr(c.SO,4)}, {sr(T0+1)} offen{P["wpm"]}')
    if P['wpf'] == 1: wpf()
    bits(a, vCR, L, T, [(12, 5), (48, 6), (3, 3)], sr(sLb))
    ssum(a, sr(c.sB1), None, [(sr(T0), 13)], QKV)
    ssum(a, sr(sPX), None, [(sr(T0), 11)], PX + 65536)
    a(f's_mov_b32 {sr(sSCL)}, {0x3f800000 if P["sm2"] == 1 else SCL:#x}')
    a(f's_lshl_b32 {sr(T0)}, {sr(c.sG)}, 4')
    a(f's_add_u32 {sr(T0)}, {sr(T0)}, {sr(c.sC)}')
    bits(a, vK, L, T, [(1, 4), (2, 5), (4, 5), (8, 7), (48, 4)])
    ssum(a, sr(T0+1), None, [(j, 5)], KX)
    a(f's_cmp_lt_u32 {j}, 2')
    a(f's_cselect_b32 {sr(T0+1)}, {sr(T0+1)}, {QX}')
    a(f's_cselect_b64 vcc, -1, 0')
    a(f's_lshl_b32 {sr(T0+2)}, {sr(T0)}, 11')
    a(f's_add_u32 {sr(sKQ)}, {sr(T0+1)}, {sr(T0+2)}')
    a(f'v_cndmask_b32 v{vK}, v{L16}, v{vK}, vcc')
    if P['at']:
        bits(a, vSS, L, T, [(6, 5), (1, 4), (16, -1), (32, 5), (8, 28)])
        a(f'v_xor_b32 v{PP}, 32, v{L}')
        bits(a, T2, PP, T, [(15, 4), (16, 6), (32, 26)])
        a(f'v_cndmask_b32 v{vSS}, v{T2}, v{vSS}, vcc')
        bits(a, T2, PP, T, [(6, 4), (1, 3), (16, 0), (32, 26), (8, 27)])
    else:
        bits(a, vSS, L, T, [(13, 4), (16, -1), (32, 5)])
        bits(a, T2, L, T, [(15, 4), (16, 6), (32, -2)])
        a(f'v_cndmask_b32 v{vSS}, v{T2}, v{vSS}, vcc')
        bits(a, T2, L, T, [(13, 4), (48, -2), (2, 0)] if P['sm2'] else [(15, 3), (48, -3)])
    a(f's_and_b32 {sr(T0+2)}, {sr(T0)}, 3')
    ssum(a, sr(T0+1), None, [(j, 5)], 2048)
    a(f's_cmp_lt_u32 {j}, 2')
    a(f's_cselect_b32 {sr(T0+1)}, {sr(T0+1)}, 4096')
    a(f's_lshl_b32 {sr(T0+3)}, {sr(T0+2)}, 8')
    a(f's_add_u32 {sr(T0+1)}, {sr(T0+1)}, {sr(T0+3)}')
    ssum(a, sr(T0+3), None, [(sr(T0+2), 8 if P['sm2'] else 7)], 6144)
    a(f's_cmp_eq_u32 {j}, 2')
    a(f's_cselect_b32 {sr(T0+1)}, {sr(T0+3)}, {sr(T0+1)}')
    a(f's_cselect_b64 vcc, -1, 0')
    a(f's_lshr_b32 {sr(T0+2)}, {sr(T0)}, 2')
    ssum(a, sr(T0+2), None, [(sr(T0+2), 13)], QKV)
    a(f's_add_u32 {sr(T0+1)}, {sr(T0+1)}, {sr(T0+2)}')
    a(f'v_cndmask_b32 v{vSS}, v{vSS}, v{T2}, vcc')
    a(f'v_add_u32 v{vSS}, {sr(T0+1)}, v{vSS}')
    bits(a, vQR, L, T, [(15, 7), (15, 5), (48, 1)] if P['at'] == 2 else [(12, 3), (12, 1), (48, 4), (48, 2), (3, 3)])
    ssum(a, sr(T0+1), None, [(j, 13)], VB)
    a(f'v_add_u32 v{vVR}, {sr(T0+1)}, v{L16}')
    ssum(a, sr(T0+1), None, [(j, 12)], XO)
    a(f'v_add_u32 v{vXW}, {sr(T0+1)}, v{L16}')
    ssum(a, sr(T0+1), None, [(j, 9)], XR)
    a(f'v_add_u32 v{vXR}, {sr(T0+1)}, v{L8}')
    ssum(a, sr(T0+1), None, [(j, 11)], CO)
    bits(a, vCW, L, T, PERM4, sr(T0+1))
    ssum(a, sr(T0+1), None, [(j, 2)], FLAG)
    a(f'v_mov_b32 v{vFl}, {sr(T0+1)}')
    a(f'v_mov_b32 v{vOne}, 0')
    for r in (242, 243): a(f'v_mov_b32 v{r}, {SCL:#x}')
    a(f'v_and_b32 v{T}, 2, v{L}')
    a(f'v_cmp_ne_u32 {sr(sMask,2)}, 0, v{T}')
    a(f'v_mov_b32 v{T}, 0x4444')
    a(f'v_mov_b32 v{T2}, 0xeeee')
    a(f'v_cndmask_b32 v{vIdx}, v{T}, v{T2}, {sr(sMask,2)}')
    a(f'v_and_b32 v{PP}, 1, v{L}')
    a(f'v_cmp_ne_u32 vcc, 0, v{PP}')
    a(f'v_cndmask_b32 v{T}, v{T}, v{T2}, vcc')
    a(f'v_lshl_or_b32 v{vIdx}, v{T}, 16, v{vIdx}')
    make_sel(a, SELA, L, T, T2)
    a(f'v_and_b32 v{T}, 8, v{L}')
    a(f'v_cmp_ne_u32 vcc, 0, v{T}')
    for p in range(4):
        a(f'v_cndmask_b32 v{SELB+p}, 0, v{SELA+p}, vcc')
        a(f'v_sub_u32 v{SELA+p}, v{SELA+p}, v{SELB+p}')
    if P['sm2']:
        a(f'v_and_b32 v{T}, 12, v{L}')
        a(f'v_mov_b32 v{T2}, 0x3f803f80')
        for p in range(4):
            a(f'v_cmp_eq_u32 vcc, {4*p}, v{T}')
            a(f'v_cndmask_b32 v{SELM+p}, 0, v{T2}, vcc')
    else:
        bits(a, T2, L, T, [(4, 2)])
        a(f'v_mov_b32 v{T}, 0x3f80')
        a(f'v_lshlrev_b32 v{T2}, v{T2}, v{T}')
        a(f'v_cndmask_b32 v{SELM+1}, 0, v{T2}, vcc')
        a(f'v_sub_u32 v{SELM}, v{T2}, v{SELM+1}')
    for t in range(5):
        a(f'v_mov_b32 v{U+8*t+4}, 0'); a(f'v_mov_b32 v{U+8*t+5}, 0')
    for r in (2, 3, 6, 7): a(f'v_mov_b32 v{U+32+r}, 0x3f803f80')
    for r in (0, 1): a(f'v_mov_b32 v{U+32+r}, 0x3f80')
    a(f'v_mov_b32 v{T}, 0x80000000')
    a(f's_cmp_eq_u32 {j}, 3')
    a(f's_cselect_b64 vcc, -1, 0')
    a(f'v_cndmask_b32 v{vK2}, v{T}, v{vK}, vcc')
    a(f's_cmp_eq_u32 {j}, 2')
    a(f's_cselect_b64 vcc, -1, 0')
    a(f'v_cndmask_b32 v{vK}, v{vK}, v{T}, vcc')
    if P['wob'] >= 0: a('s_barrier')
    for m in range(16):
        a(f's_mov_b32 {sr(T0+2)}, {m*8*2048}')
        a(f's_add_u32 m0, {sr(sLb)}, {m*1024}')
        a(f'buffer_load_dwordx4 v{vPS}, {sr(c.SO,4)}, {sr(T0+2)} offen{P["om"]} lds')
    if P['tail'] and P['warm']:
        a('s_waitcnt lgkmcnt(0)')
        srd(a, c.SA, sr(c.SA), sr(c.SA+1), 2048*2048)
        a(f's_mov_b32 {sr(T0+1)}, {40<<16}')
        a(f's_buffer_load_dword {sr(c.sO4)}, {sr(c.SA,4)}, {sr(T0+1)}')
        for o in (OPA + (40<<16), GT, OP + (40<<16), OP + (40<<16) + (1<<22)):
            if o >= OP: ssum(a, sr(T0+1), None, [(j, 23)], o)
            else: a(f's_mov_b32 {sr(T0+1)}, {o}')
            a(f's_buffer_load_dword {sr(c.sO4)}, {WS}, {sr(T0+1)}')
    def rdWo():
        a('s_waitcnt vmcnt(2)')
        c.wost()
        for t in range(4):
            for ch in range(2):
                for q in range(4):
                    off = (ch * 64 + 32 * (q >> 1) + 4 * (q & 1)) * 128 + t * 32
                    a(f'ds_read_b64_tr_b16 {vr(WO+(t*2+ch)*8+2*q,2)}, v{vCR} offset:{off}')
            a('s_waitcnt lgkmcnt(0)')
        ssum(a, sr(T0+1), None, [(j, 9)], CO)
        a(f'v_add_u32 v{vCR}, {sr(T0+1)}, v{L8}')
    ssum(a, sr(T0+1), sr(T0+2), [(j, 11), (sr(c.sC), 17 if P['npl'] else 14), (sr(c.sG), 7)])
    bits(a, vPS, L, T, [(2, 9), (32, 1), (12, 2), (1, 3), (16, -2)], sr(T0+1))
    a(f's_mov_b32 {sr(c.sS)}, 0')
    a(f's_mov_b32 {sr(c.sSpin)}, {SPIN}')
    a(f's_mov_b32 {sr(c.sSlot)}, 0')
    def ldKQ():
        a(f'buffer_load_dwordx4 {vr(KQ,4)}, v{vK}, {WS}, {sr(sKQ)} offen')
        a(f'buffer_load_dwordx4 {vr(KQ+4,4)}, v{vK2}, {WS}, {sr(sKQ)} offen offset:1024')
        a(f's_add_u32 {sr(sKQ)}, {sr(sKQ)}, {0 if P["nokq"] else 1<<18}')
    def ldPX():
        return [f'buffer_load_dwordx4 {vr(PX_,4)}, v{L16}, {WS}, {sr(sPX)} offen',
                f'buffer_load_dwordx4 {vr(PX_+6,4)}, v{L16}, {WS}, {sr(sPX)} offen offset:1024',
                f's_add_u32 {sr(sPX)}, {sr(sPX)}, {0 if P["nokq"] else 1<<18}']
    def ldXL():
        for k in range(2): a(f'buffer_load_dwordx4 {vr(XL+4*k,4)}, v{L16}, {WS}, {sr(c.sO2)} offen offset:{1024*k} sc1')
    def rdV():
        for ks in range(4):
            for kt in range(2):
                a(f'ds_read_b128 {vr(VXr+16*kt+4*ks,4)}, v{vVR} offset:{2048*ks+1024*kt}')
    def xpv_head(Lretry, Lbad, Lgood):
        a(f'{Lretry}:')
        a(f'v_mfma_f32_16x16x32_bf16 {vr(E,4)}, {vr(SELA,4)}, {vr(XL,4)}, 0')
        a(f'v_mfma_f32_16x16x32_bf16 {vr(E,4)}, {vr(SELB,4)}, {vr(XL+4,4)}, {vr(E,4)}')
        for r in range(4): a(f'v_fma_f32 v{E+r}, v{E+r}, {sr(sSCL)}, -v{PX_+(r>>1)}')
        a(f'v_max3_f32 v{T}, v{E}, v{E+1}, v{E+2}')
        a(f'v_max_f32 v{T}, v{T}, v{E+3}')
        a(f'v_cmp_nge_f32 vcc, 0x42800000, v{T}')
        a(f's_cbranch_vccnz {Lbad}')
        a(f'{Lgood}:')
        for r in range(4): a(f'v_exp_f32 v{E+r}, v{E+r}')
        for r in range(4): a(f'v_cvt_pk_bf16_f32 v{PX_+(r&1)+4*(r>>1)}, v{E+r}, v{E+r}')
    def xpv_bad(Lretry, Lbad, Lgood):
        Lbig = a.lab('c_big')
        a(f'{Lbad}:')
        a(f'v_cmp_u_f32 vcc, v{T}, v{T}')
        a(f's_cbranch_vccz {Lbig}')
        ldXL()
        spin(a, c, Lend)
        a('s_waitcnt vmcnt(0)')
        a(f's_branch {Lretry}')
        a(f'{Lbig}:')
        for tq in range(2):
            a(f'v_max3_f32 v{T}, v{E+2*tq}, v{E+2*tq+1}, 0')
            for op in ('v_permlane16_swap_b32', 'v_permlane32_swap_b32'):
                a(f'v_mov_b32 v{T2}, v{T}')
                a(f'{op} v{T}, v{T2}')
                a(f'v_max_f32 v{T}, v{T}, v{T2}')
            a(f'v_sub_f32 v{E+2*tq}, v{E+2*tq}, v{T}')
            a(f'v_sub_f32 v{E+2*tq+1}, v{E+2*tq+1}, v{T}')
            a(f'v_exp_f32 v{T}, -v{T}')
            for r in ((2, 3) if tq == 0 else (6, 7, 8, 9)):
                a(f'v_lshlrev_b32 v{T2}, 16, v{PX_+r}')
                a(f'v_and_b32 v{PX_+r}, 0xffff0000, v{PX_+r}')
                a(f'v_mul_f32 v{T2}, v{T2}, v{T}')
                a(f'v_mul_f32 v{PX_+r}, v{PX_+r}, v{T}')
                a(f'v_cvt_pk_bf16_f32 v{PX_+r}, v{T2}, v{PX_+r}')
        a(f's_branch {Lgood}')
    def xpv_mfma(t):
        D0 = UD + 8 * t if t < 4 else OUT + 16
        D1 = UD + 8 * t + 4 if t < 4 else E4
        return [f'v_mfma_f32_16x16x32_bf16 {vr(D1,4)}, {vr(U+8*t,4)}, {vr(PX_+4,4)}, 0',
                f'v_mfma_f32_16x16x32_bf16 {vr(D0,4)}, {vr(U+8*t,4)}, {vr(PX_,4)}, 0',
                f'v_mfma_f32_16x16x32_bf16 {vr(D1,4)}, {vr(U+8*t+4,4)}, {vr(PX_+6,4)}, {vr(D1,4)}']
    def xpv_post(t):
        if t == 4:
            return [f'v_rcp_f32 v{R}, v{OUT+16}', f'v_rcp_f32 v{R+1}, v{E4}', f'ds_write_b64 v{vXR}, {vr(R,2)}']
        Y = XL + 4 * (t & 1); D = UD + 8 * t
        return [f'v_cvt_pk_bf16_f32 v{Y+i}, v{D+2*i}, v{D+2*i+1}' for i in range(4)] + [f'ds_write_b128 v{vXW}, {vr(Y,4)} offset:{1024*t}']
    def xpv_body():
        cv = []
        for t in (4, 0, 1, 2, 3):
            for i, m in enumerate(xpv_mfma(t)):
                a(m)
                if i >= 1:
                    for _ in range(3):
                        if cv: a(cv.pop(0))
            cv += xpv_post(t)
        return cv
    def ux(cv, kq=-1):
        a(f's_add_u32 {sr(c.sO1)}, {sr(c.sB1)}, {sr(c.sSlot)}')
        a(f's_add_u32 {sr(c.sO2)}, {sr(c.sO1)}, 4096')
        if P['npl']:
            a(f's_lshr_b32 {sr(c.sO3)}, {sr(c.sSlot)}, 3')
            a(f's_add_u32 {sr(c.sO3)}, {sr(c.sO3)}, {sr(c.sMS)}')
            a(f's_xor_b32 {sr(c.sO4)}, {sr(c.sO3)}, 0x4000')
        if P['loc']:
            a(f's_add_u32 {sr(c.sO3)}, {sr(c.sSlot)}, {sr(c.sMS)}')
            a(f's_xor_b32 {sr(c.sO4)}, {sr(c.sO3)}, 8192')
        a(f's_mov_b32 {sr(c.sFb)}, 0')
        a(f'v_xor_b32 v{vVR}, 32768, v{vVR}')
        if P['at']: a(f'v_xor_b32 v{vQR}, {2048*P["at"]}, v{vQR}')
        a(f'v_add_u32 v{vOne}, 1, v{vOne}')
        for t in range(4):
            if kq == t: ldKQ()
            for ks in range(4):
                for kt in range(2):
                    D = vr(UD + (t * 2 + kt) * 4, 4)
                    a(f'v_mfma_f32_16x16x32_bf16 {D}, {vr(VXr+16*kt+4*ks,4)}, {vr(WO+(t*2+(ks>>1))*8+(ks&1)*4,4)}, {D if ks else 0}')
                    if ks >= 1 or (t == 0 and kt == 1):
                        for _ in range(2):
                            if cv: a(cv.pop(0))
            for kt in range(2):
                D = UD + (t * 2 + kt) * 4
                cv += [f'v_cvt_pk_bf16_f32 v{U+8*t+2+4*kt}, v{D}, v{D+1}', f'v_cvt_pk_bf16_f32 v{U+8*t+3+4*kt}, v{D+2}, v{D+3}']
            cv += [f'v_mov_b32 v{UD+8*t+i}, 0' for i in range(8)]
        if kq == 4: ldKQ()
        for i in range(32, 36): a(f'v_mov_b32 v{UM+i}, 0')
        for x in cv: a(x)

    ents = [a.lab('c_ent0'), a.lab('c_ent1')]; Lfin = a.lab('c_fin')
    a(f'v_mov_b32 v{R}, {PARW}')
    a(f'v_mov_b32 v{T}, {FLAG+32}')
    a(f'v_mov_b32 v{T2}, {4<<18}')
    a('s_barrier')
    ldKQ()
    a(f'ds_read_b32 v{R}, v{R}')
    a(f'ds_write_b32 v{vFl}, v{vOne}')
    a(f'ds_write_b32 v{T}, v{T2}')
    a('s_waitcnt lgkmcnt(0)')
    c.usepar(R)
    a(f'v_add_u32 v{vPS}, {sr(c.sPart)}, v{vPS}')
    if P['npl']: a(f's_xor_b32 {sr(c.sMS)}, {sr(c.sT+1)}, {0x4000*P["nfo"]}')
    if P['loc']:
        a(f'v_subrev_u32 v{vPS}, {sr(c.sT)}, v{vPS}')
        a(f's_mov_b32 {sr(c.sMS)}, {sr(c.sT)}')
    rdWo()
    a('s_barrier')
    rdV()
    a('s_waitcnt lgkmcnt(0)')
    ux([])
    a(f's_cmp_eq_u32 {sr(c.sMode)}, 0')
    a(f's_cbranch_scc1 {ents[0]}')
    a(f's_branch {ents[1]}')
    for mode in range(2):
        sm = ' sc1' if mode else ''
        Lt = a.lab('c_top'); Lp = a.lab('c_p'); Lpz = a.lab('c_pz'); Lsm = a.lab('c_sm'); Lfb = a.lab('c_fb'); Lz = a.lab('c_z')
        L2 = a.lab('c_r2'); L3 = a.lab('c_r3'); Lj = a.lab('c_j')
        xl = [a.lab('c_xr'), a.lab('c_xb'), a.lab('c_xg')]
        a(f'{Lt}:')
        a(f's_waitcnt vmcnt({max(1 + P["loc"], P["npl"])})')
        if tr: tr.flush(VXr)
        if tr and P['cst'] == 1: tr(6)
        if P['kqtop'] == 1: ldKQ()
        if tr and P['cst'] == 2: tr(6)
        rdV()
        a(f's_cmp_le_u32 {sr(c.sS)}, 4')
        a(f's_cbranch_scc1 {Lt}p')
        if P['nox']:
            cv = []
        else:
            xpv_head(*xl)
            cv = xpv_body()
        a(f's_waitcnt lgkmcnt({0 if P["nox"] else 4})')
        if tr and P['cst'] == 3: tr(6)
        ux(cv, P['kqtop'] - 2)
        a(f'v_xor_b32 v{vXW}, 16384, v{vXW}')
        a(f'v_xor_b32 v{vXR}, 2048, v{vXR}')
        if tr and P['cst'] == 0: tr(6)
        a(f'{ents[mode]}:')
        a(f's_waitcnt vmcnt(0) lgkmcnt(0)')
        if P['cprio']: a(f's_setprio {P["cprio"]}')
        if tr: tr(0)
        a(f's_cmp_ge_u32 {j}, 2')
        a(f's_cbranch_scc1 {L2}')
        def rdq(R_, base):
            for u in range(2):
                for wh in range(2):
                    a(f'ds_read_b64_tr_b16 {vr(R_+4*u+2*wh,2)}, v{vQR} offset:{base+1280*u+160*wh}')
        if P['at']:
            def rd2():
                a('s_barrier')
                if P['at'] == 2:
                    for wh in range(2): a(f'ds_read_b128 {vr(QB+4+4*wh,4)}, v{vQR} offset:{16*wh}')
                    for wh in range(2):
                        a(f's_waitcnt lgkmcnt({1-wh})')
                        for i in range(2): a(f'v_cvt_pk_bf16_f32 v{QB+2*wh+i}, v{QB+4+4*wh+2*i}, v{QB+5+4*wh+2*i}')
                    return
                for wh in range(2): a(f'ds_read_b64_tr_b16 {vr(QB+2*wh,2)}, v{vQR} offset:{160*wh}')
                a('s_waitcnt lgkmcnt(0)')
            rd2()
            a(f'v_mfma_f32_16x16x32_bf16 {vr(DS,4)}, {vr(KQ,4)}, {vr(QB,4)}, 0')
            for r in range(2): a(f'v_cvt_pk_bf16_f32 v{DS+r}, v{DS+2*r}, v{DS+2*r+1}')
            a(f'buffer_store_dwordx2 {vr(DS,2)}, v{vSS}, {WS}, {sr(c.sSlot)} offen{sm}')
            delay(a, P['dqr'][0])
            a(f's_branch {Lj}')
            a(f'{L2}:')
            a(f's_cmp_eq_u32 {j}, 3')
            a(f's_cbranch_scc1 {L3}')
            rd2()
            a(f'v_mfma_f32_16x16x32_bf16 {vr(DS,4)}, {vr(QB,4)}, {vr(QB,4)}, 0')
            for r in range(2): a(f'v_pk_mul_f32 {vr(DS+2*r,2)}, {vr(DS+2*r,2)}, v[242:243]')
            for r in range(2): a(f'v_cvt_pk_bf16_f32 v{DS+r}, v{DS+2*r}, v{DS+2*r+1}')
            a(f'buffer_store_dwordx2 {vr(DS,2)}, v{vSS}, {WS}, {sr(c.sSlot)} offen{sm}')
            delay(a, P['dqr'][1])
            a(f's_branch {Lj}')
            a(f'{L3}:')
            rd2()
            for tq in range(2): a(f'v_mfma_f32_16x16x32_bf16 {vr(DS+4*tq,4)}, {vr(QB,4)}, {vr(KQ+4*tq,4)}, 0')
            for q in range(4): a(f'v_permlane16_swap_b32 v{DS+2*q}, v{DS+2*q+1}')
            for q in range(4): a(f'v_cvt_pk_bf16_f32 v{KQ+q}, v{DS+4*(q&1)+(q&2)}, v{DS+4*(q&1)+(q&2)+1}')
            a(f'buffer_store_dwordx4 {vr(KQ,4)}, v{vSS}, {WS}, {sr(c.sSlot)} offen{sm}')
            delay(a, P['dqr'][2])
        else:
            if tr and P['cst'] == 9: tr(6)
            a('s_barrier')
            rdq(QB, QI)
            a('s_waitcnt lgkmcnt(2)')
            a(f'v_mfma_f32_16x16x32_bf16 {vr(DS,4)}, {vr(KQ,4)}, {vr(QB,4)}, 0')
            a('s_waitcnt lgkmcnt(0)')
            a(f'v_mfma_f32_16x16x32_bf16 {vr(DS,4)}, {vr(KQ,4)}, {vr(QB+4,4)}, {vr(DS,4)}')
            for r in range(4): a(f'v_add_f32_dpp v{DS+r}, v{DS+r}, v{DS+r} quad_perm:[2,3,0,1] row_mask:0xf bank_mask:0xf')
            a(f'v_cvt_pk_bf16_f32 v{DS}, v{DS}, v{DS+1}')
            a(f'v_cvt_pk_bf16_f32 v{DS+1}, v{DS+2}, v{DS+3}')
            a(f'buffer_store_dwordx2 {vr(DS,2)}, v{vSS}, {WS}, {sr(c.sSlot)} offen{sm}')
            delay(a, P['dqr'][0])
            a(f's_branch {Lj}')
            a(f'{L2}:')
            a(f's_cmp_eq_u32 {j}, 3')
            a(f's_cbranch_scc1 {L3}')
            if tr and P['cst'] == 9: tr(6)
            a('s_barrier')
            for u in range(2):
                for R_, base in ((QB, QI), (KA_, KI)):
                    for wh in range(2):
                        a(f'ds_read_b64_tr_b16 {vr(R_+4*u+2*wh,2)}, v{vQR} offset:{base+1280*u+160*wh}')
            a('s_waitcnt lgkmcnt(4)')
            a(f'v_mfma_f32_16x16x32_bf16 {vr(DS,4)}, {vr(KA_,4)}, {vr(QB,4)}, 0')
            a('s_waitcnt lgkmcnt(2)')
            a(f'v_mfma_f32_16x16x32_bf16 {vr(DS,4)}, {vr(KA_,4)}, {vr(QB+4,4)}, {vr(DS,4)}')
            a('s_waitcnt lgkmcnt(0)')
            a(f'v_mfma_f32_16x16x32_bf16 {vr(DS,4)}, {vr(KA_+4,4)}, {vr(QB,4)}, {vr(DS,4)}')
            a(f'v_mfma_f32_16x16x32_bf16 {vr(DS,4)}, {vr(KA_+4,4)}, {vr(QB+4,4)}, {vr(DS,4)}')
            if P['pk'] & 4: a(f'v_pk_add_f32 {vr(DS,2)}, {vr(DS,2)}, {vr(DS+2,2)}')
            else:
                a(f'v_add_f32 v{DS}, v{DS}, v{DS+2}')
                a(f'v_add_f32 v{DS+1}, v{DS+1}, v{DS+3}')
            if P['sm2']:
                if P['sm2'] == 2:
                    for r in range(2): a(f'v_mul_f32 v{DS+r}, {sr(sSCL)}, v{DS+r}')
                a(f'v_cvt_pk_bf16_f32 v{DS}, v{DS}, v{DS+1}')
                a(f'buffer_store_short v{DS}, v{vSS}, {WS}, {sr(c.sSlot)} offen{sm}')
                a(f'buffer_store_short_d16_hi v{DS}, v{vSS}, {WS}, {sr(c.sSlot)} offen offset:32{sm}')
            else:
                a(f'v_cndmask_b32 v{DS+2}, v{DS+1}, v{DS}, {sr(sMask,2)}')
                a(f'v_cndmask_b32 v{DS+3}, v{DS}, v{DS+1}, {sr(sMask,2)}')
                a(f'v_add_f32_dpp v{DS}, v{DS+2}, v{DS+3} quad_perm:[2,3,0,1] row_mask:0xf bank_mask:0xf')
                a(f'v_mul_f32 v{DS}, {sr(sSCL)}, v{DS}')
                a(f'v_cvt_pk_bf16_f32 v{DS}, v{DS}, v{DS}')
                a(f'buffer_store_short v{DS}, v{vSS}, {WS}, {sr(c.sSlot)} offen{sm}')
            delay(a, P['dqr'][1])
            a(f's_branch {Lj}')
            a(f'{L3}:')
            if tr and P['cst'] == 9: tr(6)
            a('s_barrier')
            if P['r3d']: a(f's_nop {P["r3d"]-1}')
            rdq(KA_, KI)
            a('s_waitcnt lgkmcnt(2)')
            for tq in range(2): a(f'v_mfma_f32_16x16x32_bf16 {vr(DS+4*tq,4)}, {vr(KA_,4)}, {vr(KQ+4*tq,4)}, 0')
            a('s_waitcnt lgkmcnt(0)')
            for tq in range(2): a(f'v_mfma_f32_16x16x32_bf16 {vr(DS+4*tq,4)}, {vr(KA_+4,4)}, {vr(KQ+4*tq,4)}, {vr(DS+4*tq,4)}')
            for tq in range(2):
                a(f'v_add_f32 v{DS+4*tq}, v{DS+4*tq}, v{DS+4*tq+2}')
                a(f'v_add_f32 v{DS+4*tq+1}, v{DS+4*tq+1}, v{DS+4*tq+3}')
                a(f'v_cvt_pk_bf16_f32 v{DS+tq}, v{DS+4*tq}, v{DS+4*tq+1}')
            a(f'buffer_store_dwordx2 {vr(DS,2)}, v{vSS}, {WS}, {sr(c.sSlot)} offen{sm}')
            delay(a, P['dqr'][2])
        a(f'{Lj}:')
        if tr: tr(1)
        if P['xe'] & 4:
            for x in ldPX()[:2]: a(x)
        delay(a, P['dq'])
        def um(t, ch): return f'v_smfmac_f32_16x16x64_bf16 {vr(UM+4*t,4)}, {vr(VMr+4*ch,4)}, {vr(WO+(t*2+ch)*8,8)}, v{vIdx} abid:1'
        def ucv(t): return [f'v_cvt_pk_bf16_f32 v{U+8*t}, v{UM+4*t}, v{UM+4*t+1}', f'v_cvt_pk_bf16_f32 v{U+8*t+1}, v{UM+4*t+2}, v{UM+4*t+3}']
        def pv(t): return f'v_smfmac_f32_16x16x64_bf16 {vr(OUT+4*t,4)}, {vr(PP,4)}, {vr(U+8*t,8)}, v{vIdx}'
        def soft():
            return [f'v_exp_f32 v{X+i}, v{E+i}' for i in range(2)] + [f'v_exp_f32 v{X+4}, v{E4}'] + \
                   [f'v_exp_f32 v{X+i}, v{E+i}' for i in range(2, 4)] + \
                   [f'v_cvt_pk_bf16_f32 v{PP}, v{X+4}, v{X+4}', f'v_cvt_pk_bf16_f32 v{PP+2}, v{X+4}, v{X+4}',
                    f'v_cvt_pk_bf16_f32 v{PP+1}, v{X}, v{X+1}', f'v_cvt_pk_bf16_f32 v{PP+3}, v{X+2}, v{X+3}',
                    f'v_permlane32_swap_b32 v{PP}, v{PP+2}']
        def ldS():
            for k in range(2): a(f'buffer_load_dwordx4 {vr(SL+4*k,4)}, v{L16}, {WS}, {sr(c.sO1)} offen offset:{2048+1024*k} sc1')
            if P['sm2']: a(f'buffer_load_dwordx4 {vr(SML,4)}, v{L16}, {WS}, {sr(c.sO2)} offen offset:2048 sc1')
            else: a(f'buffer_load_dwordx2 {vr(SML,2)}, v{L8}, {WS}, {sr(c.sO2)} offen offset:2048 sc1')
            if P['xe'] & 3: delay(a, P['dxe'])
            if P['xe'] & 2:
                for x in ldPX()[:2]: a(x)
            if P['xe'] & 1: ldXL()
        nx = 2 * bin(P['xe'] & 3).count('1'); assert P['ve'] == 1 or not nx
        def ldVm():
            for ch in range(2):
                a(f'buffer_load_dwordx4 {vr(VMr+4*ch,4)}, v{L16}, {WS}, {sr(c.sO1)} offen offset:{1024*ch} sc1')
        def emf(n):
            a(f's_waitcnt vmcnt({n+2})')
            a(f'v_mfma_f32_16x16x32_bf16 {vr(E,4)}, {vr(SELA,4)}, {vr(SL,4)}, 0')
            a(f's_waitcnt vmcnt({n+1})')
            a(f'v_mfma_f32_16x16x32_bf16 {vr(E,4)}, {vr(SELB,4)}, {vr(SL+4,4)}, {vr(E,4)}')
            a(f's_waitcnt vmcnt({n})')
            if P['sm2']: a(f'v_mfma_f32_16x16x32_bf16 {vr(E4,4)}, {vr(SELM,4)}, {vr(SML,4)}, 0')
            else: a(f'v_mfma_f32_16x16x16_bf16 {vr(E4,4)}, {vr(SELM,2)}, {vr(SML,2)}, 0')
        def bgl():
            if not P['xe'] & 1: ldXL()
            for x in ldPX()[2 if P['xe'] & 6 else 0:]: a(x)
            if not P['kqtop']: ldKQ()
            if P['fo'] and not P['ef']: a(f'ds_write_b32 v{vFl}, v{vOne}')
        nq = P['nq']; Lq = a.lab('c_q')
        a(f'{Lp}:')
        if P['ve']:
            ldVm()
            delay(a, P['dq2'])
            ldS()
            a(f'{Lq}w:')
            spin(a, c, Lend)
            if P['ve'] == 2:
                a(f's_waitcnt vmcnt(3)')
                a(f'v_cmp_u_f32 vcc, v{VMr}, v{VMr+4}')
                a(f's_cbranch_vccnz {Lq}v')
                a(um(0, 0))
            else:
                a(f's_waitcnt vmcnt({4+nx})')
                a(um(0, 0))
                a(f's_waitcnt vmcnt({3+nx})')
            for t in range(4):
                for ch in range(2):
                    if t or ch: a(um(t, ch))
            a(f'v_cmp_u_f32 {sr(c.sT,2)}, v{UM}, v{UM+1}')
            a(f'v_cmp_u_f32 vcc, v{UM+2}, v{UM+3}')
            for x in ucv(0): a(x)
            a(f's_or_b64 vcc, vcc, {sr(c.sT,2)}')
            a(f's_cbranch_scc1 {Lpz}')
            for x in ucv(1): a(x)
            a(f'{Lq}l:')
            emf(nx)
            for x in ucv(2) + ucv(3): a(x)
            so = soft()
            a(so.pop(0)); a(so.pop(0))
            a(f'v_cmp_u_f32 vcc, v{E}, v{E4}')
            a(so.pop(0))
            if P['ef'] < 2: a(so.pop(0)); a(so.pop(0))
            a(f's_cbranch_vccnz {Lq}r')
            if P['ef']: a(f'ds_write_b32 v{vFl}, v{vOne}')
            if P['ef'] == 3: bgl()
            if tr: tr(2)
            for x in so: a(x)
            a(pv(4))
            a(pv(0))
            if P['ef'] != 3: bgl()
            a(pv(1))
        elif nq == 1:
            ldS(); ldVm()
            spin(a, c, Lend)
            emf(2)
            a('s_waitcnt vmcnt(1)')
            a(um(0, 0))
            a('s_waitcnt vmcnt(0)')
            a(um(0, 1))
            so = soft()
            a(so.pop(0))
            a(um(1, 0))
            a(so.pop(0))
            a(um(1, 1))
            a(so.pop(0))
            a(f'v_cmp_u_f32 {sr(c.sT,2)}, v{E}, v{E4}')
            a(um(2, 0))
            a(so.pop(0))
            a(f'v_cmp_u_f32 {sr(c.sT+2,2)}, v{UM}, v{UM+1}')
            a(f'v_cmp_u_f32 vcc, v{UM+2}, v{UM+3}')
            a(um(2, 1))
            a(so.pop(0))
            a(f's_or_b64 {sr(c.sT,2)}, {sr(c.sT,2)}, {sr(c.sT+2,2)}')
            a(f's_or_b64 vcc, vcc, {sr(c.sT,2)}')
            a(f's_cbranch_vccnz {Lpz}')
            if tr: tr(2)
            a(um(3, 0))
            a(so.pop(0)); a(so.pop(0))
            a(um(3, 1))
            for x in so: a(x)
            bgl()
            for x in ucv(0): a(x)
            a(pv(4))
            for x in ucv(1): a(x)
            a(pv(0))
            for x in ucv(2): a(x)
            a(pv(1))
            for x in ucv(3): a(x)
        else:
            n = 3 * (nq - 1)
            ldVm(); ldS()
            spin(a, c, Lend)
            for k in range(1, nq):
                delay(a, P['dq2']); ldS()
            a(f's_waitcnt vmcnt({n+4})')
            a(um(0, 0))
            a(f's_waitcnt vmcnt({n+3})')
            a(um(0, 1))
            emf(n)
            a(um(1, 0))
            a(um(1, 1))
            so = soft()
            a(f'v_cmp_u_f32 {sr(c.sT,2)}, v{UM}, v{UM+1}')
            a(f'v_cmp_u_f32 {sr(c.sT+2,2)}, v{UM+2}, v{UM+3}')
            a(so.pop(0))
            a(um(2, 0))
            a(so.pop(0))
            a(f'v_cmp_u_f32 vcc, v{E}, v{E4}')
            a(um(2, 1))
            a(so.pop(0))
            a(f's_or_b64 {sr(c.sT,2)}, {sr(c.sT,2)}, {sr(c.sT+2,2)}')
            a(f's_cbranch_scc1 {Lpz}')
            a(um(3, 0))
            a(so.pop(0))
            a(um(3, 1))
            a(f's_cbranch_vccnz {Lq}')
            if tr: tr(2)
            for x in so: a(x)
            for x in ucv(0): a(x)
            a(pv(4))
            bgl()
            for x in ucv(1): a(x)
            a(pv(0))
            for x in ucv(2): a(x)
            a(pv(1))
            for x in ucv(3): a(x)
        a(f'{Lsm}:')
        Lr = OUT + 16
        a(pv(2))
        if P['pk'] & 8: a(f'v_pk_add_f32 {vr(Lr,2)}, {vr(Lr,2)}, {vr(Lr+2,2)}')
        else: a(f'v_add_f32 v{Lr}, v{Lr}, v{Lr+2}'); a(f'v_add_f32 v{Lr+1}, v{Lr+1}, v{Lr+3}')
        a(pv(3))
        a(f'v_rcp_f32 v{R}, v{Lr}'); a(f'v_rcp_f32 v{R+1}, v{Lr+1}')
        lo = (127 - 64) << 23; span = 128 << 23
        for t in range(4):
            Y = OUT + 4 * t
            if P['pk'] & 16:
                a(f'v_pk_add_f32 {vr(Y,2)}, {vr(Y,2)}, {vr(Y+2,2)}')
                a(f'v_pk_mul_f32 {vr(Y,2)}, {vr(Y,2)}, {vr(R,2)}')
            else:
                a(f'v_add_f32 v{Y}, v{Y}, v{Y+2}'); a(f'v_add_f32 v{Y+1}, v{Y+1}, v{Y+3}')
                a(f'v_mul_f32 v{Y}, v{Y}, v{R}'); a(f'v_mul_f32 v{Y+1}, v{Y+1}, v{R+1}')
            a(f'ds_write2st64_b32 v{vCW}, v{Y}, v{Y+1} offset0:{2*t} offset1:{2*t+1}')
        a(f'v_subrev_u32 v{Lr}, {lo:#x}, v{Lr}'); a(f'v_subrev_u32 v{Lr+1}, {lo:#x}, v{Lr+1}')
        a(f'v_max_u32 v{T}, v{Lr}, v{Lr+1}')
        a(f'v_cmp_lt_u32 vcc, {span:#x}, v{T}')
        a(f's_add_u32 {sr(c.sS)}, {sr(c.sS)}, 1')
        a(f's_cbranch_vccnz {Lfb}')
        a(f'{Lz}:')
        a('s_waitcnt lgkmcnt(0)')
        if tr: tr(3)
        a('s_barrier')
        if tr: tr(5)
        for q in range(4): a(f'ds_read_b64 {vr(DS+2*q,2)}, v{vCR} offset:{2048*q}')
        a(f's_cmp_eq_u32 {sr(c.sS)}, {NSTEP}')
        a('s_waitcnt lgkmcnt(2)')
        def add2(x, y):
            if P['pk'] & 32: a(f'v_pk_add_f32 {vr(x,2)}, {vr(x,2)}, {vr(y,2)}')
            else:
                for r in range(2): a(f'v_add_f32 v{x+r}, v{x+r}, v{y+r}')
        add2(DS, DS + 2)
        if P['pk'] & 64:
            a('s_waitcnt lgkmcnt(1)')
            add2(DS, DS + 4)
            a('s_waitcnt lgkmcnt(0)')
            add2(DS, DS + 6)
        else:
            a('s_waitcnt lgkmcnt(0)')
            add2(DS + 4, DS + 6)
            add2(DS, DS + 4)
        a(f'v_cvt_pk_bf16_f32 v{R}, v{DS}, v{DS+1}')
        for so in ((c.sO3, c.sO4)[2-P['npl']:] if P['npl'] else (c.sO3 if P['loc'] else c.sSlot,)): a(f'buffer_store_dword v{R}, v{vPS}, {WS}, {sr(so)} offen sc1')
        if P['loc']: a(f'buffer_store_dword v{R}, v{vPS}, {WS}, {sr(c.sO4)} offen{sm}')
        if P['cprio']: a(f's_setprio 0')
        if tr: tr(4)
        a(f's_cbranch_scc1 {Lfin}')
        a(f's_add_u32 {sr(c.sSlot)}, {sr(c.sSlot)}, {1<<18}')
        a(f's_and_b32 {sr(c.sSlot)}, {sr(c.sSlot)}, {3<<18}')
        a(f's_branch {Lt}')
        a(f'{Lt}p:')
        a(f's_sub_u32 {sr(T0)}, {sr(sPX)}, {1<<18}')
        a(f's_cmp_eq_u32 {sr(c.sS)}, 4')
        a(f's_cselect_b32 {sr(T0+1)}, 65536, 0')
        a(f's_sub_u32 {sr(sPX)}, {sr(sPX)}, {sr(T0+1)}')
        a(f'v_cmp_u_f32 vcc, v{PX_}, v{PX_+6}')
        a(f's_cbranch_vccz {xl[0]}')
        a(f'{Lt}q:')
        a(f'buffer_load_dwordx4 {vr(PX_,4)}, v{L16}, {WS}, {sr(T0)} offen sc1')
        a(f'buffer_load_dwordx4 {vr(PX_+6,4)}, v{L16}, {WS}, {sr(T0)} offen offset:1024 sc1')
        spin(a, c, Lend)
        a('s_waitcnt vmcnt(0)')
        a(f'v_cmp_u_f32 vcc, v{PX_}, v{PX_+6}')
        a(f's_cbranch_vccnz {Lt}q')
        a(f's_branch {xl[0]}')
        a(f'{Lpz}:')
        if P['ve']:
            if P['ve'] == 1: ldVm()
            a('s_nop 7')
            for i in range(16): a(f'v_mov_b32 v{UM+i}, 0')
            if P['ve'] == 2:
                a(f'{Lq}v:')
                ldVm()
            a('s_waitcnt vmcnt(2)')
            ldS()
            a(f's_branch {Lq}w')
            a(f'{Lq}r:')
            ldS()
            spin(a, c, Lend)
            a(f's_branch {Lq}l')
        else:
            a('s_nop 7')
            for i in range(12): a(f'v_mov_b32 v{UM+i}, 0')
            a(f's_branch {Lp}')
        if nq > 1 and not P['ve']:
            a(f'{Lq}:')
            ldS()
            for t in range(4):
                for x in ucv(t): a(x)
            a(f'{Lq}l:')
            emf(n)
            so = soft()
            a(so.pop(0)); a(so.pop(0))
            a(f'v_cmp_u_f32 vcc, v{E}, v{E4}')
            a(so.pop(0)); a(so.pop(0)); a(so.pop(0))
            a(f's_cbranch_vccnz {Lq}r')
            if tr: tr(2)
            for x in so: a(x)
            a(pv(4))
            a(pv(0))
            bgl()
            a(pv(1))
            a(f's_branch {Lsm}')
            a(f'{Lq}r:')
            ldS()
            spin(a, c, Lend)
            a(f's_branch {Lq}l')
        if not P['nox']: xpv_bad(*xl)
        a(f'{Lfb}:')
        a(f's_cmp_lg_u32 {sr(c.sFb)}, 0')
        a(f's_cbranch_scc1 {Lz}')
        a(f's_mov_b32 {sr(c.sFb)}, 1')
        a(f's_sub_u32 {sr(c.sS)}, {sr(c.sS)}, 1')
        a(f'v_max3_f32 v{T}, v{E}, v{E+1}, v{E+2}')
        a(f'v_max3_f32 v{T}, v{T}, v{E+3}, v{E4}')
        a(f'v_max_f32_dpp v{T}, v{T}, v{T} quad_perm:[2,3,0,1] row_mask:0xf bank_mask:0xf')
        for op in ('v_permlane16_swap_b32', 'v_permlane32_swap_b32'):
            a(f'v_mov_b32 v{T2}, v{T}')
            a(f'{op} v{T}, v{T2}')
            a(f'v_max_f32 v{T}, v{T}, v{T2}')
        for i in range(5): a(f'v_sub_f32 v{E+i}, v{E+i}, v{T}')
        for x in soft(): a(x)
        for i in range(20): a(f'v_mov_b32 v{OUT+i}, 0')
        for t in (4, 0, 1): a(pv(t))
        a('s_nop 7')
        a(f's_branch {Lsm}')
    xl = [a.lab('c_xr'), a.lab('c_xb'), a.lab('c_xg')]
    a(f'{Lfin}:')
    a(f's_waitcnt vmcnt({max(1 + P["loc"], P["npl"])})')
    xpv_head(*xl)
    for x in xpv_body(): a(x)
    a('s_waitcnt lgkmcnt(0)')
    a('s_barrier')
    if P['fused'] and not P['tail']: a('s_barrier')
    a(f's_branch {Ldone or Lend}')
    xpv_bad(*xl)
```

```python
from asm import *
from gemm16 import Gemm16

class GemmCfgR:
    def __init__(self, TN=256, TM=256, dual=True, RW=4, WN=4, WT=2):
        self.TN, self.TM, self.WN, self.WT = TN, TM, WN, WT
        assert (TN == 256 and dual) or (TN == 128 and not dual)
        self.dual = dual; self.RW = RW; self.RX = RW // 2 + 1
        self.tn = TN // 16 // WN; self.tt = TM // 16 // WT
        self.wslot = 32 * TN * 2; self.xbytes = TM * 128
        self.wp = TN // 128; self.xp = TM // 64
        self.rpp = 4; self.rowb = 256; self.nwg = 1
        self.xoff = RW * self.wslot
        self.lds = self.xoff + self.RX * self.xbytes
        assert self.lds <= 163840
KILL = 0x40000000

class GemmR(Gemm16):
    def __init__(self, a, cfg, sreg, vreg, SO, sWv):
        self.a = a; self.c = c = cfg
        self.SX = sreg.get(4, 4); self.SW = sreg.get(4, 4); self.SO = SO; self.SW2 = sreg.get(4, 4)
        self.sOB = sreg.get(); self.sLdx = sreg.get(); self.sLdw = sreg.get(); self.sLdo = sreg.get(); self.sWv = sWv
        self.sOx = sreg.get(); self.sOw = sreg.get(); self.sDw = sreg.get(); self.sM0 = sreg.get(); self.sCnt = sreg.get()
        self.sScale = sreg.get(); self.sT = sreg.get()
        self.sOM = sreg.get(); self.sU1 = sreg.get(); self.sU2 = sreg.get(); self.sTP = sreg.get(); self.sT2 = sreg.get()
        self.sWp = sreg.get(); self.sWd = sreg.get(); self.sWl = sreg.get(); self.sWs = sreg.get(); self.sWx = sreg.get(); self.sWo = sreg.get()
        self.sXp = sreg.get(); self.sXd = sreg.get(); self.sXl = sreg.get(); self.sXs = sreg.get(); self.sXx = sreg.get(); self.sXo = sreg.get(); self.sWq = sreg.get()
        self.vWr = vreg.get(c.tn); self.vXr = vreg.get(2); self.vWg = vreg.get(1); self.vXg = vreg.get(c.xp)
        self.vWr2 = None
        self.vO = vreg.get(1); self.vE = vreg.get(1); self.vT = vreg.get(4)
        self.fA = [vreg.get(4 * c.tn, 4) for _ in range(2)]
        self.fB = [vreg.get(4 * c.tt, 4) for _ in range(2)]
        self.acc = vreg.get(c.tn * c.tt * 4, 4)
        self.storemod = ''; self.wmod = ''; self.xmod = ''; self.bar1 = False; self.tp = 0; self.wph = 0; self.hook = None

    def setup_g(self):
        a, c = self.a, self.c; T = self.vT; w = sr(self.sWv)
        a(f'v_and_b32 v{T}, 63, v0')
        a(f's_lshl_b32 {sr(self.sM0)}, {w}, 10')
        a(f's_lshl_b32 {sr(self.sDw)}, {sr(self.sLdw)}, 5')
        a(f'v_lshrrev_b32 v{T+1}, 4, v0')
        a(f'v_and_b32 v{T+2}, 3, v{T+1}')
        a(f'v_lshlrev_b32 v{T+2}, 1, v{T+2}')
        a(f'v_and_b32 v{T+3}, 8, v{T+1}')
        a(f'v_or_b32 v{T+2}, v{T+2}, v{T+3}')
        a(f'v_and_b32 v{T+3}, 15, v{T}')
        a(f'v_xor_b32 v{T+2}, v{T+2}, v{T+3}')
        a(f'v_lshlrev_b32 v{T+2}, 4, v{T+2}')
        a(f'v_mul_lo_u32 v{T+1}, v{T+1}, {sr(self.sLdw)}')
        a(f'v_add_u32 v{self.vWg}, v{T+1}, v{T+2}')
        a(f'v_lshrrev_b32 v{T+1}, 3, v0')
        a(f'v_lshrrev_b32 v{T+2}, 4, v0')
        a(f'v_xor_b32 v{T+2}, v{T+2}, v{T}')
        a(f'v_and_b32 v{T+2}, 7, v{T+2}')
        a(f'v_lshlrev_b32 v{T+2}, 4, v{T+2}')
        a(f'v_lshl_add_u32 v{self.vXg}, v{T+1}, 11, v{T+2}')
        for m in range(1, c.xp): a(f'v_add_u32 v{self.vXg+m}, {m*64*2048}, v{self.vXg}')

    def order(self, r):
        a = self.a
        if self.tp:
            a(f's_mul_i32 {sr(self.sWx)}, {sr(self.sLdw)}, {0x6780//2}')
            a(f's_mul_i32 {sr(self.sXx)}, {sr(self.sLdw)}, {544//2}')
            for x in (self.sOx, self.sOw, self.sXo, self.sWo): a(f's_mov_b32 {sr(x)}, 0')
            if self.tp == 3:
                a(f's_bitcmp1_b32 {self.par}, 2')
                a(f's_cselect_b32 {sr(self.sLdx)}, {self.rev}, 0')
                a(f's_mul_i32 {sr(self.sWq)}, {sr(self.sLdx)}, {sr(self.sLdw)}')
                a(f's_lshr_b32 {sr(self.sWq)}, {sr(self.sWq)}, 1')
                a(f's_mov_b32 {sr(self.sXo)}, {sr(self.sLdx)}')
                a(f's_mov_b32 {sr(self.sWo)}, {sr(self.sWq)}')
            if self.tp == 2:
                a(f's_and_b32 {sr(self.sLdx)}, {r}, 1')
                a(f's_lshl_b32 {sr(self.sLdx)}, {sr(self.sLdx)}, 10')
                a(f's_lshl_b32 {sr(self.sWq)}, {sr(self.sLdx)}, 12')
                a(f's_mov_b32 {sr(self.sXo)}, {sr(self.sLdx)}')
                a(f's_mov_b32 {sr(self.sWo)}, {sr(self.sWq)}')
            return
        a(f's_lshl_b32 {sr(self.sXx)}, {r}, 7')
        a(f's_mul_i32 {sr(self.sWx)}, {sr(self.sXx)}, {sr(self.sLdw)}')
        a(f's_lshr_b32 {sr(self.sWx)}, {sr(self.sWx)}, 1')
        a(f's_mov_b32 {sr(self.sOx)}, 0')
        a(f's_mov_b32 {sr(self.sOw)}, 0')
        a(f's_mov_b32 {sr(self.sXo)}, {sr(self.sXx)}')
        a(f's_mov_b32 {sr(self.sWo)}, {sr(self.sWx)}')

    def setup_l(self):
        a, c = self.a, self.c; T = self.vT; w = sr(self.sWv)
        a(f'v_lshrrev_b32 v{T+1}, 2, v{T}')
        a(f'v_and_b32 v{T+3}, 7, v{T+1}')
        a(f'v_and_b32 v{T+1}, 3, v{T+1}')
        a(f'v_lshrrev_b32 v{T+2}, 4, v{T}')
        a(f'v_lshl_add_u32 v{T+2}, v{T+2}, 3, v{T+1}')
        a(f'v_lshlrev_b32 v{T+2}, 8, v{T+2}')
        a(f's_and_b32 {sr(self.sT)}, {w}, {1 if c.dual else c.WN-1}')
        a(f's_mul_i32 {sr(self.sT)}, {sr(self.sT)}, {c.tn}')
        a(f'v_xor_b32 v{T+3}, {sr(self.sT)}, v{T+3}')
        a(f'v_lshl_add_u32 v{T+2}, v{T+3}, 5, v{T+2}')
        if c.dual:
            a(f's_and_b32 {sr(self.sT)}, {w}, 2')
            a(f's_lshl_b32 {sr(self.sT)}, {sr(self.sT)}, 12')
            a(f'v_add_u32 v{T+2}, {sr(self.sT)}, v{T+2}')
        a(f'v_and_b32 v{T+1}, 3, v{T}')
        a(f'v_lshl_add_u32 v{self.vWr}, v{T+1}, 3, v{T+2}')
        for t in range(1, c.tn): a(f'v_xor_b32 v{self.vWr+t}, {32*t}, v{self.vWr}')
        a(f's_lshr_b32 {sr(self.sT)}, {w}, {c.WN.bit_length()-1}')
        a(f's_mul_i32 {sr(self.sT)}, {sr(self.sT)}, {16*c.tt}')
        a(f'v_and_b32 v{T+1}, 15, v{T}')
        a(f'v_add_u32 v{T+3}, {sr(self.sT)}, v{T+1}')
        a(f'v_lshrrev_b32 v{T+1}, 1, v{T+1}')
        a(f'v_lshrrev_b32 v{T+2}, 4, v{T}')
        a(f'v_xor_b32 v{T+1}, v{T+1}, v{T+2}')
        a(f'v_lshlrev_b32 v{T+1}, 4, v{T+1}')
        a(f'v_lshl_add_u32 v{T+1}, v{T+3}, 7, v{T+1}')
        a(f'v_add_u32 v{self.vXr}, {c.xoff}, v{T+1}')
        a(f'v_xor_b32 v{self.vXr+1}, 64, v{self.vXr}')
        self.setup_out()
        if c.dual:
            a(f'v_and_b32 v{T+1}, 15, v{T}')
            a(f'v_lshlrev_b32 v{T+3}, 4, v{T+1}')
            a(f'v_and_b32 v{T+1}, 16, v{T}')
            a(f'v_lshl_add_u32 v{T+3}, v{T+1}, 5, v{T+3}')
            a(f'v_and_b32 v{T+1}, 32, v{T}')
            a(f'v_lshl_add_u32 v{T+3}, v{T+1}, 3, v{T+3}')
            a(f's_lshr_b32 {sr(self.sT)}, {w}, 2')
            a(f's_mul_i32 {sr(self.sT)}, {sr(self.sT)}, {c.tt//2*16384}')
            a(f's_and_b32 {sr(self.sT2)}, {w}, 3')
            a(f's_lshl_b32 {sr(self.sT2)}, {sr(self.sT2)}, 12')
            a(f's_add_u32 {sr(self.sT)}, {sr(self.sT)}, {sr(self.sT2)}')
            a(f's_add_u32 {sr(self.sT)}, {sr(self.sT)}, 32768')
            a(f'v_add_u32 v{self.vE}, {sr(self.sT)}, v{T+3}')

    def dW(self, base=None, off=0):
        c = self.c; L = []
        for m in range(c.wp):
            S = self.SW2 if m else self.SW
            L.append((f's_add_u32 m0, {sr(self.sWp if base is None else base)}, {off + m*8192}',
                      f'buffer_load_dwordx4 v{self.vWg}, {sr(S,4)}, {sr(self.sWo)} offen{self.wmod} lds'))
        if self.tp:
            self.wph ^= 1
            if self.wph: t = f'\ns_add_u32 {sr(self.sWo)}, {sr(self.sWo)}, {sr(self.sDw)}'
            else: t = f'\ns_add_u32 {sr(self.sOw)}, {sr(self.sOw)}, {sr(self.sXx)}\ns_and_b32 {sr(self.sWo)}, {sr(self.sOw)}, {sr(self.sWx)}' + (f'\ns_xor_b32 {sr(self.sWo)}, {sr(self.sWo)}, {sr(self.sWq)}' if self.tp >= 2 else '')
            L[-1] = (L[-1][0], L[-1][1] + t)
            return L
        L[-1] = (L[-1][0], L[-1][1] + f'\ns_add_u32 {sr(self.sOw)}, {sr(self.sOw)}, {sr(self.sDw)}\ns_xor_b32 {sr(self.sWo)}, {sr(self.sOw)}, {sr(self.sWx)}')
        return L
    def dX(self, half, base=None, off=0):
        c = self.c; L = []; h = c.xp // 2
        for m in range(half * h, half * h + h):
            L.append((f's_add_u32 m0, {sr(self.sXp if base is None else base)}, {off + m*8192}',
                      f'buffer_load_dwordx4 v{self.vXg+m}, {sr(self.SX,4)}, {sr(self.sXo)} offen{self.xmod} lds'))
        if half and self.tp: L[-1] = (L[-1][0], L[-1][1] + f'\ns_add_u32 {sr(self.sOx)}, {sr(self.sOx)}, 544\ns_and_b32 {sr(self.sXo)}, {sr(self.sOx)}, 0x780\n' + (f's_xor_b32 {sr(self.sXo)}, {sr(self.sXo)}, {sr(self.sLdx)}\n' if self.tp >= 2 else '') + f's_bitcmp1_b32 {sr(self.sOx)}, 13\ns_cselect_b32 {sr(self.sXo)}, {KILL}, {sr(self.sXo)}')
        elif half: L[-1] = (L[-1][0], L[-1][1] + f'\ns_add_u32 {sr(self.sOx)}, {sr(self.sOx)}, 128\ns_bitcmp1_b32 {sr(self.sOx)}, 11\ns_cselect_b32 {sr(self.sOx)}, {KILL+2048}, {sr(self.sOx)}\ns_xor_b32 {sr(self.sXo)}, {sr(self.sOx)}, {sr(self.sXx)}')
        return L

    def rds(self, sub, st):
        c = self.c
        def ra(t): return [f'ds_read_b64_tr_b16 {vr(self.fA[st]+4*t, 2)}, v{self.vWr+t}',
                           f'ds_read_b64_tr_b16 {vr(self.fA[st]+4*t+2, 2)}, v{self.vWr+t} offset:1024']
        L = ra(0)
        for u in range(c.tt): L.append(f'ds_read_b128 {vr(self.fB[st]+4*u, 4)}, v{self.vXr+sub} offset:{u*2048}')
        for t in range(1, c.tn): L += ra(t)
        return L

    def half(self, st, rd, dm, post, rgap=1, egap=2, estart=0, rstart=0, rdiv=1):
        a = self.a; mf = self.mfmas(st); rd = list(rd); dm = list(dm); post = list(post)
        for i, (m, _) in enumerate(mf):
            doe = dm and i >= estart and (i - estart) % egap == 0
            if doe: a(dm[0][0])
            a(m)
            if doe: a(dm.pop(0)[1])
            if rd:
                if i >= rstart and (i - rstart) % rdiv == 0:
                    for _ in range(rgap):
                        if rd: a(rd.pop(0))
            elif not dm:
                for _ in range(2):
                    if post: a(post.pop(0))
        for r in rd: a(r)
        for e in dm: a(e[0]); a(e[1])
        for p in post: a(p)

    def gW(self, base, off=0): return [d for h in range(4) for d in self.dW(base, off + h * self.c.wslot)]
    def gX(self, base, off=0): return [d for st in range(2) for h in range(2) for d in self.dX(h, base, off + st * self.c.xbytes)]
    def rds2(self, h, st):
        c = self.c; wo = h * c.wslot; xo = (h >> 1) * c.xbytes
        def ra(t): return [f'ds_read_b64_tr_b16 {vr(self.fA[st]+4*t, 2)}, v{self.vWr+t} offset:{wo}',
                           f'ds_read_b64_tr_b16 {vr(self.fA[st]+4*t+2, 2)}, v{self.vWr+t} offset:{wo+1024}']
        L = ra(0)
        for u in range(c.tt): L.append(f'ds_read_b128 {vr(self.fB[st]+4*u, 4)}, v{self.vXr+(h&1)} offset:{xo+u*2048}')
        for t in range(1, c.tn): L += ra(t)
        return L
    def main2(self, plan=(4, 4, 0, 0), wfirst=1, **kw):
        a, c = self.a, self.c
        assert c.RW == 8 and 4 * c.wslot == 32768 and 2 * c.xbytes <= 32768
        ng = 4 + 2 * c.xp
        for i in range(c.tn * c.tt * 4): a(f'v_mov_b32 v{self.acc+i}, 0')
        a(f's_add_u32 {sr(self.sWp)}, {sr(self.sM0)}, 32768')
        a(f's_mov_b32 {sr(self.sCnt)}, 8')
        a(f's_waitcnt vmcnt({plan[0]})')
        a('s_barrier')
        for r in self.rds2(0, 0): a(r)
        W = self.gW(self.sWp); X = self.gX(self.sWp, c.xoff)
        G = W + X if wfirst else X + W
        cut = [sum(plan[:i]) for i in range(5)]; assert cut[4] == ng
        L = a.lab('gk')
        a(f'{L}:')
        for h in range(3):
            a('s_waitcnt lgkmcnt(0)')
            post = []
            if h == 2:
                post = [f'v_xor_b32 v{r}, 32768, v{r}' for r in list(range(self.vWr, self.vWr + c.tn)) + [self.vXr, self.vXr + 1]] + \
                       [f's_xor_b32 {sr(self.sWp)}, {sr(self.sWp)}, 32768']
            self.half(h & 1, self.rds2(h + 1, (h + 1) & 1), G[cut[h+1]:cut[h+2]], post, **kw)
        a('s_waitcnt vmcnt(0) lgkmcnt(0)')
        a('s_barrier')
        self.half(1, self.rds2(0, 0), G[:cut[1]], [f's_sub_u32 {sr(self.sCnt)}, {sr(self.sCnt)}, 1'], **kw)
        a(f's_cmp_lg_u32 {sr(self.sCnt)}, 0')
        a(f's_cbranch_scc1 {L}')
        a('s_waitcnt vmcnt(0) lgkmcnt(0)')
        a('s_barrier')
    def issue2(self, plan=(4, 4, 0, 0), wfirst=1, **kw):
        a, c = self.a, self.c
        L = self.gX(self.sM0, c.xoff) + self.gW(self.sM0)
        W = self.gW(self.sM0, 32768); X = self.gX(self.sM0, c.xoff + 32768)
        L += (W + X if wfirst else X + W)[:plan[0]]
        for d in L: a(d[0]); a(d[1])

    def issue0(self):
        a, c = self.a, self.c
        if self.bar1:
            for i in range(c.RW // 2):
                L = self.dX(0, self.sM0, c.xoff + i * c.xbytes) + self.dX(1, self.sM0, c.xoff + i * c.xbytes) + \
                    self.dW(self.sM0, 2 * i * c.wslot) + self.dW(self.sM0, (2 * i + 1) * c.wslot)
                for d in L: a(d[0]); a(d[1])
            return
        for d in self.dX(0, self.sM0, c.xoff): a(d[0]); a(d[1])
        for i in range(c.RW):
            L = self.dW(self.sM0, i * c.wslot) + self.dX(1 - (i & 1), self.sM0, c.xoff + (i + 1) // 2 * c.xbytes)
            for d in L: a(d[0]); a(d[1])

    def main(self, alt=None, prio=0, **kw):
        a, c = self.a, self.c
        n = c.wp + c.xp // 2; m = c.RW // 2
        for i in range(c.tn * c.tt * 4): a(f'v_mov_b32 v{self.acc+i}, 0')
        a(f's_mov_b32 {sr(self.sWp)}, {sr(self.sM0)}')
        a(f's_mov_b32 {sr(self.sWd)}, {c.wslot}')
        a(f's_mov_b32 {sr(self.sWs)}, {c.wslot}')
        a(f's_add_u32 {sr(self.sWl)}, {sr(self.sM0)}, {(c.RW-1)*c.wslot}')
        a(f's_add_u32 {sr(self.sXl)}, {sr(self.sM0)}, {c.xoff+(c.RX-1)*c.xbytes}')
        a(f's_mov_b32 {sr(self.sXp)}, {sr(self.sXl)}')
        a(f's_mov_b32 {sr(self.sXd)}, {-(c.RX-1)*c.xbytes}')
        a(f's_mov_b32 {sr(self.sXs)}, {c.xbytes}')
        a(f's_mov_b32 {sr(self.sCnt)}, 16')
        a(f's_waitcnt vmcnt({(m-1)*2*n if self.bar1 else (c.RW-1)*n})')
        a('s_barrier')
        for r in self.rds(0, 0): a(r)
        for t in range(c.tn): a(f'v_add_u32 v{self.vWr+t}, {sr(self.sWd)}, v{self.vWr+t}')
        wadv = [f's_add_u32 {sr(self.sWp)}, {sr(self.sWp)}, {sr(self.sWd)}',
                f's_cmp_eq_u32 {sr(self.sWp)}, {sr(self.sWl)}\ns_cselect_b32 {sr(self.sWd)}, {-(c.RW-1)*c.wslot}, {sr(self.sWs)}'] + \
               [f'v_add_u32 v{self.vWr+t}, {sr(self.sWd)}, v{self.vWr+t}' for t in range(c.tn)]
        xadv = [f's_add_u32 {sr(self.sXp)}, {sr(self.sXp)}, {sr(self.sXd)}',
                f's_cmp_eq_u32 {sr(self.sXp)}, {sr(self.sXl)}\ns_cselect_b32 {sr(self.sXd)}, {-(c.RX-1)*c.xbytes}, {sr(self.sXs)}',
                f'v_add_u32 v{self.vXr}, {sr(self.sXd)}, v{self.vXr}']
        Le = a.lab('ge'); La = a.lab('ga')
        if alt is not None:
            a(f's_cmp_ge_u32 {sr(self.sWv)}, 4')
            a(f's_cbranch_scc1 {La}')
        for gi, k in enumerate([kw] if alt is None else [kw, alt]):
            kA = k.get('A', k); kB = k.get('B', k)
            L = a.lab('gk')
            if gi:
                a(f'{La}:')
                if prio: a(f's_setprio {prio}')
            a(f'{L}:')
            if self.bar1: a('s_waitcnt lgkmcnt(0)')
            else:
                a(f's_waitcnt vmcnt({(c.RW-2)*n}) lgkmcnt(0)')
                a('s_barrier')
            self.half(0, self.rds(1, 1), self.dX(0) + self.dX(1) if self.bar1 else self.dW() + self.dX(1), wadv + xadv, **kA)
            a(f's_waitcnt vmcnt({(m-2)*2*n+c.xp if self.bar1 else (c.RW-2)*n}) lgkmcnt(0)')
            a('s_barrier')
            self.half(1, self.rds(0, 0), self.dW(off=-c.wslot) + self.dW() if self.bar1 else self.dW() + self.dX(0),
                      wadv + [f'v_xor_b32 v{self.vXr+1}, 64, v{self.vXr}', f's_sub_u32 {sr(self.sCnt)}, {sr(self.sCnt)}, 1'], **kB)
            a(f's_cmp_lg_u32 {sr(self.sCnt)}, {self.hook[0] if self.hook else 0}')
            a(f's_cbranch_scc1 {L}')
            if self.hook:
                a(f's_cmp_eq_u32 {sr(self.sCnt)}, 0')
                a(f's_cbranch_scc1 {Le}')
                a(f's_mov_b32 {self.hook[0]}, 0')
                self.hook[1]()
                a(f's_branch {L}')
            if alt is not None and gi == 0: a(f's_branch {Le}')
            if gi and prio: a('s_setprio 0')
        a(f'{Le}:')
        a('s_waitcnt vmcnt(0) lgkmcnt(0)')
        a('s_barrier')

    def epilogue(self, scale=True, xch=False):
        a, c = self.a, self.c
        a(f's_mov_b32 {sr(self.sT)}, {sr(self.sOB)}')
        for u in range(c.tt):
            for t in range(0, c.tn, 2):
                b = self.accr(t, u)
                if scale:
                    for r in range(8): a(f'v_mul_f32 v{b+r}, {sr(self.sScale)}, v{b+r}')
                for r in range(4): a(f'v_cvt_pk_bf16_f32 v{b+r}, v{b+2*r}, v{b+2*r+1}')
            for t in range(0, c.tn, 2):
                b = self.accr(t, u)
                a(f'v_permlane16_swap_b32 v{b}, v{b+2}')
                a(f'v_permlane16_swap_b32 v{b+1}, v{b+3}')
            if u & 1: a(f's_add_u32 {sr(self.sT2)}, {sr(self.sT)}, {sr(self.sU1)}')
            else: a(f's_mov_b32 {sr(self.sT2)}, {sr(self.sT)}')
            if xch:
                Lx = a.lab('ex')
                a(f's_cbranch_vccz {Lx}')
                for t in range(0, c.tn, 2):
                    a(f'ds_write_b128 v{self.vE}, {vr(self.accr(t,u),4)} offset:{(u>>1)*16384+(u&1)*1024+t*1024}')
                a(f'{Lx}:')
            for t in range(0, c.tn, 2):
                b = self.accr(t, u)
                a(f'buffer_store_dwordx4 {vr(b,4)}, v{self.vO}, {sr(self.SO,4)}, {sr(self.sT2)} offen{self.storemod}')
                if t + 2 < c.tn: a(f's_add_u32 {sr(self.sT2)}, {sr(self.sT2)}, {sr(self.sTP)}')
            if u & 1: a(f's_add_u32 {sr(self.sT)}, {sr(self.sT)}, {sr(self.sU2)}')
```

```python
from asm import *
from layout import *
from small import srd
from gemm16 import *

def px_setup(a, v):
    class X: pass
    x = X()
    x.L16 = v.get(); x.T = v.get(); x.T2 = v.get()
    x.C = v.get(4, 4); x.Q = v.get(32, 4); x.K = v.get(32, 4); x.S = v.get(12, 4); x.O = v.get(8, 4)
    T, T2 = x.T, x.T2
    a(f'v_and_b32 v{T}, 63, v0')
    a(f'v_lshlrev_b32 v{x.L16}, 4, v{T}')
    a(f'v_lshrrev_b32 v{T2}, 2, v{T}')
    a(f'v_and_b32 v{T2}, 12, v{T2}')
    a(f'v_and_b32 v{T}, 15, v{T}')
    a(f'v_sub_u32 v{T}, v{T}, v{T2}')
    a(f'v_mov_b32 v{T2}, {f32bits(-1e30):#x}')
    for r in range(4):
        a(f'v_cmp_le_i32 vcc, {r}, v{T}')
        a(f'v_cndmask_b32 v{x.C+r}, v{T2}, 0, vcc')
    return x

def px_job(a, x, sIdx, SWS, sT, stm='', lds=None, ldm='', first=False):
    WS = sr(SWS, 4); T, T2 = x.T, x.T2
    s0, s1 = sr(sT), sr(sT + 1)
    if lds:
        a(f's_lshl_b32 {s0}, {lds}, 14')
        a(f's_add_u32 {s0}, {s0}, 32768')
        a(f'v_add_u32 v{T}, {s0}, v{x.L16}')
        for ks in range(4):
            if ks == 3: a('s_waitcnt lgkmcnt(8)')
            for t in range(2):
                a(f'ds_read_b128 {vr(x.K+16*t+4*ks,4)}, v{T} offset:{8192+2048*ks+1024*t}')
                a(f'ds_read_b128 {vr(x.Q+16*t+4*ks,4)}, v{T} offset:{2048*ks+1024*t}')
    for ksh in range(0 if lds else 2):
        a(f's_lshl_b32 {s0}, {sIdx}, 13')
        a(f's_add_u32 {s1}, {s0}, {KX+4096*ksh}')
        a(f's_add_u32 {s0}, {s0}, {QX+4096*ksh}')
        for kl in range(2):
            ks = 2 * ksh + kl
            for t in range(2):
                a(f'buffer_load_dwordx4 {vr(x.K+16*t+4*ks,4)}, v{x.L16}, {WS}, {s1} offen offset:{2048*kl+1024*t}{ldm}')
                a(f'buffer_load_dwordx4 {vr(x.Q+16*t+4*ks,4)}, v{x.L16}, {WS}, {s0} offen offset:{2048*kl+1024*t}{ldm}')
    a(f's_lshr_b32 {s0}, {sIdx}, 5')
    a(f's_lshl_b32 {s0}, {s0}, 18')
    a(f's_and_b32 {s1}, {sIdx}, 31')
    a(f's_lshl_b32 {s1}, {s1}, 11')
    a(f's_add_u32 {s0}, {s0}, {s1}')
    a(f's_add_u32 {s0}, {s0}, {PX + (65536 if first else 0)}')
    for ks in range(4):
        a(f's_waitcnt {"lgkmcnt" if lds else "vmcnt"}({12-4*ks})')
        for i, (tq, kt) in enumerate(((0, 0), (1, 0), (1, 1))):
            D = vr(x.S + 4 * i, 4)
            Cc = vr(x.C, 4) if tq == kt else '0'
            a(f'v_mfma_f32_16x16x32_bf16 {D}, {vr(x.K+16*kt+4*ks,4)}, {vr(x.Q+16*tq+4*ks,4)}, {D if ks else Cc}')
    S = x.S; m0, m1 = x.O, x.O + 1
    a(f'v_max3_f32 v{m0}, v{S}, v{S+1}, v{S+2}')
    a(f'v_max3_f32 v{m1}, v{S+4}, v{S+5}, v{S+6}')
    a(f'v_max_f32 v{m0}, v{m0}, v{S+3}')
    a(f'v_max3_f32 v{m1}, v{m1}, v{S+7}, v{S+8}')
    a(f'v_max3_f32 v{m1}, v{m1}, v{S+9}, v{S+10}')
    a(f'v_max_f32 v{m1}, v{m1}, v{S+11}')
    for op in ('v_permlane16_swap_b32', 'v_permlane32_swap_b32'):
        a(f'v_mov_b32 v{T}, v{m0}'); a(f'v_mov_b32 v{T2}, v{m1}')
        a(f'{op} v{T}, v{m0}'); a(f'{op} v{T2}, v{m1}')
        a(f'v_max_f32 v{m0}, v{m0}, v{T}'); a(f'v_max_f32 v{m1}, v{m1}, v{T2}')
    for i in range(12): a(f'v_sub_f32 v{S+i}, v{S+i}, v{m0 if i < 4 else m1}')
    for i in range(12): a(f'v_exp_f32 v{S+i}, v{S+i}')
    for i in range(6): a(f'v_cvt_pk_bf16_f32 v{x.O+2+i}, v{S+2*i}, v{S+2*i+1}')
    a(f'buffer_store_dwordx4 {vr(x.O,4)}, v{x.L16}, {WS}, {s0} offen{stm}')
    a(f'buffer_store_dwordx4 {vr(x.O+4,4)}, v{x.L16}, {WS}, {s0} offen offset:1024{stm}')

def gen_px(name='px_kernel'):
    a = Asm()
    sreg = Regs(4, 100, 's')
    kWs = sreg.get(2, 2); sW = sreg.get(); sT = sreg.get(2); SWS = sreg.get(4, 4); sI = sreg.get()
    a(kstart(name))
    a('s_cmp_ge_u32 s2, 256')
    a(f's_cbranch_scc1 {name}_end')
    a(f's_load_dwordx2 {sr(kWs,2)}, s[0:1], {D_WS}')
    a(f'v_lshrrev_b32 v1, 6, v0')
    a(f'v_readfirstlane_b32 {sr(sW)}, v1')
    a(f's_lshl_b32 {sr(sI)}, s2, 3')
    a(f's_add_u32 {sr(sI)}, {sr(sI)}, {sr(sW)}')
    v = Regs(1, 128)
    x = px_setup(a, v)
    a('s_waitcnt lgkmcnt(0)')
    srd(a, SWS, sr(kWs), sr(kWs+1), WS_BYTES)
    px_job(a, x, sr(sI), SWS, sT)
    a(f'{name}_end:')
    a('s_endpgm')
    a.pad()
    return a.text() + kd(name, 128, 128), 0

def red_setup(a, v):
    class X: pass
    x = X()
    x.L16 = v.get(); x.T = v.get(); x.vA = v.get(); x.vO = v.get(); x.vG = v.get(); x.G = v.get(2, 2)
    x.A = v.get(16, 4); x.P = v.get(128, 4); x.acc = v.get(32, 4); x.t = v.get(4)
    T = x.T
    a(f'v_and_b32 v{T}, 63, v0')
    a(f'v_lshlrev_b32 v{x.L16}, 4, v{T}')
    a(f'v_and_b32 v{x.vG}, 15, v{T}')
    a(f'v_lshlrev_b32 v{x.vO}, 11, v{x.vG}')
    a(f'v_lshlrev_b32 v{x.vG}, 2, v{x.vG}')
    a(f'v_lshrrev_b32 v{x.vA}, 4, v{T}')
    a(f'v_lshl_add_u32 v{x.vA}, v{x.vA}, 3, v{x.vO}')
    a(f'v_and_b32 v{x.G}, 16, v{T}')
    a(f'v_lshl_add_u32 v{x.vO}, v{x.G}, 1, v{x.vO}')
    a(f'v_lshrrev_b32 v{x.G}, 5, v{T}')
    a(f'v_lshl_add_u32 v{x.vO}, v{x.G}, 4, v{x.vO}')
    return x

def red_job(a, x, sIdx, SWS, SO, sT, ldm='', stm='', mid=None, lim=0):
    WS = sr(SWS, 4); s0, s1, s2 = sr(sT), sr(sT + 1), sr(sT + 2)
    a(f's_lshr_b32 {s0}, {sIdx}, 4')
    def ldG():
        a(f's_lshl_b32 {s1}, {s0}, 7')
        a(f's_add_u32 {s1}, {s1}, {GT+8192}')
        for tq in range(2): a(f'buffer_load_dword v{x.G+tq}, v{x.vG}, {WS}, {s1} offen offset:{64*tq}{ldm}')
    if not mid: ldG()
    a(f's_lshl_b32 {s1}, {sIdx}, 12')
    a(f's_add_u32 {s1}, {s1}, {OP}')
    for g in range(8):
        if lim and g >= lim: a(f's_waitcnt vmcnt({4*(lim-1)})')
        for b in range(4): a(f'buffer_load_dwordx4 {vr(x.P+16*g+4*b,4)}, v{x.L16}, {WS}, {s1} offen offset:{1024*b}{ldm}')
        if g < 7: a(f's_add_u32 {s1}, {s1}, {1<<22}')
    def ldA():
        a(f's_lshl_b32 {s0}, {s0}, 16')
        a(f's_and_b32 {s1}, {sIdx}, 15')
        a(f's_lshl_b32 {s1}, {s1}, 7')
        a(f's_add_u32 {s0}, {s0}, {s1}')
        a(f's_add_u32 {s1}, {s0}, {OPA}')
        a(f's_add_u32 {s2}, {s0}, {OPA+32768}')
        for tq in range(2):
            for b in range(4): a(f'buffer_load_dwordx2 {vr(x.A+4*b+2*tq,2)}, v{x.vA}, {WS}, {s2 if tq else s1} offen offset:{32*b}{ldm}')
        a(f's_add_u32 {s1}, {s0}, 32768')
    if not mid: ldA()
    for g in range(8):
        a(f's_waitcnt vmcnt({(0 if mid else 8)+28-4*g})')
        for i in range(16):
            p = x.P + 16 * g + i
            if g == 0:
                a(f'v_lshlrev_b32 v{x.acc+2*i}, 16, v{p}')
                a(f'v_and_b32 v{x.acc+2*i+1}, 0xffff0000, v{p}')
            else:
                a(f'v_lshlrev_b32 v{x.t+(i&1)}, 16, v{p}')
                a(f'v_and_b32 v{p}, 0xffff0000, v{p}')
                a(f'v_add_f32 v{x.acc+2*i}, v{x.acc+2*i}, v{x.t+(i&1)}')
                a(f'v_add_f32 v{x.acc+2*i+1}, v{x.acc+2*i+1}, v{p}')
    if mid: mid(); ldG(); ldA()
    a('s_waitcnt vmcnt(0)')
    for i in range(16):
        p = x.A + i; G = x.G + ((i >> 1) & 1)
        a(f'v_lshlrev_b32 v{x.t+(i&1)}, 16, v{p}')
        a(f'v_and_b32 v{p}, 0xffff0000, v{p}')
        a(f'v_fma_f32 v{x.acc+2*i}, v{x.acc+2*i}, v{G}, v{x.t+(i&1)}')
        a(f'v_fma_f32 v{x.acc+2*i+1}, v{x.acc+2*i+1}, v{G}, v{p}')
    O = x.P
    for b in range(4):
        for d in range(4):
            i = 4 * b + d
            a(f'v_cvt_pk_bf16_f32 v{O+8*(d>>1)+4*(b>>1)+2*(b&1)+(d&1)}, v{x.acc+2*i}, v{x.acc+2*i+1}')
    for q in range(4):
        a(f'v_permlane16_swap_b32 v{O+4*q}, v{O+4*q+2}')
        a(f'v_permlane16_swap_b32 v{O+4*q+1}, v{O+4*q+3}')
    for q in range(4):
        a(f'buffer_store_dwordx4 {vr(O+4*q,4)}, v{x.vO}, {sr(SO,4)}, {s1 if q>>1 else s0} offen offset:{64*(q&1)}{stm}')

def gen_red(name='red_kernel'):
    a = Asm()
    sreg = Regs(4, 100, 's')
    kWs = sreg.get(2, 2); sW = sreg.get(); sT = sreg.get(3); SWS = sreg.get(4, 4); SO = sreg.get(4, 4); sI = sreg.get()
    a(kstart(name))
    a('s_cmp_ge_u32 s2, 256')
    a(f's_cbranch_scc1 {name}_end')
    a(f's_load_dwordx2 {sr(kWs,2)}, s[0:1], {D_WS}')
    a(f's_load_dwordx2 {sr(SO,2)}, s[0:1], {D_OUT}')
    a(f'v_lshrrev_b32 v1, 6, v0')
    a(f'v_readfirstlane_b32 {sr(sW)}, v1')
    a(f's_lshl_b32 {sr(sI)}, s2, 2')
    a(f's_add_u32 {sr(sI)}, {sr(sI)}, {sr(sW)}')
    v = Regs(1, 256)
    x = red_setup(a, v)
    a('s_waitcnt lgkmcnt(0)')
    srd(a, SWS, sr(kWs), sr(kWs+1), WS_BYTES)
    srd(a, SO, sr(SO), sr(SO+1), 2048*2048)
    red_job(a, x, sr(sI), SWS, SO, sT)
    a(f'{name}_end:')
    a('s_endpgm')
    a.pad()
    return a.text() + kd(name, 256, 256), 0

def gen_fina(name='fina_kernel', TN=128, TM=128):
    a = Asm()
    sreg = Regs(4, 100, 's'); vreg = Regs(1, 256, 'v')
    kWo = sreg.get(2, 2); kWs = sreg.get(2, 2)
    t0 = sreg.get(); t1 = sreg.get(); t2 = sreg.get()
    g = Gemm16(a, GemmCfg16(TN, TM), sreg, vreg)
    nn = 1024 // TN; nm = 2048 // TM
    a(kstart(name))
    a(f's_cmp_ge_u32 s2, {nn*nm}')
    a(f's_cbranch_scc1 {name}_end')
    a(f's_load_dwordx2 {sr(kWo,2)}, s[0:1], {A_WO}')
    a(f's_load_dwordx2 {sr(kWs,2)}, s[0:1], {D_WS}')
    a(f'v_lshrrev_b32 v1, 6, v0')
    a(f'v_readfirstlane_b32 {sr(g.sWv)}, v1')
    a(f's_lshr_b32 {sr(t0)}, s2, 3')
    a(f's_and_b32 {sr(t1)}, {sr(t0)}, {nn-1}')
    a(f's_lshr_b32 {sr(t0)}, {sr(t0)}, {nn.bit_length()-1}')
    a(f's_lshl_b32 {sr(t0)}, {sr(t0)}, 3')
    a(f's_and_b32 {sr(t2)}, s2, 7')
    a(f's_add_u32 {sr(t2)}, {sr(t2)}, {sr(t0)}')
    a(f's_mov_b32 {sr(g.sLdw)}, 2048')
    a(f's_mov_b32 {sr(g.sLdo)}, 2048')
    a(f's_mov_b32 {sr(g.sLdx)}, 2048')
    a(f's_mov_b32 {sr(g.sOM)}, 0')
    a(f's_mul_i32 {sr(t1)}, {sr(t1)}, {TN*2}')
    a('s_waitcnt lgkmcnt(0)')
    a(f's_mul_i32 {sr(t2)}, {sr(t2)}, {TM*2048}')
    a(f's_add_u32 {sr(t0)}, {sr(t2)}, {OA}')
    srd(a, g.SX, sr(kWs), sr(kWs+1), TM*2048, off=sr(t0))
    a(f's_sub_u32 {sr(t0)}, {1024*2048}, {sr(t1)}')
    srd(a, g.SW, sr(kWo), sr(kWo+1), sr(t0), off=sr(t1))
    a(f's_add_u32 {sr(t0)}, {sr(t2)}, {sr(t1)}')
    a(f's_add_u32 {sr(t0)}, {sr(t0)}, {OPA}')
    a(f's_sub_u32 {sr(t1)}, {TM*2048}, {sr(t1)}')
    srd(a, g.SO, sr(kWs), sr(kWs+1), sr(t1), off=sr(t0))
    a(f's_mov_b32 {sr(g.sOx)}, 0')
    a(f's_mov_b32 {sr(g.sOw)}, 0')
    g.setup()
    g.main(16)
    g.epilogue(scale=False)
    a(f'{name}_end:')
    a('s_endpgm')
    a.pad()
    return a.text() + kd(name, 256, 256), g.c.lds, nn*nm
```

```python
from asm import *
from layout import *
from small import *
from chain4 import *
from attna import attnA_job
from gemm16 import *
from gemmr import *
from xjobs import *
from k2 import Trace, Trace2

JSLOT = 0
KINDS = ['T', 'S', 'B', 'P', 'KVA', 'GATE', 'QA', 'ATT', 'FIN', 'ATH']
REST = [(2,'KVA',0), (2,'GATE',0), (8,'QA',0), (48,'B',48), (32,'ATT',0), (32,'FIN',0)]
JT = {0: [(24,'T',0), (8,'S',12), (8,'T',48), (12,'S',24), (4,'P',0), (12,'B',24), (8,'S',36), (8,'T',112), (12,'B',36)] + REST,
      1: [(24,'T',0), (8,'S',12), (8,'T',48), (12,'S',24), (4,'P',0), (4,'B',24), (8,'S',36), (8,'B',28), (8,'T',112), (12,'B',36)] + REST,
      2: [(24, 'T', 0), (8, 'S', 12), (8, 'T', 48), (12, 'S', 24), (4, 'P', 0), (8, 'S', 36), (12, 'B', 24), (8, 'T', 112), (2, 'KVA', 0), (4, 'QA', 0), (16, 'B', 36), (2, 'GATE', 0), (16, 'B', 52), (4, 'QA', 4), (8, 'ATT', 0), (20, 'B', 68), (24, 'ATT', 8), (8, 'B', 88), (32, 'FIN', 0)],
      3: [(16, 'T', 0), (4, 'S', 8), (4, 'S', 20), (8, 'S', 12), (12, 'S', 24), (4, 'P', 0), (8, 'S', 36), (12, 'B', 24), (8, 'T', 112), (2, 'KVA', 0), (4, 'QA', 0), (16, 'B', 36), (2, 'GATE', 0), (16, 'B', 52), (4, 'QA', 4), (8, 'ATT', 0), (20, 'B', 68), (24, 'ATT', 8), (8, 'B', 88), (32, 'FIN', 0)],
      4: [(24, 'T', 0), (8, 'S', 12), (8, 'T', 48), (12, 'S', 24), (4, 'P', 0), (8, 'S', 36), (8, 'T', 112), (12, 'S', 48), (12, 'B', 36), (12, 'S', 60), (8, 'QA', 0), (16, 'B', 48), (2, 'GATE', 0), (2, 'KVA', 0), (32, 'B', 64), (32, 'ATT', 0), (32, 'FIN', 0)],
      5: [(24, 'T', 0), (8, 'S', 12), (8, 'T', 48), (12, 'S', 24), (4, 'P', 0), (8, 'S', 36), (8, 'T', 112), (12, 'S', 48), (8, 'B', 36), (12, 'S', 60), (4, 'B', 44), (4, 'QA', 0), (2, 'KVA', 0), (2, 'GATE', 0), (20, 'B', 48), (4, 'QA', 4), (8, 'ATT', 0), (24, 'B', 68), (24, 'ATT', 8), (4, 'B', 92), (32, 'FIN', 0)],
      6: [(24, 'T', 0), (8, 'S', 12), (8, 'T', 48), (12, 'S', 24), (4, 'P', 0), (8, 'S', 36), (12, 'B', 24), (8, 'T', 112), (12, 'B', 36), (2, 'KVA', 0), (4, 'QA', 0), (2, 'GATE', 0), (20, 'B', 48), (4, 'QA', 4), (8, 'ATT', 0), (28, 'B', 68), (24, 'ATT', 8), (32, 'FIN', 0)],
      7: [(24, 'T', 0), (8, 'S', 12), (8, 'T', 48), (12, 'S', 24), (4, 'P', 0), (8, 'S', 36), (12, 'B', 24), (8, 'T', 112), (12, 'B', 36), (2, 'KVA', 0), (2, 'GATE', 0), (8, 'QA', 0), (48, 'B', 48), (32, 'ATT', 0), (32, 'FIN', 0)],
      8: [(24, 'T', 0), (8, 'S', 12), (8, 'T', 48), (12, 'S', 24), (4, 'P', 0), (4, 'T', 112), (8, 'S', 36), (4, 'S', 48), (4, 'T', 116), (8, 'B', 36), (16, 'S', 52), (4, 'B', 44), (4, 'S', 68), (24, 'B', 48), (2, 'KVA', 0), (2, 'GATE', 0), (8, 'QA', 0), (24, 'B', 72), (32, 'ATT', 0), (32, 'FIN', 0)],
      9: [(24, 'T', 0), (8, 'S', 12), (8, 'T', 48), (12, 'S', 24), (4, 'P', 0), (8, 'S', 36), (12, 'B', 24), (8, 'T', 112), (2, 'GATE', 0), (4, 'QA', 0), (6, 'B', 36), (2, 'KVA', 0), (26, 'B', 42), (8, 'ATT', 0), (4, 'QA', 4), (10, 'B', 68), (2, 'ATT', 8), (8, 'B', 78), (22, 'ATT', 10), (2, 'FIN', 0), (10, 'B', 86), (30, 'FIN', 2)],
      12: [(24, 'T', 0), (8, 'S', 12), (8, 'T', 48), (12, 'S', 24), (4, 'P', 0), (8, 'S', 36), (12, 'B', 24), (8, 'T', 112), (12, 'B', 36), (2, 'KVA', 0), (2, 'GATE', 0), (8, 'QA', 0), (36, 'B', 48), (24, 'S', 168), (32, 'ATT', 0), (32, 'FIN', 0)],
      13: [(24, 'T', 0), (8, 'S', 12), (8, 'T', 48), (12, 'S', 24), (4, 'P', 0), (8, 'S', 36), (12, 'B', 24), (8, 'T', 112), (12, 'B', 36), (2, 'KVA', 0), (2, 'GATE', 0), (8, 'QA', 0), (32, 'B', 48), (4, 'S', 152), (4, 'S', 164), (24, 'S', 168), (32, 'ATT', 0), (32, 'FIN', 0)],
      14: [(24, 'T', 0), (8, 'S', 12), (8, 'T', 48), (12, 'S', 24), (4, 'P', 0), (8, 'S', 36), (12, 'B', 24), (8, 'T', 112), (12, 'B', 36), (2, 'KVA', 0), (2, 'GATE', 0), (8, 'QA', 0), (42, 'B', 48), (6, 'S', 174), (6, 'S', 186), (32, 'ATT', 0), (32, 'FIN', 0)],
      15: [(24, 'T', 0), (8, 'S', 12), (8, 'T', 48), (12, 'S', 24), (4, 'P', 0), (8, 'S', 36), (12, 'B', 24), (8, 'T', 112), (12, 'B', 36), (2, 'KVA', 0), (2, 'GATE', 0), (8, 'QA', 0), (32, 'B', 48), (16, 'ATT', 0), (16, 'B', 80), (16, 'ATT', 16), (32, 'FIN', 0)],
      16: [(24, 'T', 0), (8, 'S', 12), (8, 'T', 48), (12, 'S', 24), (4, 'P', 0), (8, 'S', 36), (12, 'B', 24), (8, 'T', 112), (12, 'B', 36), (2, 'KVA', 0), (2, 'GATE', 0), (8, 'QA', 0), (48, 'B', 48), (16, 'ATT', 0), (32, 'ATH', 32), (32, 'FIN', 0)],
      17: [(24, 'T', 0), (8, 'S', 12), (8, 'T', 48), (12, 'S', 24), (4, 'P', 0), (8, 'S', 36), (12, 'B', 24), (8, 'T', 112), (12, 'B', 36), (2, 'KVA', 0), (2, 'GATE', 0), (8, 'QA', 0), (48, 'B', 48), (24, 'ATT', 0), (16, 'ATH', 48), (32, 'FIN', 0)],
      18: [(24, 'T', 0), (8, 'S', 12), (8, 'T', 48), (12, 'S', 24), (4, 'P', 0), (8, 'S', 36), (12, 'B', 24), (8, 'T', 112), (12, 'B', 36), (2, 'KVA', 0), (2, 'GATE', 0), (8, 'QA', 0), (48, 'B', 48), (64, 'ATH', 0), (32, 'FIN', 0)],
      19: [(24, 'T', 0), (8, 'S', 12), (8, 'T', 48), (12, 'S', 24), (4, 'P', 0), (8, 'S', 36), (12, 'B', 24), (8, 'T', 112), (12, 'B', 36), (2, 'KVA', 0), (2, 'GATE', 0), (8, 'QA', 0), (48, 'B', 48), (20, 'ATT', 0), (24, 'ATH', 40), (32, 'FIN', 0)],
      20: [(24, 'T', 0), (8, 'S', 12), (8, 'T', 48), (12, 'S', 24), (4, 'P', 0), (8, 'S', 36), (12, 'B', 24), (8, 'T', 112), (12, 'B', 36), (2, 'KVA', 0), (2, 'GATE', 0), (8, 'QA', 0), (48, 'B', 48), (8, 'ATT', 0), (48, 'ATH', 16), (32, 'FIN', 0)],
      21: [(24, 'T', 0), (8, 'S', 12), (8, 'T', 48), (12, 'S', 24), (4, 'P', 0), (8, 'S', 36), (12, 'B', 24), (8, 'T', 112), (12, 'B', 36), (2, 'KVA', 0), (2, 'GATE', 0), (8, 'QA', 0), (36, 'B', 48), (12, 'ATT', 0), (12, 'B', 84), (4, 'ATT', 12), (32, 'ATH', 32), (32, 'FIN', 0)],
      22: [(24, 'T', 0), (8, 'S', 12), (8, 'T', 48), (12, 'S', 24), (4, 'P', 0), (8, 'S', 36), (12, 'B', 24), (8, 'T', 112), (12, 'B', 36), (2, 'KVA', 0), (2, 'GATE', 0), (8, 'QA', 0), (36, 'B', 48), (16, 'ATT', 0), (12, 'B', 84), (32, 'ATH', 32), (32, 'FIN', 0)],
      23: [(24, 'T', 0), (8, 'S', 12), (8, 'T', 48), (12, 'S', 24), (4, 'P', 0), (8, 'S', 36), (12, 'B', 24), (8, 'T', 112), (12, 'B', 36), (2, 'KVA', 0), (2, 'GATE', 0), (8, 'QA', 0), (36, 'B', 48), (8, 'ATT', 0), (12, 'B', 84), (8, 'ATT', 8), (32, 'ATH', 32), (32, 'FIN', 0)],
      24: [(24, 'T', 0), (8, 'S', 12), (8, 'T', 48), (12, 'S', 24), (4, 'P', 0), (8, 'S', 36), (12, 'B', 24), (8, 'T', 112), (12, 'B', 36), (2, 'KVA', 0), (2, 'GATE', 0), (8, 'QA', 0), (36, 'B', 48), (20, 'ATT', 0), (12, 'B', 84), (24, 'ATH', 40), (32, 'FIN', 0)],
      25: [(24, 'T', 0), (8, 'S', 12), (8, 'T', 48), (12, 'S', 24), (4, 'P', 0), (8, 'S', 36), (12, 'B', 24), (8, 'T', 112), (12, 'B', 36), (2, 'KVA', 0), (2, 'GATE', 0), (8, 'QA', 0), (36, 'B', 48), (16, 'ATT', 0), (12, 'B', 84), (8, 'ATT', 16), (16, 'ATH', 48), (32, 'FIN', 0)],
      26: [(24, 'T', 0), (8, 'S', 12), (8, 'T', 48), (12, 'S', 24), (4, 'P', 0), (8, 'S', 36), (8, 'T', 112), (12, 'B', 24), (12, 'B', 36), (2, 'KVA', 0), (2, 'GATE', 0), (8, 'QA', 0), (48, 'B', 48), (16, 'ATT', 0), (32, 'ATH', 32), (32, 'FIN', 0)],
      27: [(24, 'T', 0), (8, 'S', 12), (8, 'T', 48), (12, 'S', 24), (4, 'P', 0), (8, 'S', 36), (4, 'B', 24), (8, 'T', 112), (8, 'B', 28), (12, 'B', 36), (2, 'KVA', 0), (2, 'GATE', 0), (8, 'QA', 0), (48, 'B', 48), (16, 'ATT', 0), (32, 'ATH', 32), (32, 'FIN', 0)],
      28: [(24, 'T', 0), (8, 'S', 12), (8, 'T', 48), (12, 'S', 24), (4, 'P', 0), (12, 'S', 36), (12, 'B', 24), (12, 'B', 36), (2, 'KVA', 0), (2, 'GATE', 0), (8, 'QA', 0), (48, 'B', 48), (16, 'ATT', 0), (32, 'ATH', 32), (32, 'FIN', 0)],
      29: [(24, 'T', 0), (8, 'S', 12), (8, 'T', 48), (12, 'S', 24), (4, 'P', 0), (12, 'S', 36), (8, 'B', 24), (4, 'S', 56), (4, 'S', 68), (12, 'B', 36), (2, 'KVA', 0), (2, 'GATE', 0), (8, 'QA', 0), (48, 'B', 48), (16, 'ATT', 0), (32, 'ATH', 32), (32, 'FIN', 0)],
      30: [(24, 'T', 0), (8, 'S', 12), (8, 'T', 48), (12, 'S', 24), (4, 'P', 0), (4, 'B', 24), (8, 'S', 36), (8, 'B', 28), (8, 'T', 112), (12, 'B', 36), (2, 'KVA', 0), (2, 'GATE', 0), (8, 'QA', 0), (48, 'B', 48), (16, 'ATT', 0), (32, 'ATH', 32), (32, 'FIN', 0)],
      11: [(24, 'T', 0), (8, 'S', 12), (8, 'T', 48), (8, 'S', 24), (4, 'P', 0), (4, 'S', 32), (8, 'S', 36), (12, 'B', 24), (8, 'T', 112), (12, 'B', 36), (2, 'KVA', 0), (2, 'GATE', 0), (8, 'QA', 0), (48, 'B', 48), (32, 'ATT', 0), (32, 'FIN', 0)],
      10: [(16, 'T', 0), (4, 'S', 8), (4, 'S', 20), (8, 'S', 12), (12, 'S', 24), (4, 'P', 0), (8, 'S', 36), (12, 'B', 24), (8, 'T', 112), (12, 'B', 36), (2, 'KVA', 0), (2, 'GATE', 0), (8, 'QA', 0), (48, 'B', 48), (32, 'ATT', 0), (32, 'FIN', 0)],
}
NRED = 128

def gen_k5(name, diag=False, trace=False, force_slow=False, par=None, cal=(0,1), calr=6, calc=10, flip=0, rom=' sc1', rotx=0, stm=' sc1', join=True, rsl=8, rws=6, rwf=8, rot=2, xpf=3, gp=None, xw=0, xc=0, jt_=16, aw=0, tps=3, tpf=3, wmf='', wms='', tw=1, cb=3, pol=None, rlim=0, rldm='', gq=0, gro=14, rsp=1, rord=(0,4,8,1,5,9,2,6,10,12,13,3,7,11), xsh=14, sd=0, cpr=3, mpf=5, xs=0, mpm='', rsh=3, ww=3, cpf=7, cpw=7, ea=0, mk2=0, lp=0, vm=14, rev=0x780, **pp):
    JOBS = JT[jt_] if isinstance(jt_, int) else jt_
    GJ = []
    if gq:
        GJ = [(4 * n, k, 4 * i0) for n, k, i0 in JOBS if k in ('ATT', 'ATH', 'FIN')] if gq == 1 else list(gq)
        JOBS = [j for j in JOBS if j[1] not in ('ATT', 'ATH', 'FIN')]
    NG = sum(j[0] for j in GJ)
    Q_END = sum(j[0] for j in JOBS)
    import chain4; chain4.P.update(fused=1, nb0=(0, 0, 1, vm)[cb]); chain4.P.update(pp)
    tail = chain4.P['tail']; NRED = 144 if tail else 128
    if tail: join = False
    a = Asm()
    sreg = Regs(4, 100, 's')
    kWs = sreg.get(2, 2); sX = sreg.get(); sJob = sreg.get(); SD = sreg.get(4, 4)
    rt0 = sreg.get(2, 2); ct0 = sreg.get(2, 2); sJp = sreg.get(); sLog = sreg.get(); sMk = sreg.get(2, 2)
    base = sreg.p
    c = chain_common(a, sreg)
    assert c.sW == base
    wT = sreg.get(6); wS = sreg.get(16, 4); rt1 = sreg.get(2, 2); ct1 = wT + (wT & 1)
    tr = (Trace2(a, sreg, c, wS) if trace == 2 else Trace(a, sreg, 6)) if trace else None
    Lend = f'{name}_end'; Lfin = f'{name}_fin'; Ldone = f'{name}_done'; Lwork = f'{name}_worker'
    WS = sr(c.SWS, 4); sW = sr(c.sW)
    a(kstart(name))
    a('s_cmp_ge_u32 s2, 256')
    a(f's_cbranch_scc1 {Lend}')
    if rotx:
        a(f's_add_u32 s3, s2, {rotx}'); a('s_and_b32 s3, s3, 7'); a('s_and_b32 s2, s2, 0xf8'); a('s_or_b32 s2, s2, s3')
    if diag: a(f's_memrealtime {sr(rt0,2)}'); a(f's_memtime {sr(ct0,2)}')
    a(f's_load_dwordx2 {sr(kWs,2)}, s[0:1], {D_WS}')
    a(f's_load_dwordx2 {sr(SD,2)}, s[0:1], {D_DBG}')
    a(f's_load_dwordx2 {sr(c.SA,2)}, s[0:1], {B_WQ}')
    a(f's_load_dwordx2 {sr(c.SB,2)}, s[0:1], {B_WK}')
    a(f's_load_dwordx2 {sr(c.SC,2)}, s[0:1], {B_WV}')
    a(f's_load_dwordx2 {sr(wS,2)}, s[0:1], {B_MEM0}')
    a(f's_load_dwordx2 {sr(wS+4,2)}, s[0:1], {B_WO}')
    c.SM = wS; c.SO = wS + 4
    a(f'v_lshrrev_b32 v1, 6, v0')
    a(f'v_readfirstlane_b32 {sW}, v1')
    a(f's_and_b32 {sr(sX)}, s2, 3')
    a(f's_lshr_b32 {sr(sJob)}, s2, 3')
    if cpf:
        CP = wS + 8
        a(f's_cmp_lg_u32 {sW}, {cpw}')
        a(f's_cbranch_scc1 {name}_pc1')
        a(f's_getpc_b64 {sr(CP,2)}')
        a(f'{name}_pc0:')
        srd(a, CP, sr(CP), sr(CP+1), f'{name}_eof-{name}_pc0')
        a(f'v_and_b32 v1, 63, v0')
        a(f'v_lshl_add_u32 v1, {sr(sJob)}, 6, v1')
        a(f'v_lshlrev_b32 v1, {cpf}, v1')
        a(f'buffer_load_dword v255, v1, {sr(CP,4)}, 0 offen')
        a(f'{name}_pc1:')
    if diag:
        a(f's_and_b32 {sr(sLog)}, s2, 7')
        ssum(a, sr(sLog), sr(c.sT), [(sr(sLog), 15), (sr(sJob), 10)], STAMP + 0x400000)
    a('s_waitcnt lgkmcnt(0)')
    srd(a, c.SWS, sr(kWs), sr(kWs+1), WS_BYTES)
    srd(a, SD, sr(SD), sr(SD+1), 256)
    a('s_bitcmp0_b32 s2, 2' if flip else 's_bitcmp1_b32 s2, 2')
    if xw:
        a(f's_cbranch_scc0 {Lwork}_x')
        for i in range(xw): a('s_sleep 127')
        a(f's_branch {Lwork}')
        a(f'{Lwork}_x:')
    a(f's_cbranch_scc1 {Lwork}')
    ssum(a, sr(c.sT+3), None, [(sr(sX), 5)])
    a(f's_add_u32 {sr(c.sT+3)}, {sr(c.sT+3)}, {sr(sJob)}')
    a(f's_lshr_b32 {sr(c.sG)}, {sr(c.sT+3)}, 4')
    a(f's_and_b32 {sr(c.sC)}, {sr(c.sT+3)}, 15')
    a(f's_sub_u32 {sr(c.sPart)}, 0, {sr(kWs)}')
    a(f's_and_b32 {sr(c.sPart)}, {sr(c.sPart)}, 0x1fffff')
    a(f's_add_u32 {sr(c.sPart)}, {sr(c.sPart)}, {PARTA}')
    a(f's_cmp_lt_u32 {sW}, 4')
    a(f's_cbranch_scc1 {name}_b')
    a(f's_cmp_lg_u32 {sW}, 6')
    a(f's_cbranch_scc1 {name}_c')
    cT = c.sT
    if cpr: a(f's_setprio {cpr}')
    ssum(a, sr(cT), sr(cT+1), [(sr(sX), 14), (sr(sJob), 8)], 0x100000)
    a(f's_add_u32 {sr(cT)}, {sr(cT)}, {sr(c.sPart)}')
    a(f's_and_b32 {sr(cT+2)}, {sr(sJob)}, 1')
    a(f's_lshl_b32 {sr(cT+1)}, {sr(cT+2)}, 13')
    a(f's_add_u32 {sr(cT)}, {sr(cT)}, {sr(cT+1)}')
    a(f's_lshl_b32 {sr(cT+2)}, {sr(cT+2)}, 14')
    a(f's_sub_u32 {sr(cT+1)}, {sr(cT)}, {sr(cT+2)}')
    a(f's_add_u32 {sr(cT+1)}, {sr(cT+1)}, 8192')
    a(f'v_and_b32 v1, 63, v0')
    a(f'v_lshlrev_b32 v2, 2, v1')
    for i in range(4): a(f'v_mov_b32 v{12+i}, -1')
    for k in range(2): a(f'buffer_store_dword v12, v2, {WS}, {sr(cT+k)} offen sc1')
    a(f'v_lshlrev_b32 v9, 4, v1')
    a(f'v_lshlrev_b32 v10, 3, v1')
    for i in range(2): a(f'v_mov_b32 v{16+i}, 0')
    ssum(a, sr(cT+2), None, [(sr(cT+3), 9)], FL)
    a(f'buffer_store_dwordx2 v[16:17], v10, {WS}, {sr(cT+2)} offen sc1')
    ssum(a, sr(cT+2), None, [(sr(cT+3), 11)], QKV)
    for k in range(2): a(f'buffer_store_dwordx4 v[12:15], v9, {WS}, {sr(cT+2)} offen offset:{1024*k} sc1')
    npl = chain4.P['npl']
    if npl:
        assert cb == 3
        ssum(a, sr(cT+2), sr(c.sArm), [(sr(c.sC), 17), (sr(c.sG), 12)])
        a(f's_add_u32 {sr(cT+2)}, {sr(cT+2)}, {sr(c.sPart)}')
    else:
        a(f's_add_u32 {sr(cT+2)}, {sr(cT+2)}, {sr(c.sPart)}')
        a(f's_sub_u32 {sr(cT+2)}, {sr(cT+2)}, {QKV}')
    for k in range(4 if npl else 2): a(f'buffer_store_dwordx4 v[12:15], v9, {WS}, {sr(cT+2)} offen offset:{1024*k} sc1')
    ssum(a, sr(cT+2), sr(c.sArm), [(sr(sX), 18), (sr(sJob), 11)], PX + 65536)
    for k in range(2): a(f'buffer_store_dwordx4 v[12:15], v9, {WS}, {sr(cT+2)} offen offset:{1024*k} sc1')
    if tw:
        a(f'v_lshlrev_b32 v3, 21, v1')
        a(f's_lshl_b32 {sr(cT+2)}, {sr(cT+3)}, 6')
        for i, S in enumerate((c.SA, c.SB, c.SC, c.SO)):
            srd(a, S, sr(S), sr(S+1), 1024*8192)
            a(f'buffer_load_dword v{4+i}, v3, {sr(S,4)}, {sr(cT+2)} offen')
        a(f'buffer_load_dword v8, off, {sr(SD,4)}, 0 sc1')
    a(f's_getreg_b32 {sr(c.sMode)}, hwreg(HW_REG_XCC_ID)')
    a(f's_and_b32 {sr(c.sMode)}, {sr(c.sMode)}, 7')
    a(f's_mul_i32 {sr(cT+2)}, {sr(c.sMode)}, {sr(c.sMode)}')
    ssum(a, sr(c.sMode), sr(cT+2), [(sr(c.sMode), 12), (sr(cT+2), 20)], 1)
    ssum(a, sr(c.sArm), None, [(sr(sX), rsh)], 32)
    a(f'v_mov_b32 v254, {sr(c.sMode)}')
    a(f's_mov_b32 {sr(cT+2)}, {calc}')
    a('s_waitcnt vmcnt(0)')
    Lc = a.lab('cal')
    if cb == 3:
        a(f's_mov_b32 {sr(c.sSlot)}, 0')
        a(f's_mov_b32 {sr(c.sS)}, {sr(sJob)}')
        if diag: a(f's_memrealtime {sr(sMk,2)}')
        a(f's_and_b32 {sr(cT+3)}, {sr(c.sC)}, {vm}')
        a(f's_cmp_lg_u32 {sr(cT+3)}, 6')
        a(f's_cbranch_scc1 {Lc}z')
        a(f's_mov_b32 {sr(c.sSpin)}, {calr}')
        a(f'{Lc}r:')
        a(f's_mov_b32 {sr(cT+2)}, {calc}')
    for k in range(2): a(f'buffer_store_dword v12, v2, {WS}, {sr(cT+k)} offen sc1')
    if cb == 0: a('s_barrier')
    if diag and cb != 3: a(f's_memrealtime {sr(sMk,2)}')
    a('s_waitcnt vmcnt(1)')
    a(f'{Lc}:')
    a(f's_getreg_b32 {sr(cT+3)}, hwreg(HW_REG_IB_STS, 0, 4)')
    a(f's_cmp_eq_u32 {sr(cT+3)}, 0')
    a(f's_cbranch_scc1 {Lc}x')
    a(f's_sub_u32 {sr(cT+2)}, {sr(cT+2)}, 1')
    a(f's_cbranch_scc0 {Lc}')
    a(f'{Lc}x:')
    a(f's_sub_u32 {sr(cT+3)}, 0, {sr(cT+2)}')
    a(f's_bitcmp1_b32 {sr(c.sS if cb == 3 else sJob)}, 0')
    a(f's_cselect_b32 {sr(cT+2)}, {sr(cT+3)}, {sr(cT+2)}')
    if cb == 3:
        a(f's_add_u32 {sr(c.sSlot)}, {sr(c.sSlot)}, {sr(cT+2)}')
        a(f's_xor_b32 {sr(c.sS)}, {sr(c.sS)}, 1')
        a(f's_mov_b32 {sr(cT+3)}, {sr(cT)}'); a(f's_mov_b32 {sr(cT)}, {sr(cT+1)}'); a(f's_mov_b32 {sr(cT+1)}, {sr(cT+3)}')
        a('s_waitcnt vmcnt(0)')
        a(f's_sub_u32 {sr(c.sSpin)}, {sr(c.sSpin)}, 1')
        a(f's_cmp_lg_u32 {sr(c.sSpin)}, 0')
        a(f's_cbranch_scc1 {Lc}r')
        a('s_barrier')
        a(f'{Lc}z:')
        a(f's_mov_b32 {sr(cT+2)}, {sr(c.sSlot)}')
    a(f'v_mov_b32 v255, {sr(cT+2)}')
    a(f's_mov_b64 exec, 1')
    a(f'buffer_atomic_add_x2 v[254:255], off, {sr(SD,4)}, {sr(c.sArm)} sc1')
    a(f's_mov_b64 exec, -1')
    if cb == 1: a('s_barrier')
    if cpr: a(f's_setprio 0')
    if diag:
        a('s_waitcnt lgkmcnt(0)')
        a(f's_mov_b32 {sr(sJp)}, {sr(sMk)}')
    a(f's_branch {name}_c1')
    def mark(code, w=0):
        if not diag: return
        Lm = a.lab('mk')
        a(f's_cmp_lg_u32 {sW}, {w}')
        a(f's_cbranch_scc1 {Lm}')
        a(f's_memrealtime {sr(sMk,2)}')
        a('s_waitcnt lgkmcnt(0)')
        a(f'v_mov_b32 v253, {sr(sMk)}')
        a(f'v_mov_b32 v254, {code*256+1}')
        a(f'buffer_store_dword v253, off, {WS}, {sr(sLog)}')
        a(f'buffer_store_dword v254, off, {WS}, {sr(sLog)} offset:4')
        a(f's_memtime {sr(sMk,2)}')
        a('s_waitcnt lgkmcnt(0)')
        a(f'v_mov_b32 v253, {sr(sMk)}')
        a(f'v_mov_b32 v254, {code*256+2}')
        a(f'buffer_store_dword v253, off, {WS}, {sr(sLog)} offset:8')
        a(f'buffer_store_dword v254, off, {WS}, {sr(sLog)} offset:12')
        a(f's_add_u32 {sr(sLog)}, {sr(sLog)}, 16')
        a(f'{Lm}:')
    c.mark = mark
    def arrived(V, Lfail, sSp):
        Lg = a.lab('gp')
        a(f'v_mbcnt_lo_u32_b32 v{V+2}, -1, 0')
        a(f'v_lshl_add_u32 v{V+2}, v{V+2}, {rsh}, 32')
        a(f's_mov_b32 {sSp}, {SPIN}')
        a(f's_mov_b64 exec, 15')
        a(f'{Lg}:')
        a(f'buffer_load_dwordx2 {vr(V,2)}, v{V+2}, {sr(SD,4)}, 0 offen sc1')
        a(f's_sub_u32 {sSp}, {sSp}, 1')
        a(f's_cbranch_scc1 {Lfail}')
        a('s_waitcnt vmcnt(0)')
        a(f'v_and_b32 v{V+3}, 32, v{V}')
        a(f'v_cmp_eq_u32 vcc, 0, v{V+3}')
        a(f's_cbranch_vccz {Lg}x')
        a(f's_sleep 4')
        a(f's_branch {Lg}')
        a(f'{Lg}x:')
        a(f's_mov_b64 exec, -1')
    def getpar(V):
        assert rsh == 3
        Lg = a.lab('gp'); T = c.sT
        a(f's_getreg_b32 {sr(T)}, hwreg(HW_REG_XCC_ID)')
        a(f's_and_b32 {sr(T)}, {sr(T)}, 7')
        a(f's_mul_i32 {sr(T+1)}, {sr(T)}, {sr(T)}')
        ssum(a, sr(T), sr(T+1), [(sr(T), 17), (sr(T+1), 25)], 32)
        a(f'{Lg}:')
        a(f's_buffer_load_dwordx8 {sr(wS,8)}, {sr(SD,4)}, 32 glc')
        a(f's_sub_u32 {sr(c.sSpin)}, {sr(c.sSpin)}, 1')
        a(f's_cbranch_scc1 {Lfin}')
        a('s_waitcnt lgkmcnt(0)')
        a(f's_and_b32 {sr(T+1)}, {sr(wS)}, {sr(wS+2)}')
        a(f's_and_b32 {sr(T+2)}, {sr(wS+4)}, {sr(wS+6)}')
        a(f's_and_b32 {sr(T+1)}, {sr(T+1)}, {sr(T+2)}')
        a(f's_bitcmp1_b32 {sr(T+1)}, 5')
        a(f's_cbranch_scc1 {Lg}x')
        a(f's_sleep 8')
        a(f's_branch {Lg}')
        a(f'{Lg}x:')
        a(f's_add_u32 {sr(T+1)}, {sr(wS+1)}, {sr(wS+3)}')
        a(f's_add_u32 {sr(T+2)}, {sr(wS+5)}, {sr(wS+7)}')
        a(f's_add_u32 {sr(T+1)}, {sr(T+1)}, {sr(T+2)}')
        a(f's_cmp_gt_i32 {sr(T+1)}, 0')
        if par is None: a(f's_cselect_b32 {sr(T+2)}, 8192, 0')
        elif par == 'inv': a(f's_cselect_b32 {sr(T+2)}, 0, 8192')
        else: a(f's_mov_b32 {sr(T+2)}, {par*8192}')
        for i in (1, 2, 3):
            a(f's_cmp_eq_u32 {sr(sX)}, {i}')
            a(f's_cselect_b32 {sr(wS)}, {sr(wS+2*i)}, {sr(wS)}')
        if force_slow: a(f's_cmp_lg_u32 0, 1')
        else: a(f's_cmp_lg_u32 {sr(wS)}, {sr(T)}')
        a(f's_addc_u32 {sr(T+2)}, {sr(T+2)}, 0')
        if diag:
            a(f's_add_u32 {sr(T+1)}, {sr(T+1)}, 1000')
            a(f's_lshl_b32 {sr(T+1)}, {sr(T+1)}, 16')
            a(f's_add_u32 {sr(T+2)}, {sr(T+2)}, {sr(T+1)}')
        a(f'v_mov_b32 v{V}, {sr(T+2)}')
        if chain4.P['mk1'] & 2: mark(2)
    def wost():
        if not diag: return
        Lw = a.lab('wost')
        a(f's_cmp_lg_u32 {sW}, 6')
        a(f's_cbranch_scc1 {Lw}')
        a(f's_memrealtime {sr(sMk,2)}')
        a('s_waitcnt lgkmcnt(0)')
        ssum(a, sr(c.sT+1), sr(c.sT), [(sr(c.sG), 9), (sr(c.sC), 5)], STAMP + 0x500000)
        a(f'v_mov_b32 v244, {sr(sJp)}')
        a(f'v_mov_b32 v245, {sr(sMk)}')
        a(f'v_mov_b32 v246, {sr(sMk)}')
        a(f'v_mov_b32 v247, v254')
        a(f'buffer_store_dwordx4 v[244:247], off, {WS}, {sr(c.sT+1)}')
        a(f'{Lw}:')
    c.wost = wost
    def usepar(V):
        a(f'v_readfirstlane_b32 {sr(c.sMode)}, v{V}')
        if diag: a(f's_mov_b32 {sr(sJob)}, {sr(c.sMode)}')
        if npl:
            a(f's_getreg_b32 {sr(c.sT)}, hwreg(HW_REG_XCC_ID)')
            a(f's_lshl_b32 {sr(c.sT)}, {sr(c.sT)}, {xsh if npl == 2 else 15}')
            a(f's_lshl_b32 {sr(c.sT+1)}, {sr(c.sC)}, 12')
            a(f's_xor_b32 {sr(c.sT+1)}, {sr(c.sT+1)}, {sr(c.sT)}')
            a(f's_xor_b32 {sr(c.sT+1)}, {sr(c.sT+1)}, {sr(c.sMode) if pol is None else 0x4000*pol}')
            a(f's_and_b32 {sr(c.sT+1)}, {sr(c.sT+1)}, 0x4000')
        a(f's_and_b32 {sr(c.sT)}, {sr(c.sMode)}, 8192')
        a(f's_and_b32 {sr(c.sMode)}, {sr(c.sMode)}, 1')
        a(f's_add_u32 {sr(c.sPart)}, {sr(c.sPart)}, {sr(c.sT)}')
        if tr: tr.init()
    c.getpar = getpar; c.usepar = usepar
    a(f'{name}_b:')
    bwave(a, c, Lfin, tr, getpar, Ldone)
    a(f'{name}_c:')
    if cb == 3:
        a(f's_and_b32 {sr(c.sT)}, {sr(c.sC)}, {vm}')
        a(f's_cmp_lg_u32 {sr(c.sT)}, 6')
        a(f's_cbranch_scc1 {name}_c1')
    if cb != 2: a('s_barrier')
    a(f'{name}_c1:')
    cwave(a, c, Lfin, tr, getpar, Ldone)
    def chain_diag():
        a(f's_memrealtime {sr(rt1,2)}')
        a(f's_memtime {sr(ct1,2)}')
        a('s_waitcnt vmcnt(0) lgkmcnt(0)')
        a(f's_sub_u32 {sr(ct1)}, {sr(ct1)}, {sr(ct0)}')
        a(f's_lshl_b32 {sr(ct1)}, {sr(ct1)}, 1')
        a(f's_add_u32 {sr(c.sMode)}, {sr(c.sMode)}, {sr(ct1)}')
        ssum(a, sr(c.sT), sr(c.sT+1), [(sr(c.sG), 13), (sr(c.sC), 9), (sW, 6)], STAMP)
        vals = [sr(rt0), sr(rt1), sr(c.sSpin), sr(c.sS), sr(c.sMode), sr(sJob)] + ([sr(tr.acc+i) for i in range(6)] if trace == 1 else [])
        a(f'v_mov_b32 v1, {sr(c.sT)}')
        for i, x in enumerate(vals):
            a(f'v_mov_b32 v2, {x}')
            a(f'buffer_store_dword v2, v1, {WS}, 0 offen offset:{4*i}')
    a(f'{Lfin}:')
    if diag: chain_diag()
    a(f'{Lend}:')
    a('s_endpgm')
    a(f'{Ldone}:')
    if diag: chain_diag()
    if not join: a('s_endpgm')
    a(f'v_mbcnt_lo_u32_b32 v0, -1, 0')
    a(f'v_mbcnt_hi_u32_b32 v0, -1, v0')
    a(f's_lshl_b32 {sr(c.sT)}, {sW}, 6')
    a(f'v_add_u32 v0, {sr(c.sT)}, v0')
    a(f's_mov_b32 {sr(sJob)}, -1')
    a(f'{Lwork}:')
    wr = Regs(c.SWS + 4, 100, 's')
    sQo = wr.get(); sBud = rt0 + 1; sSig = wr.get(); sInc = wr.get(); sSp = wr.get(); t0 = wr.get(4, 2); jt = wr.get(2, 2); sChk = wr.get(); sAmt = wr.get(); sXo = wr.get(); sStop = wr.get()
    wb = wr.p
    Lloop = a.lab('w_loop'); Lnext = a.lab('w_next'); Lsig = a.lab('w_sig')
    def pop(early=False):
        Lp = a.lab('w_pop')
        a(f's_cmp_lg_u32 {sW}, 0')
        a(f's_cbranch_scc1 {Lp}')
        a(f's_mov_b64 exec, 1')
        a(f'v_mov_b32 v255, 1')
        a(f'buffer_atomic_add v255, off, {sr(SD,4)}, {sr(sQo)} sc0 sc1')
        a(f's_mov_b64 exec, -1')
        if early and ea == 1:
            a(f's_cmp_eq_u32 {sr(sChk)}, 0')
            a(f's_cbranch_scc1 {Lp}')
            a(f'v_and_b32 v253, 3, v0')
            a(f'v_lshl_add_u32 v253, v253, {rsh}, 32')
            a(f'buffer_load_dword v252, v253, {sr(SD,4)}, 0 offen sc1')
        a(f'{Lp}:')
    def dep(off, cnt, sl=rsl):
        Lx = a.lab('dp'); Ly = a.lab('dpx')
        a(f's_cmp_lg_u32 {sW}, 0')
        a(f's_cbranch_scc1 {Ly}')
        a(f's_mov_b32 {sr(sSp)}, {SPIN}')
        a(f'{Lx}:')
        for k, o in enumerate(off): a(f'buffer_load_dword v{1+k}, off, {WS}, {o} sc1')
        a(f's_sub_u32 {sr(sSp)}, {sr(sSp)}, 1')
        a(f's_cbranch_scc1 {Lend}')
        a('s_waitcnt vmcnt(0)')
        for k in range(len(off)):
            a(f'v_cmp_gt_u32 vcc, {cnt[k]}, v{1+k}')
            a(f's_cbranch_vccnz {Lx}_s')
        a(f's_branch {Ly}')
        a(f'{Lx}_s:')
        a(f's_sleep {sl}')
        a(f's_branch {Lx}')
        a(f'{Ly}:')
        a('s_barrier')
    ssum(a, sr(sQo), None, [(sr(sX), 2)], 128)
    ssum(a, sr(sJp), None, [(sW, 10)], JSLOT)
    a(f's_mov_b32 {sr(sBud)}, 512')
    a(f's_mov_b32 {sr(sInc)}, 0')
    a(f's_mov_b32 {sr(sChk)}, 1')
    a(f'v_mov_b32 v252, 0')
    a(f's_cmp_eq_u32 {sW}, 0')
    a(f's_cselect_b32 {sr(sStop)}, {ea}, 0')
    def ehook():
        a(f'v_and_b32 v253, 3, v0')
        a(f'v_lshl_add_u32 v253, v253, {rsh}, 32')
        a(f'buffer_load_dword v252, v253, {sr(SD,4)}, 0 offen sc1')
    Lfirst = a.lab('w_first'); Lnc = a.lab('w_nc')
    def jlog(J):
        a(f's_memrealtime {sr(jt,2)}')
        a('s_waitcnt lgkmcnt(0)')
        a(f'v_mov_b32 v4, {sr(jt)}')
        a(f'v_lshl_add_u32 v5, {J}, 8, {sr(sQo)}')
        a(f'buffer_store_dwordx2 v[4:5], off, {WS}, {sr(sLog)}')
        a(f's_add_u32 {sr(sLog)}, {sr(sLog)}, 8')
    if diag:
        a(f'v_mov_b32 v2, {sr(sJob)}')
        a(f's_cmp_lg_u32 {sW}, 0')
        a(f's_cbranch_scc1 {Lwork}_nl')
        jlog('v2')
        a(f'{Lwork}_nl:')
    a(f's_cmp_lg_u32 {sr(sJob)}, -1')
    a(f's_cbranch_scc1 {Lfirst}0')
    pop()
    a(f'{Lnext}:')
    if mk2 & 8:
        a(f's_waitcnt vmcnt({mk2>>4})')
        mark(15)
    a('s_waitcnt vmcnt(0)')
    if mk2 & 1: mark(12)
    a(f'v_mov_b32 v1, {sr(sJp)}')
    a(f's_cmp_lg_u32 {sW}, 0')
    a(f's_cbranch_scc1 {Lsig}')
    a(f's_cmp_eq_u32 {sr(sChk)}, 0')
    a(f's_cbranch_scc1 {Lnc}')
    a(f's_mov_b32 {sr(sChk)}, 0')
    if ea:
        a(f'v_and_b32 v252, 32, v252')
        a(f'v_cmp_eq_u32 vcc, 0, v252')
        a(f's_cbranch_vccz {Lnc}')
    arrived(4, Lend, sr(sSp))
    a(f'{Lnc}:')
    if mk2 & 2: mark(13)
    a(f'v_readfirstlane_b32 {sr(t0+1)}, v255')
    a(f's_cmp_eq_u32 {sr(sQo)}, 144')
    a(f's_cselect_b32 {sr(t0)}, 0, 32')
    a(f's_add_u32 {sr(t0)}, {sr(t0)}, {sr(t0+1)}')
    a(f'v_mov_b32 v2, {sr(t0)}')
    a(f'v_and_b32 v3, 7, v0')
    a(f'v_lshl_add_u32 v3, v3, 10, v1')
    a(f'ds_write_b32 v3, v2')
    a('s_waitcnt lgkmcnt(0)')
    a(f'{Lsig}:')
    a('s_barrier')
    a(f'ds_read_b32 v2, v1')
    a(f's_xor_b32 {sr(sJp)}, {sr(sJp)}, 4')
    Lns = a.lab('w_ns'); Lnp = a.lab('w_np')
    a(f's_cmp_lg_u32 {sW}, 0')
    a(f's_cbranch_scc1 {Lnp}')
    a(f's_cmp_eq_u32 {sr(sInc)}, 0')
    a(f's_cbranch_scc1 {Lns}')
    a(f'v_lshlrev_b32 v4, 7, v0')
    a(f'v_mov_b32 v3, {sr(sAmt)}')
    a(f's_mov_b32 exec_lo, {sr(sInc)}')
    a(f's_mov_b32 exec_hi, 0')
    a(f'buffer_atomic_add v3, v4, {WS}, {sr(sSig)} offen sc1')
    a(f's_mov_b64 exec, -1')
    a(f'{Lns}:')
    if diag: jlog('v2')
    a(f'{Lnp}:')
    a('s_waitcnt lgkmcnt(0)')
    a(f'v_readfirstlane_b32 {sr(sJob)}, v2')
    a(f's_mov_b32 {sr(sInc)}, 0')
    a(f's_sub_u32 {sr(sBud)}, {sr(sBud)}, 1')
    a(f's_cbranch_scc1 {Lend}')
    Lred = a.lab('w_red'); Lsw = a.lab('w_sw'); Lgo = a.lab('w_go')
    a(f's_mov_b32 {sr(t0)}, {Q_END}')
    a(f's_cmp_eq_u32 {sr(sQo)}, 144')
    a(f's_cselect_b32 {sr(t0)}, {NRED + NG}, {sr(t0)}')
    a(f's_cmp_ge_u32 {sr(sJob)}, {sr(t0)}')
    a(f's_cbranch_scc1 {Lsw}')
    a(f'{Lfirst}:')
    a(f's_cmp_eq_u32 {sr(sQo)}, 144')
    a(f's_cbranch_scc1 {Lred}')
    Lbig = a.lab('w_big'); Lsm = a.lab('w_sm'); Lkva = a.lab('w_kva'); Lgate = a.lab('w_gate'); Lqa = a.lab('w_qa'); Latt = a.lab('w_att'); Lfn = a.lab('w_fin')
    def mk(TN, TM, dual, RW, **mp):
        s = Regs(wb, 100, 's'); v = Regs(1, 252)
        g = GemmR(a, GemmCfgR(TN, TM, dual=dual, RW=RW), s, v, SO=c.SWS, sWv=c.sW); g.storemod = stm; g.bar1 = mp.pop('bar1', 0); g.tp = mp.pop('tp', 0); g.wmod = mp.pop('wm', ''); g.xmod = mp.pop('xm', ''); g.mp = mp; g.par = sr(sJp); g.rev = rev
        return g, s
    gp = gp or {}
    gB, sB = mk(256, 256, True, 4, **gp.get('B', dict(bar1=1,egap=4))); gS, _ = mk(256, 128, True, rws, **gp.get('S', dict(bar1=1,rgap=1,egap=4,tp=tps,wm=wms))); gF, _ = mk(128, 128, False, rwf, **gp.get('F', dict(bar1=1,rgap=1,tp=tpf,wm=wmf)))
    if ea > 1: gS.hook = gF.hook = (sr(sStop), ehook)
    sRow = sB.get(); sTile = sB.get(); sPx = sB.get(); pT = sB.get(2)
    J = sr(sJob)
    Lt128 = a.lab('w_t'); Lpx0 = a.lab('w_p0')
    ath = any(k == 'ATH' for n, k, i0 in JOBS + GJ)
    st = 0
    for n, k, i0 in JOBS:
        d = (KINDS.index(k) << 16) | ((i0 - st) & 0xffff)
        if st == 0: a(f's_mov_b32 {sr(t0)}, {d}')
        else:
            a(f's_cmp_ge_u32 {J}, {st}')
            a(f's_cselect_b32 {sr(t0)}, {d}, {sr(t0)}')
        st += n
    a(f's_sext_i32_i16 {sr(t0+1)}, {sr(t0)}')
    a(f's_add_u32 {J}, {J}, {sr(t0+1)}')
    a(f's_lshr_b32 {sr(t0)}, {sr(t0)}, 16')
    a(f's_mov_b32 {sr(sAmt)}, 1')
    for k, Lk in (('T', Lt128), ('B', Lbig), ('P', Lpx0), ('KVA', Lkva), ('GATE', Lgate), ('QA', Lqa), ('ATT', Latt), ('FIN', Lfn)) + ((('ATH', Latt + 'h'),) if ath else ()):
        a(f's_cmp_eq_u32 {sr(t0)}, {KINDS.index(k)}')
        a(f's_cbranch_scc1 {Lk}')
    a(f's_mul_i32 {sr(sRow)}, {J}, 43691')
    a(f's_lshr_b32 {sr(sRow)}, {sr(sRow)}, 19')
    a(f's_mul_i32 {sr(t0+1)}, {sr(sRow)}, 12')
    a(f's_sub_u32 {sr(sTile)}, {J}, {sr(t0+1)}')
    def kqv(g, inc):
        TM = g.c.TM
        Lv = a.lab('w_v'); Lj = a.lab('w_j'); Lnopx = a.lab('w_nopx')
        a(f's_load_dwordx2 {sr(g.SX,2)}, s[0:1], {A_X}')
        a(f's_mov_b32 {sr(sInc)}, {inc}')
        a(f's_mov_b32 {sr(sAmt)}, 2')
        a(f's_lshl_b32 {sr(t0+2)}, {sr(sX)}, 3')
        a(f's_cmp_ge_u32 {sr(sTile)}, 8')
        a(f's_cbranch_scc1 {Lv}')
        a(f's_load_dwordx2 {sr(g.SW,2)}, s[0:1], {B_WQ}')
        a(f's_load_dwordx2 {sr(g.SW2,2)}, s[0:1], {B_WK}')
        a(f's_add_u32 {sr(t0+2)}, {sr(t0+2)}, {sr(sTile)}')
        a(f's_lshl_b32 {sr(t0)}, {sr(t0+2)}, 8')
        a(f's_mov_b32 {sr(t0+1)}, {sr(t0)}')
        a(f's_bitcmp1_b32 {sW}, 1')
        a(f's_mov_b32 {sr(g.sOB)}, {QX}')
        a(f's_cselect_b32 {sr(g.sOB)}, {KX-8192}, {sr(g.sOB)}')
        a(f's_cselect_b32 {sr(g.sScale)}, {SCL:#x}, 1.0')
        a(f's_branch {Lj}')
        a(f'{Lv}:')
        a(f's_load_dwordx2 {sr(g.SW,2)}, s[0:1], {B_WV}')
        a(f's_load_dwordx2 {sr(g.SW2,2)}, s[0:1], {B_WV}')
        a(f's_lshl_b32 {sr(t0)}, {sr(sTile)}, 1')
        a(f's_add_u32 {sr(t0+2)}, {sr(t0+2)}, {sr(t0)}')
        a(f's_sub_u32 {sr(t0+2)}, {sr(t0+2)}, 16')
        a(f's_lshl_b32 {sr(t0)}, {sr(t0+2)}, 8')
        a(f's_add_u32 {sr(t0+1)}, {sr(t0)}, 256')
        a(f's_mov_b32 {sr(g.sOB)}, {VX}')
        a(f's_mov_b32 {sr(g.sScale)}, 1.0')
        a(f'{Lj}:')
        ssum(a, sr(sPx), sr(t0+3), [(sr(sRow), 7), (sW, 5), (sr(t0+2), 0)])
        a(f's_lshl_b32 {sr(t0+3)}, {sr(sRow)}, 7')
        a(f's_lshr_b32 {sr(sSig)}, {sr(t0+2)}, 2')
        a(f's_lshl_b32 {sr(sSig)}, {sr(sSig)}, 11')
        a(f's_add_u32 {sr(sSig)}, {sr(sSig)}, {sr(t0+3)}')
        a(f's_add_u32 {sr(sSig)}, {sr(sSig)}, {RDY}')
        ssum(a, sr(t0+2), sr(t0+3), [(sr(t0+2), 13), (sr(sRow), 20)])
        a(f's_add_u32 {sr(g.sOB)}, {sr(g.sOB)}, {sr(t0+2)}')
        a(f's_mov_b32 {sr(g.sOM)}, 1')
        a(f's_mov_b32 {sr(g.sLdw)}, 8192')
        a(f's_mov_b32 {sr(t0+3)}, {1024*8192}')
        return Lnopx
    def run(g, Lnopx=None, scale=True, xws=None):
        TM = g.c.TM
        a(f's_mov_b32 {sr(g.sLdo)}, 2048')
        g.setup_g()
        a(f's_lshl_b32 {sr(t0+2)}, {sr(sRow)}, 18')
        a('s_waitcnt lgkmcnt(0)')
        if xws is not None: a(f's_add_u32 {sr(t0+2)}, {sr(t0+2)}, {xws}')
        srd(a, g.SX, sr(g.SX), sr(g.SX+1), TM*2048, off=sr(t0+2))
        a(f's_sub_u32 {sr(t0+2)}, {sr(t0+3)}, {sr(t0)}')
        srd(a, g.SW, sr(g.SW), sr(g.SW+1), sr(t0+2), off=sr(t0))
        if g.c.dual:
            a(f's_sub_u32 {sr(t0+2)}, {sr(t0+3)}, {sr(t0+1)}')
            srd(a, g.SW2, sr(g.SW2), sr(g.SW2+1), sr(t0+2), off=sr(t0+1))
        a(f's_bfe_u32 {sr(t0)}, {sr(sRow)}, {(rot<<16) + (0 if TM == 128 else 1)}')
        g.order(sr(t0))
        mark(9)
        if g.bar1 == 2: g.issue2(**g.mp)
        else: g.issue0()
        g.setup_l()
        if g.bar1 == 2: g.main2(**g.mp)
        else: g.main(**g.mp)
        if not (g is gS and lp): pop(g is not gB)
        if g is gS and mpf:
            Lm = a.lab('w_mp')
            a(f's_cmp_lg_u32 {sr(sRow)}, 1')
            a(f's_cbranch_scc1 {Lm}')
            a(f's_cmp_ge_u32 {sW}, {mpf}')
            a(f's_cbranch_scc1 {Lm}')
            a(f's_cmp_ge_u32 {sr(sTile)}, 8')
            a(f's_cbranch_scc1 {Lm}')
            a(f's_load_dwordx2 {sr(g.SX,2)}, s[0:1], {A_X}')
            a(f'v_and_b32 v253, 63, v0')
            a(f'v_lshlrev_b32 v253, 7, v253')
            ssum(a, sr(t0), sr(t0+1), [(sr(sX), 13), (sr(sTile), 15), (sW, 18)], xpf << 18)
            a('s_waitcnt lgkmcnt(0)')
            srd(a, g.SX, sr(g.SX), sr(g.SX+1), 2048*2048)
            a(f'buffer_load_dword v253, v253, {sr(g.SX,4)}, {sr(t0)} offen{mpm}')
            a(f'{Lm}:')
        mark(10)
        if g.c.dual:
            a(f's_cmp_lt_u32 {sr(sTile)}, 8')
            a(f's_cselect_b64 vcc, -1, 0')
        g.epilogue(scale=scale, xch=g.c.dual)
        if g is gS and lp: pop()
        mark(11)
    Lpx = a.lab('w_px')
    kqv(gS, 1)
    run(gS)
    a(f's_cmp_ge_u32 {sr(sTile)}, 8')
    a(f's_cbranch_scc1 {Lnext}')
    a('s_waitcnt lgkmcnt(0)')
    a('s_barrier')
    a(f's_cmp_ge_u32 {sW}, 4')
    a(f's_cbranch_scc1 {Lnext}')
    a(f's_branch {Lpx}')
    a(f'{Lbig}:')
    a(f's_mov_b32 {sr(t0)}, {J}')
    a(f's_mul_i32 {sr(sRow)}, {sr(t0)}, 43691')
    a(f's_lshr_b32 {sr(sRow)}, {sr(sRow)}, 19')
    a(f's_mul_i32 {sr(t0+1)}, {sr(sRow)}, 12')
    a(f's_sub_u32 {sr(sTile)}, {sr(t0)}, {sr(t0+1)}')
    a(f's_lshl_b32 {sr(sRow)}, {sr(sRow)}, 1')
    a(f'{Lbig}2:')
    kqv(gB, 3)
    a(f'{Lbig}3:')
    run(gB)
    a(f's_cmp_ge_u32 {sr(sTile)}, 8')
    a(f's_cbranch_scc1 {Lnext}')
    a('s_waitcnt lgkmcnt(0)')
    a('s_barrier')
    a(f'{Lpx}:')
    x = px_setup(a, Regs(1, 116))
    px_job(a, x, sr(sPx), c.SWS, pT, stm, lds=sW)
    a(f's_branch {Lnext}')
    a(f'{Lqa}:')
    g = gB
    a(f's_load_dwordx2 {sr(g.SX,2)}, s[0:1], {A_X}')
    a(f's_load_dwordx2 {sr(g.SW,2)}, s[0:1], {A_WQ}')
    a(f's_load_dwordx2 {sr(g.SW2,2)}, s[0:1], {A_WQ}')
    a(f's_mov_b32 {sr(t0)}, {J}')
    a(f's_lshr_b32 {sr(t0+1)}, {sr(t0)}, 2')
    ssum(a, sr(sRow), sr(t0+2), [(sr(sX), 2), (sr(t0+1), 1)])
    ssum(a, sr(sSig), None, [(sr(sRow), 6)], QAC)
    a(f's_mov_b32 {sr(sInc)}, 1')
    a(f's_and_b32 {sr(t0)}, {sr(t0)}, 3')
    a(f's_lshl_b32 {sr(t0)}, {sr(t0)}, 9')
    a(f's_add_u32 {sr(t0+1)}, {sr(t0)}, 256')
    ssum(a, sr(g.sOB), None, [(sr(sRow), 18)], QA)
    a(f's_add_u32 {sr(g.sOB)}, {sr(g.sOB)}, {sr(t0)}')
    a(f's_mov_b32 {sr(g.sScale)}, {f32bits(32**-0.5*LOG2E):#x}')
    a(f's_mov_b32 {sr(g.sOM)}, 0')
    a(f's_mov_b32 {sr(g.sLdw)}, 2048')
    a(f's_mov_b32 {sr(t0+3)}, {1024*2048}')
    a(f's_mov_b32 {sr(sTile)}, 8')
    a(f's_branch {Lbig}3')
    S0 = (wb + 3) // 4 * 4; sJ2 = S0 + 16; sCn = S0 + 17; aT = S0 + 18
    a(f'{Lkva}:')
    a(f's_mov_b32 {sr(sSig)}, {KVC}')
    a(f's_mov_b32 {sr(sInc)}, 1')
    ssum(a, sr(sJ2), None, [(sr(sX), 1)])
    a(f's_add_u32 {sr(sJ2)}, {sr(sJ2)}, {J}')
    kva_job(a, sr(sJ2), sW, S0, t0, stm, pop)
    a(f's_branch {Lnext}')
    a(f'{Lgate}:')
    a(f's_mov_b32 {sr(sSig)}, {KVC}')
    a(f's_mov_b32 {sr(sInc)}, 1')
    ssum(a, sr(sJ2), None, [(sr(sX), 1)])
    a(f's_add_u32 {sr(sJ2)}, {sr(sJ2)}, {J}')
    a(f's_lshl_b32 {sr(sJ2)}, {sr(sJ2)}, 2')
    a(f'{Lgate}1:')
    gate_job(a, sr(sJ2), sW, S0, t0, stm)
    a(f's_add_u32 {sr(sJ2)}, {sr(sJ2)}, 1')
    a(f's_and_b32 {sr(t0)}, {sr(sJ2)}, 3')
    a(f's_cbranch_scc1 {Lgate}1')
    pop()
    a(f's_branch {Lnext}')
    a(f'{Latt}:')
    ssum(a, sr(sJ2), None, [(sr(sX), 5)])
    a(f's_add_u32 {sr(sJ2)}, {sr(sJ2)}, {J}')
    a(f's_lshr_b32 {sr(t0)}, {sr(sJ2)}, 3')
    ssum(a, sr(sSig), None, [(sr(t0), 7)], ATC)
    a(f's_mov_b32 {sr(sInc)}, 1')
    a(f's_lshr_b32 {sr(t0)}, {sr(sJ2)}, 4')
    ssum(a, sr(t0), None, [(sr(t0), 7)], QAC)
    a(f's_mov_b32 {sr(t0+1)}, {KVC}')
    dep([sr(t0), sr(t0+1)], [4, 16])
    if ath: a(f's_mov_b32 {sr(sAmt)}, 2')
    attnA_job(a, sr(sJ2), sW, S0, aT, kWs, storemod=stm, late=pop)
    a(f's_branch {Lnext}')
    if ath:
        a(f'{Latt}h:')
        ssum(a, sr(sJ2), None, [(sr(sX), 6)])
        a(f's_add_u32 {sr(sJ2)}, {sr(sJ2)}, {J}')
        a(f's_lshr_b32 {sr(t0)}, {sr(sJ2)}, 4')
        ssum(a, sr(sSig), None, [(sr(t0), 7)], ATC)
        a(f's_mov_b32 {sr(sInc)}, 1')
        a(f's_lshr_b32 {sr(t0)}, {sr(sJ2)}, 5')
        ssum(a, sr(t0), None, [(sr(t0), 7)], QAC)
        a(f's_mov_b32 {sr(t0+1)}, {KVC}')
        dep([sr(t0), sr(t0+1)], [4, 16])
        attnA_job(a, sr(sJ2), sW, S0, aT, kWs, storemod=stm, late=pop, half=True)
        a(f's_branch {Lnext}')
    a(f'{Lfn}:')
    g = gF
    a(f's_load_dwordx2 {sr(g.SW,2)}, s[0:1], {A_WO}')
    a(f's_mov_b32 {sr(t0)}, {J}')
    a(f's_lshr_b32 {sr(t0+1)}, {sr(t0)}, 3')
    ssum(a, sr(sRow), sr(t0+2), [(sr(sX), 2), (sr(t0+1), 0)])
    ssum(a, sr(sSig), None, [(sr(sRow), 7)], FNC)
    a(f's_mov_b32 {sr(sInc)}, 1')
    if tail:
        a(f's_cmp_eq_u32 {sr(sRow)}, 15')
        a(f's_cselect_b32 {sr(sSig)}, {FNC2}, {sr(sSig)}')
        a(f's_cselect_b32 {sr(sInc)}, 0xffff, {sr(sInc)}')
    ssum(a, sr(t0+1), None, [(sr(sRow), 7)], ATC)
    dep([sr(t0+1)], [16 if ath else 8])
    a(f's_and_b32 {sr(t0)}, {sr(t0)}, 7')
    a(f's_lshl_b32 {sr(t0)}, {sr(t0)}, 8')
    ssum(a, sr(g.sOB), None, [(sr(sRow), 18)], OPA)
    a(f's_add_u32 {sr(g.sOB)}, {sr(g.sOB)}, {sr(t0)}')
    a(f's_mov_b32 {sr(g.sOM)}, 0')
    a(f's_mov_b32 {sr(g.sLdw)}, 2048')
    a(f's_mov_b32 {sr(t0+3)}, {1024*2048}')
    a(f's_mov_b32 {sr(g.sScale)}, 1.0')
    a(f's_mov_b32 {sr(sXo)}, {OA}')
    a(f's_mov_b64 {sr(g.SX,2)}, {sr(kWs,2)}')
    a(f's_branch {Lt128}r')
    a(f'{Lt128}:')
    a(f's_load_dwordx2 {sr(g.SX,2)}, s[0:1], {A_X}')
    a(f's_bfe_u32 {sr(t0+1)}, {J}, {(2<<16)+3}')
    for k in range(3):
        if k < 2:
            a(f's_cmp_lg_u32 {sr(t0+1)}, {k}')
            a(f's_cbranch_scc1 {Lt128}m{k}')
        a(f's_load_dwordx2 {sr(g.SW,2)}, s[0:1], {B_WQ+8*k}')
        if k < 2: a(f's_branch {Lt128}m2')
        a(f'{Lt128}m{k}:')
    a(f's_cmp_eq_u32 {sr(t0+1)}, 1')
    a(f's_cselect_b32 {sr(g.sScale)}, {SCL:#x}, 1.0')
    a(f's_lshr_b32 {sr(sRow)}, {J}, 5')
    a(f's_and_b32 {sr(t0)}, {J}, 7')
    ssum(a, sr(t0+2), None, [(sr(sX), 3)])
    a(f's_add_u32 {sr(t0+2)}, {sr(t0+2)}, {sr(t0)}')
    ssum(a, sr(g.sOB), sr(t0), [(sr(t0+1), 24), (sr(t0+2), 13), (sr(sRow), 20)])
    a(f's_lshr_b32 {sr(t0+1)}, {sr(t0+2)}, 2')
    ssum(a, sr(sSig), sr(t0), [(sr(t0+1), 11), (sr(sRow), 7)], RDY)
    if tail:
        assert sorted(i0 + i for n, k, i0 in JOBS if k == 'T' for i in range(n) if (i0 + i) >> 5 == 3) == list(range(112, 120))
        a(f's_cmp_lg_u32 {sr(sRow)}, 3')
        a(f's_cbranch_scc1 {Lt128}a')
        a(f's_and_b32 {sr(t0)}, {sr(t0+2)}, 3')
        ssum(a, sr(t0), sr(t0+1), [(sr(t0), 16), (sr(t0+1), 22)], OP + (60 << 16))
        a(f'v_lshlrev_b32 v1, 4, v0')
        for i in range(4): a(f'v_mov_b32 v{4+i}, -1')
        for k in range(8):
            a(f'buffer_store_dwordx4 v[4:7], v1, {WS}, {sr(t0)} offen sc1')
            if k < 7: a(f's_add_u32 {sr(t0)}, {sr(t0)}, 8192')
        a(f'{Lt128}a:')
    a(f's_lshl_b32 {sr(t0)}, {sr(t0+2)}, 8')
    a(f's_mov_b32 {sr(sInc)}, 1')
    a(f's_mov_b32 {sr(sXo)}, 0')
    a(f's_mov_b32 {sr(g.sOM)}, 1')
    a(f's_mov_b32 {sr(g.sLdw)}, 8192')
    a(f's_mov_b32 {sr(t0+3)}, {1024*8192}')
    a(f'{Lt128}r:')
    run(g, xws=sr(sXo))
    a(f's_branch {Lnext}')
    a(f'{Lpx0}:')
    a(f's_lshr_b32 {sr(t0)}, {J}, 1')
    ssum(a, sr(t0+1), None, [(sr(sX), 1)])
    a(f's_add_u32 {sr(t0)}, {sr(t0)}, {sr(t0+1)}')
    a(f's_and_b32 {sr(t0+1)}, {J}, 1')
    a(f's_lshr_b32 {sr(t0+2)}, {sW}, 2')
    a(f's_and_b32 {sr(t0+3)}, {sW}, 3')
    ssum(a, sr(sPx), sr(pT), [(sr(t0+1), 6), (sr(t0+2), 5), (sr(t0), 2), (sr(t0+3), 0)])
    ssum(a, sr(t0), None, [(sr(t0), 11)], RDY)
    x = px_setup(a, Regs(8, 128))
    dep([sr(t0)], [12], sl=1)
    px_job(a, x, sr(sPx), c.SWS, pT, stm, ldm=' sc1', first=True)
    pop()
    a(f's_branch {Lnext}')
    a(f'{Lfirst}0:')
    if sd:
        a(f's_cmp_lt_u32 {J}, 24')
        a(f's_cbranch_scc1 {Lfirst}3')
        a(f's_sleep {sd}')
        a(f'{Lfirst}3:')
    if ww:
        a(f's_cmp_lg_u32 {sW}, 7')
        a(f's_cbranch_scc1 {Lfirst}4')
        a(f'v_and_b32 v1, 63, v0')
        a(f'v_lshlrev_b32 v1, 24, v1')
        a(f's_mov_b32 {sr(t0)}, {FL}')
        a(f'v_writelane_b32 v1, {sr(t0)}, 4')
        a(f's_mov_b64 exec, {0x117}')
        if ww & 2: a(f'buffer_load_dword v252, v1, {WS}, 0 offen sc1')
        a(f's_mov_b64 exec, 1')
        if ww & 1: a(f'buffer_load_dword v253, off, {sr(SD,4)}, 0 sc1')
        a(f'v_mov_b32 v2, 0')
        if ww & 4: a(f'buffer_atomic_add v2, off, {sr(SD,4)}, 0 offset:16 sc1')
        ssum(a, sr(t0), sr(t0+1), [(sr(sX), 12), (J, 7)], PX0)
        if ww & 8: a(f'buffer_store_dword v2, off, {WS}, {sr(t0)} sc1')
        a(f's_mov_b64 exec, -1')
        a(f'{Lfirst}4:')
    if xpf:
        a(f's_cmp_ge_u32 {sW}, {xpf+xs}')
        a(f's_cbranch_scc1 {Lfirst}')
        a(f's_load_dwordx2 {sr(S0,2)}, s[0:1], {A_X}')
        a(f'v_and_b32 v1, 63, v0')
        a(f'v_lshlrev_b32 v1, 7, v1')
        ssum(a, sr(t0), sr(t0+1), [(sW, 18), (J, 13)])
        if xs:
            ssum(a, sr(t0+1), sr(t0+2), [(sW, 20), (J, 15), (sr(sX), 13)], (xpf << 18) - (xpf << 20))
            a(f's_cmp_ge_u32 {sW}, {xpf}')
            a(f's_cselect_b32 {sr(t0)}, {sr(t0+1)}, {sr(t0)}')
        a('s_waitcnt lgkmcnt(0)')
        srd(a, S0, sr(S0), sr(S0+1), 2048*2048)
        a(f'buffer_load_dword v253, v1, {sr(S0,4)}, {sr(t0)} offen')
    a(f's_branch {Lfirst}')
    a(f'{Lsw}:')
    a(f's_cmp_eq_u32 {sr(sQo)}, 144')
    a(f's_cbranch_scc1 {Lend}')
    a(f's_mov_b32 {sr(sQo)}, 144')
    pop()
    a(f's_branch {Lnext}')
    a(f'{Lred}:')
    if gq:
        a(f's_mov_b32 {sr(sX)}, 0')
        a(f's_mov_b32 {sr(sAmt)}, 1')
        a(f's_mov_b32 {sr(t0)}, {J}')
        st = 0
        for n, k, i0 in GJ:
            u = 16 if k == 'ATH' else 8
            a(f's_add_u32 {J}, {sr(t0)}, {(i0 - st + gro * u) % (16 * u)}')
            a(f's_and_b32 {J}, {J}, {16 * u - 1}')
            st += n
            a(f's_cmp_lt_u32 {sr(t0)}, {st}')
            a(f's_cbranch_scc1 {dict(ATT=Latt, ATH=Latt + "h", FIN=Lfn)[k]}')
        a(f's_sub_u32 {J}, {sr(t0)}, {NG}')
    SO = S0
    a(f's_load_dwordx2 {sr(SO,2)}, s[0:1], {D_OUT}')
    if rord:
        tb = sum(b << (4 * i) for i, b in enumerate(rord)); assert sorted(rord) == list(range(14))
        a(f's_mov_b32 {sr(t0)}, {tb & 0xffffffff:#x}')
        a(f's_mov_b32 {sr(t0+1)}, {tb >> 32:#x}')
        a(f's_lshr_b32 {sr(t0+2)}, {J}, 3')
        a(f's_lshl_b32 {sr(t0+2)}, {sr(t0+2)}, 2')
        a(f's_lshr_b64 {sr(t0,2)}, {sr(t0,2)}, {sr(t0+2)}')
        a(f's_and_b32 {sr(t0)}, {sr(t0)}, 15')
        a(f's_and_b32 {sr(t0+1)}, {J}, 7')
        ssum(a, sr(sJ2), sr(t0+2), [(sr(t0), 6), (sr(t0+1), 3), (sW, 0)])
    else: ssum(a, sr(sJ2), sr(t0), [(J, 3), (sW, 0)])
    if tail:
        a(f's_cmp_lt_u32 {J}, 112')
        a(f's_cbranch_scc1 {Lred}1')
        ssum(a, sr(sJ2), sr(t0), [(J, 1), (sW, 0)], 896 - 224)
        a(f's_cmp_ge_u32 {sW}, 2')
        a(f's_cbranch_scc1 {Lnext}')
        a(f'{Lred}1:')
    x = red_setup(a, Regs(1, 255))
    a(f's_lshr_b32 {sr(t0)}, {sr(sJ2)}, 6')
    ssum(a, sr(t0), None, [(sr(t0), 7)], FNC)
    a(f's_and_b32 {sr(t0+1)}, {sr(sJ2)}, 15')
    ssum(a, sr(t0+1), None, [(sr(t0+1), 10)], PROG)
    a(f's_lshr_b32 {sr(t0+2)}, {sr(sJ2)}, 4')
    a(f'v_lshlrev_b32 v{x.T}, 3, v{x.L16}')
    a(f'v_and_b32 v{x.T}, 0x380, v{x.T}')
    a(f's_mov_b32 {sr(sSp)}, {SPIN}')
    a('s_waitcnt lgkmcnt(0)')
    srd(a, SO, sr(SO), sr(SO+1), 2048*2048)
    Lx = a.lab('rd_p'); Ly = a.lab('rd_g')
    a(f'{Lx}:')
    a(f'buffer_load_dword v{x.t}, v{x.T}, {WS}, {sr(t0+1)} offen sc1')
    if not rsp: a(f'buffer_load_dword v{x.t+1}, off, {WS}, {sr(t0)} sc1')
    a(f's_sub_u32 {sr(sSp)}, {sr(sSp)}, 1')
    a(f's_cbranch_scc1 {Lend}')
    a('s_waitcnt vmcnt(0)')
    if rsp: a(f'v_cmp_ge_u32 vcc, {sr(t0+2)}, v{x.t}')
    else:
        a(f'v_cmp_ge_u32 {sr(jt,2)}, {sr(t0+2)}, v{x.t}')
        a(f'v_cmp_gt_u32 vcc, 8, v{x.t+1}')
        a(f's_or_b64 vcc, vcc, {sr(jt,2)}')
    a(f's_cbranch_vccz {Ly}')
    a(f's_sleep {rsl}')
    a(f's_branch {Lx}')
    a(f'{Ly}:')
    def rmid():
        a(f'{Lx}m:')
        a(f'v_cmp_gt_u32 vcc, 8, v{x.t+2}')
        a(f's_cbranch_vccz {Ly}m')
        a(f's_sleep {rsl}')
        a(f'buffer_load_dword v{x.t+2}, off, {WS}, {sr(t0)} sc1')
        a(f's_sub_u32 {sr(sSp)}, {sr(sSp)}, 1')
        a(f's_cbranch_scc1 {Lend}')
        a('s_waitcnt vmcnt(0)')
        a(f's_branch {Lx}m')
        a(f'{Ly}m:')
        pop()
    if rsp: a(f'buffer_load_dword v{x.t+2}, off, {WS}, {sr(t0)} sc1')
    else: pop()
    red_job(a, x, sr(sJ2), c.SWS, SO, aT, ldm=rldm, stm=rom, mid=rmid if rsp else None, lim=rlim)
    a(f's_branch {Lnext}')
    a(f'{name}_eof:')
    a.pad()
    return a.text() + kd(name, 256, 256) + (f'; JOBS {JOBS}\n; NG {NG}\n' if diag else ''), 163840

if __name__ == '__main__':
    import sys
    from build import HDR
    NAME = 'gated_mix__grouped_kv_mqa__memory_aug_recurrent_mem_tr__prompt_kernel'
    kw = dict(diag=True); kw.update(eval('dict(' + (sys.argv[2] if len(sys.argv) > 2 else '') + ')'))
    lst = kw.pop('lst', True)
    t, l = gen_k5('fused_kernel' if lst else NAME, **kw)
    if lst: o = HDR + f'; @launch kernel=fused_kernel grid=(256,1,1) block=(512,1,1) lds={l}\n'
    else: o = HDR + f'; @launch grid=(256,1,1) block=(512,1,1) lds={l}\n'
    o += '.amdgcn_target "amdgcn-amd-amdhsa--gfx950"\n.text\n' + t
    open(sys.argv[1], 'w').write(o)
```
